```python
import torch

def _softmax(x, axis=-1):
    return torch.softmax(x, dim=axis)
def _gelu(x):
    return torch.nn.functional.gelu(x, approximate="tanh")
def _silu(x):
    return torch.nn.functional.silu(x)
def _sigmoid(x):
    return torch.sigmoid(x)
def _layernorm(x, axis=-1, eps=1e-5):
    m = x.mean(dim=axis, keepdim=True)
    v = x.var(dim=axis, keepdim=True, unbiased=False)
    return (x - m) / torch.sqrt(v + eps)
def _scatter_add(tgt, idx, src, axis=0):
    return tgt.clone().index_add_(axis, idx, src)
def _segment_sum(src, seg, n):
    out = torch.zeros((n,) + src.shape[1:], dtype=src.dtype)
    return out.index_add_(0, seg, src)
def _pad(x, pw):
    flat = tuple(v for pair in reversed(pw) for v in pair)
    return torch.nn.functional.pad(x, flat)

kernel_name = 'parallel_sum__sliding_local_dilated__glu_gated_swiglu__prompt'

def setup_inputs():

    _w = (lambda a: (lambda t: t.to(torch.bfloat16) if t.is_floating_point() else t)(torch.as_tensor(a)))
    def _A_setup():
        B, S, D = 1, 2048, 640
        return {
            "x": _w((lambda *s: torch.randn(*s, dtype=torch.bfloat16) * 0.05)(B, S, D)),
            "wqkv": _w((lambda *s: torch.randn(*s, dtype=torch.bfloat16) * 0.05)(D, 3 * D)),
            "wo": _w((lambda *s: torch.randn(*s, dtype=torch.bfloat16) * 0.05)(D, D)),
        }
    _A_in = _A_setup()

    def _B_setup():
        B, S, D, F = 1, 2048, 640, 1728
        return {
            "x": _w((lambda *s: torch.randn(*s, dtype=torch.bfloat16) * 0.05)(B, S, D)),
            "w1": _w((lambda *s: torch.randn(*s, dtype=torch.bfloat16) * 0.8)(D, F) * (2.0 / D) ** 0.5),
            "w3": _w((lambda *s: torch.randn(*s, dtype=torch.bfloat16) * 0.8)(D, F) * (2.0 / D) ** 0.5),
            "w2": _w((lambda *s: torch.randn(*s, dtype=torch.bfloat16) * 0.8)(F, D) * (2.0 / F) ** 0.5),
        }
    _B_in = _B_setup()

    return {
        "A_x": _A_in["x"],
        "A_wqkv": _A_in["wqkv"],
        "A_wo": _A_in["wo"],
        "B_x": _B_in["x"],
        "B_w1": _B_in["w1"],
        "B_w3": _B_in["w3"],
        "B_w2": _B_in["w2"],
    }

def reference(A_x, A_wqkv, A_wo, B_x, B_w1, B_w3, B_w2):
    def _A_ref(x, wqkv, wo):
        B, S, D = x.shape
        H = 32; Dh = D // H
        W, dil = 8, 2
        qkv = (lambda x, *d: x.permute(*d))((x @ wqkv).reshape(B, S, 3, H, Dh), 2, 0, 3, 1, 4)
        q, k, v = qkv[0], qkv[1], qkv[2]
        scale = Dh ** -0.5
        pos = torch.arange(S)
        off = torch.arange(W) * dil
        idx = pos[:, None] - off[None, :]
        mask = idx >= 0
        idx_c = torch.where(mask, idx, 0).reshape(-1)
        kg = k[:, :, idx_c, :].reshape(B, H, S, W, Dh)
        vg = v[:, :, idx_c, :].reshape(B, H, S, W, Dh)
        logits = torch.einsum("bhsd,bhswd->bhsw", q, kg) * scale
        logits = torch.where(mask[None, None, :, :], logits, -1e9)
        attn = _softmax(logits, axis=-1)
        o = torch.einsum("bhsw,bhswd->bhsd", attn, vg)
        return (lambda x, *d: x.permute(*d))(o, 0, 2, 1, 3).reshape(B, S, D) @ wo

    def _B_ref(x, w1, w3, w2):
        gate = torch.einsum("bsd,df->bsf", x, w1)
        up = torch.einsum("bsd,df->bsf", x, w3)
        h = _silu(gate) * up
        out = torch.einsum("bsf,fd->bsd", h, w2)
        return out

    x = A_x
    xn = _layernorm(x, axis=-1)
    return x + _A_ref(xn, A_wqkv, A_wo) + _B_ref(xn, B_w1, B_w3, B_w2)
```

```python
ACT_OFF = 0
ACT_SIZE = 32 * 74 * 4096
W2F_OFF = 0xA00000
W2F_SIZE = 8 * 74 * 5120
TOK_OFF = 0xE00000
COL_OFF = 0xE10000
WS_USED = COL_OFF + 5376 * 16
XBYTES = 2048 * 1280
STAMP1 = 0x1000000
STAMP2 = 0x1010000
```

```python
import re

def R(x, n=1):
    p, i = ('a', x - 256) if x >= 256 else ('v', x)
    return f"{p}{i}" if n == 1 else f"{p}[{i}:{i+n-1}]"

def rng(x, n): return list(range(x, x + n))

class Op:
    __slots__ = ("text", "kind", "r", "w", "tag", "c", "sr", "sw")
    def __init__(self, text, kind, r=(), w=(), tag=None, c=(), sr=(), sw=()):
        self.text, self.kind, self.r, self.w, self.tag, self.c = text, kind, tuple(r), tuple(w), tag, tuple(c)
        self.sr, self.sw = tuple(sr), tuple(sw)

VALUISH = ("valu", "trans", "dot", "dpp", "perml", "rfl")
MFMA_D2X = {"mfma32": 12, "mfma16": 8, "mfma32c": 12}
MFMA_D2C = {"mfma32": 10, "mfma16": 6, "mfma32c": 10}
MFMA_CWAR = {"mfma32": 7, "mfma16": 3, "mfma32c": 7}

class Asm:
    def __init__(self):
        self.out = []
        self.reset()
    def reset(self):
        self.pos = 0
        self.lg = []
        self.vm = []
        self.lastw = {}
        self.lastc = {}
        self.lastst = {}
        self.slastw = {}
    def raw(self, text, states=1):
        self.out.append("    " + text); self.pos += states
    def label(self, name): self.out.append(name + ":")
    def comment(self, t): self.out.append("    ; " + t)
    def nop(self, n):
        while n > 0:
            k = min(n, 16); self.raw(f"s_nop {k-1}", k); n -= k
    def wait(self, vm=None, lg=None):
        parts = []
        if vm is not None and vm < len(self.vm):
            assert vm <= 63
            parts.append(f"vmcnt({vm})"); self.vm = self.vm[len(self.vm) - vm:] if vm else []
        if lg is not None and lg < len(self.lg):
            lgc = min(lg, 15)
            parts.append(f"lgkmcnt({lgc})"); self.lg = self.lg[len(self.lg) - lgc:] if lgc else []
        if parts: self.raw("s_waitcnt " + " ".join(parts))
    def wait_tag(self, tag, lg=None):
        idx = [i for i, e in enumerate(self.vm) if e[1] == tag]
        vm = None
        if idx: vm = len(self.vm) - 1 - max(idx)
        self.wait(vm=vm, lg=lg)
    def barrier(self): self.raw("s_barrier")
    def emit(self, op):
        if isinstance(op, (list, tuple)):
            for o in op: self.emit(o)
            return
        if callable(op): op(self); return
        regs = set(op.r) | set(op.w) | set(op.c)
        vm = lg = None
        for i, e in enumerate(self.vm):
            if e[0] & regs: vm = len(self.vm) - 1 - i
        for i, e in enumerate(self.lg):
            if e & regs: lg = len(self.lg) - 1 - i
        if op.kind in ("vld", "vst", "dma") and len(self.vm) >= 63: vm = 62 if vm is None else min(vm, 62)
        self.wait(vm=vm, lg=lg)
        need = 0
        k = op.kind
        def req(p, d):
            nonlocal need
            need = max(need, d - (self.pos - p - 1))
        for x in set(op.r) | set(op.c):
            if x in self.lastw:
                p, wk, dt = self.lastw[x]
                if wk in MFMA_D2X:
                    if k in MFMA_D2X:
                        if x in op.c and x not in op.r:
                            if not (dt == op.c and wk == k): req(p, MFMA_D2C[wk])
                        else: req(p, MFMA_D2X[wk])
                    else: req(p, MFMA_D2X[wk])
                elif wk in VALUISH:
                    if k in MFMA_D2X: req(p, 3 if wk == "dot" else 2)
                    if k in ("dpp", "perml"): req(p, 2)
                    if k == "rfl": req(p, 1)
                    if wk == "trans" and k in VALUISH and k != "trans": req(p, 1)
                    if wk == "trans" and k not in VALUISH: req(p, 1)
                    if wk == "dot":
                        if not (k == "dot" and x in op.c and x not in op.r): req(p, 3)
        for x in op.w:
            if x in self.lastw:
                p, wk, dt = self.lastw[x]
                if wk in MFMA_D2X and k not in MFMA_D2X: req(p, MFMA_D2X[wk])
                if wk in MFMA_D2X and k in MFMA_D2X and not (dt == tuple(op.w) and op.c == dt): req(p, MFMA_D2X[wk])
                if wk == "dot" and k != "dot": req(p, 3)
            if x in self.lastc and k not in MFMA_D2X:
                p, ck = self.lastc[x]; req(p, MFMA_CWAR[ck])
            if x in self.lastst: req(self.lastst[x], 2)
        for s in op.sr:
            if s in self.slastw:
                p, wk = self.slastw[s]
                if wk in VALUISH:
                    if k in ("vld", "vst", "dma"): req(p, 5)
                    elif k in VALUISH or k in MFMA_D2X: req(p, 4 if s == "exec" else 2)
                    else: req(p, 2)
                elif wk == "salu" and s == "m0" and k == "dma": req(p, 1)
        if need > 0: self.nop(need)
        p = self.pos
        self.raw(op.text)
        for x in op.w: self.lastw[x] = (p, k, tuple(op.w))
        if k in MFMA_D2X:
            for x in op.c: self.lastc[x] = (p, k)
        if k == "vst" and len(op.r) >= 4:
            for x in op.r: self.lastst[x] = p
        for s in op.sw: self.slastw[s] = (p, k)
        if k == "dsr": self.lg.append(set(op.w))
        elif k == "dsw": self.lg.append(set())
        elif k == "vld": self.vm.append((set(op.w), op.tag))
        elif k in ("vst", "dma"): self.vm.append((set(), op.tag))
        if len(self.lg) > 15: pass
    def text(self): return "\n".join(self.out) + "\n"

def _src(x):
    if isinstance(x, int): return R(x), [x], []
    if isinstance(x, str):
        if re.fullmatch(r"s\d+|vcc|exec|m0|vcc_lo|vcc_hi", x): return x, [], [x]
        m = re.fullmatch(r"s\[(\d+):(\d+)\]", x)
        if m: return x, [], [f"s{i}" for i in range(int(m.group(1)), int(m.group(2)) + 1)]
        m = re.fullmatch(r"(-?)v(\d+)", x)
        if m: return x, [int(m.group(2))], []
        return x, [], []
    if isinstance(x, tuple): return R(x[0], x[1]), rng(x[0], x[1]), []
    raise ValueError(x)

def V(name, d, *srcs, kind="valu", mod="", rmw=False):
    dt, dr, _ = _src(d)
    ts, r, sr = [], [], []
    for s in srcs:
        t, a, b = _src(s); ts.append(t); r += a; sr += b
    if name.startswith(("v_exp", "v_rcp", "v_rsq", "v_log", "v_sqrt")): kind = "trans"
    c = ()
    if name.startswith("v_dot2c"): kind = "dot"; c = dr
    elif rmw or name.startswith("v_fmac"): r = r + dr
    if name.startswith("v_cndmask") and len(srcs) == 2: sr = sr + ["vcc"]; ts.append("vcc")
    return Op(f"{name} {dt}, " + ", ".join(ts) + (" " + mod if mod else ""), kind, r=r, w=dr, c=c, sr=sr)

def VCMP(name, sd, a, b):
    ta, ra, sa = _src(a); tb, rb, sb = _src(b); _, _, sw = _src(sd)
    return Op(f"{name} {sd}, {ta}, {tb}", "valu", r=ra + rb, sr=sa + sb, sw=sw)

def RFL(sd, v): return Op(f"v_readfirstlane_b32 {sd}, {R(v)}", "rfl", r=[v], sw=[sd])

def S(text, sw=(), sr=()):
    m = re.match(r"(\S+)\s+([^,]+)(?:,(.*))?", text)
    w = []; r = []
    if m and not m.group(1).startswith(("s_cmp", "s_cbranch", "s_branch", "s_setprio", "s_nop", "s_sleep")):
        w = _src(m.group(2).strip())[2]
        rest = m.group(3) or ""
    else:
        rest = (m.group(2) + "," + (m.group(3) or "")) if m else ""
    for t in rest.split(","):
        t = t.strip()
        if t: r += _src(t)[2]
    return Op(text, "salu", sw=list(w) + list(sw), sr=list(r) + list(sr))

def MFMA32(d, a, b, c=None):
    ct = R(d, 16) if c is None else c
    return Op(f"v_mfma_f32_32x32x16_bf16 {R(d,16)}, {R(a,4)}, {R(b,4)}, {ct}", "mfma32",
              r=rng(a, 4) + rng(b, 4), w=rng(d, 16), c=rng(d, 16) if c is None else ())
def MFMA16(d, a, b, c=None):
    ct = R(d, 4) if c is None else c
    return Op(f"v_mfma_f32_16x16x32_bf16 {R(d,4)}, {R(a,4)}, {R(b,4)}, {ct}", "mfma16",
              r=rng(a, 4) + rng(b, 4), w=rng(d, 4), c=rng(d, 4) if c is None else ())

def MFMA32C(d, a, b):
    return Op(f"v_mfma_f32_32x32x8_bf16 {R(d,16)}, {R(a,2)}, {R(b,2)}, {R(d,16)}", "mfma32c",
              r=rng(a, 2) + rng(b, 2), w=rng(d, 16), c=rng(d, 16))
def MFMA16C(d, a, b, c):
    return Op(f"v_mfma_f32_16x16x32_bf16 {R(d,4)}, {R(a,4)}, {R(b,4)}, {R(c,4)}", "mfma16",
              r=rng(a, 4) + rng(b, 4), w=rng(d, 4), c=rng(c, 4))
def DPP(name, d, a, b, ctrl):
    return Op(f"{name}_dpp {R(d)}, {R(a)}, {R(b)} {ctrl} row_mask:0xf bank_mask:0xf", "dpp", r=[a, b], w=[d])
def SWAP(n, a, b):
    return Op(f"v_permlane{n}_swap_b32 {R(a)}, {R(b)}", "perml", r=[a, b], w=[a, b])

def _off(o): return f" offset:{o}" if o else ""
def DSR(d, n, addr, off=0, tr=False):
    assert 0 <= off < 65536, off
    name = {1: "ds_read_b32", 2: "ds_read_b64", 3: "ds_read_b96", 4: "ds_read_b128"}[n]
    if tr: name = "ds_read_b64_tr_b16"
    return Op(f"{name} {R(d,n)}, {R(addr)}{_off(off)}", "dsr", r=[addr], w=rng(d, n))
def DSW(addr, s, n, off=0):
    assert 0 <= off < 65536, off
    name = {1: "ds_write_b32", 2: "ds_write_b64", 4: "ds_write_b128"}[n]
    return Op(f"{name} {R(addr)}, {R(s,n)}{_off(off)}", "dsw", r=[addr] + rng(s, n))
def BLD(d, n, voff, srd, soff="0", off=0, tag=None, mod=""):
    assert 0 <= off < 4096, off
    name = {1: "buffer_load_dword", 2: "buffer_load_dwordx2", 4: "buffer_load_dwordx4"}[n]
    return Op(f"{name} {R(d,n)}, {R(voff)}, s[{srd}:{srd+3}], {soff} offen{_off(off)}{mod}", "vld", r=[voff], w=rng(d, n), tag=tag,
              sr=[f"s{srd+i}" for i in range(4)] + _src(soff)[2])
def BST(s, n, voff, srd, soff="0", off=0, tag=None, mod=""):
    assert 0 <= off < 4096, off
    name = {1: "buffer_store_dword", 2: "buffer_store_dwordx2", 4: "buffer_store_dwordx4"}[n]
    o = Op(f"{name} {R(s,n)}, {R(voff)}, s[{srd}:{srd+3}], {soff} offen{_off(off)}{mod}", "vst", r=rng(s, n) + [voff], tag=tag,
           sr=[f"s{srd+i}" for i in range(4)] + _src(soff)[2])
    return o
def DMA(voff, srd, soff, tag=None, mod=""):
    return Op(f"buffer_load_dwordx4 {R(voff)}, s[{srd}:{srd+3}], {soff} offen{mod} lds", "dma", r=[voff], tag=tag,
              sr=[f"s{srd+i}" for i in range(4)] + _src(soff)[2] + ["m0"])

def srd(a, d, lo, hi, size):
    a.emit(S(f"s_mov_b32 s{d}, {lo}")); a.emit(S(f"s_mov_b32 s{d+1}, {hi}"))
    a.emit(S(f"s_mov_b32 s{d+2}, {size}")); a.emit(S(f"s_mov_b32 s{d+3}, 0x20000"))

def kdesc(name, vgpr, accum, sgpr=96):
    return f""".section .rodata,"a"
.p2align 6
.amdhsa_kernel {name}
  .amdhsa_next_free_vgpr {vgpr}
  .amdhsa_next_free_sgpr {sgpr}
  .amdhsa_accum_offset {accum}
  .amdhsa_group_segment_fixed_size 0
  .amdhsa_kernarg_size 80
  .amdhsa_user_sgpr_count 2
  .amdhsa_user_sgpr_kernarg_segment_ptr 1
  .amdhsa_system_sgpr_workgroup_id_x 1
.end_amdhsa_kernel
"""
```

```python
from gasm import *
from common import *


def wave_sum(E, s, t, lo=True):
    if lo:
        E(DPP("v_add_f32", s, s, s, "quad_perm:[1,0,3,2]"))
        E(DPP("v_add_f32", s, s, s, "quad_perm:[2,3,0,1]"))
        E(DPP("v_add_f32", s, s, s, "row_half_mirror"))
    E(DPP("v_add_f32", s, s, s, "row_ror:8"))
    E(V("v_mov_b32", t, s)); E(SWAP(16, s, t)); E(V("v_add_f32", s, s, t))
    E(V("v_mov_b32", t, s)); E(SWAP(32, s, t)); E(V("v_add_f32", s, s, t))

def gen_k0(name):
    a = Asm(); E = a.emit
    a.out.append(f".globl {name}\n.p2align 8\n.type {name},@function\n{name}:")
    E(S("s_cmp_ge_u32 s2, 256")); a.raw(f"s_cbranch_scc1 L_{name}_end")
    a.raw("s_load_dwordx4 s[4:7], s[0:1], 0")
    a.raw("s_load_dwordx2 s[8:9], s[0:1], 16")
    a.raw("s_load_dwordx4 s[12:15], s[0:1], 32")
    a.raw("s_load_dwordx2 s[16:17], s[0:1], 48")
    a.raw("s_load_dwordx2 s[18:19], s[0:1], 72")
    lane, wv = 1, 2
    E(V("v_lshrrev_b32", wv, "6", 0)); E(V("v_and_b32", lane, "63", 0))
    E(RFL("s3", wv))
    a.raw("s_waitcnt lgkmcnt(0)")
    srd(a, 20, "s18", "s19", WS_USED)
    srd(a, 24, "s4", "s5", XBYTES)
    E(S("s_lshl_b32 s10, s2, 3")); E(S("s_add_u32 s10, s10, s3"))
    E(S("s_mul_i32 s11, s10, 1280"))
    E(V("v_lshlrev_b32", 3, "4", lane)); E(V("v_lshlrev_b32", 4, "2", lane))
    E(BLD(8, 4, 3, 24, "s11")); E(BLD(12, 1, 4, 24, "s11", off=1024))
    for i in range(5):
        E(V("v_lshlrev_b32", 16 + 2 * i, "16", 8 + i)); E(V("v_and_b32", 17 + 2 * i, "0xffff0000", 8 + i))
    E(V("v_add_f32", 5, 16, 17))
    for i in range(2, 10): E(V("v_add_f32", 5, 5, 16 + i))
    wave_sum(E, 5, 6)
    E(V("v_mul_f32", 5, "0xbacccccd", 5))
    E(V("v_mov_b32", 7, "0"))
    for i in range(10):
        E(V("v_add_f32", 16 + i, 16 + i, 5)); E(V("v_fmac_f32", 7, 16 + i, 16 + i))
    wave_sum(E, 7, 6)
    E(V("v_mov_b32", 6, "0x3727c5ac"))
    E(V("v_fmac_f32", 6, "0x3acccccd", 7))
    E(V("v_mov_b32", 31, 6))
    E(V("v_rsq_f32", 30, 6))
    E(V("v_cvt_pk_bf16_f32", 28, 5, 5)); E(V("v_lshlrev_b32", 28, "16", 28)); E(V("v_sub_f32", 28, 5, 28))
    E(V("v_cvt_pk_bf16_f32", 28, 5, 28)); E(V("v_mov_b32", 29, "0"))
    E(S("s_lshl_b32 s11, s10, 4")); E(S(f"s_add_u32 s11, s11, {TOK_OFF}"))
    E(V("v_mov_b32", 3, "0"))
    E(S("s_mov_b64 exec, 1"))
    E(BST(28, 4, 3, 20, "s11"))
    E(S("s_mov_b64 exec, -1"))
    E(S("s_cmp_ge_u32 s2, 84")); a.raw(f"s_cbranch_scc1 L_{name}_repack")
    E(S("s_cmp_lt_u32 s2, 57"))
    E(S("s_cselect_b32 s28, s12, s14")); E(S("s_cselect_b32 s29, s13, s15")); E(S("s_cselect_b32 s33, 30, 57"))
    E(S("s_cmp_lt_u32 s2, 30"))
    E(S("s_cselect_b32 s28, s6, s28")); E(S("s_cselect_b32 s29, s7, s29")); E(S("s_cselect_b32 s33, 0, s33"))
    E(S("s_movk_i32 s34, 3456")); E(S("s_cselect_b32 s34, 3840, s34"))
    E(S("s_mul_i32 s30, s34, 640")); E(S("s_mov_b32 s31, 0x20000"))
    E(S("s_sub_u32 s33, s2, s33")); E(S("s_lshl_b32 s33, s33, 7"))
    E(V("v_lshrrev_b32", 3, "3", 0)); E(V("v_and_b32", 4, "7", 0))
    E(V("v_mul_lo_u32", 3, 3, "s34")); E(V("v_lshl_add_u32", 3, 4, "4", 3))
    E(S("s_lshl_b32 s35, s34, 6"))
    for it in range(10):
        E(BLD(40 + 4 * it, 4, 3, 28, "s33")); E(S("s_add_u32 s33, s33, s35"))
    for j in range(8): E(V("v_mov_b32", 16 + j, "0"))
    for it in range(10):
        for j in range(4):
            E(V("v_lshlrev_b32", 8, "16", 40 + 4 * it + j)); E(V("v_and_b32", 9, "0xffff0000", 40 + 4 * it + j))
            E(V("v_add_f32", 16 + 2 * j, 16 + 2 * j, 8)); E(V("v_add_f32", 17 + 2 * j, 17 + 2 * j, 9))
    for j in range(8): wave_sum(E, 16 + j, 8, lo=False)
    E(V("v_lshlrev_b32", 5, "8", wv)); E(V("v_lshl_add_u32", 5, 4, "5", 5))
    E(DSW(5, 16, 4)); E(DSW(5, 20, 4, off=16))
    a.wait(lg=0); a.barrier()
    E(S("s_cmp_lg_u32 s3, 0")); a.raw(f"s_cbranch_scc1 L_{name}_end")
    E(V("v_lshlrev_b32", 5, "2", lane))
    for w in range(8): E(DSR(16 + w, 1, 5, off=w * 256))
    for w in range(1, 8): E(V("v_add_f32", 16, 16, 16 + w))
    E(V("v_cvt_pk_bf16_f32", 28, 16, 16)); E(V("v_lshlrev_b32", 8, "16", 28)); E(V("v_sub_f32", 8, 16, 8))
    E(V("v_cvt_pk_bf16_f32", 30, 8, 8)); E(V("v_mov_b32", 29, "0")); E(V("v_mov_b32", 31, "0"))
    E(S("s_lshl_b32 s11, s2, 10")); E(S(f"s_add_u32 s11, s11, {COL_OFF}"))
    E(V("v_lshlrev_b32", 3, "4", lane))
    E(BST(28, 4, 3, 20, "s11"))
    a.raw("s_endpgm")
    a.label(f"L_{name}_repack"); a.reset()
    E(S("s_sub_u32 s10, s2, 84")); E(S("s_lshl_b32 s10, s10, 3")); E(S("s_add_u32 s10, s10, s3"))
    E(S("s_cmp_ge_u32 s10, 740")); a.raw(f"s_cbranch_scc1 L_{name}_end")
    E(S("s_mul_i32 s11, s10, 6554")); E(S("s_lshr_b32 s11, s11, 16"))
    E(S("s_mul_i32 s32, s11, 10")); E(S("s_sub_u32 s32, s10, s32"))
    E(S("s_cmp_lt_u32 s11, 20"))
    E(S("s_cselect_b32 s28, s8, s16")); E(S("s_cselect_b32 s29, s9, s17")); E(S(f"s_mov_b32 s30, {1728*1280}")); E(S(f"s_cselect_b32 s30, {640*1280}, s30"))
    E(S("s_cselect_b32 s33, 0, 20")); E(S("s_mov_b32 s31, 0x20000"))
    E(S("s_sub_u32 s33, s11, s33")); E(S(f"s_mul_i32 s33, s33, {32*1280}")); E(S("s_lshl_b32 s34, s32, 7")); E(S("s_add_u32 s33, s33, s34"))
    E(V("v_lshrrev_b32", 3, "3", lane)); E(V("v_and_b32", 4, "7", lane))
    E(V("v_mul_u32_u24", 3, "1280", 3)); E(V("v_lshl_add_u32", 3, 4, "4", 3))
    E(S("s_lshl_b32 s35, s3, 12"))
    for q in range(4):
        E(S(f"s_add_u32 m0, s35, {q*1024}"))
        E(DMA(3, 28, "s33", tag="w2"))
        E(S(f"s_add_u32 s33, s33, {8*1280}"))
    E(V("v_lshrrev_b32", 5, "4", lane)); E(V("v_lshlrev_b32", 5, "10", 5))
    E(V("v_bfe_u32", 6, lane, "2", "2")); E(V("v_lshl_add_u32", 5, 6, "7", 5))
    E(V("v_and_b32", 6, "3", lane)); E(V("v_lshl_add_u32", 5, 6, "3", 5))
    E(V("v_add_u32", 5, "s35", 5))
    E(V("v_lshlrev_b32", 3, "4", lane))
    a.wait(vm=0)
    for c16 in range(4):
        E(DSR(16 + 4 * c16, 2, 5, off=c16 * 32, tr=True)); E(DSR(18 + 4 * c16, 2, 5, off=c16 * 32 + 512, tr=True))
    for c16 in range(4):
        E(S(f"s_lshl_b32 s36, s32, 2")); E(S(f"s_add_u32 s36, s36, {c16}"))
        E(S("s_mul_i32 s37, s36, 52")); E(S("s_lshr_b32 s37, s37, 8"))
        E(S("s_mul_i32 s38, s37, 5")); E(S("s_sub_u32 s38, s36, s38"))
        E(S("s_mul_i32 s37, s37, 74")); E(S("s_add_u32 s37, s37, s11")); E(S("s_mul_i32 s37, s37, 5")); E(S("s_add_u32 s37, s37, s38"))
        E(S("s_lshl_b32 s37, s37, 10")); E(S(f"s_add_u32 s37, s37, {W2F_OFF}"))
        E(BST(16 + 4 * c16, 4, 3, 20, "s37"))
    a.label(f"L_{name}_end"); a.raw("s_endpgm")
    return a.text(), kdesc(name, 96, 96), 32768
```

```python
from gasm import *
from common import *

LOG2E = "0x3fb8aa3b"; NLOG2E = "0xbfb8aa3b"; CSC = "0x3ea52b5c"; NCSC = "0xbea52b5c"
HUGE = "0x7ff00000"

class Stamp:
    def __init__(self, a, on): self.a, self.on, self.n = a, on, 0
    def __call__(self):
        if self.on:
            assert self.n < 13
            self.a.raw(f"s_memtime s[{64+2*self.n}:{65+2*self.n}]"); self.n += 1
    def finish(self, role, name):
        a = self.a
        if not self.on: return
        a.raw("s_waitcnt vmcnt(0)")
        self()
        a.raw("s_memrealtime s[92:93]"); a.raw("s_waitcnt lgkmcnt(0)")
        a.raw("s_cmp_lg_u32 s3, 0"); a.raw(f"s_cbranch_scc1 L_{name}_end")
        for i in range(13):
            if i < self.n: a.raw(f"s_sub_u32 s{64+2*i}, s{64+2*i}, s62"); a.raw(f"v_mov_b32 v{i}, s{64+2*i}")
            else: a.raw(f"v_mov_b32 v{i}, 0")
        a.raw(f"v_mov_b32 v13, {role}"); a.raw("v_mov_b32 v14, s60"); a.raw("v_mov_b32 v15, s92")
        a.raw("s_lshl_b32 s40, s2, 6"); a.raw(f"s_add_u32 s40, s40, {STAMP1}"); a.raw("v_mov_b32 v16, s40")
        a.raw("s_mov_b32 s22, 0x2000000"); a.raw("s_mov_b64 exec, 1")
        for i in range(4): a.raw(f"buffer_store_dwordx4 v[{4*i}:{4*i+3}], v16, s[20:23], 0 offen offset:{16*i}")

def rot_table(E, srot, sK, mulK, sKx):
    for s in range(10):
        E(S(f"s_mul_i32 s{sK+s}, {srot}, {mulK}")); E(S(f"s_lshl_b32 s{sKx+s}, {srot}, 7"))
        if s < 9:
            E(S(f"s_add_u32 {srot}, {srot}, 1")); E(S(f"s_cmp_eq_u32 {srot}, 10")); E(S(f"s_cselect_b32 {srot}, 0, {srot}"))

def interleave(E, main, fill, per):
    for m in main:
        E(m)
        b = per
        while fill and b > 0:
            c, o = fill.pop(0); E(o); b -= c

def gen_ffn(a, name, stamps):
    E = a.emit; st = Stamp(a, stamps)
    sK, sKx = 40, 50
    E(S("s_sub_u32 s12, s12, 14")); E(S("s_mul_i32 s13, s11, 18")); E(S("s_add_u32 s13, s13, s12"))
    E(S("s_lshr_b32 s14, s13, 3"))
    E(S("s_and_b32 s15, s13, 7"))
    E(S("s_mul_i32 s16, s14, 3")); E(S("s_add_u32 s16, s16, s15"))
    E(S("s_mul_i32 s17, s16, 26")); E(S("s_lshr_b32 s17, s17, 8")); E(S("s_mul_i32 s17, s17, 10")); E(S("s_sub_u32 s16, s16, s17"))
    E(S("s_lshl_b32 s17, s10, 3")); E(S("s_add_u32 s15, s15, s17"))
    rot_table(E, "s16", sK, 64 * 3456, sKx)
    XF, A0, A1, A2, WB = 96, 48, 64, 80, 24
    vWr = [2, 3, 4]; vDW, vSt, vCol = 5, 6, 7
    TOK = 8
    AP = [12, 14]
    T = 16
    lane = 1
    vDX, vDX2, vXr = A2, A2 + 1, A2 + 2
    t0, t1, t2, t3 = T, T + 1, T + 2, T + 3
    E(S("s_and_b32 s17, s3, 3")); E(S("s_lshr_b32 s18, s3, 2"))
    E(V("v_lshrrev_b32", t0, "3", lane)); E(V("v_and_b32", t1, "7", lane))
    E(V("v_lshrrev_b32", t2, "2", lane)); E(V("v_and_b32", t2, "4", t2)); E(V("v_xor_b32", t2, t1, t2))
    E(V("v_mul_u32_u24", vDW, "3456", t0)); E(V("v_lshl_add_u32", vDW, t2, "4", vDW))
    E(S(f"s_mul_i32 s19, s3, {8*3456}")); E(S("s_mul_i32 s9, s14, 384")); E(S("s_add_u32 s19, s19, s9"))
    E(V("v_add_u32", vDW, "s19", vDW))
    E(S("s_lshl_b32 s19, s17, 3"))
    E(V("v_add_u32", t2, "s19", t0))
    E(V("v_bfe_u32", t3, t2, "1", "3")); E(V("v_xor_b32", t3, t1, t3))
    E(V("v_and_b32", vDX, "15", t2)); E(V("v_lshlrev_b32", vDX, "1", vDX)); E(V("v_lshrrev_b32", t2, "4", t2)); E(V("v_add_u32", vDX, vDX, t2))
    E(S("s_lshl_b32 s19, s15, 7")); E(S("s_lshl_b32 s9, s18, 5")); E(S("s_add_u32 s19, s19, s9"))
    E(V("v_add_u32", vDX, "s19", vDX)); E(V("v_mul_u32_u24", vDX, "1280", vDX)); E(V("v_lshl_add_u32", vDX, t3, "4", vDX))
    E(V("v_add_u32", vDX2, str(64 * 1280), vDX))
    E(S("s_lshl_b32 s8, s3, 10"))
    NSLOT = 9
    items = {}
    free = list(range(NSLOT))
    qX = [("X", s) for s in range(10)]
    qW = [("W", s) for s in range(30)]
    dma_chunk = [0]
    def dma_ops(it, slot):
        kind, s = it
        base = slot * 16384
        ops = []
        if kind == "X":
            ops.append([S(f"s_add_u32 m0, s8, {base}"), DMA(vDX, 24, f"s{sKx+s}", tag=it)])
            ops.append([S(f"s_add_u32 m0, s8, {base+8192}"), DMA(vDX2, 24, f"s{sKx+s}", tag=it)])
        elif s < 10:
            ops.append([S(f"s_add_u32 m0, s8, {base}"), DMA(vDW, 28, f"s{sK+s}", tag=it)])
            ops.append([S(f"s_add_u32 m0, s8, {base+8192}"), DMA(vDW, 32, f"s{sK+s}", tag=it)])
        else:
            p = (s - 10) // 5 + 1; j = (s - 10) % 5
            chunk = (p + 1) // 2; srdw = 28 if p % 2 == 1 else 32
            pre = []
            if chunk != dma_chunk[0]:
                dma_chunk[0] = chunk; pre = [V("v_add_u32", vDW, "128", vDW)]
            ops.append(pre + [S(f"s_add_u32 m0, s8, {base}"), DMA(vDW, srdw, f"s{sK+2*j}", tag=it)])
            ops.append([S(f"s_add_u32 m0, s8, {base+8192}"), DMA(vDW, srdw, f"s{sK+2*j+1}", tag=it)])
        return ops
    def refill():
        out = []
        prog = True
        while prog:
            prog = False
            cands = []
            if qX:
                sl = [x for x in free if x < 4]
                if sl: cands.append((qX[0][1], 0, qX, sl[0]))
            if qW:
                sl = [x for x in free if x >= 4 or not qX]
                if sl: cands.append((qW[0][1], 1, qW, sl[0]))
            if cands:
                cands.sort(key=lambda c: c[:2]); _, _, q, sl = cands[0]
                it = q.pop(0); free.remove(sl); items[it] = sl; out += dma_ops(it, sl); prog = True
        return out
    for o in refill(): E(o)
    st()
    E(V("v_lshrrev_b32", t0, "5", lane)); E(V("v_lshlrev_b32", t0, "10", t0))
    E(V("v_bfe_u32", t1, lane, "2", "2")); E(V("v_lshl_add_u32", t0, t1, "7", t0))
    E(V("v_lshrrev_b32", t1, "1", t1)); E(V("v_xor_b32", t1, "s18", t1)); E(V("v_lshl_add_u32", t0, t1, "6", t0))
    E(V("v_bfe_u32", t1, lane, "4", "1")); E(V("v_lshl_add_u32", t0, t1, "5", t0))
    E(V("v_and_b32", t1, "1", lane)); E(V("v_lshl_add_u32", t0, t1, "4", t0))
    E(V("v_bfe_u32", t1, lane, "1", "1")); E(V("v_lshl_add_u32", vWr[0], t1, "3", t0))
    E(V("v_add_u32", vWr[1], "0x10000", vWr[0])); E(V("v_add_u32", vWr[2], "0x20000", vWr[0]))
    E(V("v_and_b32", t0, "31", lane)); E(V("v_lshrrev_b32", t1, "5", lane)); E(V("v_bfe_u32", t2, lane, "1", "3"))
    E(V("v_xor_b32", t2, t1, t2))
    E(S("s_lshl_b32 s19, s17, 12"))
    E(V("v_lshlrev_b32", t3, "7", t0)); E(V("v_add_u32", t3, "s19", t3))
    for s4 in range(4):
        E(V("v_xor_b32", vXr + s4, str(2 * s4), t2)); E(V("v_lshl_add_u32", vXr + s4, vXr + s4, "4", t3))
    E(V("v_and_b32", t2, "15", lane)); E(V("v_bfe_u32", t3, lane, "4", "1")); E(V("v_lshl_add_u32", T + 4, t2, "1", t3))
    E(V("v_lshlrev_b32", T + 4, "4", T + 4))
    E(S("s_lshl_b32 s19, s15, 2")); E(S("s_add_u32 s19, s19, s17"))
    E(S("s_lshl_b32 s9, s19, 9"))
    tokload = BLD(TOK, 4, T + 4, 36, "s9", tag="tok")
    E(V("v_lshlrev_b32", vSt, "10", t3)); E(V("v_lshl_add_u32", vSt, t1, "8", vSt)); E(V("v_lshl_add_u32", vSt, t2, "4", vSt))
    E(S("s_mul_i32 s19, s19, 74")); E(S("s_mul_i32 s7, s14, 6")); E(S("s_add_u32 s19, s19, s7")); E(S("s_add_u32 s19, s19, s18"))
    E(S("s_add_u32 s19, s19, 20")); E(S("s_lshl_b32 s7, s19, 11"))
    E(V("v_and_b32", vCol, "19", lane))
    E(V("v_bfe_u32", t2, lane, "2", "1")); E(V("v_lshl_add_u32", vCol, t2, "3", vCol))
    E(V("v_bfe_u32", t2, lane, "3", "1")); E(V("v_lshl_add_u32", vCol, t2, "2", vCol))
    E(S("s_mul_i32 s19, s14, 192")); E(S("s_lshl_b32 s6, s18, 5")); E(S("s_add_u32 s19, s19, s6"))
    E(V("v_add_u32", vCol, "s19", vCol)); E(V("v_lshlrev_b32", vCol, "4", vCol)); E(V("v_lshl_add_u32", vCol, t1, "3", vCol))
    E(tokload)
    def colload(dst, mat, chunk):
        off = COL_OFF + (1920 if mat == 0 else 3648) * 16 + chunk * 1024
        return [S(f"s_mov_b32 s6, {off}"), BLD(dst, 2, vCol, 20, "s6", tag="col")]
    E(colload(AP[0], 0, 0)); E(colload(AP[1], 1, 0))
    M = []
    for t in range(40):
        M.append((A0, t, t // 4, 0, t % 4)); M.append((A1, t, t // 4, 1, t % 4))
    for p, acc in ((1, A2), (2, A0), (3, A1), (4, A0)):
        for t in range(40):
            M.append((acc, t, 10 + 5 * (p - 1) + t // 8, (t // 4) % 2, t % 4))
    PF = 4; NB = 6
    def reads(n):
        acc, t, s, half, sub = M[n]
        pos = items[("W", s)] * 16384 + half * 8192 + sub * 2048
        b = WB + 4 * (n % NB)
        return [DSR(b, 2, vWr[pos >> 16], off=pos & 0xffff, tr=True), DSR(b + 2, 2, vWr[pos >> 16], off=(pos & 0xffff) + 512, tr=True)]
    fill = []
    def silu(G):
        ops = []
        for i in range(0, 16, 4):
            for e in range(4): ops.append((1, V("v_mul_f32", T + e, G + i + e, TOK + 2)))
            for e in range(4): ops.append((2, V("v_exp_f32", T + e, T + e)))
            for e in range(4): ops.append((1, V("v_fma_f32", T + e, T + e, TOK + 3, TOK + 3)))
            for e in range(4): ops.append((2, V("v_rcp_f32", T + e, T + e)))
            for e in range(4): ops.append((1, V("v_mul_f32", G + i + e, G + i + e, T + e)))
        return ops
    def fin(G, U, chunk):
        ops = []
        for ip in range(2):
            for e in range(8): ops.append((1, V("v_mul_f32", G + 8 * ip + e, G + 8 * ip + e, U + 8 * ip + e)))
            for e in range(4): ops.append((1, V("v_cvt_pk_bf16_f32", T + 4 + e, G + 8 * ip + 2 * e, G + 8 * ip + 2 * e + 1)))
            ops.append((1, BST(T + 4, 4, vSt, 20, "s7", off=512 * ip, tag="st")))
        if chunk < 2: ops.append((0, S("s_add_u32 s7, s7, 4096")))
        return ops
    def sync(s):
        its = [("W", s)] + ([("X", s)] if s < 10 else [])
        for c, o in fill:
            if isinstance(o, list):
                for x in o: assert getattr(x, "tag", None) not in its
        for it in its: assert it in items
        its.sort(key=lambda it: max([i for i, e in enumerate(a.vm) if e[1] == it] + [-1]))
        lg = None
        if 1 <= s <= 10:
            xr = set(rng(XF + 16 * (s - 1), 16))
            idx = [i for i, e in enumerate(a.lg) if e & xr]
            if idx: lg = len(a.lg) - 1 - max(idx)
        a.wait_tag(its[-1], lg=lg)
        a.barrier()
        if 1 <= s <= 10: free.append(items[("X", s - 1)])
        if s >= 2: free.append(items[("W", s - 2)])
        d = refill()
        fill[0:0] = [(2, o) for o in d]
        if s < 10:
            for s4 in range(4):
                E(DSR(XF + 4 * (4 * s + s4), 4, vXr + s4, off=items[("X", s)] * 16384))
    sync(0)
    st()
    for n in range(PF): E(reads(n))
    after = {
        82: lambda: (E(MFMA32C(A0, AP[0], TOK)), E(MFMA32C(A1, AP[1], TOK)), E(V("v_mul_f32", TOK + 2, NLOG2E, TOK + 2)),
                     fill.extend([(1, colload(AP[0], 0, 1)), (1, colload(AP[1], 1, 1)), (4, []), (4, [])] + silu(A0) + fin(A0, A1, 0))),
        122: lambda: (E(MFMA32C(A2, AP[0], TOK)), fill.extend([(1, colload(AP[0], 0, 2)), (4, []), (4, [])] + silu(A2))),
        162: lambda: (E(MFMA32C(A0, AP[1], TOK)), fill.extend([(1, colload(AP[1], 1, 2)), (4, []), (4, [])] + fin(A2, A0, 1))),
        202: lambda: (E(MFMA32C(A1, AP[0], TOK)), fill.extend([(4, []), (4, [])] + silu(A1))),
    }
    for n in range(240):
        acc, t, s, half, sub = M[n]
        first = (t == 0)
        if n in (80, 120, 160, 200):
            assert not [f for f in fill if f[0] != 2 or not isinstance(f[1], list)], (n, len(fill))
            st()
        E(MFMA32(acc, WB + 4 * (n % NB), XF + 4 * t, c="0" if first else None))
        m = n + PF
        if m < 240:
            if m % 8 == 0: sync(m // 8)
            E(reads(m))
        if n in after: after[n]()
        b = 5 if 80 <= n < 120 else 4
        while fill and b > 0:
            c, o = fill.pop(0); E(o); b -= c
    assert not fill
    st()
    E(MFMA32C(A0, AP[1], TOK))
    for c, o in fin(A1, A0, 2): E(o)
    st.finish(1, name)
    a.raw("s_endpgm")

def gen_qkv(a, name, stamps):
    E = a.emit; st = Stamp(a, stamps)
    sK, sKx = 40, 50
    lane = 1
    E(S("s_cmp_ge_u32 s12, 7")); E(S("s_cselect_b32 s13, 1, 0")); E(S("s_cselect_b32 s14, 7, 0"))
    E(S("s_sub_u32 s14, s12, s14"))
    E(S("s_mul_i32 s16, s13, 5")); E(S("s_add_u32 s16, s16, s14"))
    E(S("s_cmp_ge_u32 s16, 10")); E(S("s_cselect_b32 s15, 10, 0")); E(S("s_sub_u32 s16, s16, s15"))
    E(S("s_lshl_b32 s15, s11, 1")); E(S("s_add_u32 s13, s13, s15"))
    E(S("s_mul_i32 s15, s10, 7")); E(S("s_add_u32 s14, s14, s15"))
    rot_table(E, "s16", sK, 64 * 3840, sKx)
    ACC = 128
    FR = [208, 232]
    vDW, vDX = 2, 3
    vWr, vXr = 6, 9
    TOK = 24
    AP = 44
    vQW = 46
    T = 50
    t0, t1, t2, t3, t4 = T, T + 1, T + 2, T + 3, T + 4
    SLOT = 53248; WOFF = 20480; DUMMY = 3 * SLOT
    E(S("s_lshl_b32 s19, s3, 1"))
    E(V("v_lshrrev_b32", t0, "5", lane)); E(V("v_add_u32", t0, "s19", t0))
    E(V("v_and_b32", t1, "3", t0)); E(V("v_lshlrev_b32", t1, "2", t1)); E(V("v_and_b32", t2, "31", lane)); E(V("v_xor_b32", t1, t1, t2))
    E(V("v_min_u32", t1, "29", t1))
    E(V("v_mul_u32_u24", t2, "26", t1)); E(V("v_lshrrev_b32", t2, "8", t2))
    E(V("v_mul_u32_u24", t3, str(1280 - 160), t2)); E(V("v_lshl_add_u32", t3, t1, "4", t3))
    E(V("v_mul_u32_u24", vDW, "3840", t0)); E(V("v_add_u32", vDW, vDW, t3))
    E(S("s_mul_i32 s19, s13, 160")); E(V("v_add_u32", vDW, "s19", vDW))
    E(S("s_and_b32 s17, s3, 3")); E(S("s_lshr_b32 s18, s3, 2"))
    E(S("s_lshl_b32 s19, s17, 3"))
    E(V("v_lshrrev_b32", t0, "3", lane)); E(V("v_and_b32", t1, "7", lane))
    E(V("v_add_u32", t2, "s19", t0))
    E(V("v_bfe_u32", t3, t2, "1", "3")); E(V("v_xor_b32", t3, t1, t3))
    E(V("v_and_b32", vDX, "15", t2)); E(V("v_lshlrev_b32", vDX, "1", vDX)); E(V("v_lshrrev_b32", t2, "4", t2)); E(V("v_add_u32", vDX, vDX, t2))
    E(S("s_mul_i32 s15, s14, 146"))
    E(S("s_lshl_b32 s9, s18, 5")); E(S("s_add_u32 s19, s15, s9"))
    E(V("v_add_u32", vDX, "s19", vDX)); E(V("v_mul_u32_u24", vDX, "1280", vDX)); E(V("v_lshl_add_u32", vDX, t3, "4", vDX))
    E(V("v_add_u32", vDX + 1, str(64 * 1280), vDX))
    E(S(f"s_mov_b32 s19, {128*1280}")); E(S("s_cmp_lt_u32 s3, 4")); E(S(f"s_cselect_b32 s19, s19, {HUGE}"))
    E(V("v_add_u32", vDX + 2, "s19", vDX))
    E(S("s_lshl_b32 s8, s3, 10"))
    for z in range(3):
        E(S(f"s_add_u32 s{4+z}, s8, {z*SLOT+16384}")); E(S("s_cmp_lt_u32 s3, 4")); E(S(f"s_cselect_b32 s{4+z}, s{4+z}, {DUMMY}"))
    def dma_stage(s):
        z = s % 3; base = z * SLOT
        ops = []
        ops.append([S(f"s_add_u32 m0, s8, {base}"), DMA(vDX, 24, f"s{sKx+s}", tag=s)])
        ops.append([S(f"s_add_u32 m0, s8, {base+8192}"), DMA(vDX + 1, 24, f"s{sKx+s}", tag=s)])
        ops.append([S(f"s_mov_b32 m0, s{4+z}"), DMA(vDX + 2, 24, f"s{sKx+s}", tag=s)])
        for e in range(4):
            o = [S(f"s_add_u32 m0, s8, {base+WOFF+e*8192}")]
            if e == 0: o.append(DMA(vDW, 28, f"s{sK+s}", tag=s))
            else: o += [S(f"s_add_u32 s19, s{sK+s}, {e*16*3840}"), DMA(vDW, 28, "s19", tag=s)]
            ops.append(o)
        return ops
    for s in range(3): E(dma_stage(s))
    st()
    E(V("v_lshrrev_b32", t0, "5", lane)); E(V("v_lshlrev_b32", t0, "12", t0))
    E(V("v_bfe_u32", t1, lane, "2", "2")); E(V("v_lshl_add_u32", t0, t1, "9", t0))
    E(V("v_xor_b32", t1, "s3", t1)); E(V("v_lshl_add_u32", t0, t1, "6", t0))
    E(V("v_bfe_u32", t1, lane, "4", "1")); E(V("v_lshl_add_u32", t0, t1, "5", t0))
    E(V("v_and_b32", t1, "3", lane)); E(V("v_lshl_add_u32", t0, t1, "3", t0))
    for z in range(3): E(V("v_add_u32", vWr + z, str(z * SLOT + WOFF), t0))
    E(V("v_and_b32", t0, "31", lane)); E(V("v_lshrrev_b32", t1, "5", lane)); E(V("v_bfe_u32", t2, lane, "1", "3"))
    E(V("v_xor_b32", t2, t1, t2)); E(V("v_lshlrev_b32", t3, "7", t0))
    for s4 in range(4):
        E(V("v_xor_b32", t4, str(2 * s4), t2)); E(V("v_lshl_add_u32", vXr + s4, t4, "4", t3))
        for z in (1, 2): E(V("v_add_u32", vXr + 4 * z + s4, str(z * SLOT), vXr + s4))
    E(V("v_and_b32", t2, "15", lane)); E(V("v_bfe_u32", t3, lane, "4", "1")); E(V("v_lshl_add_u32", t4, t2, "1", t3))
    E(V("v_lshlrev_b32", t4, "4", t4)); E(S("s_lshl_b32 s9, s15, 4"))
    for rg in range(5): E(BLD(TOK + 4 * rg, 4, t4, 36, "s9", off=rg * 512, tag="tok"))
    E(S("s_lshl_b32 s19, s3, 5")); E(V("v_add_u32", t0, "s19", t0)); E(V("v_min_u32", t0, "239", t0))
    E(V("v_mul_u32_u24", t4, "205", t0)); E(V("v_lshrrev_b32", t4, "14", t4))
    E(V("v_mul_u32_u24", t4, "560", t4)); E(V("v_add_u32", t4, t4, t0))
    E(V("v_lshlrev_b32", t4, "4", t4)); E(V("v_lshl_add_u32", t4, t1, "3", t4))
    E(S("s_mul_i32 s19, s13, 1280")); E(S(f"s_add_u32 s19, s19, {COL_OFF}"))
    E(BLD(AP, 2, t4, 20, "s19", tag="col"))
    QB = SLOT
    E(V("v_mul_u32_u24", T + 5, "3200", t3)); E(V("v_mul_u32_u24", T + 6, "40", t2)); E(V("v_add3_u32", T + 5, T + 5, T + 6, "0"))
    E(V("v_add_u32", T + 5, str(QB), T + 5))
    E(S("s_lshl_b32 s19, s3, 3"))
    for i in range(4):
        E(V("v_add_u32", t0, "s19", t1));
        if i: E(V("v_add_u32", t0, str(2 * i), t0))
        E(V("v_mul_u32_u24", t4, "52", t0)); E(V("v_lshrrev_b32", t4, "8", t4))
        E(V("v_mul_u32_u24", T + 6, str(6400 - 40), t4)); E(V("v_lshl_add_u32", T + 6, t0, "3", T + 6))
        E(V("v_add_u32", vQW + i, T + 6, T + 5))
    def reads(t):
        s, sub = t // 4, t % 4; z = s % 3; f = FR[t % 2]
        ops = [DSR(f, 2, vWr + z, off=sub * 8192, tr=True), DSR(f + 2, 2, vWr + z, off=sub * 8192 + 2048, tr=True)]
        for rg in range(5): ops.append(DSR(f + 4 + 4 * rg, 4, vXr + 4 * z + sub, off=rg * 4096))
        return ops
    a.wait_tag(0); a.barrier()
    st()
    E(reads(0))
    fill = []
    for t in range(40):
        f = FR[t % 2]
        nxt = []
        if t + 1 < 40:
            if (t + 1) % 4 == 0:
                s = (t + 1) // 4
                a.wait_tag(s, lg=0); a.barrier()
                if s + 2 < 10: fill = dma_stage(s + 2)
                if s in (3, 6): st()
            nxt = reads(t + 1)
        for rg in range(5):
            E(MFMA32(ACC + 16 * rg, f, f + 4 + 4 * rg, c="0" if t == 0 else None))
            for k in range(2):
                if nxt: E(nxt.pop(0))
            if not nxt and fill: E(fill.pop(0))
    assert not fill
    st()
    for rg in range(5): E(MFMA32C(ACC + 16 * rg, AP, TOK + 4 * rg))
    BC, BP, MC, MP, ONE, MG0 = 56, 60, 64, 66, 68, 72
    vQ, vQ2, vV, vV2, vO, vO2, vO0, vO20 = 73, 74, 75, 76, 77, 78, 79, 80
    n_, g_ = 81, 82
    E(V("v_and_b32", n_, "15", lane)); E(V("v_lshrrev_b32", g_, "4", lane))
    E(V("v_lshlrev_b32", t0, "2", g_)); E(V("v_sub_u32", t0, n_, t0))
    E(V("v_mov_b32", t4, "0xf149f2ca"))
    for r in range(4):
        E(V("v_subrev_u32", t1, str(r), t0)); E(V("v_add_u32", t2, "16", t1))
        E(VCMP("v_cmp_gt_u32", f"s[{40+4*r}:{41+4*r}]", "8", t1)); E(VCMP("v_cmp_gt_u32", f"s[{42+4*r}:{43+4*r}]", "8", t2))
    E(V("v_mov_b32", t1, "0xffff")); E(V("v_mov_b32", t2, "0xffff0000"))
    for r in range(4):
        E(V("v_cndmask_b32", BC + r, t4, "0", f"s[{40+4*r}:{41+4*r}]")); E(V("v_cndmask_b32", BP + r, t4, "0", f"s[{42+4*r}:{43+4*r}]"))
    for h in range(2):
        for (MM, o) in ((MC, 0), (MP, 2)):
            E(V("v_cndmask_b32", MM + h, "0", t1, f"s[{40+8*h+o}:{41+8*h+o}]"))
            E(V("v_cndmask_b32", t3, "0", t2, f"s[{44+8*h+o}:{45+8*h+o}]"))
            E(V("v_or_b32", MM + h, MM + h, t3))
    for r in range(4): E(V("v_mov_b32", ONE + r, "0x3f803f80"))
    E(VCMP("v_cmp_eq_u32", "s[40:41]", "0", g_))
    E(V("v_cndmask_b32", MG0, "0", "-1", "s[40:41]"))
    E(S("s_mul_i32 s19, s3, 3200")); E(S(f"s_add_u32 s19, s19, {QB}"))
    E(V("v_mul_u32_u24", t0, "40", n_)); E(V("v_add_u32", t0, "s19", t0))
    E(V("v_lshl_add_u32", vQ, g_, "3", t0)); E(V("v_add_u32", vQ2, "32", t0))
    E(V("v_lshrrev_b32", t0, "2", lane)); E(V("v_mul_u32_u24", t0, "40", t0)); E(V("v_add_u32", t0, "s19", t0))
    E(V("v_add_u32", t0, str(51200), t0))
    E(V("v_and_b32", t1, "3", lane)); E(V("v_lshl_add_u32", vV, t1, "3", t0)); E(V("v_add_u32", vV2, "32", t0))
    E(S("s_mul_i32 s19, s14, 73")); E(V("v_add_u32", t0, "s19", n_))
    E(V("v_lshrrev_b32", t1, "4", t0)); E(V("v_mul_u32_u24", t1, str(74 * 2048), t1))
    E(V("v_and_b32", t0, "15", t0)); E(V("v_lshl_add_u32", t1, t0, "4", t1))
    E(S("s_and_b32 s19, s3, 1")); E(S("s_lshl_b32 s19, s19, 10")); E(V("v_add_u32", t1, "s19", t1))
    E(S("s_mul_i32 s19, s13, 20")); E(S("s_lshr_b32 s9, s3, 1")); E(S("s_mul_i32 s9, s9, 5")); E(S("s_add_u32 s19, s19, s9"))
    E(V("v_mov_b32", T + 5, HUGE))
    for (dst, second) in ((vO, False), (vO2, True)):
        if second: E(S("s_add_u32 s19, s19, 4")); E(V("v_mov_b32", t0, "s19"))
        else: E(V("v_add_u32", t0, "s19", g_))
        E(V("v_lshrrev_b32", t2, "3", t0)); E(V("v_lshl_add_u32", dst, t2, "11", t1))
        E(V("v_bfe_u32", t2, t0, "1", "2")); E(V("v_lshl_add_u32", dst, t2, "8", dst))
        E(V("v_and_b32", t2, "1", t0)); E(V("v_lshl_add_u32", dst, t2, "3", dst))
    E(V("v_cndmask_b32", vO2, T + 5, vO2, "s[40:41]"))
    E(S("s_cmp_eq_u32 s14, 0")); E(S("s_cselect_b32 s19, 0, 7"))
    E(VCMP("v_cmp_le_u32", "s[42:43]", "s19", n_))
    E(V("v_cndmask_b32", vO0, T + 5, vO, "s[42:43]")); E(V("v_cndmask_b32", vO20, T + 5, vO2, "s[42:43]"))
    for rg in range(5):
        A = ACC + 16 * rg
        for i in range(4):
            for e in range(4): E(V("v_mul_f32", A + 4 * i + e, A + 4 * i + e, TOK + 4 * rg + 2))
            E(V("v_cvt_pk_bf16_f32", A + 4 * i, A + 4 * i, A + 4 * i + 1)); E(V("v_cvt_pk_bf16_f32", A + 4 * i + 1, A + 4 * i + 2, A + 4 * i + 3))
            E(DSW(vQW + i, A + 4 * i, 2, off=rg * 640))
    a.wait(lg=0); a.barrier()
    st()
    Qr = [128 + 4 * j for j in range(5)]
    Kr = [148 + 4 * j for j in range(5)]
    V0 = 168
    V1 = 180
    for j in range(5):
        E(DSR(Qr[j], 2, vQ, off=j * 640)); E(DSR(Qr[j] + 2, 2, vQ2, off=j * 640))
        E(DSR(Kr[j], 2, vQ, off=25600 + j * 640)); E(DSR(Kr[j] + 2, 2, vQ2, off=25600 + j * 640))
    for j in range(5):
        E(DSR(V0 + 2 * (j + 1), 2, vV, off=j * 640, tr=True)); E(DSR(V1 + 2 * (j + 1), 2, vV2, off=j * 640, tr=True))
    for r in (V0, V0 + 1, V1, V1 + 1): E(V("v_mov_b32", r, "0"))
    SC = [192 + 4 * j for j in range(5)]
    SP = [212 + 4 * j for j in range(5)]
    for j in range(5):
        E(V("v_and_b32", Qr[j] + 2, Qr[j] + 2, MG0)); E(V("v_and_b32", Qr[j] + 3, Qr[j] + 3, MG0))
    for j in range(5):
        E(MFMA16C(SC[j], Kr[j], Qr[j], BC))
        if j > 0: E(MFMA16C(SP[j], Kr[j - 1], Qr[j], BP))
    MX = [84 + j for j in range(5)]; TT = [90 + j for j in range(5)]
    for j in range(5):
        if j > 0:
            for r in range(4): E(V("v_max_f32", SC[j] + r, SC[j] + r, SP[j] + r))
        E(V("v_max3_f32", MX[j], SC[j], SC[j] + 1, SC[j] + 2)); E(V("v_max_f32", MX[j], MX[j], SC[j] + 3))
    for lvl in (16, 32):
        for j in range(5): E(V("v_mov_b32", TT[j], MX[j]))
        for j in range(5): E(SWAP(lvl, MX[j], TT[j]))
        for j in range(5): E(V("v_max_f32", MX[j], MX[j], TT[j]))
    E(S(f"s_mov_b32 s9, {CSC}"))
    for j in range(5): E(V("v_mul_f32", MX[j], NCSC, MX[j]))
    PB = [96 + 4 * j for j in range(5)]
    for j in range(5):
        for r in range(4): E(V("v_fma_f32", SC[j] + r, SC[j] + r, "s9", MX[j]))
        for r in range(4): E(V("v_exp_f32", SC[j] + r, SC[j] + r))
    for j in range(5):
        E(V("v_cvt_pk_bf16_f32", SC[j], SC[j], SC[j] + 1)); E(V("v_cvt_pk_bf16_f32", SC[j] + 1, SC[j] + 2, SC[j] + 3))
        for h in range(2):
            E(V("v_and_b32", PB[j] + h, SC[j] + h, MP + h)); E(V("v_and_b32", PB[j] + 2 + h, SC[j] + h, MC + h))
    O0 = [128 + 4 * j for j in range(5)]; O1 = [148 + 4 * j for j in range(5)]; DN = [212 + 4 * j for j in range(5)]
    for j in range(5):
        E(MFMA16(DN[j], ONE, PB[j], c="0")); E(MFMA16(O0[j], V0 + 2 * j, PB[j], c="0")); E(MFMA16(O1[j], V1 + 2 * j, PB[j], c="0"))
    srd(a, 28, "s20", "s21", ACT_SIZE)
    for j in range(5): E(V("v_rcp_f32", DN[j], DN[j]))
    for j in range(5):
        for O in (O0[j], O1[j]):
            for r in range(4): E(V("v_mul_f32", O + r, O + r, DN[j]))
            E(V("v_cvt_pk_bf16_f32", O, O, O + 1)); E(V("v_cvt_pk_bf16_f32", O + 1, O + 2, O + 3))
        E(S(f"s_mov_b32 s19, {j*74*2048}"))
        E(BST(O0[j], 2, vO0 if j == 0 else vO, 28, "s19")); E(BST(O1[j], 2, vO20 if j == 0 else vO2, 28, "s19"))
    st.finish(2, name)
    a.raw("s_endpgm")

def gen_k1(name, stamps=False):
    a = Asm(); E = a.emit
    a.out.append(f".globl {name}\n.p2align 8\n.type {name},@function\n{name}:")
    E(S("s_cmp_ge_u32 s2, 256")); a.raw(f"s_cbranch_scc1 L_{name}_end")
    if stamps:
        a.raw("s_memrealtime s[60:61]"); a.raw("s_memtime s[62:63]")
    a.raw("s_load_dwordx4 s[4:7], s[0:1], 0")
    a.raw("s_load_dwordx4 s[12:15], s[0:1], 32")
    a.raw("s_load_dwordx2 s[18:19], s[0:1], 72")
    E(V("v_lshrrev_b32", 2, "6", 0)); E(V("v_and_b32", 1, "63", 0))
    E(RFL("s3", 2))
    a.raw("s_waitcnt lgkmcnt(0)")
    srd(a, 20, "s18", "s19", WS_USED)
    srd(a, 24, "s4", "s5", XBYTES)
    E(S(f"s_add_u32 s36, s18, {TOK_OFF}")); E(S("s_addc_u32 s37, s19, 0")); E(S(f"s_mov_b32 s38, {2048*16}")); E(S("s_mov_b32 s39, 0x20000"))
    srd(a, 32, "s14", "s15", 640 * 3456)
    srd(a, 28, "s12", "s13", 640 * 3456)
    E(S("s_and_b32 s11, s2, 3")); E(S("s_bfe_u32 s10, s2, 0x10002")); E(S("s_lshr_b32 s12, s2, 3"))
    E(S("s_cmp_ge_u32 s12, 14")); a.raw(f"s_cbranch_scc1 L_{name}_ffn")
    srd(a, 28, "s6", "s7", 640 * 3840)
    gen_qkv(a, name, stamps)
    a.label(f"L_{name}_ffn"); a.reset()
    gen_ffn(a, name, stamps)
    a.label(f"L_{name}_end"); a.raw("s_endpgm")
    return a.text(), kdesc(name, 256, 256), 163840
```

```python
from gasm import *
from common import *

def gen_k2(name, D=6, stamps=False):
    a = Asm()
    E = a.emit
    a.out.append(f".globl {name}\n.p2align 8\n.type {name},@function\n{name}:")
    E(S("s_cmp_ge_u32 s2, 256")); a.raw(f"s_cbranch_scc1 L_{name}_end")
    if stamps:
        a.raw("s_memrealtime s[60:61]"); a.raw("s_memtime s[62:63]")
    a.raw("s_load_dwordx2 s[4:5], s[0:1], 0")
    a.raw("s_load_dwordx2 s[6:7], s[0:1], 56")
    a.raw("s_load_dwordx2 s[8:9], s[0:1], 72")
    ACC = 0
    T = 80
    vl16, vwv, vA, vW1, vX, vXO = 80, 81, 82, 86, 88, 98
    vLW, vLR, TMP = 100, 104, 108
    E(V("v_lshrrev_b32", vwv, "6", 0)); E(V("v_and_b32", vl16, "63", 0))
    E(RFL("s3", vwv))
    E(V("v_and_b32", TMP, "15", vl16)); E(V("v_lshrrev_b32", TMP + 1, "4", vl16))
    E(V("v_lshlrev_b32", vl16, "4", vl16))
    E(S("s_and_b32 s10, s2, 7")); E(S("s_lshr_b32 s11, s2, 3"))
    E(S("s_lshr_b32 s12, s10, 1")); E(S("s_lshl_b32 s12, s12, 3")); E(S("s_and_b32 s13, s11, 7")); E(S("s_add_u32 s12, s12, s13"))
    E(S("s_and_b32 s13, s10, 1")); E(S("s_lshl_b32 s13, s13, 2")); E(S("s_lshr_b32 s14, s11, 3")); E(S("s_add_u32 s13, s13, s14"))
    E(S(f"s_mul_i32 s14, s12, 148")); E(S("s_add_u32 s14, s14, s3")); E(S("s_lshl_b32 s14, s14, 11"))
    E(S(f"s_mul_i32 s15, s13, 74")); E(S("s_add_u32 s15, s15, s3")); E(S("s_mul_i32 s15, s15, 5120")); E(S(f"s_add_u32 s15, s15, {W2F_OFF}"))
    for j in range(4):
        E(V("v_add_u32", TMP + 2, str(j), vwv)); E(V("v_and_b32", TMP + 2, "3", TMP + 2))
        E(V("v_and_b32", TMP + 3, "1", TMP + 2)); E(V("v_lshl_add_u32", vA + j, TMP + 3, "10", vl16))
        E(V("v_lshrrev_b32", TMP + 3, "1", TMP + 2)); E(V("v_mul_u32_u24", TMP + 3, str(74 * 2048), TMP + 3)); E(V("v_add_u32", vA + j, vA + j, TMP + 3))
        if j > 0:
            E(V("v_mul_u32_u24", TMP + 2, "15360", TMP + 2))
            E(V("v_add3_u32", vLW + j - 1, TMP + 2, vl16, "0"))
            if j > 1: E(V("v_add_u32", vLW + j - 1, str((j - 1) * 5120), vLW + j - 1))
    E(V("v_add_u32", vW1, "4096", vl16))
    E(V("v_mul_u32_u24", TMP + 2, "15360", vwv)); E(V("v_add_u32", vLR, TMP + 2, vl16))
    E(S("s_lshl_b32 s16, s12, 6")); E(S("s_lshr_b32 s17, s3, 1")); E(S("s_lshl_b32 s17, s17, 5")); E(S("s_add_u32 s16, s16, s17"))
    E(S("s_and_b32 s17, s3, 1")); E(S("s_add_u32 s16, s16, s17"))
    E(S("s_mul_i32 s16, s16, 1280")); E(S("s_mul_i32 s17, s13, 160")); E(S("s_add_u32 s16, s16, s17"))
    E(V("v_mul_u32_u24", TMP, "2560", TMP)); E(V("v_lshl_add_u32", vXO, TMP + 1, "3", TMP))
    a.raw("s_waitcnt lgkmcnt(0)")
    srd(a, 20, "s8", "s9", WS_USED)
    srd(a, 24, "s4", "s5", XBYTES)
    srd(a, 28, "s6", "s7", XBYTES)
    NS = 19
    BUF = 256
    def loads(i):
        d = BUF + (i % D) * 36
        ops = []
        if i == NS - 1:
            ops.append(S("s_cmp_lt_u32 s3, 2"))
            ops.append(S("s_cselect_b32 s14, s14, 0x7ff00000"))
            ops.append(S("s_cselect_b32 s15, s15, 0x7ff00000"))
        for ct in range(5):
            ops.append(BLD(d + 4 * ct, 4, vl16 if ct < 4 else vW1, 20, "s15", off=(ct % 4) * 1024 if ct < 4 else 0))
        for j in range(4):
            ops.append(BLD(d + 20 + 4 * j, 4, vA + j, 20, "s14"))
        ops.append(S(f"s_add_u32 s14, s14, {4*2048}")); ops.append(S(f"s_add_u32 s15, s15, {4*5120}"))
        return ops
    for i in range(D): E(loads(i))
    for ct in range(5): E(BLD(vX + 2 * ct, 2, vXO, 24, "s16", off=ct * 32))
    if stamps: a.raw("s_memtime s[64:65]")
    for i in range(NS):
        d = BUF + (i % D) * 36
        for j in range(4):
            for ct in range(5):
                E(MFMA16(ACC + (j * 5 + ct) * 4, d + 4 * ct, d + 20 + 4 * j, c="0" if i == 0 else None))
        if stamps and i == 0: a.raw("s_memtime s[66:67]")
        if i + D < NS: E(loads(i + D))
    if stamps: a.raw("s_memtime s[68:69]")
    for j in range(1, 4):
        for ct in range(5):
            E(DSW(vLW + j - 1, ACC + (j * 5 + ct) * 4, 4, off=ct * 1024))
    a.wait(lg=0); a.barrier()
    RD = 112
    for src in range(3):
        for ct in range(5):
            E(DSR(RD + (src * 5 + ct) * 4, 4, vLR, off=(src * 5 + ct) * 1024))
    for ct in range(5):
        x0 = vX + 2 * ct
        E(V("v_lshlrev_b32", TMP, "16", x0)); E(V("v_and_b32", TMP + 1, "0xffff0000", x0))
        E(V("v_lshlrev_b32", TMP + 2, "16", x0 + 1)); E(V("v_and_b32", TMP + 3, "0xffff0000", x0 + 1))
        for r in range(4): E(V("v_add_f32", ACC + ct * 4 + r, ACC + ct * 4 + r, TMP + r))
    for ct in range(5):
        for r in range(4):
            E(V("v_add_f32", RD + ct * 4 + r, RD + ct * 4 + r, RD + (5 + ct) * 4 + r))
            E(V("v_add_f32", ACC + ct * 4 + r, ACC + ct * 4 + r, RD + (10 + ct) * 4 + r))
            E(V("v_add_f32", ACC + ct * 4 + r, ACC + ct * 4 + r, RD + ct * 4 + r))
        E(V("v_cvt_pk_bf16_f32", vX + 2 * ct, ACC + ct * 4, ACC + ct * 4 + 1))
        E(V("v_cvt_pk_bf16_f32", vX + 2 * ct + 1, ACC + ct * 4 + 2, ACC + ct * 4 + 3))
        E(BST(vX + 2 * ct, 2, vXO, 28, "s16", off=ct * 32))
    if stamps:
        a.wait(vm=0)
        a.raw("s_memtime s[70:71]"); a.raw("s_memrealtime s[72:73]"); a.raw("s_waitcnt lgkmcnt(0)")
        a.raw("s_cmp_lg_u32 s3, 0"); a.raw(f"s_cbranch_scc1 L_{name}_end")
        for i, s in enumerate([64, 66, 68, 70]):
            a.raw(f"s_sub_u32 s{s}, s{s}, s62"); a.raw(f"v_mov_b32 v{i}, s{s}")
        a.raw("v_mov_b32 v4, s60"); a.raw("v_mov_b32 v5, s72"); a.raw("v_mov_b32 v6, 0"); a.raw("v_mov_b32 v7, 0")
        a.raw("s_lshl_b32 s40, s2, 5"); a.raw(f"s_add_u32 s40, s40, {STAMP2}"); a.raw("v_mov_b32 v8, s40")
        a.raw("s_mov_b32 s22, 0x2000000")
        a.raw("s_mov_b64 exec, 1")
        a.raw("buffer_store_dwordx4 v[0:3], v8, s[20:23], 0 offen"); a.raw("buffer_store_dwordx4 v[4:7], v8, s[20:23], 0 offen offset:16")
    a.label(f"L_{name}_end"); a.raw("s_endpgm")
    return a.text(), kdesc(name, 256 + D * 36, 256), 61440
```

```python
import sys
from k2 import gen_k2
NAME = "parallel_sum__sliding_local_dilated__glu_gated_swiglu__prompt"
HDR = open("cdna_kernels/" + NAME + ".s.ref").read().split("; Override launch")[0]

def build(kernels):
    s = HDR
    for (name, text, desc, lds, thr) in kernels:
        s += f"; @launch kernel={name} grid=(256,1,1) block=({thr},1,1) lds={lds}\n"
    s += '.amdgcn_target "amdgcn-amd-amdhsa--gfx950"\n.text\n'
    for k in kernels: s += k[1]
    for k in kernels: s += k[2]
    return s

if __name__ == "__main__":
    which = sys.argv[1]; out = sys.argv[2]
    stamps = len(sys.argv) > 3
    ks = []
    if "0" in which:
        from k0 import gen_k0
        t, d, l = gen_k0("stage0_kernel"); ks.append(("stage0_kernel", t, d, l, 512))
    if "1" in which:
        from k1 import gen_k1
        t, d, l = gen_k1("stage1_kernel", stamps=stamps); ks.append(("stage1_kernel", t, d, l, 512))
    if "2" in which:
        t, d, l = gen_k2("stage2_kernel", stamps=stamps); ks.append(("stage2_kernel", t, d, l, 256))
    open(out, "w").write(build(ks))
```

```python
ACT_OFF = 0
ACT_SIZE = 64 * 74 * 2048
W2F_OFF = 0xA00000
W2F_SIZE = 8 * 74 * 5120
TOK_OFF = 0xE00000
COL_OFF = 0xE40000
FLG_OFF = 0xE60000
EPO_OFF = 0xE68000
WS_USED = EPO_OFF + 128
XBYTES = 2048 * 1280
STAMP1 = 0x1000000
STAMP2 = 0x1010000
```

```python
from gasm import *
from common import *

NLOG2E = "0xbfb8aa3b"; CSC = "0x3ea52b5c"; NCSC = "0xbea52b5c"
HUGE = "0x7ff00000"
SC1 = " sc1"
S_OUT, S_AUX = 64, 68
sTag = "s60"
sP2A, sP2W, sP2X, sSpin, sFlg = "s72", "s73", "s74", "s75", "s76"
sColSt, sOwn, sL = "s18", "s17", "s16"
P_QKV, P_WO, P_W2 = 52, 54, 56
NST = 18
uid = [0]
STW = 0

class Stamp:
    def __init__(self, a, on, sel=None): self.a, self.on, self.n, self.sel, self.names = a, on, 0, sel, []
    def __call__(self, name="x", force=False):
        if not self.on: return
        if self.sel is not None and not force and name not in self.sel: return
        assert self.n < NST, name
        if self.n: self.a.raw(f"s_mov_b32 s{82+self.n-1}, s100")
        self.a.raw("s_memtime s[100:101]"); self.n += 1; self.names.append(name)
    def finish(self, role, name, wave=0):
        a = self.a
        if not self.on: return
        a.raw("s_waitcnt vmcnt(0)")
        self("end", True)
        a.raw("s_memrealtime s[4:5]"); a.raw("s_waitcnt lgkmcnt(0)")
        a.raw(f"s_mov_b32 s{82+self.n-1}, s100")
        a.raw(f"s_cmp_lg_u32 s3, {wave}"); a.raw(f"s_cbranch_scc1 L_{name}_end")
        for i in range(20):
            if i < self.n: a.raw(f"s_sub_u32 s6, s{82+i}, s80"); a.raw(f"v_mov_b32 v{i}, s6")
            else: a.raw(f"v_mov_b32 v{i}, 0")
        a.raw(f"v_mov_b32 v20, {sSpin}")
        a.raw(f"v_mov_b32 v21, {role}"); a.raw("v_mov_b32 v22, s77"); a.raw("v_mov_b32 v23, s4")
        a.raw("s_lshl_b32 s40, s2, 7"); a.raw(f"s_add_u32 s40, s40, {STAMP1}"); a.raw("v_mov_b32 v24, s40")
        a.raw("s_mov_b32 s22, 0x2000000"); a.raw("s_mov_b64 exec, 1")
        for i in range(6): a.raw(f"buffer_store_dwordx4 v[{4*i}:{4*i+3}], v24, s[20:23], 0 offen offset:{16*i}")
        a.comment(f"STAMPS role {role}: " + " ".join(self.names))

class L(list):
    def s(self, *ts):
        for t in ts: self.append(S(t))
        return self
    def v(self, *x, **k): self.append(V(*x, **k)); return self

def scc_live(ops):
    for o in ops:
        if isinstance(o, list): return False
        if o.kind != "salu": continue
        n = o.text.split()[0]
        if n.startswith(("s_cselect", "s_addc", "s_subb", "s_cbranch_scc")): return True
        if n.startswith(("s_mov", "s_mul_i32", "s_movk")): continue
        return False
    return False
def exec_dirty(ops):
    return False

def paced(E, ops, groups, every):
    k = 0
    for i, o in enumerate(ops):
        E(o); k += len(o) if isinstance(o, list) else 1
        if groups and k >= every and not scc_live(ops[i + 1:]):
            E(groups.pop(0)); k = 0

def rot_table(srot, sK, mulK, sKx, lo, hi, blk=10):
    o = L()
    for s in range(lo, hi):
        base = s // blk * blk
        if base: o.s(f"s_add_u32 s4, {srot}, {base}", f"s_mul_i32 s{sK+s}, s4, {mulK}", f"s_lshl_b32 s{sKx+s}, s4, 7")
        else: o.s(f"s_mul_i32 s{sK+s}, {srot}, {mulK}", f"s_lshl_b32 s{sKx+s}, {srot}, 7")
        if s < 9: o.s(f"s_add_u32 {srot}, {srot}, 1", f"s_cmp_eq_u32 {srot}, {blk}", f"s_cselect_b32 {srot}, 0, {srot}")
    return o
def mod_ops(src, dst, m):
    if m == 1: return [S(f"s_mov_b32 {dst}, 0")]
    if m == 2: return [S(f"s_and_b32 {dst}, {src}, 1")]
    k = {5: 52, 10: 26}[m]
    return [S(f"s_mul_i32 s5, {src}, {k}"), S("s_lshr_b32 s5, s5, 8"), S(f"s_mul_i32 s5, s5, {m}"), S(f"s_sub_u32 {dst}, {src}, s5")]

def check(a, load, cmp_ops, sleep=2):
    uid[0] += 1; Lb = f"L_ck{uid[0]}"
    a.emit(cmp_ops)
    a.raw(f"s_cbranch_scc0 {Lb}_ok")
    a.label(f"{Lb}_sp")
    a.raw(f"s_sleep {sleep}")
    for l in (load if isinstance(load, list) else [load]): a.raw(l.text)
    a.raw("s_waitcnt vmcnt(0)")
    a.raw(f"s_add_u32 {sSpin}, {sSpin}, 1"); a.raw(f"s_cmp_gt_u32 {sSpin}, 30000"); a.raw(f"s_cbranch_scc1 {Lb}_ok")
    for o in cmp_ops:
        a.raw(o.text); a.raw("s_nop 3")
    a.raw(f"s_cbranch_scc1 {Lb}_sp")
    a.label(f"{Lb}_ok")

M_FFN, M_Q, M_W2 = 0x1ff, 0xffff0000, 0x3ffffff << 32
LV_W2, LV_A, LV_B, LV_C = "W2", "A", "B", "C"
LV = {"W2": (0, M_W2), "A": (48 * 128, M_FFN), "B": (64 * 128, M_FFN), "C": (0, M_FFN | M_Q)}
def flg_poll(vP, vA, lv):
    off, m = LV[lv]
    return [S(f"s_mov_b32 s9, {FLG_OFF + off}"), S(f"s_mov_b32 exec_lo, {m & 0xffffffff}"), S(f"s_mov_b32 exec_hi, {m >> 32}"),
            BLD(vP, 1, vA, 20, "s9", tag="poll", mod=SC1), S("s_mov_b64 exec, -1")]
def flg_cmp(vP, lv):
    off, mask = LV[lv]
    o = [VCMP("v_cmp_ne_u32", "vcc", sTag, vP)]
    if mask >> 32 == 0: o.append(S(f"s_and_b32 vcc_lo, vcc_lo, {mask}", sr=["vcc"]))
    else: o.append(S(f"s_and_b32 vcc_hi, vcc_hi, {mask >> 32}", sr=["vcc"]))
    return o
def flg_check(a, vP, vA, lv, sleep=2): check(a, flg_poll(vP, vA, lv), flg_cmp(vP, lv), sleep)
def tag_cmp(regs, t):
    o = [V("v_xor_b32", t, sTag, regs[0])]
    for r in regs[1:]: o.append(Op(f"v_bitop3_b32 {R(t)}, {R(t)}, {R(r)}, {sTag} bitop3:0xf6", "valu", r=[t, r], w=[t], sr=[sTag]))
    return o + [VCMP("v_cmp_ne_u32", "vcc", "0", t), S("s_cmp_lg_u64 vcc, 0")]
def flag_st(vT, vF, lv, base=None):
    return [S(f"s_add_u32 s9, {base or sOwn}, {LV[lv][0]}"), V("v_mov_b32", vT, sTag), BST(vT, 1, vF, 20, "s9", tag="flag", mod=SC1)]
def col_fix(AP): return [V("v_perm_b32", AP + 1, AP, AP, "s62"), V("v_perm_b32", AP, AP, AP, "s61")]

def wsum(s, t):
    return [DPP("v_add_f32", s, s, s, "quad_perm:[1,0,3,2]"), DPP("v_add_f32", s, s, s, "quad_perm:[2,3,0,1]"), DPP("v_add_f32", s, s, s, "row_half_mirror"),
            DPP("v_add_f32", s, s, s, "row_ror:8"), V("v_mov_b32", t, s), SWAP(16, s, t), V("v_add_f32", s, s, t),
            V("v_mov_b32", t, s), SWAP(32, s, t), V("v_add_f32", s, s, t)]
def merge(a, b):
    o = []
    a, b = list(a), list(b)
    na, nb = len(a), len(b)
    while a or b:
        if a and (not b or len(a) * nb >= len(b) * na): o.append(a.pop(0))
        else: o.append(b.pop(0))
    return o

def st_pre(B, lane):
    o = L()
    o.s("s_and_b32 s4, s2, 7", "s_lshl_b32 s4, s4, 5", "s_lshr_b32 s5, s2, 3", "s_add_u32 s4, s4, s5", "s_lshl_b32 s4, s4, 3", "s_add_u32 s4, s4, s3",
        "s_mul_i32 s63, s4, 1280", "s_lshl_b32 s61, s4, 7", f"s_mov_b32 s62, {EPO_OFF}")
    o.v("v_lshlrev_b32", B + 36, "4", lane).v("v_lshlrev_b32", B + 37, "2", lane).v("v_lshlrev_b32", B + 5, "24", lane)
    return o
def st_issue(B):
    return [BLD(B + 5, 1, B + 5, 20, "s62", mod=SC1), BLD(B, 4, B + 36, 24, "s63"), BLD(B + 4, 1, B + 37, 24, "s63", off=1024), S("s_mov_b32 s81, s61")]
def col_pre(B, lane, pitch):
    o = L()
    o.s(f"s_cselect_b32 s9, s9, {HUGE}", "s_cselect_b32 s7, s3, 1",
        "s_lshl_b32 s5, s8, 10", "s_lshl_b32 s8, s10, 9", "s_add_u32 s5, s5, s8", f"s_add_u32 s5, s5, {COL_OFF}",
        "s_mul_i32 s8, s10, 40", "s_add_u32 s8, s8, s3", f"s_mul_i32 s8, s8, {8*pitch}", "s_add_u32 s78, s8, s9",
        "s_cmp_eq_u32 s7, 0", f"s_cselect_b32 {sColSt}, s5, {HUGE}")
    o.v("v_lshrrev_b32", B + 38, "3", lane).v("v_and_b32", B + 39, "7", lane)
    o.v("v_mul_u32_u24", B + 38, str(pitch), B + 38).v("v_lshl_add_u32", B + 38, B + 39, "4", B + 38)
    return o
def col_issue(B, srdn, pitch):
    return [[BLD(B + 16 + 4 * it, 4, B + 38, srdn, "s78")] + ([S(f"s_add_u32 s78, s78, {64*pitch}")] if it < 4 else []) for it in range(5)]
def stats_ops(B):
    U = B + 6; s, t = B + 5, B + 4
    o = L()
    o.append(RFL(sTag, B + 5))
    for i in (4, 0, 1, 2, 3): o.v("v_lshlrev_b32", U + 2 * i, "16", B + i).v("v_and_b32", U + 2 * i + 1, "0xffff0000", B + i)
    o.s(f"s_mul_i32 {sTag}, {sTag}, 0x9e3779b1", f"s_add_u32 {sTag}, {sTag}, 0x7f4a7c15")
    o.v("v_add_f32", s, U, U + 1).v("v_add_f32", t, U + 2, U + 3)
    for i in range(4, 10, 2): o.v("v_add_f32", s, s, U + i).v("v_add_f32", t, t, U + i + 1)
    o.v("v_add_f32", s, s, t)
    o += wsum(s, t)
    o.v("v_mul_f32", s, "0xbacccccd", s)
    q = B + 1
    for i in range(10): o.v("v_add_f32", U + i, U + i, s)
    o.v("v_mul_f32", q, U, U).v("v_mul_f32", t, U + 1, U + 1)
    for i in range(2, 10, 2): o.v("v_fmac_f32", q, U + i, U + i).v("v_fmac_f32", t, U + i + 1, U + i + 1)
    o.v("v_add_f32", q, q, t)
    o += wsum(q, t)
    o.v("v_mov_b32", B + 3, "0x3727c5ac").v("v_fmac_f32", B + 3, "0x3acccccd", q).v("v_rsq_f32", B + 2, B + 3)
    o.v("v_cvt_pk_bf16_f32", t, s, s).v("v_lshlrev_b32", t, "16", t).v("v_sub_f32", t, s, t)
    o.v("v_cvt_pk_bf16_f32", B, s, t).v("v_mov_b32", B + 1, sTag)
    o.v("v_lshrrev_b32", t, "7", B + 36).v("v_lshl_add_u32", t, t, "24", B + 36)
    o.append(BST(B, 4, t, 36, "s81", tag="tab", mod=SC1))
    return o
def col_acc_ops(B, lane, xoff, dot=True):
    A = B + 40
    o = L()
    o.s("s_mov_b32 s61, 0x3f80", "s_mov_b32 s62, 0x3f800000")
    for j in range(4): o.v("v_lshlrev_b32", A + 2 * j, "16", B + 16 + j).v("v_and_b32", A + 2 * j + 1, "0xffff0000", B + 16 + j)
    for it in range(1, 5):
        for j in range(4):
            r = B + 16 + 4 * it + j
            if dot: o.v("v_dot2c_f32_bf16", A + 2 * j, "s61", r).v("v_dot2c_f32_bf16", A + 2 * j + 1, "s62", r)
            else: o.v("v_lshlrev_b32", B + 16, "16", r).v("v_and_b32", r, "0xffff0000", r).v("v_add_f32", A + 2 * j, A + 2 * j, B + 16).v("v_add_f32", A + 2 * j + 1, A + 2 * j + 1, r)
    t0 = B + 16
    o.v("v_lshrrev_b32", t0, "4", lane).v("v_lshlrev_b32", t0, "3", t0).v("v_lshl_add_u32", t0, B + 39, "5", t0)
    for j in range(4): o.append(SWAP(32, A + j, A + j + 4))
    for j in range(4): o.v("v_add_f32", A + j, A + j, A + j + 4)
    o.v("v_mov_b32", t0 + 1, sL).v("v_lshrrev_b32", t0 + 1, "2", t0 + 1)
    for j in range(2): o.append(SWAP(16, A + j, A + j + 2))
    for j in range(2): o.v("v_add_f32", A + j, A + j, A + j + 2)
    o.v("v_add_u32", t0, t0, t0 + 1).v("v_add_u32", t0, str(xoff), t0)
    for j in range(2): o.append(DPP("v_add_f32", A + j, A + j, A + j, "row_ror:8"))
    o.append(DSW(t0, A, 2))
    o.s("s_mov_b32 s61, 0x01000100", "s_mov_b32 s62, 0x03020302")
    return o
def col_fin_ops(B, xoff):
    o = L()
    o.v("v_add_u32", B + 6, str(xoff), B + 37)
    for w in range(8): o.append(DSR(B + 16 + w, 1, B + 6, off=w * 256))
    o.v("v_mov_b32", B + 9, sTag).v("v_lshlrev_b32", B + 10, "1", B + 37)
    o += [[], []]
    for w in range(4): o.v("v_add_f32", B + 16 + w, B + 16 + w, B + 20 + w)
    o.v("v_add_f32", B + 16, B + 16, B + 17).v("v_add_f32", B + 18, B + 18, B + 19).v("v_add_f32", B + 16, B + 16, B + 18)
    o.v("v_cvt_pk_bf16_f32", B + 8, B + 16, B + 16).v("v_lshlrev_b32", B + 7, "16", B + 8).v("v_sub_f32", B + 7, B + 16, B + 7)
    o.v("v_cvt_pk_bf16_f32", B + 8, B + 16, B + 7)
    o.append(BST(B + 8, 2, B + 10, 20, sColSt, tag="tab", mod=SC1))
    return o

ACTB, ACC2, WF2 = 96, 48, 8
def p2_setup(vA, lane):
    g = []
    o = L()
    o.s("s_bfe_u32 s10, s2, 0x20001", "s_lshl_b32 s10, s10, 3", "s_bfe_u32 s5, s2, 0x30003", "s_add_u32 s10, s10, s5",
        "s_and_b32 s11, s2, 1", "s_lshl_b32 s11, s11, 2", "s_lshr_b32 s6, s2, 6", "s_add_u32 s11, s11, s6"); g.append(list(o))
    o = L()
    o.s("s_bfe_u32 s6, s3, 0x10001", "s_lshl_b32 s9, s10, 1", "s_add_u32 s6, s6, s9",
        f"s_mul_i32 {sP2A}, s6, 74", "s_lshr_b32 s9, s3, 2", f"s_add_u32 {sP2A}, {sP2A}, s9", f"s_lshl_b32 {sP2A}, {sP2A}, 1",
        "s_and_b32 s9, s3, 1", f"s_add_u32 {sP2A}, {sP2A}, s9", f"s_lshl_b32 {sP2A}, {sP2A}, 10",
        "s_lshl_b32 s6, s6, 5", "s_add_u32 s6, s6, s9", f"s_mul_i32 {sP2X}, s6, 1280"); g.append(list(o))
    o = L()
    o.s(f"s_mul_i32 {sP2W}, s11, 74", f"s_add_u32 {sP2W}, {sP2W}, s3", f"s_mul_i32 {sP2W}, {sP2W}, 5120", f"s_add_u32 {sP2W}, {sP2W}, {W2F_OFF}",
        "s_mul_i32 s6, s11, 160", f"s_add_u32 {sP2X}, {sP2X}, s6", "s_lshr_b32 s6, s3, 2", "s_mul_i32 s6, s6, 96", f"s_add_u32 {sP2X}, {sP2X}, s6",
        ); g.append(list(o))
    def part(o, lo, n):
        m = ((1 << n) - 1) << lo
        o.s("s_lshl_b32 s6, s6, 7", f"s_sub_u32 s6, s6, {lo*4}", f"s_mov_b32 exec_lo, {m & 0xffffffff}", f"s_mov_b32 exec_hi, {m >> 32}")
        o.v("v_lshl_add_u32", vA, lane, "2", "s6"); o.s("s_mov_b64 exec, -1"); g.append(list(o))
    part(L().s("s_lshr_b32 s6, s10, 1"), 0, 16)
    for (lo, add) in ((16, 0), (24, 63)):
        part(L().s("s_lshl_b32 s6, s10, 6", f"s_add_u32 s6, s6, {add}", "s_max_u32 s6, s6, 14", "s_sub_u32 s6, s6, 14",
                   "s_mul_i32 s6, s6, 7183", "s_lshr_b32 s6, s6, 20", "s_add_u32 s6, s6, 16"), lo, 8)
    for (i, add) in ((0, 0), (1, 4)):
        part(L().s("s_mul_i32 s6, s11, 5", f"s_add_u32 s6, s6, {add + 128}", "s_lshr_b32 s6, s6, 2"), 32 + 13 * i, 13 if i == 0 else 19)
    g.append([S("s_mul_i32 s19, s3, 5120")])
    return g

def p2_w_item(d, vL16):
    slot = (d % 4) * 40960
    ops = []
    for i in range(5):
        g = [S(f"s_add_u32 s9, {sP2W}, {(d%2 if DBG.get('hot') else d)*8*5120 + i*1024}")]
        if d == 9: g += [S("s_cmp_lt_u32 s3, 2"), S(f"s_cselect_b32 s9, s9, {HUGE}")]
        if DBG.get("now2"): g = [S(f"s_mov_b32 s9, {HUGE}")]
        g += [S(f"s_add_u32 m0, {sL}, {slot + i*8192}"), DMA(vL16, 20, "s9", tag=("W2", d), mod="" if DBG.get("nosc1") else SC1)]
        ops.append(g)
    return ops
def pf_w2(p, vT, vD, lane):
    return [S("s_bfe_u32 s8, s2, 0x30003"), S("s_lshl_b32 s8, s8, 3"), S("s_add_u32 s8, s8, s3"), S("s_mul_i32 s8, s8, 12"), S(f"s_add_u32 s8, s8, {p*768}"),
            S("s_min_u32 s8, s8, 2948"), S("s_lshl_b32 s8, s8, 7"), S(f"s_sub_u32 s9, {sP2W}, s19"), S("s_add_u32 s9, s9, s8"),
            V("v_lshlrev_b32", vT, "7", lane), S("s_mov_b64 exec, 0xfff"), BLD(vD, 1, vT, 20, "s9", tag="pf", mod=SC1), S("s_mov_b64 exec, -1")]
def pf_act(g, vT, vD, lane):
    j0, n = [(0, 9), (9, 9), (18, 9), (27, 10)][g]
    return [S("s_lshr_b32 s8, s2, 6"), V("v_lshrrev_b32", vT, "3", lane), V("v_lshl_add_u32", vT, vT, "2", "s8"), V("v_min_u32", vT, str(n - 1), vT),
            V("v_lshlrev_b32", vT, "5", vT), V("v_and_or_b32", vT, lane, "7", vT), V("v_lshlrev_b32", vT, "7", vT),
            S(f"s_add_u32 s9, {sP2A}, {j0*4096}"), S("s_mov_b64 exec, 0xffffff"), BLD(vD, 1, vT, 20, "s9", tag="pf", mod=SC1), S("s_mov_b64 exec, -1")]
DBG = {}
def p2_act(j, vL16):
    if DBG.get("noact"): return [S(f"s_mov_b32 s9, {HUGE}"), BLD(ACTB + 4 * j, 4, vL16, 20, "s9", mod=SC1)]
    if DBG.get("hot"): return [S(f"s_add_u32 s9, {sP2A}, {(j%4)*4096}"), BLD(ACTB + 4 * j, 4, vL16, 20, "s9", mod=SC1)]
    return [S(f"s_add_u32 s9, {sP2A}, {j*4096}"), BLD(ACTB + 4 * j, 4, vL16, 20, "s9", mod="" if DBG.get("nosc1") else SC1)]

def phase2(a, st, cfg, vL16, lane, vPA, vP, pieces_done, act_done, rate, publish, epoch=False):
    E = a.emit
    PF = cfg.get("pf2", False)
    vRd = [68, 69, 70, 71, 72, 73]; vXO, vXO3, vWrt, vRr = 74, 75, 76, 77
    X0 = 78; t0, t1 = 84, 85
    EP = 86
    E(S("s_lshr_b32 s4, s3, 2")); E(S(f"s_mul_i32 s5, s4, {1024 + 3*8192}")); E(S(f"s_mul_i32 s6, s4, {1024 - 2*8192}")); E(S("s_add_u32 s6, s6, 16384"))
    E(V("v_add_u32", vRd[0], "s5", vL16)); E(V("v_add_u32", vRd[3], "s6", vL16))
    for b in (1, 2): E(V("v_add_u32", vRd[b], str(b << 16), vRd[0])); E(V("v_add_u32", vRd[3 + b], str(b << 16), vRd[3]))
    def reads(j):
        pos = ((j // 4) % 4) * 40960 + (j % 4) * 2048
        f = WF2 + 20 * (j % 2)
        o = []
        for l in range(5):
            p = pos + l * 8192 - (0 if l < 2 else 16384)
            o.append(DSR(f + 4 * l, 4, vRd[(p >> 16) + (0 if l < 2 else 3)], off=p & 0xffff))
        return o
    misc = [[V("v_lshrrev_b32", t0, "8", vL16), V("v_lshlrev_b32", t0, "3", t0), V("v_bfe_u32", t1, vL16, "4", "4"), V("v_mul_u32_u24", t1, "2560", t1), V("v_add_u32", vXO, t0, t1)],
            [S("s_cmp_lt_u32 s3, 4"), S(f"s_cselect_b32 s4, 64, {HUGE}"), V("v_add_u32", vXO3, "s4", vXO), BLD(X0, 2, vXO, 24, sP2X)],
            [BLD(X0 + 2, 2, vXO, 24, sP2X, off=32)], [BLD(X0 + 4, 2, vXO3, 24, sP2X)],
            [S("s_lshl_b32 s4, s3, 12"), S("s_add_u32 s4, s4, 81920"), V("v_add_u32", vWrt, "s4", vL16)],
            [S("s_xor_b32 s4, s3, 4"), S("s_lshl_b32 s4, s4, 12"), S("s_lshr_b32 s5, s3, 2"), S("s_lshl_b32 s5, s5, 10"), S("s_add_u32 s4, s4, s5"),
             S("s_add_u32 s4, s4, 81920"), V("v_add_u32", vRr, "s4", vL16)]]
    epl = [BLD(EP + 4 + i, 1, EP + i, 36, "0", off=4, mod=SC1) for i in range(4)]
    if epoch:
        misc.append([S("s_or_b32 s4, s2, s3"), S("s_min_u32 s4, s4, 1"), S("s_lshl_b32 s4, s4, 30"), V("v_lshl_add_u32", EP, vL16, "6", "s4")] +
                    [V("v_add_u32", EP + i, str(i * 65536), EP) for i in range(1, 4)])
        misc += [[x] for x in epl]
    a.wait_tag(("W2", 0), lg=0); a.barrier()
    st("p2s")
    E(reads(0))
    q = []
    def push(need, g): q.append((need, len(q), g)); q.sort(key=lambda e: e[:2])
    def push_item(d, frm=0):
        for g in p2_w_item(d, vL16)[frm:]: push(4 * d - 1.5, g)
    for x in range(act_done, 9): push(x, p2_act(x, vL16))
    for d in range(4):
        if pieces_done < 5 * (d + 1): push_item(d, max(0, pieces_done - 5 * d))
    nitem = 4
    PUB, CB, P3, C3 = cfg.get("pub", 3), cfg.get("cb", 1), cfg.get("p3", 9), cfg.get("c3", 13)
    RATE = rate
    LEAD = cfg.get("lead", 3)
    credit = 0.0
    for j in range(37):
        f = WF2 + 20 * (j % 2)
        nxt = []
        while q and q[0][0] <= j: E(q.pop(0)[2])
        if j + 1 < 37:
            if j == PUB:
                a.wait_tag("st"); a.barrier(); E(publish); st("pub")
            if (j + 1) % 4 == 0:
                d = (j + 1) // 4
                a.wait_tag(("W2", d), lg=0); a.barrier()
                if nitem < 10: push_item(nitem); nitem += 1
            nxt = reads(j + 1)
        if j == CB:
            flg_check(a, vP, vPA, LV_B)
            if PF: E(pf_act(1, t0, 6, lane))
            for x in range(9, 18): push(x, p2_act(x, vL16))
        if j == P3: E(flg_poll(vP, vPA, LV_C))
        if j == C3:
            flg_check(a, vP, vPA, LV_C, sleep=1)
            st("c3")
            if PF: E(pf_act(2, t0, 6, lane)); E(pf_act(3, t0, 7, lane))
            for x in range(18, 37): push(x, p2_act(x, vL16))
            for g in misc: push(36, g)
        st(f"g{j}")
        credit = min(credit + RATE, 4)
        for l in range(5):
            if cfg.get("nomfma") and l: pass
            else: E(MFMA16(ACC2 + 4 * l, f + 4 * l, ACTB + 4 * j, c="0" if j == 0 else None))
            if nxt:
                x_ = nxt.pop(0)
                if not (cfg.get("nords") and l): E(x_)
            if q and (credit >= 1 or q[0][0] <= j + LEAD):
                g = q.pop(0)[2]; E(g)
                if any(x.kind in ("vld", "dma") for x in g): credit -= 1
    fill = q
    assert not fill
    st("p2e")
    for i in range(3):
        x0 = X0 + 2 * i; o = 8 + 4 * i
        E(V("v_lshlrev_b32", o, "16", x0)); E(V("v_and_b32", o + 1, "0xffff0000", x0))
        E(V("v_lshlrev_b32", o + 2, "16", x0 + 1)); E(V("v_and_b32", o + 3, "0xffff0000", x0 + 1))
    for l in range(2, 5): E(DSW(vWrt, ACC2 + 4 * l, 4, off=(l - 2) * 1024))
    for i in range(3):
        for r in range(4): E(V("v_add_f32", 8 + 4 * i + r, 8 + 4 * i + r, ACC2 + 4 * i + r))
    a.wait(lg=0); a.barrier()
    st("red")
    RD = 96
    for i in range(3): E(DSR(RD + 4 * i, 4, vRr, off=i * 1024))
    for i in range(3):
        o = 8 + 4 * i
        for r in range(4): E(V("v_add_f32", o + r, o + r, RD + 4 * i + r))
        E(V("v_cvt_pk_bf16_f32", X0 + 2 * i, o, o + 1)); E(V("v_cvt_pk_bf16_f32", X0 + 2 * i + 1, o + 2, o + 3))
        E(BST(X0 + 2 * i, 2, vXO if i < 2 else vXO3, S_OUT, sP2X, off=32 * i if i < 2 else 0))
    st("out")
    if epoch:
        uid[0] += 1; Lb = f"L_ep{uid[0]}"
        E(S("s_or_b32 s4, s2, s3")); a.raw(f"s_cbranch_scc1 {Lb}")
        check(a, epl, tag_cmp([EP + 4, EP + 5, EP + 6, EP + 7], 24))
        E(V("v_mov_b32", 25, sTag)); E(V("v_lshlrev_b32", 24, "20", vL16)); E(S(f"s_mov_b32 s4, {EPO_OFF}"))
        E(BST(25, 1, 24, 20, "s4", mod=SC1))
        a.label(Lb)

def common_wait(a, stamps):
    E = a.emit
    a.raw("s_waitcnt lgkmcnt(0)")
    if stamps: a.raw("s_mov_b32 s77, s76")
    E(S(f"s_add_u32 s36, s20, {TOK_OFF}")); E(S("s_addc_u32 s37, s21, 0"))

def cost(o):
    if isinstance(o, list): return 1 + len(o) // 5 if o else 4
    return {"trans": 2, "perml": 2, "salu": 0.5}.get(o.kind, 1)

def gen_ffn(a, name, stamps, cfg):
    E = a.emit; st = Stamp(a, stamps, cfg.get("sel"))
    PFX = cfg.get("pf", False)
    sK, sKx = 40, 50
    XF, A0, A1, A2, WB = 96, 48, 64, 80, 28
    vL16, lane = 0, 1
    vWr = [2, 3, 4]; vDW, vSt, vCol = 5, 6, 7
    TOK = 8; AP = [12, 14]; T = 16
    vPA, vP, vF, vTt = 24, 25, 26, 27
    vDX, vDX2, vXr, vTokA = A2, A2 + 1, A2 + 2, A2 + 6
    TB = 208
    t0, t1, t2, t3 = T, T + 1, T + 2, T + 3
    sSt, sCb, sRb, sTok = "s13", "s14", "s15", "s19"
    RB = cfg.get("rblk", 10)
    o = L()
    o.s("s_mul_i32 s13, s11, 18", "s_add_u32 s13, s13, s12", f"s_lshr_b32 {sCb}, s13, 3", f"s_and_b32 {sRb}, s13, 7",
        f"s_mul_i32 s4, {sCb}, {cfg.get('rmul', 3)}", f"s_add_u32 s4, s4, {sRb}")
    o += mod_ops("s4", "s19", RB)
    o.s("s_lshl_b32 s5, s10, 3", f"s_add_u32 {sRb}, {sRb}, s5")
    o += rot_table("s19", sK, 64 * 3456, sKx, 0, 2, RB)
    o.s("s_and_b32 s4, s3, 3", "s_lshr_b32 s5, s3, 2", "s_lshl_b32 s6, s4, 3")
    o.v("v_lshrrev_b32", t0, "3", lane).v("v_and_b32", t1, "7", lane).v("v_add_u32", t2, "s6", t0)
    o.v("v_bfe_u32", t3, t2, "1", "3").v("v_xor_b32", t3, t1, t3)
    o.v("v_and_b32", vDX, "15", t2).v("v_lshrrev_b32", t2, "4", t2).v("v_lshl_add_u32", vDX, vDX, "1", t2)
    o.s(f"s_lshl_b32 s6, {sRb}, 7", "s_lshl_b32 s9, s5, 5", "s_add_u32 s6, s6, s9")
    o.v("v_add_u32", vDX, "s6", vDX).v("v_mul_u32_u24", vDX, "1280", vDX).v("v_lshl_add_u32", vDX, t3, "4", vDX).v("v_add_u32", vDX2, str(64 * 1280), vDX)
    o.v("v_lshrrev_b32", t2, "2", lane).v("v_and_b32", t2, "4", t2).v("v_xor_b32", t2, t1, t2)
    o.v("v_mul_u32_u24", vDW, "3456", t0).v("v_lshl_add_u32", vDW, t2, "4", vDW)
    o.s(f"s_mul_i32 s6, s3, {8*3456}", f"s_mul_i32 s9, {sCb}, 384", "s_add_u32 s6, s6, s9")
    o.v("v_add_u32", vDW, "s6", vDW)
    E(o); E(st_pre(TB, lane))
    items = {}
    free = list(range(9))
    qX = [("X", s) for s in range(10)]
    qW = [("W", s) for s in range(30)]
    dma_chunk = [0]
    def dma_ops(it, slot):
        kind, s = it
        base = slot * 16384
        m0 = lambda x: S(f"s_add_u32 m0, {sL}, {base+x}")
        if kind == "X":
            return [[m0(0), DMA(vDX, 24, f"s{sKx+s}", tag=it)], [m0(8192), DMA(vDX2, 24, f"s{sKx+s}", tag=it)]]
        if s < 10:
            return [[m0(0), DMA(vDW, 28, f"s{sK+s}", tag=it)], [m0(8192), DMA(vDW, 32, f"s{sK+s}", tag=it)]]
        p = (s - 10) // 5 + 1; j = (s - 10) % 5
        chunk = (p + 1) // 2; srdw = 28 if p % 2 == 1 else 32
        pre = []
        if chunk != dma_chunk[0]:
            dma_chunk[0] = chunk; pre = [V("v_add_u32", vDW, "128", vDW)]
        return [pre + [m0(0), DMA(vDW, srdw, f"s{sK+2*j}", tag=it)], [m0(8192), DMA(vDW, srdw, f"s{sK+2*j+1}", tag=it)]]
    def slot_of(it):
        kind, s = it
        return (s + 2) % 4 if kind == "X" else (4 + s % 6 if s < 10 else s % 10)
    def refill(maxstage=99):
        out = []
        while True:
            cands = []
            for q in (qX, qW):
                if q and q[0][1] <= maxstage and slot_of(q[0]) in free and not (q is qW and q[0][1] >= 10 and slot_of(q[0]) < 4 and any(slot_of(x) == slot_of(q[0]) for x in qX)):
                    cands.append((q[0][1], q is qW, q))
            if not cands: break
            cands.sort(key=lambda c: c[:2]); q = cands[0][2]
            it = q.pop(0); sl = slot_of(it); free.remove(sl); items[it] = sl; out += dma_ops(it, sl)
        if not qW and p2["go"]:
            while p2["pieces"] < 20 and p2["pieces"] // 2 in free:
                k = p2["pieces"]; out.append(p2_w_item(k // 5, vL16)[k % 5]); p2["pieces"] += 1
        return out
    p2 = {"pieces": 0, "act": 0, "go": False}
    common_wait(a, stamps)
    E(st_issue(TB))
    for g in refill(0): E(g)
    st("i0")
    o = L()
    o.s("s_bitcmp1_b32 s13, 0", f"s_cselect_b32 s{S_AUX}, s32, s28", f"s_cselect_b32 s{S_AUX+1}, s33, s29", "s_cselect_b32 s8, 57, 30",
        f"s_mov_b32 s{S_AUX+2}, {640*3456}", f"s_mov_b32 s{S_AUX+3}, 0x20000",
        f"s_mul_i32 s9, {sCb}, 3", "s_bfe_u32 s4, s13, 0x20001", "s_add_u32 s9, s9, s4", "s_add_u32 s8, s8, s9", "s_lshl_b32 s9, s9, 7", "s_cmp_lt_u32 s4, 3")
    o += col_pre(TB, lane, 3456)
    E(o)
    dq = col_issue(TB, S_AUX, 3456) + refill(1)
    o = L()
    o.s("s_mul_i32 s12, s10, 72", "s_add_u32 s12, s12, s13", "s_cmp_ge_u32 s12, 90",
        f"s_cselect_b32 s0, s{P_WO}, s{P_W2}", f"s_cselect_b32 s1, s{P_WO+1}, s{P_W2+1}")
    o += rot_table("s19", sK, 64 * 3456, sKx, 2, 10, RB)
    paced(E, o, dq, 8)
    st("i1")
    o = L()
    o.s("s_and_b32 s4, s3, 3", "s_lshr_b32 s5, s3, 2")
    o.v("v_lshrrev_b32", t0, "5", lane).v("v_lshlrev_b32", t0, "10", t0).v("v_bfe_u32", t1, lane, "2", "2").v("v_lshl_add_u32", t0, t1, "7", t0)
    o.v("v_lshrrev_b32", t1, "1", t1).v("v_xor_b32", t1, "s5", t1).v("v_lshl_add_u32", t0, t1, "6", t0)
    o.v("v_bfe_u32", t1, lane, "4", "1").v("v_lshl_add_u32", t0, t1, "5", t0).v("v_and_b32", t1, "1", lane).v("v_lshl_add_u32", t0, t1, "4", t0)
    o.v("v_bfe_u32", t1, lane, "1", "1").v("v_lshl_add_u32", vWr[0], t1, "3", t0)
    o.v("v_add_u32", vWr[1], "0x10000", vWr[0]).v("v_add_u32", vWr[2], "0x20000", vWr[0])
    o.v("v_and_b32", t0, "31", lane).v("v_lshrrev_b32", t1, "5", lane).v("v_bfe_u32", t2, lane, "1", "3").v("v_xor_b32", t2, t1, t2)
    o.s("s_lshl_b32 s6, s4, 12")
    o.v("v_lshlrev_b32", t3, "7", t0).v("v_add_u32", t3, "s6", t3)
    for s4 in range(4): o.v("v_xor_b32", vXr + s4, str(2 * s4), t2).v("v_lshl_add_u32", vXr + s4, vXr + s4, "4", t3)
    o += stats_ops(TB)
    CIN = cfg.get("cin", False)
    if not CIN: o += col_acc_ops(TB, lane, 9 * 16384)
    dq += refill(cfg.get("pre", 1))
    paced(E, o, dq, cfg.get("pace", 16))
    st("i3")
    D = L()
    D.append(list(L().s("s_and_b32 s4, s3, 3", "s_lshr_b32 s5, s3, 2", f"s_lshl_b32 s6, {sRb}, 2", "s_add_u32 s6, s6, s4", f"s_lshl_b32 {sTok}, s6, 12",
        "s_mul_i32 s6, s6, 74", f"s_lshl_b32 s7, {sCb}, 1", "s_add_u32 s6, s6, s7", "s_add_u32 s6, s6, s5", f"s_lshl_b32 {sSt}, s6, 11")))
    D.v("v_lshrrev_b32", t1, "5", lane).v("v_and_b32", t2, "15", lane).v("v_bfe_u32", t3, lane, "4", "1").v("v_lshl_add_u32", vTokA, t2, "1", t3).v("v_lshlrev_b32", vTokA, "7", vTokA)
    D.v("v_lshlrev_b32", vSt, "10", t3).v("v_lshl_add_u32", vSt, t1, "8", vSt).v("v_lshl_add_u32", vSt, t2, "4", vSt)
    D.v("v_and_b32", vCol, "19", lane).v("v_bfe_u32", t2, lane, "2", "1").v("v_lshl_add_u32", vCol, t2, "3", vCol)
    D.v("v_bfe_u32", t2, lane, "3", "1").v("v_lshl_add_u32", vCol, t2, "2", vCol)
    D.append(list(L().s(f"s_mul_i32 s6, {sCb}, 384", "s_lshr_b32 s5, s3, 2", "s_lshl_b32 s7, s5, 5", "s_add_u32 s6, s6, s7").v("v_add_u32", vCol, "s6", vCol)))
    D.v("v_lshlrev_b32", vCol, "3", vCol).v("v_lshl_add_u32", vCol, t1, "9", vCol)
    D.append(list(L().s(f"s_lshl_b32 {sOwn}, {sRb}, 7", f"s_lshl_b32 s6, {sCb}, 2", f"s_add_u32 {sOwn}, {sOwn}, s6", f"s_add_u32 {sOwn}, {sOwn}, {FLG_OFF}")))
    D.s(f"s_mov_b32 s78, {COL_OFF + 30*1024}", f"s_mov_b32 s79, {COL_OFF + 57*1024}")
    D.v("v_lshlrev_b32", vL16, "4", lane).v("v_or_b32", vF, sL, lane).v("v_min_u32", vF, "1", vF).v("v_lshlrev_b32", vF, "30", vF)
    def colload(dst, mat, chunk):
        return BLD(dst, 2, vCol, 20, "s78" if mat == 0 else "s79", off=chunk * 1024, tag="col", mod=SC1)
    def colchk(dst, mat, chunk):
        check(a, colload(dst, mat, chunk), tag_cmp([dst + 1], vTt)); E(col_fix(dst))
    M = []
    for t in range(40):
        M.append((A0, t, t // 4, 0, t % 4)); M.append((A1, t, t // 4, 1, t % 4))
    for p, acc in ((1, A2), (2, A0), (3, A1), (4, A0)):
        for t in range(40):
            M.append((acc, t, 10 + 5 * (p - 1) + t // 8, (t // 4) % 2, t % 4))
    PF = 4; NB = 5
    def reads(n):
        acc, t, s, half, sub = M[n]
        pos = items[("W", s)] * 16384 + half * 8192 + sub * 2048
        b = WB + 4 * (n % NB)
        return [DSR(b, 2, vWr[pos >> 16], off=pos & 0xffff, tr=True), DSR(b + 2, 2, vWr[pos >> 16], off=(pos & 0xffff) + 512, tr=True)]
    fill = []
    def silu(G):
        ops = []
        for i in range(0, 16, 4):
            ops += [V("v_mul_f32", T + e, G + i + e, TOK + 2) for e in range(4)]
            ops += [V("v_exp_f32", T + e, T + e) for e in range(4)]
            ops += [V("v_fma_f32", T + e, T + e, TOK + 3, TOK + 3) for e in range(4)]
            ops += [V("v_rcp_f32", T + e, T + e) for e in range(4)]
            ops += [V("v_mul_f32", G + i + e, G + i + e, T + e) for e in range(4)]
        return ops
    def fin(G, U, chunk):
        ops = []
        for ip in range(2):
            ops += [V("v_mul_f32", G + 8 * ip + e, G + 8 * ip + e, U + 8 * ip + e) for e in range(8)]
            ops += [V("v_cvt_pk_bf16_f32", T + 4 + e, G + 8 * ip + 2 * e, G + 8 * ip + 2 * e + 1) for e in range(4)]
            ops.append(BST(T + 4, 4, vSt, 20, sSt, off=512 * ip, tag="st", mod=SC1))
        if chunk < 2: ops.append(S(f"s_add_u32 {sSt}, {sSt}, {18*2048}"))
        return ops
    at_sync = {}
    def sync(s):
        its = [("W", s)] + ([("X", s)] if s < 10 else [])
        ex = at_sync.get(s, {})
        tags = its + ex.get("tags", [])
        while any(getattr(x, "tag", None) in tags for g in dq for x in g): E(dq.pop(0))
        for it in its: assert it in items
        for o_ in fill: assert getattr(o_, "tag", None) not in tags, (s, o_.text)
        tags.sort(key=lambda it: max([i for i, e in enumerate(a.vm) if e[1] == it] + [-1]))
        lg = None
        if 1 <= s <= 10:
            xr = set(rng(XF + 16 * (s - 1), 16))
            idx = [i for i, e in enumerate(a.lg) if e & xr]
            if idx: lg = len(a.lg) - 1 - max(idx)
        if s == 0: lg = 0
        if "lgw" in ex:
            idx = [i for i, e in enumerate(a.lg) if not e]
            if idx: lg = min(99 if lg is None else lg, len(a.lg) - 1 - max(idx))
        a.wait_tag(tags[-1], lg=lg)
        a.barrier()
        st(f"s{s}")
        if 1 <= s <= 10: free.append(items[("X", s - 1)])
        if s >= 2: free.append(items[("W", s - 2)])
        free.extend(ex.get("free", []))
        if "post" in ex: ex["post"]()
        dq.extend(refill())
        if s < 10:
            for s4 in range(4):
                E(DSR(XF + 4 * (4 * s + s4), 4, vXr + s4, off=items[("X", s)] * 16384))
    def chk_empty(): assert not fill, len(fill)
    if CIN:
        fill += [[]] * cfg.get("cdelay", 2) + col_acc_ops(TB, lane, 9 * 16384, dot=False)
        SA = cfg.get("sa", 4)
        at_sync[SA] = dict(lgw=1, post=lambda: (chk_empty(), fill.extend(col_fin_ops(TB, 9 * 16384) + D)))
        at_sync[SA + 2] = dict(free=[9])
    else:
        fill += col_fin_ops(TB, 9 * 16384) + D
        at_sync[2] = dict(free=[9])
    def rp_scalars(z):
        dst = f"s{50+z}"
        return list(L().s("s_mul_i32 s5, s11, 6", "s_lshr_b32 s4, s3, 2", "s_add_u32 s5, s5, s4", f"s_add_u32 s5, s5, {2*z}",
             "s_lshl_b32 s8, s5, 2", "s_and_b32 s6, s3, 3", "s_add_u32 s8, s8, s6", f"s_mul_i32 s8, s8, {8*1280}", "s_lshl_b32 s7, s10, 7", "s_add_u32 s8, s8, s7",
             "s_cmp_lt_u32 s12, 130", f"s_cselect_b32 s8, s8, {HUGE}")), \
             list(L().s("s_mul_i32 s5, s11, 6", "s_lshr_b32 s4, s3, 2", "s_add_u32 s5, s5, s4", f"s_add_u32 s5, s5, {2*z+54}",
             "s_lshl_b32 s7, s11, 1", "s_add_u32 s7, s7, s4", f"s_add_u32 s7, s7, {18*z}", "s_cmp_ge_u32 s12, 90", "s_cselect_b32 s5, s5, s7",
             "s_mul_i32 s6, s5, 5120", "s_add_u32 s6, s6, s53", "s_cmp_lt_u32 s5, 74", f"s_cselect_b32 {dst}, s6, {HUGE}",
             "s_cmp_lt_u32 s12, 130", f"s_cselect_b32 {dst}, {dst}, {HUGE}"))
    RS = [8, 9]
    def rp_issue():
        for x in RS: free.remove(x)
        pre = list(L().s("s_mul_i32 s10, s12, 57", "s_lshr_b32 s10, s10, 9", "s_mul_i32 s4, s10, 9", "s_sub_u32 s11, s12, s4",
               "s_sub_u32 s4, s12, 90", "s_lshr_b32 s5, s4, 2", "s_and_b32 s4, s4, 3", f"s_mov_b32 s{S_AUX+2}, {1728*1280}", "s_cmp_ge_u32 s12, 90",
               "s_cselect_b32 s10, s5, s10", "s_cselect_b32 s11, s4, s11", f"s_mov_b32 s{S_AUX}, s0", f"s_mov_b32 s{S_AUX+1}, s1",
               f"s_cselect_b32 s{S_AUX+2}, {640*1280}, s{S_AUX+2}"))
        dq.append(pre)
        dq.append(list(L().v("v_lshrrev_b32", T + 4, "3", lane).v("v_mul_u32_u24", T + 4, "1280", T + 4).v("v_and_b32", T + 5, "7", lane).v("v_lshl_add_u32", T + 4, T + 5, "4", T + 4)))
        for z in range(3):
            dq.append(rp_scalars(z)[0] + [S(f"s_add_u32 m0, {sL}, {RS[0]*16384 + z*8192}"), DMA(T + 4, S_AUX, "s8", tag="rp")])
        dq.append(list(L().s("s_lshl_b32 s4, s10, 2", "s_and_b32 s6, s3, 3", "s_add_u32 s4, s4, s6", "s_mul_i32 s6, s4, 52", "s_lshr_b32 s6, s6, 8",
               "s_mul_i32 s6, s6, 365", "s_add_u32 s6, s6, s4", "s_lshl_b32 s6, s6, 10", f"s_add_u32 s53, s6, {W2F_OFF}")))
        for z in range(3): dq.append(rp_scalars(z)[1])
        dq.append(list(L().s("s_cmp_ge_u32 s12, 90", "s_cselect_b32 s4, 9, 0", "s_add_u32 s4, s4, s11", "s_lshl_b32 s4, s4, 2", "s_lshl_b32 s5, s10, 7",
               "s_add_u32 s4, s4, s5", f"s_add_u32 s4, s4, {FLG_OFF + 32*128}", "s_cmp_lt_u32 s12, 130", f"s_cselect_b32 s54, s4, {0x30000000}")))
        dq.append(list(L().v("v_lshrrev_b32", vP, "4", lane).v("v_lshlrev_b32", vP, "10", vP).v("v_bfe_u32", vTt, lane, "2", "2").v("v_lshl_add_u32", vP, vTt, "7", vP)))
        dq.append(list(L().v("v_and_b32", vTt, "3", lane).v("v_lshl_add_u32", vP, vTt, "3", vP)
             .s("s_lshr_b32 s4, s3, 2", "s_lshl_b32 s4, s4, 12", "s_and_b32 s5, s3, 3", "s_lshl_b32 s5, s5, 5", "s_add_u32 s4, s4, s5", f"s_add_u32 s4, s4, {RS[0]*16384}").v("v_add_u32", vP, "s4", vP)))
    def rp_rd(z): return [DSR(T + 4, 2, vP, off=z * 8192, tr=True), DSR(T + 6, 2, vP, off=z * 8192 + 512, tr=True)]
    def rp_st(z): return BST(T + 4, 4, vL16, 20, f"s{50+z}", tag="rps", mod=SC1)
    at_sync[8] = dict(post=rp_issue)
    at_sync[11] = dict(tags=["rp"])
    at_sync[13] = dict(free=RS)
    at_sync[15] = dict(tags=["rps"], post=lambda: E(flag_st(vTt, vF, LV_W2, "s54")))
    at_sync[17] = dict(tags=["st"], post=lambda: E(flag_st(vTt, vF, LV_A)))
    at_sync[24] = dict(tags=["st"], post=lambda: E(flag_st(vTt, vF, LV_B)))
    sync(0)
    for n in range(PF): E(reads(n))
    def w2chk():
        flg_check(a, vP, vPA, LV_W2); p2["go"] = True
    def achk():
        flg_check(a, vP, vPA, LV_A)
        if PFX: E(pf_act(0, vTt, T + 4, lane))
    P1 = cfg.get("p1", 66); WC = cfg.get("wc", 168); AC = cfg.get("ac", 198)
    tokld = BLD(TOK, 4, vTokA, 36, sTok, tag="tok", mod=SC1)
    first = [tokld, colload(AP[0], 0, 0), colload(AP[1], 1, 0)]
    after = {}
    def at(n, f): after.setdefault(n, []).append(f)
    at(P1, lambda: E(first))
    at(79, lambda: (check(a, first, tag_cmp([TOK + 1, AP[0] + 1, AP[1] + 1], vTt)), E(col_fix(AP[0])), E(col_fix(AP[1])),
                    E(V("v_mov_b32", TOK + 1, TOK)), E(V("v_mul_f32", TOK + 2, NLOG2E, TOK + 2))))
    at(82, lambda: (E(MFMA32C(A0, AP[0], TOK)), E(MFMA32C(A1, AP[1], TOK)),
                    fill.extend([colload(AP[0], 0, 1), colload(AP[1], 1, 1), []] + silu(A0) + fin(A0, A1, 0))))
    for z in range(3):
        at(86 + 4 * z, lambda z=z: E(rp_rd(z))); at(89 + 4 * z, lambda z=z: E(rp_st(z)))
    at(119, lambda: colchk(AP[0], 0, 1))
    at(122, lambda: (E(MFMA32C(A2, AP[0], TOK)), fill.extend([colload(AP[0], 0, 2), [], []] + silu(A2))))
    at(159, lambda: colchk(AP[1], 1, 1))
    at(162, lambda: (E(MFMA32C(A0, AP[1], TOK)), fill.extend([colload(AP[1], 1, 2), [], []] + fin(A2, A0, 1))))
    at(124, lambda: dq.extend(p2_setup(vPA, lane)))
    at(WC - cfg.get("pl", 14), lambda: E(flg_poll(vP, vPA, LV_W2))); at(WC, w2chk)
    if PFX:
        for p in range(4): at(WC + 1 + 5 * p, lambda p=p: E(pf_w2(p, vTt, T + p, lane)))
    at(199, lambda: colchk(AP[0], 0, 2))
    at(202, lambda: (E(MFMA32C(A1, AP[0], TOK)), fill.extend([[], []] + silu(A1))))
    at(AC - cfg.get("pl", 14), lambda: E(flg_poll(vP, vPA, LV_A))); at(AC, achk)
    at(220, lambda: colchk(AP[1], 1, 2))
    at(236, lambda: E(flg_poll(3, vPA, LV_B)))
    for n in range(240):
        acc, t, s, half, sub = M[n]
        if n in (56, 80, 120, 160, 200): chk_empty()
        E(MFMA32(acc, WB + 4 * (n % NB), XF + 4 * t, c="0" if t == 0 else None))
        m = n + PF
        if m < 240:
            if m % 8 == 0: sync(m // 8)
            E(reads(m))
        for f in after.get(n, []): f()
        b = cfg.get("b1", 4.5) if (80 <= n < 120 or (CIN and n < 40)) else cfg.get("b", 3.5)
        ph = m % 8
        okd = ph in cfg.get("ph0", [1, 2, 3, 4, 5, 6]) if n < 80 else ph in (cfg.get("ph2", [2, 4, 6]) if len(dq) > 2 else cfg.get("ph1", [3, 5]))
        if dq and (okd or not any(x.kind == "dma" for x in dq[0])): E(dq.pop(0)); b -= 1
        elif n >= cfg.get("ago", 202) and ph in (1, 7) and p2["act"] < 9:
            assert p2["act"] <= t
            E(p2_act(p2["act"], vL16)); p2["act"] += 1; b -= 1
        while fill and b > 0:
            o_ = fill.pop(0); E(o_); b -= cost(o_)
    assert not fill and not dq
    st("p1e")
    E(MFMA32C(A0, AP[1], TOK))
    E(V("v_mov_b32", 2, vPA)); E(V("v_mov_b32", 4, vF))
    E(fin(A1, A0, 2))
    phase2(a, st, cfg, vL16, lane, 2, 3, p2["pieces"], p2["act"], cfg.get("rate", 1.8), flag_st(5, 4, LV_C), epoch=True)
    st.finish(1, name, cfg.get("stw", 0))
    a.raw("s_endpgm")

def gen_qkv(a, name, stamps, cfg):
    E = a.emit; st = Stamp(a, stamps, cfg.get("sel"))
    PFX = cfg.get("pf", False)
    sK, sKx = 40, 50
    vL16, lane = 0, 1
    ACC = 176; FR = [128, 152]; TB = 80
    vPA, vP, vF = 2, 3, 4
    vDW, vDX = 5, 6
    vWr, vXr = 9, 12
    TOK = 24; AP = 44; vQW = 46; T = 50
    vTt, vColA, vTokA = 57, 58, 88
    BC, BP, MC, MP, ONE, MG0 = 60, 64, 68, 70, 72, 76
    vQ, vQ2, vV, vV2, vOW, vOW2, vOR = 77, 78, 79, 80, 81, 82, 83
    n_, g_ = 85, 86
    vOG = 93
    t0, t1, t2, t3, t4 = T, T + 1, T + 2, T + 3, T + 4
    sHg, sB, sT0 = "s13", "s14", "s15"
    SLOT = 53248; WOFF = 20480; DUMMY = 3 * SLOT; XOFF = DUMMY + 1024
    sM3 = ["s68", "s69", "s70"]
    RB = cfg.get("rblkq", 10)
    E(st_pre(TB, lane))
    o = L()
    o.s("s_sub_u32 s12, s12, 18", f"s_mov_b32 s30, {640*3840}",
        "s_cmp_ge_u32 s12, 7", f"s_cselect_b32 {sHg}, 1, 0", f"s_cselect_b32 {sB}, 7, 0", f"s_sub_u32 {sB}, s12, {sB}",
        f"s_mul_i32 s4, {sHg}, {cfg.get('rmulq', 5)}", f"s_add_u32 s4, s4, {sB}")
    o += mod_ops("s4", "s19", RB)
    o.s("s_lshl_b32 s4, s11, 1", f"s_add_u32 {sHg}, {sHg}, s4", "s_mul_i32 s4, s10, 7", f"s_add_u32 {sB}, {sB}, s4")
    o += rot_table("s19", sK, 64 * 3840, sKx, 0, 1, RB)
    o.s("s_and_b32 s4, s3, 3", "s_lshr_b32 s5, s3, 2", "s_lshl_b32 s6, s4, 3")
    o.v("v_lshrrev_b32", t0, "3", lane).v("v_and_b32", t1, "7", lane).v("v_add_u32", t2, "s6", t0)
    o.v("v_bfe_u32", t3, t2, "1", "3").v("v_xor_b32", t3, t1, t3)
    o.v("v_and_b32", vDX, "15", t2).v("v_lshrrev_b32", t2, "4", t2).v("v_lshl_add_u32", vDX, vDX, "1", t2)
    o.s(f"s_mul_i32 {sT0}, {sB}, 146", "s_lshl_b32 s9, s5, 5", f"s_add_u32 s6, {sT0}, s9")
    o.v("v_add_u32", vDX, "s6", vDX).v("v_mul_u32_u24", vDX, "1280", vDX).v("v_lshl_add_u32", vDX, t3, "4", vDX).v("v_add_u32", vDX + 1, str(64 * 1280), vDX)
    o.s(f"s_mov_b32 s6, {128*1280}")
    for z in range(3): o.s(f"s_add_u32 {sM3[z]}, {sL}, {z*SLOT+16384}")
    o.s("s_cmp_lt_u32 s3, 4", f"s_cselect_b32 s6, s6, {HUGE}")
    for z in range(3): o.s(f"s_cselect_b32 {sM3[z]}, {sM3[z]}, {DUMMY}")
    o.v("v_add_u32", vDX + 2, "s6", vDX)
    E(o)
    def dma_stage(s):
        z = s % 3; base = z * SLOT
        ops = [[S(f"s_add_u32 m0, {sL}, {base}"), DMA(vDX, 24, f"s{sKx+s}", tag=s)],
               [S(f"s_add_u32 m0, {sL}, {base+8192}"), DMA(vDX + 1, 24, f"s{sKx+s}", tag=s)],
               [S(f"s_mov_b32 m0, {sM3[z]}"), DMA(vDX + 2, 24, f"s{sKx+s}", tag=s)]]
        for e in range(4):
            g = [S(f"s_add_u32 m0, {sL}, {base+WOFF+e*8192}")]
            if e == 0: g.append(DMA(vDW, 28, f"s{sK+s}", tag=s))
            else: g += [S(f"s_add_u32 s63, s{sK+s}, {e*16*3840}"), DMA(vDW, 28, "s63", tag=s)]
            ops.append(g)
        return ops
    o = L()
    o.s("s_lshl_b32 s6, s3, 1")
    o.v("v_lshrrev_b32", t0, "5", lane).v("v_add_u32", t0, "s6", t0)
    o.v("v_and_b32", t1, "3", t0).v("v_lshlrev_b32", t1, "2", t1).v("v_and_b32", t2, "31", lane).v("v_xor_b32", t1, t1, t2).v("v_min_u32", t1, "29", t1)
    o.v("v_mul_u32_u24", t2, "26", t1).v("v_lshrrev_b32", t2, "8", t2)
    o.v("v_mul_u32_u24", t3, str(1280 - 160), t2).v("v_lshl_add_u32", t3, t1, "4", t3)
    o.v("v_mul_u32_u24", vDW, "3840", t0).v("v_add_u32", vDW, vDW, t3)
    o.s(f"s_mul_i32 s6, {sHg}, 160").v("v_add_u32", vDW, "s6", vDW)
    E(o)
    common_wait(a, stamps)
    E(S(f"s_mov_b32 s28, s{P_QKV}")); E(S(f"s_mov_b32 s29, s{P_QKV+1}"))
    E(st_issue(TB))
    E(dma_stage(0))
    st("i0")
    E(rot_table("s19", sK, 64 * 3840, sKx, 1, 10, RB))
    st("i1")
    dq = []
    o = L()
    o.v("v_lshrrev_b32", t0, "5", lane).v("v_lshlrev_b32", t0, "12", t0).v("v_bfe_u32", t1, lane, "2", "2").v("v_lshl_add_u32", t0, t1, "9", t0)
    o.v("v_xor_b32", t1, "s3", t1).v("v_lshl_add_u32", t0, t1, "6", t0)
    o.v("v_bfe_u32", t1, lane, "4", "1").v("v_lshl_add_u32", t0, t1, "5", t0).v("v_and_b32", t1, "3", lane).v("v_lshl_add_u32", t0, t1, "3", t0)
    for z in range(3): o.v("v_add_u32", vWr + z, str(z * SLOT + WOFF), t0)
    o.v("v_and_b32", t0, "31", lane).v("v_lshrrev_b32", t1, "5", lane).v("v_bfe_u32", t2, lane, "1", "3").v("v_xor_b32", t2, t1, t2).v("v_lshlrev_b32", t3, "7", t0)
    for s4 in range(4):
        o.v("v_xor_b32", t4, str(2 * s4), t2).v("v_lshl_add_u32", vXr + s4, t4, "4", t3)
        for z in (1, 2): o.v("v_add_u32", vXr + 4 * z + s4, str(z * SLOT), vXr + s4)
    o.s("s_mul_i32 s4, s11, 15", "s_add_u32 s4, s4, 1", "s_lshr_b32 s4, s4, 1", "s_add_u32 s4, s4, s12",
        "s_mul_i32 s6, s4, 86", "s_lshr_b32 s6, s6, 8", "s_mul_i32 s7, s6, 3", "s_sub_u32 s4, s4, s7", "s_mul_i32 s8, s4, 10", "s_add_u32 s8, s8, s6",
        "s_lshl_b32 s9, s8, 7", "s_and_b32 s4, s11, 1", "s_add_u32 s4, s4, s12", "s_cmp_lt_u32 s4, 8")
    o += col_pre(TB, lane, 3840)
    o += stats_ops(TB)
    dq += dma_stage(1)
    paced(E, o, dq, cfg.get("paceq", 16))
    dq += dma_stage(2)
    st("i3")
    QB = 81920
    D = L()
    D += p2_setup(vPA, lane)
    D.s(f"s_lshl_b32 {sOwn}, {sB}, 5", f"s_add_u32 {sOwn}, {sOwn}, {sHg}", f"s_lshl_b32 {sOwn}, {sOwn}, 2", f"s_add_u32 {sOwn}, {sOwn}, {FLG_OFF + 16*128}",
        f"s_mov_b32 s79, {COL_OFF}")
    D.v("v_lshlrev_b32", vL16, "4", lane).v("v_or_b32", vF, sL, lane).v("v_min_u32", vF, "1", vF).v("v_lshlrev_b32", vF, "30", vF)
    D.v("v_and_b32", t0, "31", lane).v("v_lshrrev_b32", t1, "5", lane)
    D.v("v_and_b32", t2, "15", lane).v("v_bfe_u32", t3, lane, "4", "1").v("v_lshl_add_u32", t4, t2, "1", t3).v("v_add_u32", t4, sT0, t4)
    for rg in range(5):
        D.v("v_add_u32", vTokA + rg, str(32 * rg), t4).v("v_min_u32", vTokA + rg, "2047", vTokA + rg).v("v_lshlrev_b32", vTokA + rg, "7", vTokA + rg)
    D.s("s_lshl_b32 s6, s3, 5").v("v_add_u32", t0, "s6", t0).v("v_min_u32", t0, "239", t0)
    D.v("v_mul_u32_u24", t4, "205", t0).v("v_lshrrev_b32", t4, "14", t4).v("v_mul_u32_u24", t4, "560", t4).v("v_add_u32", t4, t4, t0)
    D.s(f"s_mul_i32 s6, {sHg}, 80").v("v_add_u32", t4, "s6", t4)
    D.v("v_lshrrev_b32", vColA, "6", t4).v("v_lshlrev_b32", vColA, "10", vColA).v("v_and_b32", t4, "63", t4)
    D.v("v_lshl_add_u32", vColA, t4, "3", vColA).v("v_lshl_add_u32", vColA, t1, "9", vColA)
    D.v("v_mul_u32_u24", T + 5, "3200", t3).v("v_mul_u32_u24", T + 6, "40", t2).v("v_add_u32", T + 5, T + 5, T + 6).v("v_add_u32", T + 5, str(QB), T + 5)
    D.s("s_lshl_b32 s6, s3, 3")
    for i in range(4):
        D.v("v_add_u32", t0, "s6", t1)
        if i: D.v("v_add_u32", t0, str(2 * i), t0)
        D.v("v_mul_u32_u24", t4, "52", t0).v("v_lshrrev_b32", t4, "8", t4)
        D.v("v_mul_u32_u24", T + 6, str(6400 - 40), t4).v("v_lshl_add_u32", T + 6, t0, "3", T + 6).v("v_add_u32", vQW + i, T + 6, T + 5)
    D.v("v_and_b32", n_, "15", lane).v("v_lshrrev_b32", g_, "4", lane).v("v_lshlrev_b32", t0, "2", g_).v("v_sub_u32", t0, n_, t0)
    D.v("v_mov_b32", t4, "0xf149f2ca").v("v_mov_b32", T + 5, "0xffff").v("v_mov_b32", T + 6, "0xffff0000")
    for r in range(4):
        for (BB, MM, add) in ((BC, MC, 0), (BP, MP, 16)):
            D.v("v_add_u32", t1, str(add - r), t0)
            D.append(VCMP("v_cmp_gt_u32", "s[4:5]", "8", t1))
            D.v("v_cndmask_b32", BB + r, t4, "0", "s[4:5]")
            if r % 2 == 0: D.v("v_cndmask_b32", MM + r // 2, "0", T + 5, "s[4:5]")
            else: D.v("v_cndmask_b32", t3, "0", T + 6, "s[4:5]").v("v_or_b32", MM + r // 2, MM + r // 2, t3)
    for r in range(4): D.v("v_mov_b32", ONE + r, "0x3f803f80")
    D.append(VCMP("v_cmp_eq_u32", "s[4:5]", "0", g_))
    D.v("v_cndmask_b32", MG0, "0", "-1", "s[4:5]")
    D.s("s_mul_i32 s6, s3, 3200", f"s_add_u32 s6, s6, {QB}")
    D.v("v_mul_u32_u24", t0, "40", n_).v("v_add_u32", t0, "s6", t0).v("v_lshl_add_u32", vQ, g_, "3", t0).v("v_add_u32", vQ2, "32", t0)
    D.v("v_lshrrev_b32", t0, "2", lane).v("v_mul_u32_u24", t0, "40", t0).v("v_add_u32", t0, "s6", t0).v("v_add_u32", t0, str(51200), t0)
    D.v("v_and_b32", t1, "3", lane).v("v_lshl_add_u32", vV, t1, "3", t0).v("v_add_u32", vV2, "32", t0)
    OB = QB
    D.s(f"s_mul_i32 s7, {sB}, 73", "s_and_b32 s6, s7, 7", "s_lshl_b32 s6, s6, 4", "s_bitcmp1_b32 s3, 0")
    D[-1:] = [[D[-1], S(f"s_cselect_b32 s8, {OB + 1408}, {0}"), S(f"s_max_u32 s8, s8, {OB}"), S("s_add_u32 s6, s6, s8")]]
    D.v("v_lshl_add_u32", t1, n_, "4", "s6")
    D.s("s_lshr_b32 s6, s3, 1", "s_mul_i32 s6, s6, 5")
    for (dst, second) in ((vOW, False), (vOW2, True)):
        if second: D.s("s_add_u32 s6, s6, 4").v("v_mov_b32", t0, "s6")
        else: D.v("v_add_u32", t0, "s6", g_)
        D.v("v_lshrrev_b32", t2, "1", t0).v("v_mul_u32_u24", t2, "2816", t2).v("v_add_u32", dst, t2, t1)
        D.v("v_and_b32", t2, "1", t0).v("v_lshl_add_u32", dst, t2, "3", dst)
    D.v("v_mov_b32", T + 5, str(DUMMY)).v("v_cndmask_b32", vOW2, T + 5, vOW2, "s[4:5]")
    D.v("v_lshrrev_b32", t0, "4", sL) if False else None
    D.v("v_lshl_add_u32", vOR, lane, "4", sL).v("v_add_u32", vOR, str(OB), vOR)
    D.append([S(f"s_mul_i32 s7, {sB}, 73"), S("s_add_u32 s8, s7, 7"), S(f"s_cmp_eq_u32 {sB}, 0"), S("s_cselect_b32 s8, 0, s8"),
              S("s_add_u32 s35, s7, 80"), S("s_sub_u32 s34, s35, s8"), S("s_mov_b32 s33, s8"), S("s_and_b32 s32, s7, -8"),
              S(f"s_mul_i32 s71, {sHg}, 10")])
    D.v("v_mov_b32", T + 5, HUGE)
    for i in range(4):
        D.append([S("s_lshl_b32 s6, s3, 6"), S(f"s_add_u32 s6, s6, {512*i}"), V("v_add_u32", t0, "s6", lane)])
        D.v("v_mul_u32_u24", t1, "745", t0).v("v_lshrrev_b32", t1, "16", t1)
        D.v("v_mul_u32_u24", t2, "88", t1).v("v_sub_u32", t0, t0, t2).v("v_add_u32", t0, "s32", t0)
        D.v("v_lshrrev_b32", t2, "4", t0).v("v_mul_u32_u24", vOG + i, str(74 * 2048), t2)
        D.v("v_and_b32", t2, "15", t0).v("v_lshl_add_u32", vOG + i, t2, "4", vOG + i)
        D.v("v_and_b32", t2, "1", t1).v("v_lshl_add_u32", vOG + i, t2, "10", vOG + i)
        D.v("v_lshrrev_b32", t2, "1", t1).v("v_add_u32", t2, "s71", t2)
        D.v("v_lshrrev_b32", t3, "2", t2).v("v_lshl_add_u32", vOG + i, t3, "11", vOG + i)
        D.v("v_and_b32", t2, "3", t2).v("v_lshl_add_u32", vOG + i, t2, "8", vOG + i)
        D.v("v_subrev_u32", t0, "s33", t0)
        D.append(VCMP("v_cmp_gt_u32", "s[4:5]", "s34", t0))
        D.v("v_cndmask_b32", vOG + i, T + 5, vOG + i, "s[4:5]")
        if i == 3:
            D.append(VCMP("v_cmp_gt_u32", "s[4:5]", "20", t1))
            D.v("v_cndmask_b32", vOG + i, T + 5, vOG + i, "s[4:5]")
    def reads(t):
        s, sub = t // 4, t % 4; z = s % 3; f = FR[t % 2]
        ops = [DSR(f, 2, vWr + z, off=sub * 8192, tr=True), DSR(f + 2, 2, vWr + z, off=sub * 8192 + 2048, tr=True)]
        for rg in range(5): ops.append(DSR(f + 4 + 4 * rg, 4, vXr + 4 * z + sub, off=rg * 4096))
        return ops
    tabld = [BLD(TOK + 4 * rg, 4, vTokA + rg, 36, "0", tag="tok", mod=SC1) for rg in range(5)] + [BLD(AP, 2, vColA, 20, "s79", tag="col", mod=SC1)]
    while any(x.tag == 0 for g in dq for x in g): E(dq.pop(0))
    a.wait_tag(0, lg=0); a.barrier()
    st("s0")
    E(reads(0))
    fill = []
    for t in range(40):
        f = FR[t % 2]
        nxt = []
        if t + 1 < 40:
            if (t + 1) % 4 == 0:
                s = (t + 1) // 4
                while any(x.tag == s for g in dq for x in g): E(dq.pop(0))
                a.wait_tag(s, lg=0); a.barrier()
                st(f"s{s}")
                if s + 2 < 10: dq += dma_stage(s + 2)
                if s == 1: dq += col_issue(TB, 28, 3840)
                if s == 2: fill = [[]] * 6 + col_acc_ops(TB, lane, XOFF, dot=False)
                if s == 4:
                    assert not fill; fill = col_fin_ops(TB, XOFF) + D
                if s == 8:
                    assert not fill
                    dq += [[x] for x in tabld]
            nxt = reads(t + 1)
        if t == 38:
            check(a, tabld, tag_cmp([TOK + 4 * rg + 1 for rg in range(5)] + [AP + 1], vTt))
            fill = col_fix(AP) + [V("v_mov_b32", TOK + 4 * rg + 1, TOK + 4 * rg) for rg in range(5)]
        for rg in range(5):
            E(MFMA32(ACC + 16 * rg, f, f + 4 + 4 * rg, c="0" if t == 0 else None))
            for k in range(2):
                if nxt: E(nxt.pop(0))
            b = 4
            if (rg >= 3 or t < 12) and dq: E(dq.pop(0)); b -= 1
            while fill and b > 0:
                o_ = fill.pop(0); E(o_); b -= cost(o_)
    assert not fill and not dq
    st("ge")
    for rg in range(5): E(MFMA32C(ACC + 16 * rg, AP, TOK + 4 * rg))
    for rg in range(5):
        A = ACC + 16 * rg
        if rg == 2: E(flg_poll(vP, vPA, LV_W2))
        for i in range(4):
            for e in range(4): E(V("v_mul_f32", A + 4 * i + e, A + 4 * i + e, TOK + 4 * rg + 2))
            E(V("v_cvt_pk_bf16_f32", A + 4 * i, A + 4 * i, A + 4 * i + 1)); E(V("v_cvt_pk_bf16_f32", A + 4 * i + 1, A + 4 * i + 2, A + 4 * i + 3))
            E(DSW(vQW + i, A + 4 * i, 2, off=rg * 640))
    E(flg_poll(vTt, vPA, LV_A))
    a.wait(lg=0); a.barrier()
    st("at")
    Qr = [176 + 4 * j for j in range(5)]; Kr = [196 + 4 * j for j in range(5)]
    V0, V1 = 24, 36
    for j in range(5):
        E(DSR(Qr[j], 2, vQ, off=j * 640)); E(DSR(Qr[j] + 2, 2, vQ2, off=j * 640))
        E(DSR(Kr[j], 2, vQ, off=25600 + j * 640)); E(DSR(Kr[j] + 2, 2, vQ2, off=25600 + j * 640))
    for j in range(5):
        E(DSR(V0 + 2 * (j + 1), 2, vV, off=j * 640, tr=True)); E(DSR(V1 + 2 * (j + 1), 2, vV2, off=j * 640, tr=True))
    for r in (V0, V0 + 1, V1, V1 + 1): E(V("v_mov_b32", r, "0"))
    SC = [216 + 4 * j for j in range(5)]; SP = [236 + 4 * j for j in range(5)]
    for j in range(5):
        E(V("v_and_b32", Qr[j] + 2, Qr[j] + 2, MG0)); E(V("v_and_b32", Qr[j] + 3, Qr[j] + 3, MG0))
    for j in range(5):
        E(MFMA16C(SC[j], Kr[j], Qr[j], BC))
        if j > 0: E(MFMA16C(SP[j], Kr[j - 1], Qr[j], BP))
    MX = [5 + j for j in range(5)]; TT = [10 + j for j in range(5)]
    a.barrier()
    flg_check(a, vP, vPA, LV_W2)
    flg_check(a, vTt, vPA, LV_A)
    pre = merge(p2_w_item(0, vL16) + p2_w_item(1, vL16), [p2_act(x, vL16) for x in range(1, 9)])
    def pp(k=1):
        for _ in range(k):
            if pre: E(pre.pop(0))
    for j in range(5):
        if j > 0:
            for r in range(4): E(V("v_max_f32", SC[j] + r, SC[j] + r, SP[j] + r))
        E(V("v_max3_f32", MX[j], SC[j], SC[j] + 1, SC[j] + 2)); E(V("v_max_f32", MX[j], MX[j], SC[j] + 3))
        if j % 2: pp()
    for lvl in (16, 32):
        for j in range(5): E(V("v_mov_b32", TT[j], MX[j]))
        for j in range(5): E(SWAP(lvl, MX[j], TT[j]))
        for j in range(5): E(V("v_max_f32", MX[j], MX[j], TT[j]))
        pp()
    E(S(f"s_mov_b32 s7, {CSC}"))
    for j in range(5): E(V("v_mul_f32", MX[j], NCSC, MX[j]))
    PB = [236 + 4 * j for j in range(5)]
    for j in range(5):
        for r in range(4): E(V("v_fma_f32", SC[j] + r, SC[j] + r, "s7", MX[j]))
        for r in range(4): E(V("v_exp_f32", SC[j] + r, SC[j] + r))
        pp()
    for j in range(5):
        E(V("v_cvt_pk_bf16_f32", SC[j], SC[j], SC[j] + 1)); E(V("v_cvt_pk_bf16_f32", SC[j] + 1, SC[j] + 2, SC[j] + 3))
        for h in range(2):
            E(V("v_and_b32", PB[j] + h, SC[j] + h, MP + h)); E(V("v_and_b32", PB[j] + 2 + h, SC[j] + h, MC + h))
        if j % 2: pp()
    O0 = Qr; O1 = Kr; DN = SC
    for j in range(5):
        E(MFMA16(DN[j], ONE, PB[j], c="0")); E(MFMA16(O0[j], V0 + 2 * j, PB[j], c="0")); E(MFMA16(O1[j], V1 + 2 * j, PB[j], c="0"))
    srd(a, 28, "s20", "s21", ACT_SIZE)
    for j in range(5): E(V("v_rcp_f32", DN[j], DN[j]))
    for j in range(5):
        for O in (O0[j], O1[j]):
            for r in range(4): E(V("v_mul_f32", O + r, O + r, DN[j]))
            E(V("v_cvt_pk_bf16_f32", O, O, O + 1)); E(V("v_cvt_pk_bf16_f32", O + 1, O + 2, O + 3))
        E(DSW(vOW, O0[j], 2, off=j * 256)); E(DSW(vOW2, O1[j], 2, off=j * 256))
        pp()
    a.wait(lg=0); a.barrier()
    for i in range(4): E(DSR(216 + 4 * i, 4, vOR, off=i * 8192))
    E(S(f"s_mov_b32 s6, {54*2048}"))
    for i in range(4): E(BST(216 + 4 * i, 4, vOG + i, 28, "s6", tag="st", mod=SC1))
    st("p1e")
    E(p2_act(0, vL16))
    pp(20)
    E(flg_poll(vP, vPA, LV_B))
    phase2(a, st, cfg, vL16, lane, vPA, vP, 10, 9, cfg.get("rateq", 2.0), flag_st(5, vF, LV_C))
    st.finish(2, name, cfg.get("stw", 0))
    a.raw("s_endpgm")

def gen_fused(name, stamps=False, cfg={}):
    DBG.update(cfg)
    a = Asm(); E = a.emit
    a.out.append(f".globl {name}\n.p2align 8\n.type {name},@function\n{name}:")
    E(S("s_cmp_ge_u32 s2, 256")); a.raw(f"s_cbranch_scc1 L_{name}_end")
    if stamps:
        a.raw("s_memrealtime s[76:77]"); a.raw("s_memtime s[80:81]")
    a.raw("s_load_dwordx2 s[24:25], s[0:1], 0")
    a.raw(f"s_load_dwordx4 s[{P_QKV}:{P_QKV+3}], s[0:1], 8")
    a.raw("s_load_dwordx2 s[28:29], s[0:1], 32"); a.raw("s_load_dwordx2 s[32:33], s[0:1], 40")
    a.raw(f"s_load_dwordx2 s[{P_W2}:{P_W2+1}], s[0:1], 48")
    a.raw(f"s_load_dwordx2 s[{S_OUT}:{S_OUT+1}], s[0:1], 56")
    a.raw("s_load_dwordx2 s[20:21], s[0:1], 72")
    E(V("v_lshrrev_b32", 2, "6", 0)); E(V("v_and_b32", 1, "63", 0))
    E(RFL("s3", 2))
    for (b, size) in ((20, WS_USED), (24, XBYTES), (S_OUT, XBYTES), (36, 2048 * 128), (28, 640 * 3456), (32, 640 * 3456)):
        E(S(f"s_mov_b32 s{b+2}, {size}")); E(S(f"s_mov_b32 s{b+3}, 0x20000"))
    E(S("s_and_b32 s11, s2, 3")); E(S("s_bfe_u32 s10, s2, 0x10002")); E(S("s_lshr_b32 s12, s2, 3"))
    E(S(f"s_lshl_b32 {sL}, s3, 10")); E(S(f"s_mov_b32 {sSpin}, 0"))
    E(S("s_cmp_lt_u32 s12, 18")); a.raw(f"s_cbranch_scc1 L_{name}_ffn")
    gen_qkv(a, name, stamps, cfg)
    a.label(f"L_{name}_ffn"); a.reset()
    gen_ffn(a, name, stamps, cfg)
    a.label(f"L_{name}_end"); a.raw("s_endpgm")
    return a.text(), kdesc(name, 256, 256, 102), 163840
```

```python
import sys, json
from f2 import gen_fused
NAME = "parallel_sum__sliding_local_dilated__glu_gated_swiglu__prompt"
HDR = open("cdna_kernels/" + NAME + ".s.ref").read().split("; Override launch")[0]
out = sys.argv[1]; stamps = len(sys.argv) > 2 and sys.argv[2] == "st"
cfg = json.loads(sys.argv[3]) if len(sys.argv) > 3 else {}
t, d, l = gen_fused(NAME + "_kernel", stamps, cfg)
s = HDR + f"; @launch grid=(256,1,1) block=(512,1,1) lds={l}\n" + '.amdgcn_target "amdgcn-amd-amdhsa--gfx950"\n.text\n' + t + d
open(out, "w").write(s)
```

```python
from gasm import *
from common import *

NLOG2E = "0xbfb8aa3b"; CSC = "0x3ea52b5c"; NCSC = "0xbea52b5c"
HUGE = "0x7ff00000"
SC1 = " sc1"
S_OUT, S_AUX = 64, 68
sTag = "s60"
sP2A, sP2W, sP2X, sSpin, sFlg = "s72", "s73", "s74", "s75", "s76"
sColSt, sOwn, sL = "s18", "s17", "s16"
P_QKV, P_WO, P_W2 = 52, 54, 56
NST = 18
DBG = {}
uid = [0]
STW = 0

class Stamp:
    def __init__(self, a, on, sel=None): self.a, self.on, self.n, self.sel, self.names = a, on, 0, sel, []
    def __call__(self, name="x", force=False):
        if not self.on: return
        if self.sel is not None and not force and name not in self.sel: return
        assert self.n < NST, name
        if self.n: self.a.raw(f"s_mov_b32 s{82+self.n-1}, s100")
        self.a.raw("s_memtime s[100:101]"); self.n += 1; self.names.append(name)
    def finish(self, role, name, wave=0):
        a = self.a
        if not self.on: return
        a.raw("s_waitcnt vmcnt(0)")
        self("end", True)
        a.raw("s_memrealtime s[4:5]"); a.raw("s_waitcnt lgkmcnt(0)")
        a.raw(f"s_mov_b32 s{82+self.n-1}, s100")
        a.raw(f"s_cmp_lg_u32 s3, {wave}"); a.raw(f"s_cbranch_scc1 L_{name}_end")
        for i in range(20):
            if i < self.n: a.raw(f"s_sub_u32 s6, s{82+i}, s80"); a.raw(f"v_mov_b32 v{i}, s6")
            else: a.raw(f"v_mov_b32 v{i}, 0")
        a.raw(f"v_mov_b32 v20, {sSpin}")
        a.raw(f"v_mov_b32 v21, {role}"); a.raw("v_mov_b32 v22, s77"); a.raw("v_mov_b32 v23, s4")
        a.raw("s_lshl_b32 s40, s2, 7"); a.raw(f"s_add_u32 s40, s40, {STAMP1}"); a.raw("v_mov_b32 v24, s40")
        a.raw("s_mov_b32 s22, 0x2000000"); a.raw("s_mov_b64 exec, 1")
        for i in range(6): a.raw(f"buffer_store_dwordx4 v[{4*i}:{4*i+3}], v24, s[20:23], 0 offen offset:{16*i}")
        a.comment(f"STAMPS role {role}: " + " ".join(self.names))

class L(list):
    def s(self, *ts):
        for t in ts: self.append(S(t))
        return self
    def v(self, *x, **k): self.append(V(*x, **k)); return self

def scc_live(ops):
    for o in ops:
        if isinstance(o, list): return False
        if o.kind != "salu": continue
        n = o.text.split()[0]
        if n.startswith(("s_cselect", "s_addc", "s_subb", "s_cbranch_scc")): return True
        if n.startswith(("s_mov", "s_mul_i32", "s_movk")): continue
        return False
    return False
def exec_dirty(ops):
    return False

def paced(E, ops, groups, every):
    k = 0
    for i, o in enumerate(ops):
        E(o); k += len(o) if isinstance(o, list) else 1
        if groups and k >= every and not scc_live(ops[i + 1:]):
            E(groups.pop(0)); k = 0

def rot_table(srot, sK, mulK, sKx, lo, hi, blk=10):
    o = L()
    for s in range(lo, hi):
        base = s // blk * blk
        if base: o.s(f"s_add_u32 s4, {srot}, {base}", f"s_mul_i32 s{sK+s}, s4, {mulK}", f"s_lshl_b32 s{sKx+s}, s4, 7")
        else: o.s(f"s_mul_i32 s{sK+s}, {srot}, {mulK}", f"s_lshl_b32 s{sKx+s}, {srot}, 7")
        if s < 9: o.s(f"s_add_u32 {srot}, {srot}, 1", f"s_cmp_eq_u32 {srot}, {blk}", f"s_cselect_b32 {srot}, 0, {srot}")
    return o
def mod_ops(src, dst, m):
    if m == 1: return [S(f"s_mov_b32 {dst}, 0")]
    if m == 2: return [S(f"s_and_b32 {dst}, {src}, 1")]
    k = {5: 52, 10: 26}[m]
    return [S(f"s_mul_i32 s5, {src}, {k}"), S("s_lshr_b32 s5, s5, 8"), S(f"s_mul_i32 s5, s5, {m}"), S(f"s_sub_u32 {dst}, {src}, s5")]

def check(a, load, cmp_ops, sleep=2):
    uid[0] += 1; Lb = f"L_ck{uid[0]}"
    a.emit(cmp_ops)
    a.raw(f"s_cbranch_scc0 {Lb}_ok")
    a.label(f"{Lb}_sp")
    a.raw(f"s_sleep {sleep}")
    for l in (load if isinstance(load, list) else [load]): a.raw(l.text)
    a.raw("s_waitcnt vmcnt(0)")
    a.raw(f"s_add_u32 {sSpin}, {sSpin}, 1"); a.raw(f"s_cmp_gt_u32 {sSpin}, 30000"); a.raw(f"s_cbranch_scc1 {Lb}_ok")
    for o in cmp_ops:
        a.raw(o.text); a.raw("s_nop 3")
    a.raw(f"s_cbranch_scc1 {Lb}_sp")
    a.label(f"{Lb}_ok")

M_FFN, M_Q, M_W2 = 0x1ff, 0xffff0000, 0x3ffffff << 32
LV_W2, LV_A, LV_B, LV_C = "W2", "A", "B", "C"
LV = {"W2": (0, M_W2), "A": (48 * 128, M_FFN), "B": (64 * 128, M_FFN), "C": (0, M_FFN | M_Q)}
def flg_poll(vP, vA, lv):
    off, m = LV[lv]
    return [S(f"s_mov_b32 s9, {FLG_OFF + off}"), S(f"s_mov_b32 exec_lo, {m & 0xffffffff}"), S(f"s_mov_b32 exec_hi, {m >> 32}"),
            BLD(vP, 1, vA, 20, "s9", tag="poll", mod=SC1), S("s_mov_b64 exec, -1")]
def flg_cmp(vP, lv):
    off, mask = LV[lv]
    o = [VCMP("v_cmp_ne_u32", "vcc", sTag, vP)]
    if mask >> 32 == 0: o.append(S(f"s_and_b32 vcc_lo, vcc_lo, {mask}", sr=["vcc"]))
    else: o.append(S(f"s_and_b32 vcc_hi, vcc_hi, {mask >> 32}", sr=["vcc"]))
    return o
def flg_check(a, vP, vA, lv, sleep=2): check(a, flg_poll(vP, vA, lv), flg_cmp(vP, lv), sleep)
def tag_cmp(regs, t):
    o = [V("v_xor_b32", t, sTag, regs[0])]
    for r in regs[1:]: o.append(Op(f"v_bitop3_b32 {R(t)}, {R(t)}, {R(r)}, {sTag} bitop3:0xf6", "valu", r=[t, r], w=[t], sr=[sTag]))
    return o + [VCMP("v_cmp_ne_u32", "vcc", "0", t), S("s_cmp_lg_u64 vcc, 0")]
def flag_st(vT, vF, lv, base=None):
    return [Cond("s_cmp_eq_u32 s3, 0", [S(f"s_add_u32 s9, {base or sOwn}, {LV[lv][0]}"), V("v_mov_b32", vT, sTag), BST(vT, 1, vF, 20, "s9", tag="flag", mod=SC1)])]
def col_fix(AP): return [V("v_perm_b32", AP + 1, AP, AP, "s62"), V("v_perm_b32", AP, AP, AP, "s61")]

def wsum(s, t):
    return [DPP("v_add_f32", s, s, s, "quad_perm:[1,0,3,2]"), DPP("v_add_f32", s, s, s, "quad_perm:[2,3,0,1]"), DPP("v_add_f32", s, s, s, "row_half_mirror"),
            DPP("v_add_f32", s, s, s, "row_ror:8"), V("v_mov_b32", t, s), SWAP(16, s, t), V("v_add_f32", s, s, t),
            V("v_mov_b32", t, s), SWAP(32, s, t), V("v_add_f32", s, s, t)]
def merge(a, b):
    o = []
    a, b = list(a), list(b)
    na, nb = len(a), len(b)
    while a or b:
        if a and (not b or len(a) * nb >= len(b) * na): o.append(a.pop(0))
        else: o.append(b.pop(0))
    return o

def st_pre(B, lane):
    o = L()
    o.s("s_and_b32 s4, s2, 7", "s_lshl_b32 s4, s4, 5", "s_lshr_b32 s5, s2, 3", "s_add_u32 s4, s4, s5", "s_lshl_b32 s4, s4, 3", "s_add_u32 s4, s4, s3",
        "s_mul_i32 s63, s4, 1280", "s_lshl_b32 s61, s4, 4", f"s_mov_b32 s62, {EPO_OFF}")
    o.v("v_lshlrev_b32", B + 36, "4", lane).v("v_lshlrev_b32", B + 37, "2", lane).v("v_lshlrev_b32", B + 5, "24", lane)
    return o
def st_issue(B):
    return [BLD(B + 5, 1, B + 5, 20, "s62", mod=SC1), BLD(B, 4, B + 36, 24, "s63"), BLD(B + 4, 1, B + 37, 24, "s63", off=1024), S("s_mov_b32 s81, s61")]
def col_pre(B, lane, pitch):
    o = L()
    o.s(f"s_cselect_b32 s9, s9, {HUGE}", "s_cselect_b32 s7, s3, 1",
        "s_lshl_b32 s5, s8, 10", "s_lshl_b32 s8, s10, 9", "s_add_u32 s5, s5, s8", f"s_add_u32 s5, s5, {COL_OFF}",
        "s_mul_i32 s8, s10, 40", "s_add_u32 s8, s8, s3", f"s_mul_i32 s8, s8, {8*pitch}", "s_add_u32 s78, s8, s9",
        "s_cmp_eq_u32 s7, 0", f"s_cselect_b32 {sColSt}, s5, {HUGE}")
    o.v("v_lshrrev_b32", B + 38, "3", lane).v("v_and_b32", B + 39, "7", lane)
    o.v("v_mul_u32_u24", B + 38, str(pitch), B + 38).v("v_lshl_add_u32", B + 38, B + 39, "4", B + 38)
    return o
def col_issue(B, srdn, pitch):
    return [[BLD(B + 16 + 4 * it, 4, B + 38, srdn, "s78", mod=DBG.get("cm", ""))] + ([S(f"s_add_u32 s78, s78, {64*pitch}")] if it < 4 else []) for it in range(5)]
def stats_ops(B, xoff):
    U = B + 6; s, t = B + 5, B + 4
    o = L()
    o.append(RFL(sTag, B + 5))
    for i in (4, 0, 1, 2, 3): o.v("v_lshlrev_b32", U + 2 * i, "16", B + i).v("v_and_b32", U + 2 * i + 1, "0xffff0000", B + i)
    o.s(f"s_mul_i32 {sTag}, {sTag}, 0x9e3779b1", f"s_add_u32 {sTag}, {sTag}, 0x7f4a7c15")
    o.v("v_add_f32", s, U, U + 1).v("v_add_f32", t, U + 2, U + 3)
    for i in range(4, 10, 2): o.v("v_add_f32", s, s, U + i).v("v_add_f32", t, t, U + i + 1)
    o.v("v_add_f32", s, s, t)
    o += wsum(s, t)
    o.v("v_mul_f32", s, "0xbacccccd", s)
    q = B + 1
    for i in range(10): o.v("v_add_f32", U + i, U + i, s)
    o.v("v_mul_f32", q, U, U).v("v_mul_f32", t, U + 1, U + 1)
    for i in range(2, 10, 2): o.v("v_fmac_f32", q, U + i, U + i).v("v_fmac_f32", t, U + i + 1, U + i + 1)
    o.v("v_add_f32", q, q, t)
    o += wsum(q, t)
    o.v("v_mov_b32", B + 3, "0x3727c5ac").v("v_fmac_f32", B + 3, "0x3acccccd", q).v("v_rsq_f32", B + 2, B + 3)
    o.v("v_cvt_pk_bf16_f32", t, s, s).v("v_lshlrev_b32", t, "16", t).v("v_sub_f32", t, s, t)
    o.v("v_cvt_pk_bf16_f32", B, s, t).v("v_mov_b32", B + 1, sTag)
    o.v("v_mov_b32", t, sL).v("v_lshrrev_b32", t, "6", t).v("v_add_u32", t, str(xoff + 2048), t)
    o.append(DSW(t, B, 4))
    return o
def tok_fin_ops(B, xoff):
    o = L()
    o.v("v_and_b32", B + 4, "0x70", B + 36).v("v_add_u32", B + 4, str(xoff + 2048), B + 4)
    o.append(DSR(B, 4, B + 4))
    o.v("v_lshrrev_b32", B + 5, "7", B + 36).v("v_lshl_add_u32", B + 5, B + 5, "24", B + 36)
    o.append([])
    o.append([Cond("s_cmp_eq_u32 s3, 0", [BST(B, 4, B + 5, 36, "s81", tag="tab", mod=SC1)])])
    return o
def col_acc_ops(B, lane, xoff, dot=True):
    A = B + 40
    o = L()
    o.s("s_mov_b32 s61, 0x3f80", "s_mov_b32 s62, 0x3f800000")
    for j in range(4): o.v("v_lshlrev_b32", A + 2 * j, "16", B + 16 + j).v("v_and_b32", A + 2 * j + 1, "0xffff0000", B + 16 + j)
    for it in range(1, 5):
        for j in range(4):
            r = B + 16 + 4 * it + j
            if dot: o.v("v_dot2c_f32_bf16", A + 2 * j, "s61", r).v("v_dot2c_f32_bf16", A + 2 * j + 1, "s62", r)
            else: o.v("v_lshlrev_b32", B + 16, "16", r).v("v_and_b32", r, "0xffff0000", r).v("v_add_f32", A + 2 * j, A + 2 * j, B + 16).v("v_add_f32", A + 2 * j + 1, A + 2 * j + 1, r)
    t0 = B + 16
    o.v("v_lshrrev_b32", t0, "4", lane).v("v_lshlrev_b32", t0, "3", t0).v("v_lshl_add_u32", t0, B + 39, "5", t0)
    for j in range(4): o.append(SWAP(32, A + j, A + j + 4))
    for j in range(4): o.v("v_add_f32", A + j, A + j, A + j + 4)
    o.v("v_mov_b32", t0 + 1, sL).v("v_lshrrev_b32", t0 + 1, "2", t0 + 1)
    for j in range(2): o.append(SWAP(16, A + j, A + j + 2))
    for j in range(2): o.v("v_add_f32", A + j, A + j, A + j + 2)
    o.v("v_add_u32", t0, t0, t0 + 1).v("v_add_u32", t0, str(xoff), t0)
    for j in range(2): o.append(DPP("v_add_f32", A + j, A + j, A + j, "row_ror:8"))
    o.append(DSW(t0, A, 2))
    o.s("s_mov_b32 s61, 0x01000100", "s_mov_b32 s62, 0x03020302")
    return o
def col_fin_ops(B, xoff):
    o = L()
    o.v("v_add_u32", B + 6, str(xoff), B + 37)
    for w in range(8): o.append(DSR(B + 16 + w, 1, B + 6, off=w * 256))
    o.v("v_mov_b32", B + 9, sTag).v("v_lshlrev_b32", B + 10, "1", B + 37)
    o += [[], []]
    for w in range(4): o.v("v_add_f32", B + 16 + w, B + 16 + w, B + 20 + w)
    o.v("v_add_f32", B + 16, B + 16, B + 17).v("v_add_f32", B + 18, B + 18, B + 19).v("v_add_f32", B + 16, B + 16, B + 18)
    o.v("v_cvt_pk_bf16_f32", B + 8, B + 16, B + 16).v("v_lshlrev_b32", B + 7, "16", B + 8).v("v_sub_f32", B + 7, B + 16, B + 7)
    o.v("v_cvt_pk_bf16_f32", B + 8, B + 16, B + 7)
    o.append([Cond(f"s_cmp_lt_u32 {sColSt}, {HUGE}", [BST(B + 8, 2, B + 10, 20, sColSt, tag="tab", mod=SC1)])])
    return o

ACTB, ACC2, WF2 = 96, 48, 8
def p2_setup(vA, lane, rb="s10", cb="s11"):
    g = []
    o = L()
    o.s("s_bfe_u32 s10, s2, 0x20001", "s_lshl_b32 s10, s10, 3", "s_bfe_u32 s5, s2, 0x30003", "s_add_u32 s10, s10, s5",
        "s_and_b32 s11, s2, 1", "s_lshl_b32 s11, s11, 2", "s_lshr_b32 s6, s2, 6", "s_add_u32 s11, s11, s6"); g.append(list(o))
    o = L()
    o.s("s_bfe_u32 s6, s3, 0x10001", "s_lshl_b32 s9, s10, 1", "s_add_u32 s6, s6, s9",
        f"s_mul_i32 {sP2A}, s6, 74", "s_lshr_b32 s9, s3, 2", f"s_add_u32 {sP2A}, {sP2A}, s9", f"s_lshl_b32 {sP2A}, {sP2A}, 1",
        "s_and_b32 s9, s3, 1", f"s_add_u32 {sP2A}, {sP2A}, s9", f"s_lshl_b32 {sP2A}, {sP2A}, 10",
        "s_lshl_b32 s6, s6, 5", "s_add_u32 s6, s6, s9", f"s_mul_i32 {sP2X}, s6, 1280"); g.append(list(o))
    o = L()
    o.s(f"s_mul_i32 {sP2W}, s11, 74", f"s_add_u32 {sP2W}, {sP2W}, s3", f"s_mul_i32 {sP2W}, {sP2W}, 5120", f"s_add_u32 {sP2W}, {sP2W}, {W2F_OFF}",
        "s_mul_i32 s6, s11, 160", f"s_add_u32 {sP2X}, {sP2X}, s6", "s_lshr_b32 s6, s3, 2", "s_mul_i32 s6, s6, 96", f"s_add_u32 {sP2X}, {sP2X}, s6",
        ); g.append(list(o))
    def part(o, lo, n):
        m = ((1 << n) - 1) << lo
        o.s("s_lshl_b32 s6, s6, 7", f"s_sub_u32 s6, s6, {lo*4}", f"s_mov_b32 exec_lo, {m & 0xffffffff}", f"s_mov_b32 exec_hi, {m >> 32}")
        o.v("v_lshl_add_u32", vA, lane, "2", "s6"); o.s("s_mov_b64 exec, -1"); g.append(list(o))
    part(L().s("s_lshr_b32 s6, s10, 1"), 0, 16)
    for (lo, add) in ((16, 0), (24, 63)):
        part(L().s("s_lshl_b32 s6, s10, 6", f"s_add_u32 s6, s6, {add}", "s_max_u32 s6, s6, 14", "s_sub_u32 s6, s6, 14",
                   "s_mul_i32 s6, s6, 7183", "s_lshr_b32 s6, s6, 20", "s_add_u32 s6, s6, 16"), lo, 8)
    for (i, add) in ((0, 0), (1, 4)):
        part(L().s("s_mul_i32 s6, s11, 5", f"s_add_u32 s6, s6, {add + 128}", "s_lshr_b32 s6, s6, 2"), 32 + 13 * i, 13 if i == 0 else 19)
    g = [[S(x.text.replace("s10", rb).replace("s11", cb)) if x.kind == "salu" else x for x in grp] for grp in g]
    return g

def p2_w_item(d, vL16):
    slot = (d % 4) * 40960
    ops = []
    for i in range(5):
        g = [S(f"s_add_u32 s9, {sP2W}, {(d%2 if DBG.get('hot') else d)*8*5120 + i*1024}")]
        if DBG.get("now2"): g = [S(f"s_mov_b32 s9, {HUGE}")]
        g += [S(f"s_add_u32 m0, {sL}, {slot + i*8192}"), DMA(vL16, 20, "s9", tag=("W2", d), mod="" if DBG.get("nosc1") else SC1)]
        ops.append(g)
    if d == 9: ops = [[Cond("s_cmp_lt_u32 s3, 2", sum(ops, []))]]
    return ops
def pf_w2(p, vT, vD, lane):
    return [S("s_bfe_u32 s8, s2, 0x30003"), S("s_lshl_b32 s8, s8, 3"), S("s_add_u32 s8, s8, s3"), S("s_mul_i32 s8, s8, 12"), S(f"s_add_u32 s8, s8, {p*768}"),
            S("s_min_u32 s8, s8, 2948"), S("s_lshl_b32 s8, s8, 7"), S("s_mul_i32 s9, s3, 5120"), S(f"s_sub_u32 s9, {sP2W}, s9"), S("s_add_u32 s9, s9, s8"),
            V("v_lshlrev_b32", vT, "7", lane), S("s_mov_b64 exec, 0xfff"), BLD(vD, 1, vT, 20, "s9", tag="pf", mod=SC1), S("s_mov_b64 exec, -1")]
def pf_act(g, vT, vD, lane):
    j0, n = [(0, 9), (9, 9), (18, 9), (27, 10)][g]
    return [S("s_lshr_b32 s8, s2, 6"), V("v_lshrrev_b32", vT, "3", lane), V("v_lshl_add_u32", vT, vT, "2", "s8"), V("v_min_u32", vT, str(n - 1), vT),
            V("v_lshlrev_b32", vT, "5", vT), V("v_and_or_b32", vT, lane, "7", vT), V("v_lshlrev_b32", vT, "7", vT),
            S(f"s_add_u32 s9, {sP2A}, {j0*4096}"), S("s_mov_b64 exec, 0xffffff"), BLD(vD, 1, vT, 20, "s9", tag="pf", mod=SC1), S("s_mov_b64 exec, -1")]
def p2_act(j, vL16):
    if DBG.get("noact"): return [S(f"s_mov_b32 s9, {HUGE}"), BLD(ACTB + 4 * j, 4, vL16, 20, "s9", mod=SC1)]
    if DBG.get("hot"): return [S(f"s_add_u32 s9, {sP2A}, {(j%4)*4096}"), BLD(ACTB + 4 * j, 4, vL16, 20, "s9", mod=SC1)]
    return [S(f"s_add_u32 s9, {sP2A}, {j*4096}"), BLD(ACTB + 4 * j, 4, vL16, 20, "s9", mod="" if DBG.get("nosc1") else SC1)]

def phase2(a, st, cfg, vL16, lane, vPA, vP, pieces_done, act_done, rate, publish, epoch=False):
    E = a.emit
    PF = cfg.get("pf2", False)
    vRd = [68, 69, 70, 71, 72, 73]; vXO, vXO3, vWrt, vRr = 74, 75, 76, 77
    X0 = 78; t0, t1 = 84, 85
    EP = 86
    E(S("s_lshr_b32 s4, s3, 2")); E(S(f"s_mul_i32 s5, s4, {1024 + 3*8192}")); E(S(f"s_mul_i32 s6, s4, {1024 - 2*8192}")); E(S("s_add_u32 s6, s6, 16384"))
    E(V("v_add_u32", vRd[0], "s5", vL16)); E(V("v_add_u32", vRd[3], "s6", vL16))
    for b in (1, 2): E(V("v_add_u32", vRd[b], str(b << 16), vRd[0])); E(V("v_add_u32", vRd[3 + b], str(b << 16), vRd[3]))
    def reads(j):
        pos = ((j // 4) % 4) * 40960 + (j % 4) * 2048
        f = WF2 + 20 * (j % 2)
        o = []
        for l in range(5):
            p = pos + l * 8192 - (0 if l < 2 else 16384)
            o.append(DSR(f + 4 * l, 4, vRd[(p >> 16) + (0 if l < 2 else 3)], off=p & 0xffff))
        return o
    misc = [[V("v_lshrrev_b32", t0, "8", vL16), V("v_lshlrev_b32", t0, "3", t0), V("v_bfe_u32", t1, vL16, "4", "4"), V("v_mul_u32_u24", t1, "2560", t1), V("v_add_u32", vXO, t0, t1)],
            [S("s_cmp_lt_u32 s3, 4"), S(f"s_cselect_b32 s4, 64, {HUGE}"), V("v_add_u32", vXO3, "s4", vXO), BLD(X0, 2, vXO, 24, sP2X)],
            [BLD(X0 + 2, 2, vXO, 24, sP2X, off=32)], [Cond("s_cmp_lt_u32 s3, 4", [BLD(X0 + 4, 2, vXO3, 24, sP2X)])],
            [S("s_lshl_b32 s4, s3, 12"), S("s_add_u32 s4, s4, 81920"), V("v_add_u32", vWrt, "s4", vL16)],
            [S("s_xor_b32 s4, s3, 4"), S("s_lshl_b32 s4, s4, 12"), S("s_lshr_b32 s5, s3, 2"), S("s_lshl_b32 s5, s5, 10"), S("s_add_u32 s4, s4, s5"),
             S("s_add_u32 s4, s4, 81920"), V("v_add_u32", vRr, "s4", vL16)]]
    epl = [BLD(EP + 4 + i, 1, EP + i, 36, "0", off=4, mod=SC1) for i in range(4)]
    if epoch:
        misc.append([S("s_or_b32 s4, s2, s3"), Cond("s_cmp_eq_u32 s4, 0", [V("v_lshlrev_b32", EP, "3", vL16)] +
                    [V("v_add_u32", EP + i, str(i * 8192), EP) for i in range(1, 4)] + epl)])
    a.wait_tag(("W2", 0), lg=0); a.barrier()
    st("p2s")
    E(reads(0))
    q = []
    def push(need, g): q.append((need, len(q), g)); q.sort(key=lambda e: e[:2])
    def push_item(d, frm=0):
        for g in p2_w_item(d, vL16)[frm:]: push(4 * d - 1.5, g)
    for x in range(act_done, 9): push(x, p2_act(x, vL16))
    for d in range(4):
        if pieces_done < 5 * (d + 1): push_item(d, max(0, pieces_done - 5 * d))
    nitem = 4
    PUB, CB, P3, C3 = cfg.get("pub", 3), cfg.get("cb", 1), cfg.get("p3", 9), cfg.get("c3", 13)
    RATE = rate
    LEAD = cfg.get("lead", 3)
    credit = 0.0
    for g in misc: push(cfg.get("misc", 13), g)
    for j in range(37):
        f = WF2 + 20 * (j % 2)
        nxt = []
        while q and q[0][0] <= j: E(q.pop(0)[2])
        if j + 1 < 37:
            if j == PUB:
                a.wait_tag("st"); a.barrier(); E(publish); st("pub")
            if (j + 1) % 4 == 0:
                d = (j + 1) // 4
                a.wait_tag(("W2", d), lg=0); a.barrier()
                if nitem < 10: push_item(nitem); nitem += 1
            nxt = reads(j + 1)
        if j == CB:
            flg_check(a, vP, vPA, LV_B)
            if PF: E(pf_act(1, t0, 6, lane))
            for x in range(9, 18): push(x, p2_act(x, vL16))
        if j == P3: E(flg_poll(vP, vPA, LV_C))
        if j == C3:
            flg_check(a, vP, vPA, LV_C, sleep=1)
            st("c3")
            if PF: E(pf_act(2, t0, 6, lane)); E(pf_act(3, t0, 7, lane))
            for x in range(18, 37): push(x, p2_act(x, vL16))
        st(f"g{j}")
        credit = min(credit + RATE, 4)
        for l in range(5):
            if cfg.get("nomfma") and l: pass
            else: E(MFMA16(ACC2 + 4 * l, f + 4 * l, ACTB + 4 * j, c="0" if j == 0 else None))
            if nxt:
                x_ = nxt.pop(0)
                if not (cfg.get("nords") and l): E(x_)
            if q and (credit >= 1 or q[0][0] <= j + LEAD):
                g = q.pop(0)[2]; E(g)
                if any(x.kind in ("vld", "dma") for x in g): credit -= 1
    fill = q
    assert not fill
    st("p2e")
    for i in range(3):
        x0 = X0 + 2 * i; o = 8 + 4 * i
        E(V("v_lshlrev_b32", o, "16", x0)); E(V("v_and_b32", o + 1, "0xffff0000", x0))
        E(V("v_lshlrev_b32", o + 2, "16", x0 + 1)); E(V("v_and_b32", o + 3, "0xffff0000", x0 + 1))
    for l in range(2, 5): E(DSW(vWrt, ACC2 + 4 * l, 4, off=(l - 2) * 1024))
    for i in range(3):
        for r in range(4): E(V("v_add_f32", 8 + 4 * i + r, 8 + 4 * i + r, ACC2 + 4 * i + r))
    a.wait(lg=0); a.barrier()
    st("red")
    RD = 96
    for i in range(3): E(DSR(RD + 4 * i, 4, vRr, off=i * 1024))
    for i in range(3):
        o = 8 + 4 * i
        for r in range(4): E(V("v_add_f32", o + r, o + r, RD + 4 * i + r))
        E(V("v_cvt_pk_bf16_f32", X0 + 2 * i, o, o + 1)); E(V("v_cvt_pk_bf16_f32", X0 + 2 * i + 1, o + 2, o + 3))
        E(BST(X0 + 2 * i, 2, vXO if i < 2 else vXO3, S_OUT, sP2X, off=32 * i if i < 2 else 0))
    st("out")
    if epoch:
        uid[0] += 1; Lb = f"L_ep{uid[0]}"
        E(S("s_or_b32 s4, s2, s3")); a.raw(f"s_cbranch_scc1 {Lb}")
        check(a, epl, tag_cmp([EP + 4, EP + 5, EP + 6, EP + 7], 24))
        E(V("v_mov_b32", 25, sTag)); E(V("v_lshlrev_b32", 24, "20", vL16)); E(S(f"s_mov_b32 s4, {EPO_OFF}"))
        E(BST(25, 1, 24, 20, "s4", mod=SC1))
        a.label(Lb)

def common_wait(a, stamps):
    E = a.emit
    a.raw("s_waitcnt lgkmcnt(0)")
    if stamps: a.raw("s_mov_b32 s77, s76")
    E(S(f"s_add_u32 s36, s20, {TOK_OFF}")); E(S("s_addc_u32 s37, s21, 0"))

def cost(o):
    if isinstance(o, list): return 1 + len(o) // 5 if o else 4
    return {"trans": 2, "perml": 2, "salu": 0.5}.get(o.kind, 1)

def gen_ffn(a, name, stamps, cfg):
    E = a.emit; st = Stamp(a, stamps, cfg.get("sel"))
    PFX = cfg.get("pf", False)
    sK, sKx = 40, 50
    XF, A0, A1, A2, WB = 96, 48, 64, 80, 28
    vL16, lane = 0, 1
    vWr = [2, 3, 4]; vDW, vSt, vCol = 5, 6, 7
    TOK = 8; AP = [12, 14]; T = 16
    vPA, vP, vF, vTt = 24, 25, 26, 27
    vDX, vDX2, vXr, vTokA = A2, A2 + 1, A2 + 2, A2 + 6
    TB = 208; XO = 9 * 16384 + 8192
    t0, t1, t2, t3 = T, T + 1, T + 2, T + 3
    sSt, sCb, sRb, sTok = "s13", "s14", "s15", "s19"
    RB = cfg.get("rblk", 10)
    o = L()
    o.s("s_mul_i32 s13, s11, 18", "s_add_u32 s13, s13, s12", f"s_lshr_b32 {sCb}, s13, 3", f"s_and_b32 {sRb}, s13, 7",
        f"s_mul_i32 s4, {sCb}, {cfg.get('rmul', 3)}", f"s_add_u32 s4, s4, {sRb}")
    o += mod_ops("s4", "s19", RB)
    o.s("s_lshl_b32 s5, s10, 3", f"s_add_u32 {sRb}, {sRb}, s5")
    o += rot_table("s19", sK, 64 * 3456, sKx, 0, 2, RB)
    o.s("s_and_b32 s4, s3, 3", "s_lshr_b32 s5, s3, 2", "s_lshl_b32 s6, s4, 3")
    o.v("v_lshrrev_b32", t0, "3", lane).v("v_and_b32", t1, "7", lane).v("v_add_u32", t2, "s6", t0)
    o.v("v_bfe_u32", t3, t2, "1", "3").v("v_xor_b32", t3, t1, t3)
    o.v("v_and_b32", vDX, "15", t2).v("v_lshrrev_b32", t2, "4", t2).v("v_lshl_add_u32", vDX, vDX, "1", t2)
    o.s(f"s_lshl_b32 s6, {sRb}, 7", "s_lshl_b32 s9, s5, 5", "s_add_u32 s6, s6, s9")
    o.v("v_add_u32", vDX, "s6", vDX).v("v_mul_u32_u24", vDX, "1280", vDX).v("v_lshl_add_u32", vDX, t3, "4", vDX).v("v_add_u32", vDX2, str(64 * 1280), vDX)
    o.v("v_lshrrev_b32", t2, "2", lane).v("v_and_b32", t2, "4", t2).v("v_xor_b32", t2, t1, t2)
    o.v("v_mul_u32_u24", vDW, "3456", t0).v("v_lshl_add_u32", vDW, t2, "4", vDW)
    o.s(f"s_mul_i32 s6, s3, {8*3456}", f"s_mul_i32 s9, {sCb}, 384", "s_add_u32 s6, s6, s9")
    o.v("v_add_u32", vDW, "s6", vDW)
    E(o); E(st_pre(TB, lane))
    items = {}
    free = list(range(10))
    qX = [("X", s) for s in range(10)]
    qW = [("W", s) for s in range(30)]
    dma_chunk = [0]
    def dma_ops(it, slot):
        kind, s = it
        base = slot * 16384
        m0 = lambda x: S(f"s_add_u32 m0, {sL}, {base+x}")
        if kind == "X":
            return [[m0(0), DMA(vDX, 24, f"s{sKx+s}", tag=it)], [m0(8192), DMA(vDX2, 24, f"s{sKx+s}", tag=it)]]
        if s < 10:
            return [[m0(0), DMA(vDW, 28, f"s{sK+s}", tag=it, mod=DBG.get("wm", ""))], [m0(8192), DMA(vDW, 32, f"s{sK+s}", tag=it, mod=DBG.get("wm", ""))]]
        p = (s - 10) // 5 + 1; j = (s - 10) % 5
        chunk = (p + 1) // 2; srdw = 28 if p % 2 == 1 else 32
        pre = []
        if chunk != dma_chunk[0]:
            dma_chunk[0] = chunk; pre = [V("v_add_u32", vDW, "128", vDW)]
        return [pre + [m0(0), DMA(vDW, srdw, f"s{sK+2*j}", tag=it, mod=DBG.get("wm", ""))], [m0(8192), DMA(vDW, srdw, f"s{sK+2*j+1}", tag=it, mod=DBG.get("wm", ""))]]
    def slot_of(it):
        kind, s = it
        return (s + 2) % 4 if kind == "X" else ([4, 5, 6, 7, 8, 4, 5, 6, 7, 4][s] if s < 10 else s % 10)
    def refill(maxstage=99):
        out = []
        while True:
            cands = []
            for q in (qX, qW):
                if q and q[0][1] <= maxstage and slot_of(q[0]) in free and not (q is qW and q[0][1] >= 10 and slot_of(q[0]) < 4 and any(slot_of(x) == slot_of(q[0]) for x in qX)):
                    cands.append((q[0][1], q is qW, q))
            if not cands: break
            cands.sort(key=lambda c: c[:2]); q = cands[0][2]
            it = q.pop(0); sl = slot_of(it); free.remove(sl); items[it] = sl; out += dma_ops(it, sl)
        if not qW and p2["go"]:
            while p2["pieces"] < 20 and p2["pieces"] // 2 in free:
                k = p2["pieces"]; out.append(p2_w_item(k // 5, vL16)[k % 5]); p2["pieces"] += 1
        return out
    p2 = {"pieces": 0, "act": 0, "go": False}
    common_wait(a, stamps)
    E(st_issue(TB))
    if cfg.get("pfw0"):
        E(L().s("s_and_b32 s4, s13, 7", "s_lshl_b32 s4, s4, 3", "s_add_u32 s4, s4, s3", f"s_mul_i32 s4, s4, 3456", f"s_mul_i32 s5, {sCb}, 384", "s_add_u32 s4, s4, s5")
          .v("v_mul_u32_u24", TB + 6, str(64 * 3456), lane).s("s_mov_b64 exec, 0x3ff"))
        E(BLD(TB + 7, 1, TB + 6, 28, "s4")); E(BLD(TB + 8, 1, TB + 6, 32, "s4")); E(S("s_mov_b64 exec, -1"))
    for g in refill(0): E(g)
    st("i0")
    o = L()
    o.s("s_bitcmp1_b32 s13, 0", f"s_cselect_b32 s{S_AUX}, s32, s28", f"s_cselect_b32 s{S_AUX+1}, s33, s29", "s_cselect_b32 s8, 57, 30",
        f"s_mov_b32 s{S_AUX+2}, {640*3456}", f"s_mov_b32 s{S_AUX+3}, 0x20000",
        f"s_mul_i32 s9, {sCb}, 3", "s_bfe_u32 s4, s13, 0x20001", "s_add_u32 s9, s9, s4", "s_add_u32 s8, s8, s9", "s_lshl_b32 s9, s9, 7", "s_cmp_lt_u32 s4, 3")
    o += col_pre(TB, lane, 3456)
    E(o)
    CL = cfg.get("cl", False)
    dq = ([] if CL else col_issue(TB, S_AUX, 3456)) + refill(1)
    o = L()
    o.s("s_mul_i32 s12, s10, 72", "s_add_u32 s12, s12, s13", "s_cmp_ge_u32 s12, 90",
        f"s_cselect_b32 s0, s{P_WO}, s{P_W2}", f"s_cselect_b32 s1, s{P_WO+1}, s{P_W2+1}")
    o += rot_table("s19", sK, 64 * 3456, sKx, 2, 10, RB)
    paced(E, o, dq, 8)
    st("i1")
    assert not CL and not any(x.kind == "vld" for g in dq for x in g)
    rp_pre = L()
    rp_pre.s("s_mul_i32 s10, s12, 57", "s_lshr_b32 s10, s10, 9", "s_mul_i32 s4, s10, 9", "s_sub_u32 s11, s12, s4",
        "s_sub_u32 s4, s12, 90", "s_lshr_b32 s5, s4, 2", "s_and_b32 s4, s4, 3", f"s_mov_b32 s{S_AUX+2}, {1728*1280}", "s_cmp_ge_u32 s12, 90",
        "s_cselect_b32 s10, s5, s10", "s_cselect_b32 s11, s4, s11", f"s_mov_b32 s{S_AUX}, s0", f"s_mov_b32 s{S_AUX+1}, s1",
        f"s_cselect_b32 s{S_AUX+2}, {640*1280}, s{S_AUX+2}", "s_cselect_b32 s4, 5, 6", "s_cselect_b32 s5, 5, 2", "s_cselect_b32 s6, 54, 0",
        "s_cselect_b32 s7, 2, 18", "s_cselect_b32 s8, 9, 0",
        "s_add_u32 s8, s8, s11", "s_lshl_b32 s8, s8, 2",
        "s_mul_i32 s4, s4, s11", "s_lshr_b32 s9, s3, 2", "s_add_u32 s4, s4, s9",
        "s_mul_i32 s5, s5, s11", "s_add_u32 s5, s5, s6", "s_add_u32 s5, s5, s9",
        "s_lshl_b32 s4, s4, 2", "s_and_b32 s6, s3, 3", "s_add_u32 s4, s4, s6", f"s_mul_i32 s4, s4, {8*1280}", "s_lshl_b32 s9, s10, 7", "s_add_u32 s63, s4, s9",
        "s_add_u32 s8, s8, s9",
        "s_lshl_b32 s4, s10, 2", "s_add_u32 s4, s4, s6", "s_mul_i32 s6, s4, 52", "s_lshr_b32 s6, s6, 8", "s_mul_i32 s6, s6, 365", "s_add_u32 s6, s6, s4",
        "s_mul_i32 s5, s5, 5", "s_add_u32 s6, s6, s5", "s_lshl_b32 s6, s6, 10", f"s_add_u32 s76, s6, {W2F_OFF}",
        f"s_add_u32 s10, s8, {FLG_OFF + 32*128}",
        "s_cmp_lt_u32 s12, 130", f"s_cselect_b32 s76, s76, {0x70000000}", f"s_cselect_b32 s63, s63, {0x70000000}", f"s_cselect_b32 s10, s10, {0x30000000}",
        "s_mul_i32 s7, s7, 5120", "s_add_u32 s0, s76, s7", "s_add_u32 s1, s0, s7",
        "s_lshr_b32 s4, s3, 2", "s_mul_i32 s4, s4, s12", "s_cmp_ge_u32 s4, 90", f"s_cselect_b32 s1, {0x70000000}, s1")
    rp_pre.v("v_lshrrev_b32", T + 4, "3", lane).v("v_mul_u32_u24", T + 4, "1280", T + 4).v("v_and_b32", T + 5, "7", lane).v("v_lshl_add_u32", T + 4, T + 5, "4", T + 4)
    rp_pre.v("v_lshrrev_b32", vP, "4", lane).v("v_lshlrev_b32", vP, "10", vP).v("v_bfe_u32", vTt, lane, "2", "2").v("v_lshl_add_u32", vP, vTt, "7", vP)
    rp_pre.v("v_and_b32", vTt, "3", lane).v("v_lshl_add_u32", vP, vTt, "3", vP)
    rp_pre.s("s_lshr_b32 s4, s3, 2", "s_lshl_b32 s4, s4, 12", "s_and_b32 s5, s3, 3", "s_lshl_b32 s5, s5, 5", "s_add_u32 s4, s4, s5", f"s_add_u32 s4, s4, {8*16384}").v("v_add_u32", vP, "s4", vP)
    o = L()
    o.s("s_and_b32 s4, s3, 3", "s_lshr_b32 s5, s3, 2")
    o.v("v_lshrrev_b32", t0, "5", lane).v("v_lshlrev_b32", t0, "10", t0).v("v_bfe_u32", t1, lane, "2", "2").v("v_lshl_add_u32", t0, t1, "7", t0)
    o.v("v_lshrrev_b32", t1, "1", t1).v("v_xor_b32", t1, "s5", t1).v("v_lshl_add_u32", t0, t1, "6", t0)
    o.v("v_bfe_u32", t1, lane, "4", "1").v("v_lshl_add_u32", t0, t1, "5", t0).v("v_and_b32", t1, "1", lane).v("v_lshl_add_u32", t0, t1, "4", t0)
    o.v("v_bfe_u32", t1, lane, "1", "1").v("v_lshl_add_u32", vWr[0], t1, "3", t0)
    o.v("v_add_u32", vWr[1], "0x10000", vWr[0]).v("v_add_u32", vWr[2], "0x20000", vWr[0])
    o.v("v_and_b32", t0, "31", lane).v("v_lshrrev_b32", t1, "5", lane).v("v_bfe_u32", t2, lane, "1", "3").v("v_xor_b32", t2, t1, t2)
    o.s("s_lshl_b32 s6, s4, 12")
    o.v("v_lshlrev_b32", t3, "7", t0).v("v_add_u32", t3, "s6", t3)
    for s4 in range(4): o.v("v_xor_b32", vXr + s4, str(2 * s4), t2).v("v_lshl_add_u32", vXr + s4, vXr + s4, "4", t3)
    o += rp_pre
    o += p2_setup(vPA, lane, "s4", "s11")
    o += stats_ops(TB, XO)
    CIN = cfg.get("cin", False)
    if not CIN: o += col_acc_ops(TB, lane, XO)
    dq += refill(cfg.get("pre", 1))
    paced(E, o, dq, cfg.get("pace", 16))
    st("i3")
    D = L()
    D.append(list(L().s("s_and_b32 s4, s3, 3", "s_lshr_b32 s5, s3, 2", f"s_lshl_b32 s6, {sRb}, 2", "s_add_u32 s6, s6, s4", f"s_lshl_b32 {sTok}, s6, 9",
        "s_mul_i32 s6, s6, 74", f"s_lshl_b32 s7, {sCb}, 1", "s_add_u32 s6, s6, s7", "s_add_u32 s6, s6, s5", f"s_lshl_b32 {sSt}, s6, 11")))
    D.v("v_lshrrev_b32", t1, "5", lane).v("v_and_b32", t2, "15", lane).v("v_bfe_u32", t3, lane, "4", "1").v("v_lshl_add_u32", vTokA, t2, "1", t3).v("v_lshlrev_b32", vTokA, "4", vTokA)
    D.v("v_lshlrev_b32", vSt, "10", t3).v("v_lshl_add_u32", vSt, t1, "8", vSt).v("v_lshl_add_u32", vSt, t2, "4", vSt)
    D.v("v_and_b32", vCol, "19", lane).v("v_bfe_u32", t2, lane, "2", "1").v("v_lshl_add_u32", vCol, t2, "3", vCol)
    D.v("v_bfe_u32", t2, lane, "3", "1").v("v_lshl_add_u32", vCol, t2, "2", vCol)
    D.append(list(L().s(f"s_mul_i32 s6, {sCb}, 384", "s_lshr_b32 s5, s3, 2", "s_lshl_b32 s7, s5, 5", "s_add_u32 s6, s6, s7").v("v_add_u32", vCol, "s6", vCol)))
    D.v("v_lshlrev_b32", vCol, "3", vCol).v("v_lshl_add_u32", vCol, t1, "9", vCol)
    D.append(list(L().s(f"s_lshl_b32 {sOwn}, {sRb}, 7", f"s_lshl_b32 s6, {sCb}, 2", f"s_add_u32 {sOwn}, {sOwn}, s6", f"s_add_u32 {sOwn}, {sOwn}, {FLG_OFF}")))
    D.s(f"s_mov_b32 s78, {COL_OFF + 30*1024}", f"s_mov_b32 s79, {COL_OFF + 57*1024}")
    D.v("v_lshlrev_b32", vL16, "4", lane).v("v_or_b32", vF, sL, lane).v("v_min_u32", vF, "1", vF).v("v_lshlrev_b32", vF, "30", vF)
    def colload(dst, mat, chunk):
        return BLD(dst, 2, vCol, 20, "s78" if mat == 0 else "s79", off=chunk * 1024, tag="col", mod=SC1)
    def colchk(dst, mat, chunk):
        E(col_fix(dst))
    M = []
    for t in range(40):
        M.append((A0, t, t // 4, 0, t % 4)); M.append((A1, t, t // 4, 1, t % 4))
    for p, acc in ((1, A2), (2, A0), (3, A1), (4, A0)):
        for t in range(40):
            M.append((acc, t, 10 + 5 * (p - 1) + t // 8, (t // 4) % 2, t % 4))
    PF = 4; NB = 5
    def reads(n):
        acc, t, s, half, sub = M[n]
        pos = items[("W", s)] * 16384 + half * 8192 + sub * 2048
        b = WB + 4 * (n % NB)
        return [DSR(b, 2, vWr[pos >> 16], off=pos & 0xffff, tr=True), DSR(b + 2, 2, vWr[pos >> 16], off=(pos & 0xffff) + 512, tr=True)]
    fill = []
    def silu(G):
        ops = []
        if cfg.get("nosilu"): return ops
        for i in range(0, 16, 4):
            ops += [V("v_mul_f32", T + e, G + i + e, TOK + 2) for e in range(4)]
            ops += [V("v_exp_f32", T + e, T + e) for e in range(4)]
            ops += [V("v_fma_f32", T + e, T + e, TOK + 3, TOK + 3) for e in range(4)]
            ops += [V("v_rcp_f32", T + e, T + e) for e in range(4)]
            ops += [V("v_mul_f32", G + i + e, G + i + e, T + e) for e in range(4)]
        return ops
    def fin(G, U, chunk):
        ops = []
        for ip in range(2):
            ops += [V("v_mul_f32", G + 8 * ip + e, G + 8 * ip + e, U + 8 * ip + e) for e in range(8)]
            ops += [V("v_cvt_pk_bf16_f32", T + 4 + e, G + 8 * ip + 2 * e, G + 8 * ip + 2 * e + 1) for e in range(4)]
            mk = lambda: BST(T + 4, 4, vSt, 20, sSt, off=512 * ip, tag="st", mod=SC1)
            if cfg.get("stag") and chunk < 2: ops += [[Cond("s_cmp_lt_u32 s3, 4", [mk()])], [], [Cond("s_cmp_ge_u32 s3, 4", [mk()])]]
            else: ops.append(mk())
        if chunk < 2: ops.append(S(f"s_add_u32 {sSt}, {sSt}, {18*2048}"))
        return ops
    at_sync = {}
    def sync(s):
        its = [("W", s)] + ([("X", s)] if s < 10 else [])
        ex = at_sync.get(s, {})
        tags = its + ex.get("tags", [])
        while any(getattr(x, "tag", None) in tags for g in dq for x in g): E(dq.pop(0))
        for it in its: assert it in items
        for o_ in fill:
            for x_ in (o_ if isinstance(o_, list) else [o_]): assert getattr(x_, "tag", None) not in tags, (s, x_.text)
        tags.sort(key=lambda it: max([i for i, e in enumerate(a.vm) if e[1] == it] + [-1]))
        lg = None
        if 1 <= s <= 10:
            xr = set(rng(XF + 16 * (s - 1), 16))
            idx = [i for i, e in enumerate(a.lg) if e & xr]
            if idx: lg = len(a.lg) - 1 - max(idx)
        if s == 0: lg = 0
        if "lgw" in ex:
            idx = [i for i, e in enumerate(a.lg) if not e]
            if idx: lg = min(99 if lg is None else lg, len(a.lg) - 1 - max(idx))
        a.wait_tag(tags[-1], lg=lg)
        if not (cfg.get("nobar") and s > 11 and s % 2): a.barrier()
        st(f"s{s}")
        if 1 <= s <= 10: free.append(items[("X", s - 1)])
        if s >= 2: free.append(items[("W", s - 2)])
        free.extend(ex.get("free", []))
        if "post" in ex: ex["post"]()
        dq.extend(refill())
        if s < 10:
            for s4 in range(4):
                E(DSR(XF + 4 * (4 * s + s4), 4, vXr + s4, off=items[("X", s)] * 16384))
    def chk_empty(): assert not fill, len(fill)
    fill += tok_fin_ops(TB, XO)
    if CIN:
        fill += [[]] * cfg.get("cdelay", 2) + col_acc_ops(TB, lane, XO, dot=False)
        SA = cfg.get("sa", 4)
        at_sync[SA] = dict(lgw=1, post=lambda: (chk_empty(), fill.extend(col_fin_ops(TB, XO) + D)))
    else:
        fill += col_fin_ops(TB, XO) + D
    RS = [8, 9]
    def rp_issue():
        for x in RS: free.remove(x)
        for z in range(3):
            dq.append([S(f"s_add_u32 m0, {sL}, {RS[0]*16384 + z*8192}"), DMA(T + 4, S_AUX, "s63", tag="rp", mod=DBG.get("rm", " nt")), S(f"s_add_u32 s63, s63, {64*1280}")])
    def rp_rd(z): return [DSR(T + 4, 2, vP, off=z * 8192, tr=True), DSR(T + 6, 2, vP, off=z * 8192 + 512, tr=True)]
    def rp_st(z): return BST(T + 4, 4, vL16, 20, ["s76", "s0", "s1"][z], tag="rps", mod=SC1)
    at_sync[8] = dict(post=rp_issue)
    at_sync[11] = dict(tags=["rp"])
    at_sync[13] = dict(free=RS)
    at_sync[15] = dict(tags=["rps"], post=lambda: E(flag_st(vTt, vF, LV_W2, "s10")))
    at_sync[17] = dict(tags=["st"], post=lambda: E(flag_st(vTt, vF, LV_A)))
    at_sync[24] = dict(tags=["st"], post=lambda: E(flag_st(vTt, vF, LV_B)))
    sync(0)
    if CL:
        k = cfg.get("clpos", 4)
        dq[k:k] = col_issue(TB, S_AUX, 3456)
    for n in range(PF): E(reads(n))
    def w2chk():
        flg_check(a, vP, vPA, LV_W2); p2["go"] = True
    def achk():
        flg_check(a, vP, vPA, LV_A)
        if PFX: E(pf_act(0, vTt, T + 4, lane))
    P1 = cfg.get("p1", 63); WC = cfg.get("wc", 168); AC = cfg.get("ac", 198)
    tokld = BLD(TOK, 4, vTokA, 36, sTok, tag="tok", mod=SC1)
    first = [tokld, colload(AP[0], 0, 0), colload(AP[1], 1, 0)] + \
            [BLD(T + i, 1, vCol, 20, "s78" if i % 2 == 0 else "s79", off=(1 + i // 2) * 1024 + 4, mod=SC1) for i in range(4)]
    after = {}
    def at(n, f): after.setdefault(n, []).append(f)
    for i, x in enumerate(first): at(P1 - 6 + 2 * i, lambda x=x: E(x))
    at(79, lambda: (check(a, first, tag_cmp([TOK + 1, AP[0] + 1, AP[1] + 1, T, T + 1, T + 2, T + 3], vTt)), E(col_fix(AP[0])), E(col_fix(AP[1])),
                    E(V("v_mov_b32", TOK + 1, TOK)), E(V("v_mul_f32", TOK + 2, NLOG2E, TOK + 2))))
    at(82, lambda: (E(MFMA32C(A0, AP[0], TOK)), E(MFMA32C(A1, AP[1], TOK)),
                    fill.extend([colload(AP[0], 0, 1), colload(AP[1], 1, 1), []] + silu(A0) + fin(A0, A1, 0))))
    for z in range(3):
        if cfg.get("stag"):
            at(85 + 5 * z, lambda z=z: E(rp_rd(z))); at(87 + 5 * z, lambda z=z: E(Cond("s_cmp_lt_u32 s3, 4", [rp_st(z)]))); at(89 + 5 * z, lambda z=z: E(Cond("s_cmp_ge_u32 s3, 4", [rp_st(z)])))
        else:
            at(86 + 4 * z, lambda z=z: E(rp_rd(z))); at(89 + 4 * z, lambda z=z: E(rp_st(z)))
    at(119, lambda: colchk(AP[0], 0, 1))
    at(122, lambda: (E(MFMA32C(A2, AP[0], TOK)), fill.extend([colload(AP[0], 0, 2), [], []] + silu(A2))))
    at(159, lambda: colchk(AP[1], 1, 1))
    at(162, lambda: (E(MFMA32C(A0, AP[1], TOK)), fill.extend([colload(AP[1], 1, 2), [], []] + fin(A2, A0, 1))))
    at(WC - cfg.get("pl", 14), lambda: E(flg_poll(vP, vPA, LV_W2))); at(WC, w2chk)
    if PFX:
        for p in range(4): at(WC + 1 + 5 * p, lambda p=p: E(pf_w2(p, vTt, T + p, lane)))
    at(199, lambda: colchk(AP[0], 0, 2))
    at(202, lambda: (E(MFMA32C(A1, AP[0], TOK)), fill.extend([[], []] + silu(A1))))
    at(AC - cfg.get("pl", 14), lambda: E(flg_poll(vP, vPA, LV_A))); at(AC, achk)
    at(220, lambda: colchk(AP[1], 1, 2))
    at(236, lambda: E(flg_poll(3, vPA, LV_B)))
    for n in range(240):
        acc, t, s, half, sub = M[n]
        if n in (56, 80, 120, 160, 200): chk_empty()
        E(MFMA32(acc, WB + 4 * (n % NB), XF + 4 * t, c="0" if t == 0 else None))
        m = n + PF
        if m < 240:
            if m % 8 == 0: sync(m // 8)
            E(reads(m))
        for f in after.get(n, []): f()
        b = cfg.get("b1", 4.5) if (80 <= n < 120 or (CIN and n < 40)) else cfg.get("b", 3.5)
        ph = m % 8
        okd = ph in cfg.get("ph0", [1, 2, 3, 4, 5, 6]) if n < 80 else ph in (cfg.get("ph2", [2, 4, 6]) if len(dq) > 2 else cfg.get("ph1", [3, 5]))
        if dq and (okd or not any(x.kind == "dma" for x in dq[0])):
            g_ = dq.pop(0)
            if cfg.get("nodma") and n >= 80: g_ = [x for x in g_ if x.kind != "dma"]
            E(g_); b -= 1
        elif n >= cfg.get("ago", 202) and ph in (1, 7) and p2["act"] < 9:
            assert p2["act"] <= t
            E(p2_act(p2["act"], vL16)); p2["act"] += 1; b -= 1
        while fill and b > 0:
            o_ = fill.pop(0); E(o_); b -= cost(o_)
    assert not fill and not dq
    st("p1e")
    E(MFMA32C(A0, AP[1], TOK))
    E(V("v_mov_b32", 2, vPA)); E(V("v_mov_b32", 4, vF))
    E(fin(A1, A0, 2))
    phase2(a, st, cfg, vL16, lane, 2, 3, p2["pieces"], p2["act"], cfg.get("rate", 1.8), flag_st(5, 4, LV_C), epoch=True)
    st.finish(1, name, cfg.get("stw", 0))
    a.raw("s_endpgm")

def gen_qkv(a, name, stamps, cfg):
    E = a.emit; st = Stamp(a, stamps, cfg.get("sel"))
    PFX = cfg.get("pf", False)
    sK, sKx = 40, 50
    vL16, lane = 0, 1
    ACC = 176; FR = [128, 152]; TB = 80
    vPA, vP, vF = 2, 3, 4
    vDW, vDX = 5, 6
    vWr, vXr = 9, 12
    TOK = 24; AP = 44; vQW = 46; T = 50
    vTt, vColA, vTokA = 57, 58, 88
    BC, BP, MC, MP, ONE, MG0 = 60, 64, 68, 70, 72, 76
    vQ, vQ2, vV, vV2, vOW, vOW2, vOR = 77, 78, 79, 80, 81, 82, 83
    n_, g_ = 85, 86
    vOG = 93
    t0, t1, t2, t3, t4 = T, T + 1, T + 2, T + 3, T + 4
    sHg, sB, sT0 = "s13", "s14", "s15"
    SLOT = 53248; WOFF = 20480; DUMMY = 3 * SLOT; XOFF = DUMMY + 1024
    sM3 = ["s68", "s69", "s70"]
    RB = cfg.get("rblkq", 10)
    E(st_pre(TB, lane))
    o = L()
    o.s("s_sub_u32 s12, s12, 18", f"s_mov_b32 s30, {640*3840}",
        "s_cmp_ge_u32 s12, 7", f"s_cselect_b32 {sHg}, 1, 0", f"s_cselect_b32 {sB}, 7, 0", f"s_sub_u32 {sB}, s12, {sB}",
        f"s_mul_i32 s4, {sHg}, {cfg.get('rmulq', 5)}", f"s_add_u32 s4, s4, {sB}")
    o += mod_ops("s4", "s19", RB)
    o.s("s_lshl_b32 s4, s11, 1", f"s_add_u32 {sHg}, {sHg}, s4", "s_mul_i32 s4, s10, 7", f"s_add_u32 {sB}, {sB}, s4")
    o += rot_table("s19", sK, 64 * 3840, sKx, 0, 1, RB)
    o.s("s_and_b32 s4, s3, 3", "s_lshr_b32 s5, s3, 2", "s_lshl_b32 s6, s4, 3")
    o.v("v_lshrrev_b32", t0, "3", lane).v("v_and_b32", t1, "7", lane).v("v_add_u32", t2, "s6", t0)
    o.v("v_bfe_u32", t3, t2, "1", "3").v("v_xor_b32", t3, t1, t3)
    o.v("v_and_b32", vDX, "15", t2).v("v_lshrrev_b32", t2, "4", t2).v("v_lshl_add_u32", vDX, vDX, "1", t2)
    o.s(f"s_mul_i32 {sT0}, {sB}, 146", "s_lshl_b32 s9, s5, 5", f"s_add_u32 s6, {sT0}, s9")
    o.v("v_add_u32", vDX, "s6", vDX).v("v_mul_u32_u24", vDX, "1280", vDX).v("v_lshl_add_u32", vDX, t3, "4", vDX).v("v_add_u32", vDX + 1, str(64 * 1280), vDX)
    o.v("v_add_u32", vDX + 2, str(128 * 1280), vDX)
    E(o)
    def dma_stage(s):
        z = s % 3; base = z * SLOT
        ops = [[S(f"s_add_u32 m0, {sL}, {base}"), DMA(vDX, 24, f"s{sKx+s}", tag=s)],
               [S(f"s_add_u32 m0, {sL}, {base+8192}"), DMA(vDX + 1, 24, f"s{sKx+s}", tag=s)],
               [Cond("s_cmp_lt_u32 s3, 4", [S(f"s_add_u32 m0, {sL}, {base+16384}"), DMA(vDX + 2, 24, f"s{sKx+s}", tag=s)])]]
        for e in range(4):
            g = [S(f"s_add_u32 m0, {sL}, {base+WOFF+e*8192}")]
            if e == 0: g.append(DMA(vDW, 28, f"s{sK+s}", tag=s, mod=DBG.get("wm", "")))
            else: g += [S(f"s_add_u32 s63, s{sK+s}, {e*16*3840}"), DMA(vDW, 28, "s63", tag=s, mod=DBG.get("wm", ""))]
            ops.append(g)
        return ops
    o = L()
    o.s("s_lshl_b32 s6, s3, 1")
    o.v("v_lshrrev_b32", t0, "5", lane).v("v_add_u32", t0, "s6", t0)
    o.v("v_and_b32", t1, "3", t0).v("v_lshlrev_b32", t1, "2", t1).v("v_and_b32", t2, "31", lane).v("v_xor_b32", t1, t1, t2).v("v_min_u32", t1, "29", t1)
    o.v("v_mul_u32_u24", t2, "26", t1).v("v_lshrrev_b32", t2, "8", t2)
    o.v("v_mul_u32_u24", t3, str(1280 - 160), t2).v("v_lshl_add_u32", t3, t1, "4", t3)
    o.v("v_mul_u32_u24", vDW, "3840", t0).v("v_add_u32", vDW, vDW, t3)
    o.s(f"s_mul_i32 s6, {sHg}, 160").v("v_add_u32", vDW, "s6", vDW)
    E(o)
    common_wait(a, stamps)
    E(S(f"s_mov_b32 s28, s{P_QKV}")); E(S(f"s_mov_b32 s29, s{P_QKV+1}"))
    E(st_issue(TB))
    E(dma_stage(0))
    st("i0")
    E(rot_table("s19", sK, 64 * 3840, sKx, 1, 10, RB))
    st("i1")
    dq = []
    o = L()
    o.v("v_lshrrev_b32", t0, "5", lane).v("v_lshlrev_b32", t0, "12", t0).v("v_bfe_u32", t1, lane, "2", "2").v("v_lshl_add_u32", t0, t1, "9", t0)
    o.v("v_xor_b32", t1, "s3", t1).v("v_lshl_add_u32", t0, t1, "6", t0)
    o.v("v_bfe_u32", t1, lane, "4", "1").v("v_lshl_add_u32", t0, t1, "5", t0).v("v_and_b32", t1, "3", lane).v("v_lshl_add_u32", t0, t1, "3", t0)
    for z in range(3): o.v("v_add_u32", vWr + z, str(z * SLOT + WOFF), t0)
    o.v("v_and_b32", t0, "31", lane).v("v_lshrrev_b32", t1, "5", lane).v("v_bfe_u32", t2, lane, "1", "3").v("v_xor_b32", t2, t1, t2).v("v_lshlrev_b32", t3, "7", t0)
    for s4 in range(4):
        o.v("v_xor_b32", t4, str(2 * s4), t2).v("v_lshl_add_u32", vXr + s4, t4, "4", t3)
        for z in (1, 2): o.v("v_add_u32", vXr + 4 * z + s4, str(z * SLOT), vXr + s4)
    o.s("s_mul_i32 s4, s11, 15", "s_add_u32 s4, s4, 1", "s_lshr_b32 s4, s4, 1", "s_add_u32 s4, s4, s12",
        "s_mul_i32 s6, s4, 86", "s_lshr_b32 s6, s6, 8", "s_mul_i32 s7, s6, 3", "s_sub_u32 s4, s4, s7", "s_mul_i32 s8, s4, 10", "s_add_u32 s8, s8, s6",
        "s_lshl_b32 s9, s8, 7", "s_and_b32 s4, s11, 1", "s_add_u32 s4, s4, s12", "s_cmp_lt_u32 s4, 8")
    o += col_pre(TB, lane, 3840)
    o += stats_ops(TB, XOFF)
    dq += dma_stage(1)
    paced(E, o, dq, cfg.get("paceq", 16))
    dq += dma_stage(2)
    st("i3")
    QB = 81920
    D = L()
    D += p2_setup(vPA, lane)
    D.s(f"s_lshl_b32 {sOwn}, {sB}, 5", f"s_add_u32 {sOwn}, {sOwn}, {sHg}", f"s_lshl_b32 {sOwn}, {sOwn}, 2", f"s_add_u32 {sOwn}, {sOwn}, {FLG_OFF + 16*128}",
        f"s_mov_b32 s79, {COL_OFF}")
    D.v("v_lshlrev_b32", vL16, "4", lane).v("v_or_b32", vF, sL, lane).v("v_min_u32", vF, "1", vF).v("v_lshlrev_b32", vF, "30", vF)
    D.v("v_and_b32", t0, "31", lane).v("v_lshrrev_b32", t1, "5", lane)
    D.v("v_and_b32", t2, "15", lane).v("v_bfe_u32", t3, lane, "4", "1").v("v_lshl_add_u32", t4, t2, "1", t3).v("v_add_u32", t4, sT0, t4)
    for rg in range(5):
        D.v("v_add_u32", vTokA + rg, str(32 * rg), t4).v("v_min_u32", vTokA + rg, "2047", vTokA + rg).v("v_lshlrev_b32", vTokA + rg, "4", vTokA + rg)
    D.s("s_lshl_b32 s6, s3, 5").v("v_add_u32", t0, "s6", t0).v("v_min_u32", t0, "239", t0)
    D.v("v_mul_u32_u24", t4, "205", t0).v("v_lshrrev_b32", t4, "14", t4).v("v_mul_u32_u24", t4, "560", t4).v("v_add_u32", t4, t4, t0)
    D.s(f"s_mul_i32 s6, {sHg}, 80").v("v_add_u32", t4, "s6", t4)
    D.v("v_lshrrev_b32", vColA, "6", t4).v("v_lshlrev_b32", vColA, "10", vColA).v("v_and_b32", t4, "63", t4)
    D.v("v_lshl_add_u32", vColA, t4, "3", vColA).v("v_lshl_add_u32", vColA, t1, "9", vColA)
    D.v("v_mul_u32_u24", T + 5, "3200", t3).v("v_mul_u32_u24", T + 6, "40", t2).v("v_add_u32", T + 5, T + 5, T + 6).v("v_add_u32", T + 5, str(QB), T + 5)
    D.s("s_lshl_b32 s6, s3, 3")
    for i in range(4):
        D.v("v_add_u32", t0, "s6", t1)
        if i: D.v("v_add_u32", t0, str(2 * i), t0)
        D.v("v_mul_u32_u24", t4, "52", t0).v("v_lshrrev_b32", t4, "8", t4)
        D.v("v_mul_u32_u24", T + 6, str(6400 - 40), t4).v("v_lshl_add_u32", T + 6, t0, "3", T + 6).v("v_add_u32", vQW + i, T + 6, T + 5)
    D.v("v_and_b32", n_, "15", lane).v("v_lshrrev_b32", g_, "4", lane).v("v_lshlrev_b32", t0, "2", g_).v("v_sub_u32", t0, n_, t0)
    D.v("v_mov_b32", t4, "0xf149f2ca").v("v_mov_b32", T + 5, "0xffff").v("v_mov_b32", T + 6, "0xffff0000")
    for r in range(4):
        for (BB, MM, add) in ((BC, MC, 0), (BP, MP, 16)):
            D.v("v_add_u32", t1, str(add - r), t0)
            D.append(VCMP("v_cmp_gt_u32", "s[4:5]", "8", t1))
            D.v("v_cndmask_b32", BB + r, t4, "0", "s[4:5]")
            if r % 2 == 0: D.v("v_cndmask_b32", MM + r // 2, "0", T + 5, "s[4:5]")
            else: D.v("v_cndmask_b32", t3, "0", T + 6, "s[4:5]").v("v_or_b32", MM + r // 2, MM + r // 2, t3)
    for r in range(4): D.v("v_mov_b32", ONE + r, "0x3f803f80")
    D.append(VCMP("v_cmp_eq_u32", "s[4:5]", "0", g_))
    D.v("v_cndmask_b32", MG0, "0", "-1", "s[4:5]")
    D.s("s_mul_i32 s6, s3, 3200", f"s_add_u32 s6, s6, {QB}")
    D.v("v_mul_u32_u24", t0, "40", n_).v("v_add_u32", t0, "s6", t0).v("v_lshl_add_u32", vQ, g_, "3", t0).v("v_add_u32", vQ2, "32", t0)
    D.v("v_lshrrev_b32", t0, "2", lane).v("v_mul_u32_u24", t0, "40", t0).v("v_add_u32", t0, "s6", t0).v("v_add_u32", t0, str(51200), t0)
    D.v("v_and_b32", t1, "3", lane).v("v_lshl_add_u32", vV, t1, "3", t0).v("v_add_u32", vV2, "32", t0)
    OB = QB
    D.s(f"s_mul_i32 s7, {sB}, 73", "s_and_b32 s6, s7, 7", "s_lshl_b32 s6, s6, 4", "s_bitcmp1_b32 s3, 0")
    D[-1:] = [[D[-1], S(f"s_cselect_b32 s8, {OB + 1408}, {0}"), S(f"s_max_u32 s8, s8, {OB}"), S("s_add_u32 s6, s6, s8")]]
    D.v("v_lshl_add_u32", t1, n_, "4", "s6")
    D.s("s_lshr_b32 s6, s3, 1", "s_mul_i32 s6, s6, 5")
    for (dst, second) in ((vOW, False), (vOW2, True)):
        if second: D.s("s_add_u32 s6, s6, 4").v("v_mov_b32", t0, "s6")
        else: D.v("v_add_u32", t0, "s6", g_)
        D.v("v_lshrrev_b32", t2, "1", t0).v("v_mul_u32_u24", t2, "2816", t2).v("v_add_u32", dst, t2, t1)
        D.v("v_and_b32", t2, "1", t0).v("v_lshl_add_u32", dst, t2, "3", dst)
    D.v("v_mov_b32", T + 5, str(DUMMY)).v("v_cndmask_b32", vOW2, T + 5, vOW2, "s[4:5]")
    D.v("v_lshrrev_b32", t0, "4", sL) if False else None
    D.v("v_lshl_add_u32", vOR, lane, "4", sL).v("v_add_u32", vOR, str(OB), vOR)
    D.append([S(f"s_mul_i32 s7, {sB}, 73"), S("s_add_u32 s8, s7, 7"), S(f"s_cmp_eq_u32 {sB}, 0"), S("s_cselect_b32 s8, 0, s8"),
              S("s_add_u32 s35, s7, 80"), S("s_sub_u32 s34, s35, s8"), S("s_mov_b32 s33, s8"), S("s_and_b32 s32, s7, -8"),
              S(f"s_mul_i32 s71, {sHg}, 10")])
    D.v("v_mov_b32", T + 5, HUGE)
    for i in range(4):
        D.append([S("s_lshl_b32 s6, s3, 6"), S(f"s_add_u32 s6, s6, {512*i}"), V("v_add_u32", t0, "s6", lane)])
        D.v("v_mul_u32_u24", t1, "745", t0).v("v_lshrrev_b32", t1, "16", t1)
        D.v("v_mul_u32_u24", t2, "88", t1).v("v_sub_u32", t0, t0, t2).v("v_add_u32", t0, "s32", t0)
        D.v("v_lshrrev_b32", t2, "4", t0).v("v_mul_u32_u24", vOG + i, str(74 * 2048), t2)
        D.v("v_and_b32", t2, "15", t0).v("v_lshl_add_u32", vOG + i, t2, "4", vOG + i)
        D.v("v_and_b32", t2, "1", t1).v("v_lshl_add_u32", vOG + i, t2, "10", vOG + i)
        D.v("v_lshrrev_b32", t2, "1", t1).v("v_add_u32", t2, "s71", t2)
        D.v("v_lshrrev_b32", t3, "2", t2).v("v_lshl_add_u32", vOG + i, t3, "11", vOG + i)
        D.v("v_and_b32", t2, "3", t2).v("v_lshl_add_u32", vOG + i, t2, "8", vOG + i)
        D.v("v_subrev_u32", t0, "s33", t0)
        D.append(VCMP("v_cmp_gt_u32", "s[4:5]", "s34", t0))
        D.v("v_cndmask_b32", vOG + i, T + 5, vOG + i, "s[4:5]")
        if i == 3:
            D.append(VCMP("v_cmp_gt_u32", "s[4:5]", "20", t1))
            D.v("v_cndmask_b32", vOG + i, T + 5, vOG + i, "s[4:5]")
    def reads(t):
        s, sub = t // 4, t % 4; z = s % 3; f = FR[t % 2]
        ops = [DSR(f, 2, vWr + z, off=sub * 8192, tr=True), DSR(f + 2, 2, vWr + z, off=sub * 8192 + 2048, tr=True)]
        for rg in range(5): ops.append(DSR(f + 4 + 4 * rg, 4, vXr + 4 * z + sub, off=rg * 4096))
        return ops
    tabld = [BLD(TOK + 4 * rg, 4, vTokA + rg, 36, "0", tag="tok", mod=SC1) for rg in range(5)] + [BLD(AP, 2, vColA, 20, "s79", tag="col", mod=SC1)]
    while any(x.tag == 0 for g in dq for x in g): E(dq.pop(0))
    if cfg.get("prio"): E(Cond("s_cmp_ge_u32 s3, 4", [S("s_setprio 1")]))
    a.wait_tag(0, lg=0); a.barrier()
    st("s0")
    E(reads(0))
    fill = tok_fin_ops(TB, XOFF)
    for t in range(40):
        f = FR[t % 2]
        nxt = []
        if t + 1 < 40:
            if (t + 1) % 4 == 0:
                s = (t + 1) // 4
                while any(x.tag == s for g in dq for x in g): E(dq.pop(0))
                a.wait_tag(s, lg=0); a.barrier()
                st(f"s{s}")
                if s + 2 < 10: dq += dma_stage(s + 2)
                if s == 1: dq += col_issue(TB, 28, 3840)
                if s == 2: fill = [[]] * 6 + col_acc_ops(TB, lane, XOFF, dot=False)
                if s == 4:
                    assert not fill; fill = col_fin_ops(TB, XOFF) + D
                if s == 8:
                    assert not fill
                    dq += [[x] for x in tabld]
            nxt = reads(t + 1)
        if t == 38:
            check(a, tabld, tag_cmp([TOK + 4 * rg + 1 for rg in range(5)] + [AP + 1], vTt))
            fill = col_fix(AP) + [V("v_mov_b32", TOK + 4 * rg + 1, TOK + 4 * rg) for rg in range(5)]
        for rg in range(5):
            E(MFMA32(ACC + 16 * rg, f, f + 4 + 4 * rg, c="0" if t == 0 else None))
            for k in range(2):
                if nxt: E(nxt.pop(0))
            b = 4
            if (rg >= 3 or t < 12) and dq: E(dq.pop(0)); b -= 1
            while fill and b > 0:
                o_ = fill.pop(0); E(o_); b -= cost(o_)
    assert not fill and not dq
    st("ge")
    for rg in range(5): E(MFMA32C(ACC + 16 * rg, AP, TOK + 4 * rg))
    for rg in range(5):
        A = ACC + 16 * rg
        if rg == 2: E(flg_poll(vP, vPA, LV_W2))
        for i in range(4):
            for e in range(4): E(V("v_mul_f32", A + 4 * i + e, A + 4 * i + e, TOK + 4 * rg + 2))
            E(V("v_cvt_pk_bf16_f32", A + 4 * i, A + 4 * i, A + 4 * i + 1)); E(V("v_cvt_pk_bf16_f32", A + 4 * i + 1, A + 4 * i + 2, A + 4 * i + 3))
            E(DSW(vQW + i, A + 4 * i, 2, off=rg * 640))
    E(flg_poll(vTt, vPA, LV_A))
    a.wait(lg=0); a.barrier()
    st("at")
    Qr = [176 + 4 * j for j in range(5)]; Kr = [196 + 4 * j for j in range(5)]
    V0, V1 = 24, 36
    for j in range(5):
        E(DSR(Qr[j], 2, vQ, off=j * 640)); E(DSR(Qr[j] + 2, 2, vQ2, off=j * 640))
        E(DSR(Kr[j], 2, vQ, off=25600 + j * 640)); E(DSR(Kr[j] + 2, 2, vQ2, off=25600 + j * 640))
    for j in range(5):
        E(DSR(V0 + 2 * (j + 1), 2, vV, off=j * 640, tr=True)); E(DSR(V1 + 2 * (j + 1), 2, vV2, off=j * 640, tr=True))
    for r in (V0, V0 + 1, V1, V1 + 1): E(V("v_mov_b32", r, "0"))
    SC = [216 + 4 * j for j in range(5)]; SP = [236 + 4 * j for j in range(5)]
    for j in range(5):
        E(V("v_and_b32", Qr[j] + 2, Qr[j] + 2, MG0)); E(V("v_and_b32", Qr[j] + 3, Qr[j] + 3, MG0))
    for j in range(5):
        E(MFMA16C(SC[j], Kr[j], Qr[j], BC))
        if j > 0: E(MFMA16C(SP[j], Kr[j - 1], Qr[j], BP))
    MX = [5 + j for j in range(5)]; TT = [10 + j for j in range(5)]
    a.barrier()
    flg_check(a, vP, vPA, LV_W2)
    flg_check(a, vTt, vPA, LV_A)
    pre = merge(p2_w_item(0, vL16) + p2_w_item(1, vL16), [p2_act(x, vL16) for x in range(1, 9)])
    def pp(k=1):
        for _ in range(k):
            if pre: E(pre.pop(0))
    for j in range(5):
        if j > 0:
            for r in range(4): E(V("v_max_f32", SC[j] + r, SC[j] + r, SP[j] + r))
        E(V("v_max3_f32", MX[j], SC[j], SC[j] + 1, SC[j] + 2)); E(V("v_max_f32", MX[j], MX[j], SC[j] + 3))
        if j % 2: pp()
    for lvl in (16, 32):
        for j in range(5): E(V("v_mov_b32", TT[j], MX[j]))
        for j in range(5): E(SWAP(lvl, MX[j], TT[j]))
        for j in range(5): E(V("v_max_f32", MX[j], MX[j], TT[j]))
        pp()
    E(S(f"s_mov_b32 s7, {CSC}"))
    for j in range(5): E(V("v_mul_f32", MX[j], NCSC, MX[j]))
    PB = [236 + 4 * j for j in range(5)]
    for j in range(5):
        for r in range(4): E(V("v_fma_f32", SC[j] + r, SC[j] + r, "s7", MX[j]))
        for r in range(4): E(V("v_exp_f32", SC[j] + r, SC[j] + r))
        pp()
    for j in range(5):
        E(V("v_cvt_pk_bf16_f32", SC[j], SC[j], SC[j] + 1)); E(V("v_cvt_pk_bf16_f32", SC[j] + 1, SC[j] + 2, SC[j] + 3))
        for h in range(2):
            E(V("v_and_b32", PB[j] + h, SC[j] + h, MP + h)); E(V("v_and_b32", PB[j] + 2 + h, SC[j] + h, MC + h))
        if j % 2: pp()
    O0 = Qr; O1 = Kr; DN = SC
    for j in range(5):
        E(MFMA16(DN[j], ONE, PB[j], c="0")); E(MFMA16(O0[j], V0 + 2 * j, PB[j], c="0")); E(MFMA16(O1[j], V1 + 2 * j, PB[j], c="0"))
    srd(a, 28, "s20", "s21", ACT_SIZE)
    for j in range(5): E(V("v_rcp_f32", DN[j], DN[j]))
    for j in range(5):
        for O in (O0[j], O1[j]):
            for r in range(4): E(V("v_mul_f32", O + r, O + r, DN[j]))
            E(V("v_cvt_pk_bf16_f32", O, O, O + 1)); E(V("v_cvt_pk_bf16_f32", O + 1, O + 2, O + 3))
        E(DSW(vOW, O0[j], 2, off=j * 256)); E(DSW(vOW2, O1[j], 2, off=j * 256))
        pp()
    a.wait(lg=0); a.barrier()
    for i in range(4): E(DSR(216 + 4 * i, 4, vOR, off=i * 8192))
    E(S(f"s_mov_b32 s6, {54*2048}"))
    for i in range(4): E(BST(216 + 4 * i, 4, vOG + i, 28, "s6", tag="st", mod=SC1))
    st("p1e")
    E(p2_act(0, vL16))
    pp(20)
    E(flg_poll(vP, vPA, LV_B))
    phase2(a, st, cfg, vL16, lane, vPA, vP, 10, 9, cfg.get("rateq", 2.0), flag_st(5, vF, LV_C))
    st.finish(2, name, cfg.get("stw", 0))
    a.raw("s_endpgm")

def gen_fused(name, stamps=False, cfg={}):
    DBG.update(cfg)
    a = Asm(); E = a.emit
    a.out.append(f".globl {name}\n.p2align 8\n.type {name},@function\n{name}:")
    E(S("s_cmp_ge_u32 s2, 256")); a.raw(f"s_cbranch_scc1 L_{name}_end")
    if stamps:
        a.raw("s_memrealtime s[76:77]"); a.raw("s_memtime s[80:81]")
    a.raw("s_load_dwordx2 s[24:25], s[0:1], 0")
    a.raw(f"s_load_dwordx4 s[{P_QKV}:{P_QKV+3}], s[0:1], 8")
    a.raw("s_load_dwordx2 s[28:29], s[0:1], 32"); a.raw("s_load_dwordx2 s[32:33], s[0:1], 40")
    a.raw(f"s_load_dwordx2 s[{P_W2}:{P_W2+1}], s[0:1], 48")
    a.raw(f"s_load_dwordx2 s[{S_OUT}:{S_OUT+1}], s[0:1], 56")
    a.raw("s_load_dwordx2 s[20:21], s[0:1], 72")
    E(V("v_lshrrev_b32", 2, "6", 0)); E(V("v_and_b32", 1, "63", 0))
    E(RFL("s3", 2))
    for (b, size) in ((20, WS_USED), (24, XBYTES), (S_OUT, XBYTES), (36, 2048 * 16), (28, 640 * 3456), (32, 640 * 3456)):
        E(S(f"s_mov_b32 s{b+2}, {size}")); E(S(f"s_mov_b32 s{b+3}, 0x20000"))
    E(S("s_and_b32 s11, s2, 3")); E(S("s_bfe_u32 s10, s2, 0x10002")); E(S("s_lshr_b32 s12, s2, 3"))
    E(S(f"s_lshl_b32 {sL}, s3, 10")); E(S(f"s_mov_b32 {sSpin}, 0"))
    E(S("s_cmp_lt_u32 s12, 18")); a.raw(f"s_cbranch_scc1 L_{name}_ffn")
    gen_qkv(a, name, stamps, cfg)
    a.label(f"L_{name}_ffn"); a.reset()
    gen_ffn(a, name, stamps, cfg)
    a.label(f"L_{name}_end"); a.raw("s_endpgm")
    return a.text(), kdesc(name, 256, 256, 102), 163840
```

```python
import re

def R(x, n=1):
    p, i = ('a', x - 256) if x >= 256 else ('v', x)
    return f"{p}{i}" if n == 1 else f"{p}[{i}:{i+n-1}]"

def rng(x, n): return list(range(x, x + n))

class Op:
    __slots__ = ("text", "kind", "r", "w", "tag", "c", "sr", "sw", "ghost")
    def __init__(self, text, kind, r=(), w=(), tag=None, c=(), sr=(), sw=()):
        self.text, self.kind, self.r, self.w, self.tag, self.c = text, kind, tuple(r), tuple(w), tag, tuple(c)
        self.sr, self.sw = tuple(sr), tuple(sw)
        self.ghost = False

VALUISH = ("valu", "trans", "dot", "dpp", "perml", "rfl")
MFMA_D2X = {"mfma32": 12, "mfma16": 8, "mfma32c": 12}
MFMA_D2C = {"mfma32": 10, "mfma16": 6, "mfma32c": 10}
MFMA_CWAR = {"mfma32": 7, "mfma16": 3, "mfma32c": 7}

class Asm:
    def __init__(self):
        self.out = []
        self.reset()
    def reset(self):
        self.pos = 0
        self.lg = []
        self.vm = []
        self.lastw = {}
        self.lastc = {}
        self.lastst = {}
        self.slastw = {}
    def raw(self, text, states=1):
        self.out.append("    " + text); self.pos += states
    def label(self, name): self.out.append(name + ":")
    def comment(self, t): self.out.append("    ; " + t)
    def nop(self, n):
        while n > 0:
            k = min(n, 16); self.raw(f"s_nop {k-1}", k); n -= k
    def wait(self, vm=None, lg=None):
        parts = []
        if vm is not None and vm < len(self.vm):
            keep = self.vm[len(self.vm) - vm:] if vm else []
            n = sum(1 for e in keep if not e[2])
            assert n <= 63
            parts.append(f"vmcnt({n})"); self.vm = keep
        if lg is not None and lg < len(self.lg):
            lgc = min(lg, 15)
            parts.append(f"lgkmcnt({lgc})"); self.lg = self.lg[len(self.lg) - lgc:] if lgc else []
        if parts: self.raw("s_waitcnt " + " ".join(parts))
    def wait_tag(self, tag, lg=None):
        idx = [i for i, e in enumerate(self.vm) if e[1] == tag]
        vm = None
        if idx: vm = len(self.vm) - 1 - max(idx)
        self.wait(vm=vm, lg=lg)
    def barrier(self): self.raw("s_barrier")
    def emit(self, op):
        if isinstance(op, (list, tuple)):
            for o in op: self.emit(o)
            return
        if callable(op): op(self); return
        regs = set(op.r) | set(op.w) | set(op.c)
        vm = lg = None
        for i, e in enumerate(self.vm):
            if e[0] & regs: vm = len(self.vm) - 1 - i
        for i, e in enumerate(self.lg):
            if e & regs: lg = len(self.lg) - 1 - i
        if op.kind in ("vld", "vst", "dma") and len(self.vm) >= 63: vm = 62 if vm is None else min(vm, 62)
        self.wait(vm=vm, lg=lg)
        need = 0
        k = op.kind
        def req(p, d):
            nonlocal need
            need = max(need, d - (self.pos - p - 1))
        for x in set(op.r) | set(op.c):
            if x in self.lastw:
                p, wk, dt = self.lastw[x]
                if wk in MFMA_D2X:
                    if k in MFMA_D2X:
                        if x in op.c and x not in op.r:
                            if not (dt == op.c and wk == k): req(p, MFMA_D2C[wk])
                        else: req(p, MFMA_D2X[wk])
                    else: req(p, MFMA_D2X[wk])
                elif wk in VALUISH:
                    if k in MFMA_D2X: req(p, 3 if wk == "dot" else 2)
                    if k in ("dpp", "perml"): req(p, 2)
                    if k == "rfl": req(p, 1)
                    if wk == "trans" and k in VALUISH and k != "trans": req(p, 1)
                    if wk == "trans" and k not in VALUISH: req(p, 1)
                    if wk == "dot":
                        if not (k == "dot" and x in op.c and x not in op.r): req(p, 3)
        for x in op.w:
            if x in self.lastw:
                p, wk, dt = self.lastw[x]
                if wk in MFMA_D2X and k not in MFMA_D2X: req(p, MFMA_D2X[wk])
                if wk in MFMA_D2X and k in MFMA_D2X and not (dt == tuple(op.w) and op.c == dt): req(p, MFMA_D2X[wk])
                if wk == "dot" and k != "dot": req(p, 3)
            if x in self.lastc and k not in MFMA_D2X:
                p, ck = self.lastc[x]; req(p, MFMA_CWAR[ck])
            if x in self.lastst: req(self.lastst[x], 2)
        for s in op.sr:
            if s in self.slastw:
                p, wk = self.slastw[s]
                if wk in VALUISH:
                    if k in ("vld", "vst", "dma"): req(p, 5)
                    elif k in VALUISH or k in MFMA_D2X: req(p, 4 if s == "exec" else 2)
                    else: req(p, 2)
                elif wk == "salu" and s == "m0" and k == "dma": req(p, 1)
        if need > 0: self.nop(need)
        p = self.pos
        self.raw(op.text)
        for x in op.w: self.lastw[x] = (p, k, tuple(op.w))
        if k in MFMA_D2X:
            for x in op.c: self.lastc[x] = (p, k)
        if k == "vst" and len(op.r) >= 4:
            for x in op.r: self.lastst[x] = p
        for s in op.sw: self.slastw[s] = (p, k)
        if k == "dsr": self.lg.append(set(op.w))
        elif k == "dsw": self.lg.append(set())
        elif k == "vld": self.vm.append((set(op.w), op.tag, op.ghost))
        elif k in ("vst", "dma"): self.vm.append((set(), op.tag, op.ghost))
        if len(self.lg) > 15: pass
    def text(self): return "\n".join(self.out) + "\n"

def _src(x):
    if isinstance(x, int): return R(x), [x], []
    if isinstance(x, str):
        if re.fullmatch(r"s\d+|vcc|exec|m0|vcc_lo|vcc_hi", x): return x, [], [x]
        m = re.fullmatch(r"s\[(\d+):(\d+)\]", x)
        if m: return x, [], [f"s{i}" for i in range(int(m.group(1)), int(m.group(2)) + 1)]
        m = re.fullmatch(r"(-?)v(\d+)", x)
        if m: return x, [int(m.group(2))], []
        return x, [], []
    if isinstance(x, tuple): return R(x[0], x[1]), rng(x[0], x[1]), []
    raise ValueError(x)

def V(name, d, *srcs, kind="valu", mod="", rmw=False):
    dt, dr, _ = _src(d)
    ts, r, sr = [], [], []
    for s in srcs:
        t, a, b = _src(s); ts.append(t); r += a; sr += b
    if name.startswith(("v_exp", "v_rcp", "v_rsq", "v_log", "v_sqrt")): kind = "trans"
    c = ()
    if name.startswith("v_dot2c"): kind = "dot"; c = dr
    elif rmw or name.startswith("v_fmac"): r = r + dr
    if name.startswith("v_cndmask") and len(srcs) == 2: sr = sr + ["vcc"]; ts.append("vcc")
    return Op(f"{name} {dt}, " + ", ".join(ts) + (" " + mod if mod else ""), kind, r=r, w=dr, c=c, sr=sr)

def VCMP(name, sd, a, b):
    ta, ra, sa = _src(a); tb, rb, sb = _src(b); _, _, sw = _src(sd)
    return Op(f"{name} {sd}, {ta}, {tb}", "valu", r=ra + rb, sr=sa + sb, sw=sw)

def RFL(sd, v): return Op(f"v_readfirstlane_b32 {sd}, {R(v)}", "rfl", r=[v], sw=[sd])

def S(text, sw=(), sr=()):
    m = re.match(r"(\S+)\s+([^,]+)(?:,(.*))?", text)
    w = []; r = []
    if m and not m.group(1).startswith(("s_cmp", "s_cbranch", "s_branch", "s_setprio", "s_nop", "s_sleep")):
        w = _src(m.group(2).strip())[2]
        rest = m.group(3) or ""
    else:
        rest = (m.group(2) + "," + (m.group(3) or "")) if m else ""
    for t in rest.split(","):
        t = t.strip()
        if t: r += _src(t)[2]
    return Op(text, "salu", sw=list(w) + list(sw), sr=list(r) + list(sr))

def MFMA32(d, a, b, c=None):
    ct = R(d, 16) if c is None else c
    return Op(f"v_mfma_f32_32x32x16_bf16 {R(d,16)}, {R(a,4)}, {R(b,4)}, {ct}", "mfma32",
              r=rng(a, 4) + rng(b, 4), w=rng(d, 16), c=rng(d, 16) if c is None else ())
def MFMA16(d, a, b, c=None):
    ct = R(d, 4) if c is None else c
    return Op(f"v_mfma_f32_16x16x32_bf16 {R(d,4)}, {R(a,4)}, {R(b,4)}, {ct}", "mfma16",
              r=rng(a, 4) + rng(b, 4), w=rng(d, 4), c=rng(d, 4) if c is None else ())

def MFMA32C(d, a, b):
    return Op(f"v_mfma_f32_32x32x8_bf16 {R(d,16)}, {R(a,2)}, {R(b,2)}, {R(d,16)}", "mfma32c",
              r=rng(a, 2) + rng(b, 2), w=rng(d, 16), c=rng(d, 16))
def MFMA16C(d, a, b, c):
    return Op(f"v_mfma_f32_16x16x32_bf16 {R(d,4)}, {R(a,4)}, {R(b,4)}, {R(c,4)}", "mfma16",
              r=rng(a, 4) + rng(b, 4), w=rng(d, 4), c=rng(c, 4))
def DPP(name, d, a, b, ctrl):
    return Op(f"{name}_dpp {R(d)}, {R(a)}, {R(b)} {ctrl} row_mask:0xf bank_mask:0xf", "dpp", r=[a, b], w=[d])
def SWAP(n, a, b):
    return Op(f"v_permlane{n}_swap_b32 {R(a)}, {R(b)}", "perml", r=[a, b], w=[a, b])

def _off(o): return f" offset:{o}" if o else ""
def DSR(d, n, addr, off=0, tr=False):
    assert 0 <= off < 65536, off
    name = {1: "ds_read_b32", 2: "ds_read_b64", 3: "ds_read_b96", 4: "ds_read_b128"}[n]
    if tr: name = "ds_read_b64_tr_b16"
    return Op(f"{name} {R(d,n)}, {R(addr)}{_off(off)}", "dsr", r=[addr], w=rng(d, n))
def DSW(addr, s, n, off=0):
    assert 0 <= off < 65536, off
    name = {1: "ds_write_b32", 2: "ds_write_b64", 4: "ds_write_b128"}[n]
    return Op(f"{name} {R(addr)}, {R(s,n)}{_off(off)}", "dsw", r=[addr] + rng(s, n))
def BLD(d, n, voff, srd, soff="0", off=0, tag=None, mod=""):
    assert 0 <= off < 4096, off
    name = {1: "buffer_load_dword", 2: "buffer_load_dwordx2", 4: "buffer_load_dwordx4"}[n]
    return Op(f"{name} {R(d,n)}, {R(voff)}, s[{srd}:{srd+3}], {soff} offen{_off(off)}{mod}", "vld", r=[voff], w=rng(d, n), tag=tag,
              sr=[f"s{srd+i}" for i in range(4)] + _src(soff)[2])
def BST(s, n, voff, srd, soff="0", off=0, tag=None, mod=""):
    assert 0 <= off < 4096, off
    name = {1: "buffer_store_dword", 2: "buffer_store_dwordx2", 4: "buffer_store_dwordx4"}[n]
    o = Op(f"{name} {R(s,n)}, {R(voff)}, s[{srd}:{srd+3}], {soff} offen{_off(off)}{mod}", "vst", r=rng(s, n) + [voff], tag=tag,
           sr=[f"s{srd+i}" for i in range(4)] + _src(soff)[2])
    return o
def DMA(voff, srd, soff, tag=None, mod=""):
    return Op(f"buffer_load_dwordx4 {R(voff)}, s[{srd}:{srd+3}], {soff} offen{mod} lds", "dma", r=[voff], tag=tag,
              sr=[f"s{srd+i}" for i in range(4)] + _src(soff)[2] + ["m0"])

def srd(a, d, lo, hi, size):
    a.emit(S(f"s_mov_b32 s{d}, {lo}")); a.emit(S(f"s_mov_b32 s{d+1}, {hi}"))
    a.emit(S(f"s_mov_b32 s{d+2}, {size}")); a.emit(S(f"s_mov_b32 s{d+3}, 0x20000"))

def kdesc(name, vgpr, accum, sgpr=96):
    return f""".section .rodata,"a"
.p2align 6
.amdhsa_kernel {name}
  .amdhsa_next_free_vgpr {vgpr}
  .amdhsa_next_free_sgpr {sgpr}
  .amdhsa_accum_offset {accum}
  .amdhsa_group_segment_fixed_size 0
  .amdhsa_kernarg_size 80
  .amdhsa_user_sgpr_count 2
  .amdhsa_user_sgpr_kernarg_segment_ptr 1
  .amdhsa_system_sgpr_workgroup_id_x 1
.end_amdhsa_kernel
"""

_gid = [0]
class Cond:
    kind = "cond"; tag = None; w = (); text = "cond"
    def __init__(self, cmp, ops):
        self.cmp, self.ops = cmp, ops
        for o in ops:
            if o.kind in ("vld", "vst", "dma"): o.ghost = True; self.tag = o.tag; self.kind = o.kind
    def __call__(self, a):
        _gid[0] += 1; L = f"L_c{_gid[0]}"
        regs = set()
        for o in self.ops: regs |= set(o.r) | set(o.w) | set(o.c)
        a.emit(Op("s_nop 0", "other", r=list(regs))) if any((e[0] & regs) for e in a.vm) or any((e & regs) for e in a.lg) else None
        a.emit(S(self.cmp)); a.raw(f"s_cbranch_scc0 {L}")
        p0 = a.pos
        n0 = len(a.out)
        for o in self.ops: a.emit(o)
        assert not any("s_waitcnt" in l for l in a.out[n0:])
        a.label(L)
        d = a.pos - p0
        for tbl in (a.lastw, a.lastc, a.slastw):
            for k, v in list(tbl.items()):
                if v[0] < p0: tbl[k] = (v[0] + d,) + tuple(v[1:])
        for k, v in list(a.lastst.items()):
            if v < p0: a.lastst[k] = v + d
```

```python
from gasm import *
from common import *

NLOG2E = "0xbfb8aa3b"; CSC = "0x3ea52b5c"; NCSC = "0xbea52b5c"
HUGE = "0x7ff00000"
SC1 = " sc1"
S_OUT, S_AUX = 64, 68
sTag = "s60"
sP2A, sP2W, sP2X, sSpin, sFlg = "s72", "s73", "s74", "s75", "s76"
sColSt, sOwn, sL = "s18", "s17", "s16"
sRot, sItem = "s79", "s78"
P_QKV, P_WO, P_W2 = 52, 54, 56
NST = 18
DBG = {}
uid = [0]
STW = 0

class Stamp:
    def __init__(self, a, on, sel=None): self.a, self.on, self.n, self.sel, self.names = a, on, 0, sel, []
    def __call__(self, name="x", force=False):
        if not self.on: return
        if self.sel is not None and not force and name not in self.sel: return
        assert self.n < NST, name
        if self.n: self.a.raw(f"s_mov_b32 s{82+self.n-1}, s100")
        self.a.raw("s_memtime s[100:101]"); self.n += 1; self.names.append(name)
    def finish(self, role, name, wave=0):
        a = self.a
        if not self.on: return
        a.raw("s_waitcnt vmcnt(0)")
        self("end", True)
        a.raw("s_memrealtime s[4:5]"); a.raw("s_waitcnt lgkmcnt(0)")
        a.raw(f"s_mov_b32 s{82+self.n-1}, s100")
        a.raw(f"s_cmp_lg_u32 s3, {wave}"); a.raw(f"s_cbranch_scc1 L_{name}_end")
        for i in range(20):
            if i < self.n: a.raw(f"s_sub_u32 s6, s{82+i}, s80"); a.raw(f"v_mov_b32 v{i}, s6")
            else: a.raw(f"v_mov_b32 v{i}, 0")
        a.raw(f"v_mov_b32 v20, {sSpin}")
        a.raw(f"v_mov_b32 v21, {role}"); a.raw("v_mov_b32 v22, s77"); a.raw("v_mov_b32 v23, s4")
        a.raw("s_lshl_b32 s40, s2, 7"); a.raw(f"s_add_u32 s40, s40, {STAMP1}"); a.raw("v_mov_b32 v24, s40")
        a.raw("s_mov_b32 s22, 0x2000000"); a.raw("s_mov_b64 exec, 1")
        for i in range(6): a.raw(f"buffer_store_dwordx4 v[{4*i}:{4*i+3}], v24, s[20:23], 0 offen offset:{16*i}")
        a.comment(f"STAMPS role {role}: " + " ".join(self.names))

class L(list):
    def s(self, *ts):
        for t in ts: self.append(S(t))
        return self
    def v(self, *x, **k): self.append(V(*x, **k)); return self

def scc_live(ops):
    for o in ops:
        if isinstance(o, list): return False
        if o.kind != "salu": continue
        n = o.text.split()[0]
        if n.startswith(("s_cselect", "s_addc", "s_subb", "s_cbranch_scc")): return True
        if n.startswith(("s_mov", "s_mul_i32", "s_movk")): continue
        return False
    return False
def exec_dirty(ops):
    return False

def paced(E, ops, groups, every):
    k = 0
    for i, o in enumerate(ops):
        E(o); k += len(o) if isinstance(o, list) else 1
        if groups and k >= every and not scc_live(ops[i + 1:]):
            E(groups.pop(0)); k = 0

def rot_table(srot, sK, mulK, sKx, lo, hi, blk=10):
    o = L()
    for s in range(lo, hi):
        base = s // blk * blk
        if base: o.s(f"s_add_u32 s4, {srot}, {base}", f"s_mul_i32 s{sK+s}, s4, {mulK}", f"s_lshl_b32 s{sKx+s}, s4, 7")
        else: o.s(f"s_mul_i32 s{sK+s}, {srot}, {mulK}", f"s_lshl_b32 s{sKx+s}, {srot}, 7")
        if s < 9: o.s(f"s_add_u32 {srot}, {srot}, 1", f"s_cmp_eq_u32 {srot}, {blk}", f"s_cselect_b32 {srot}, 0, {srot}")
    return o
def mod_ops(src, dst, m):
    if m == 1: return [S(f"s_mov_b32 {dst}, 0")]
    if m == 2: return [S(f"s_and_b32 {dst}, {src}, 1")]
    k = {5: 52, 10: 26}[m]
    return [S(f"s_mul_i32 s5, {src}, {k}"), S("s_lshr_b32 s5, s5, 8"), S(f"s_mul_i32 s5, s5, {m}"), S(f"s_sub_u32 {dst}, {src}, s5")]

def check(a, load, cmp_ops, sleep=2):
    uid[0] += 1; Lb = f"L_ck{uid[0]}"
    a.emit(cmp_ops)
    a.raw(f"s_cbranch_scc0 {Lb}_ok")
    a.label(f"{Lb}_sp")
    a.raw(f"s_sleep {sleep}")
    for l in (load if isinstance(load, list) else [load]): a.raw(l.text)
    a.raw("s_waitcnt vmcnt(0)")
    a.raw(f"s_add_u32 {sSpin}, {sSpin}, 1"); a.raw(f"s_cmp_gt_u32 {sSpin}, 30000"); a.raw(f"s_cbranch_scc1 {Lb}_ok")
    for o in cmp_ops:
        a.raw(o.text); a.raw("s_nop 3")
    a.raw(f"s_cbranch_scc1 {Lb}_sp")
    a.label(f"{Lb}_ok")

M_FFN, M_Q, M_W2 = 0x1ff, 0xffff0000, 0x3ffffff << 32
LV_W2, LV_A, LV_B, LV_C = "W2", "A", "B", "C"
LV = {"W2": (0, M_W2), "A": (48 * 128, M_FFN), "B": (64 * 128, M_FFN), "C": (0, M_FFN | M_Q)}
def flg_poll(vP, vA, lv):
    off, m = LV[lv]
    return [S(f"s_mov_b32 s9, {FLG_OFF + off}"), S(f"s_mov_b32 exec_lo, {m & 0xffffffff}"), S(f"s_mov_b32 exec_hi, {m >> 32}"),
            BLD(vP, 1, vA, 20, "s9", tag="poll", mod=SC1), S("s_mov_b64 exec, -1")]
def flg_cmp(vP, lv):
    off, mask = LV[lv]
    o = [VCMP("v_cmp_ne_u32", "vcc", sTag, vP)]
    if mask >> 32 == 0: o.append(S(f"s_and_b32 vcc_lo, vcc_lo, {mask}", sr=["vcc"]))
    else: o.append(S(f"s_and_b32 vcc_hi, vcc_hi, {mask >> 32}", sr=["vcc"]))
    return o
def flg_check(a, vP, vA, lv, sleep=2): check(a, flg_poll(vP, vA, lv), flg_cmp(vP, lv), sleep)
def tag_cmp(regs, t):
    o = [V("v_xor_b32", t, sTag, regs[0])]
    for r in regs[1:]: o.append(Op(f"v_bitop3_b32 {R(t)}, {R(t)}, {R(r)}, {sTag} bitop3:0xf6", "valu", r=[t, r], w=[t], sr=[sTag]))
    return o + [VCMP("v_cmp_ne_u32", "vcc", "0", t), S("s_cmp_lg_u64 vcc, 0")]
def flag_st(vT, vF, lv, base=None):
    return [Cond("s_cmp_eq_u32 s3, 0", [S(f"s_add_u32 s9, {base or sOwn}, {LV[lv][0]}"), V("v_mov_b32", vT, sTag), BST(vT, 1, vF, 20, "s9", tag="flag", mod=SC1)])]
def col_fix(AP): return [V("v_perm_b32", AP + 1, AP, AP, "s62"), V("v_perm_b32", AP, AP, AP, "s61")]

def wsum(s, t):
    return [DPP("v_add_f32", s, s, s, "quad_perm:[1,0,3,2]"), DPP("v_add_f32", s, s, s, "quad_perm:[2,3,0,1]"), DPP("v_add_f32", s, s, s, "row_half_mirror"),
            DPP("v_add_f32", s, s, s, "row_ror:8"), V("v_mov_b32", t, s), SWAP(16, s, t), V("v_add_f32", s, s, t),
            V("v_mov_b32", t, s), SWAP(32, s, t), V("v_add_f32", s, s, t)]
def merge(a, b):
    o = []
    a, b = list(a), list(b)
    na, nb = len(a), len(b)
    while a or b:
        if a and (not b or len(a) * nb >= len(b) * na): o.append(a.pop(0))
        else: o.append(b.pop(0))
    return o

def st_pre(B, lane, Bs=None):
    Bs = B if Bs is None else Bs
    o = L()
    o.s("s_and_b32 s4, s2, 7", "s_lshl_b32 s4, s4, 5", "s_lshr_b32 s5, s2, 3", "s_add_u32 s4, s4, s5", "s_lshl_b32 s4, s4, 3", "s_add_u32 s4, s4, s3",
        "s_mul_i32 s63, s4, 1280", "s_lshl_b32 s61, s4, 4", f"s_mov_b32 s62, {EPO_OFF}")
    o.v("v_lshlrev_b32", B + 36, "4", lane).v("v_lshlrev_b32", B + 37, "2", lane).v("v_lshlrev_b32", Bs + 5, "24", lane)
    return o
def st_issue(B, Bs=None):
    Bs = B if Bs is None else Bs
    return [BLD(Bs + 5, 1, Bs + 5, 20, "s62", mod=SC1), BLD(Bs, 4, B + 36, 24, "s63"), BLD(Bs + 4, 1, B + 37, 24, "s63", off=1024), S("s_mov_b32 s81, s61")]
def col_pre(B, lane, pitch):
    o = L()
    o.s(f"s_cselect_b32 s9, s9, {HUGE}", "s_cselect_b32 s7, s3, 1",
        "s_lshl_b32 s5, s8, 10", "s_lshl_b32 s8, s10, 9", "s_add_u32 s5, s5, s8", f"s_add_u32 s5, s5, {COL_OFF}",
        "s_mul_i32 s8, s10, 40", "s_add_u32 s8, s8, s3", f"s_mul_i32 s8, s8, {8*pitch}", "s_add_u32 s78, s8, s9",
        "s_cmp_eq_u32 s7, 0", f"s_cselect_b32 {sColSt}, s5, {HUGE}")
    o.v("v_lshrrev_b32", B + 38, "3", lane).v("v_and_b32", B + 39, "7", lane)
    o.v("v_mul_u32_u24", B + 38, str(pitch), B + 38).v("v_lshl_add_u32", B + 38, B + 39, "4", B + 38)
    return o
def col_issue(B, srdn, pitch):
    return [[BLD(B + 16 + 4 * it, 4, B + 38, srdn, "s78", mod=DBG.get("cm", ""))] + ([S(f"s_add_u32 s78, s78, {64*pitch}")] if it < 4 else []) for it in range(5)]
def stats_ops(B, xoff):
    U = B + 6; s, t = B + 5, B + 4
    o = L()
    o.append(RFL(sTag, B + 5))
    for i in (4, 0, 1, 2, 3): o.v("v_lshlrev_b32", U + 2 * i, "16", B + i).v("v_and_b32", U + 2 * i + 1, "0xffff0000", B + i)
    o.s(f"s_mul_i32 {sTag}, {sTag}, 0x9e3779b1", f"s_add_u32 {sTag}, {sTag}, 0x7f4a7c15")
    o.v("v_add_f32", s, U, U + 1).v("v_add_f32", t, U + 2, U + 3)
    for i in range(4, 10, 2): o.v("v_add_f32", s, s, U + i).v("v_add_f32", t, t, U + i + 1)
    o.v("v_add_f32", s, s, t)
    o += wsum(s, t)
    o.v("v_mul_f32", s, "0xbacccccd", s)
    q = B + 1
    for i in range(10): o.v("v_add_f32", U + i, U + i, s)
    o.v("v_mul_f32", q, U, U).v("v_mul_f32", t, U + 1, U + 1)
    for i in range(2, 10, 2): o.v("v_fmac_f32", q, U + i, U + i).v("v_fmac_f32", t, U + i + 1, U + i + 1)
    o.v("v_add_f32", q, q, t)
    o += wsum(q, t)
    o.v("v_mov_b32", B + 3, "0x3727c5ac").v("v_fmac_f32", B + 3, "0x3acccccd", q).v("v_rsq_f32", B + 2, B + 3)
    o.v("v_cvt_pk_bf16_f32", t, s, s).v("v_lshlrev_b32", t, "16", t).v("v_sub_f32", t, s, t)
    o.v("v_cvt_pk_bf16_f32", B, s, t).v("v_mov_b32", B + 1, sTag)
    o.v("v_mov_b32", t, sL).v("v_lshrrev_b32", t, "6", t).v("v_add_u32", t, str(xoff + 2048), t)
    o.append(DSW(t, B, 4))
    return o
def tok_fin_ops(B, xoff, Bs=None):
    Bs = B if Bs is None else Bs
    o = L()
    o.v("v_and_b32", Bs + 4, "0x70", B + 36).v("v_add_u32", Bs + 4, str(xoff + 2048), Bs + 4)
    o.append(DSR(Bs, 4, Bs + 4))
    o.v("v_lshrrev_b32", Bs + 5, "7", B + 36).v("v_lshl_add_u32", Bs + 5, Bs + 5, "24", B + 36)
    o.s("s_sub_u32 s81, s81, 16")
    o.append(BST(Bs, 4, Bs + 5, 36, "s81", tag="tab", mod=SC1))
    return [[Block("s_cmp_eq_u32 s3, 1", o)]]
def col_add(A, r, first, t, dot):
    o = L()
    for j in range(4):
        if first: o.v("v_lshlrev_b32", A + 2 * j, "16", r + j).v("v_and_b32", A + 2 * j + 1, "0xffff0000", r + j)
        elif dot: o.v("v_dot2c_f32_bf16", A + 2 * j, "s61", r + j).v("v_dot2c_f32_bf16", A + 2 * j + 1, "s62", r + j)
        else: o.v("v_lshlrev_b32", t, "16", r + j).v("v_and_b32", r + j, "0xffff0000", r + j).v("v_add_f32", A + 2 * j, A + 2 * j, t).v("v_add_f32", A + 2 * j + 1, A + 2 * j + 1, r + j)
    return o
def col_red(A, t0, piece, lane, xoff):
    o = L()
    o.v("v_lshrrev_b32", t0, "4", lane).v("v_lshlrev_b32", t0, "3", t0).v("v_lshl_add_u32", t0, piece, "5", t0)
    for j in range(4): o.append(SWAP(32, A + j, A + j + 4))
    for j in range(4): o.v("v_add_f32", A + j, A + j, A + j + 4)
    o.v("v_mov_b32", t0 + 1, sL).v("v_lshrrev_b32", t0 + 1, "2", t0 + 1)
    for j in range(2): o.append(SWAP(16, A + j, A + j + 2))
    for j in range(2): o.v("v_add_f32", A + j, A + j, A + j + 2)
    o.v("v_add_u32", t0, t0, t0 + 1).v("v_add_u32", t0, str(xoff), t0)
    for j in range(2): o.append(DPP("v_add_f32", A + j, A + j, A + j, "row_ror:8"))
    o.append(DSW(t0, A, 2))
    return o
def col_acc_ops(B, lane, xoff, dot=True):
    A = B + 40
    o = L()
    if dot: o.s("s_mov_b32 s61, 0x3f80", "s_mov_b32 s62, 0x3f800000")
    for it in range(5): o += col_add(A, B + 16 + 4 * it, it == 0, B + 16, dot)
    o += col_red(A, B + 16, B + 39, lane, xoff)
    return o
PERMSEL = ["s_mov_b32 s61, 0x01000100", "s_mov_b32 s62, 0x03020302"]
def col_fin_ops(Rd, t, lane, xoff):
    o = L()
    o.v("v_lshlrev_b32", t, "2", lane).v("v_add_u32", t, str(xoff), t)
    for w in range(8): o.append(DSR(Rd + w, 1, t, off=w * 256))
    for w in range(4): o.v("v_add_f32", Rd + w, Rd + w, Rd + 4 + w)
    o.v("v_add_f32", Rd, Rd, Rd + 1).v("v_add_f32", Rd + 2, Rd + 2, Rd + 3).v("v_add_f32", Rd, Rd, Rd + 2)
    o.v("v_cvt_pk_bf16_f32", Rd + 4, Rd, Rd).v("v_lshlrev_b32", Rd + 6, "16", Rd + 4).v("v_sub_f32", Rd + 6, Rd, Rd + 6)
    o.v("v_cvt_pk_bf16_f32", Rd + 4, Rd, Rd + 6).v("v_mov_b32", Rd + 5, sTag).v("v_lshlrev_b32", t, "3", lane)
    o.append(BST(Rd + 4, 2, t, 20, sColSt, tag="tab", mod=SC1))
    return o

ACTB, ACC2, WF2 = 96, 48, 8
def p2_setup(vA, lane, rb="s10", cb="s11"):
    g = []
    o = L()
    o.s("s_bfe_u32 s10, s2, 0x20001", "s_lshl_b32 s10, s10, 3", "s_bfe_u32 s5, s2, 0x30003", "s_add_u32 s10, s10, s5",
        "s_and_b32 s11, s2, 1", "s_lshl_b32 s11, s11, 2", "s_lshr_b32 s6, s2, 6", "s_add_u32 s11, s11, s6"); g.append(list(o))
    o = L()
    o.s("s_bfe_u32 s6, s3, 0x10001", "s_lshl_b32 s9, s10, 1", "s_add_u32 s6, s6, s9",
        f"s_mul_i32 {sP2A}, s6, 74", "s_lshr_b32 s9, s3, 2", f"s_add_u32 {sP2A}, {sP2A}, s9", f"s_lshl_b32 {sP2A}, {sP2A}, 1",
        "s_and_b32 s9, s3, 1", f"s_add_u32 {sP2A}, {sP2A}, s9", f"s_lshl_b32 {sP2A}, {sP2A}, 10",
        "s_lshl_b32 s6, s6, 5", "s_add_u32 s6, s6, s9", f"s_mul_i32 {sP2X}, s6, 1280"); g.append(list(o))
    o = L()
    o.s(f"s_mul_i32 {sP2W}, s11, 74", f"s_add_u32 {sP2W}, {sP2W}, s3", f"s_mul_i32 {sP2W}, {sP2W}, 5120", f"s_add_u32 {sP2W}, {sP2W}, {W2F_OFF}",
        "s_mul_i32 s6, s11, 160", f"s_add_u32 {sP2X}, {sP2X}, s6", "s_lshr_b32 s6, s3, 2", "s_mul_i32 s6, s6, 96", f"s_add_u32 {sP2X}, {sP2X}, s6",
        ); g.append(list(o))
    if DBG.get("rot2"):
        o = L()
        o.s("s_bfe_u32 s6, s2, 0x30003", "s_lshr_b32 s9, s2, 6", "s_lshl_b32 s9, s9, 1", "s_add_u32 s6, s6, s9", "s_cmp_ge_u32 s6, 9", "s_cselect_b32 s9, 9, 0", f"s_sub_u32 {sRot}, s6, s9",
            f"s_lshl_b32 s6, {sRot}, 12", f"s_add_u32 {sP2A}, {sP2A}, s6", f"s_mul_i32 s6, {sRot}, 10240", f"s_add_u32 {sP2W}, {sP2W}, s6"); g.append(list(o))
    def part(o, lo, n):
        m = ((1 << n) - 1) << lo
        o.s("s_lshl_b32 s6, s6, 7", f"s_sub_u32 s6, s6, {lo*4}", f"s_mov_b32 exec_lo, {m & 0xffffffff}", f"s_mov_b32 exec_hi, {m >> 32}")
        o.v("v_lshl_add_u32", vA, lane, "2", "s6"); o.s("s_mov_b64 exec, -1"); g.append(list(o))
    part(L().s("s_lshr_b32 s6, s10, 1"), 0, 16)
    for (lo, add) in ((16, 0), (24, 63)):
        part(L().s("s_lshl_b32 s6, s10, 6", f"s_add_u32 s6, s6, {add}", "s_max_u32 s6, s6, 14", "s_sub_u32 s6, s6, 14",
                   "s_mul_i32 s6, s6, 7183", "s_lshr_b32 s6, s6, 20", "s_add_u32 s6, s6, 16"), lo, 8)
    for (i, add) in ((0, 0), (1, 4)):
        part(L().s("s_mul_i32 s6, s11, 5", f"s_add_u32 s6, s6, {add + 128}", "s_lshr_b32 s6, s6, 2"), 32 + 13 * i, 13 if i == 0 else 19)
    g = [[S(x.text.replace("s10", rb).replace("s11", cb)) if x.kind == "salu" else x for x in grp] for grp in g]
    return g

def GEND(j): return 9 if j < 9 else 18 if j < 18 else 27 if j < 27 else 37
def GN(j): return 10 if j >= 27 else 9
def p2_w_item(d, vL16):
    slot = (d % 4) * 40960
    ops = []
    for i in range(5):
        g = [S(f"s_add_u32 s9, {sP2W}, {(d%2 if DBG.get('hot') else d)*8*5120 + i*1024}")]
        if DBG.get("rot2"):
            pre = []
            if i == 0:
                ends = sorted(set(GEND(j) for j in range(4 * d, min(4 * d + 4, 37))))
                pre = [S("s_lshr_b32 s8, s3, 1")]
                if len(ends) == 1:
                    pre += [S(f"s_add_u32 s8, s8, {sRot}"), S(f"s_cmp_ge_u32 s8, {ends[0] - 4*d}"), S(f"s_cselect_b32 {sItem}, {GN(4*d)*10240}, 0")]
                else:
                    pre += [S(f"s_cmp_ge_u32 s8, {ends[0] - 4*d}"), S(f"s_cselect_b32 s7, {ends[1] - 4*d}, {ends[0] - 4*d}"),
                            S(f"s_cselect_b32 {sItem}, {GN(ends[0])}, {GN(4*d)}"), S(f"s_mul_i32 {sItem}, {sItem}, 10240"),
                            S(f"s_add_u32 s8, s8, {sRot}"), S("s_cmp_ge_u32 s8, s7"), S(f"s_cselect_b32 {sItem}, {sItem}, 0")]
                pre.append(S(f"s_sub_u32 {sItem}, {sP2W}, {sItem}"))
            g = pre + [S(f"s_add_u32 s9, {sItem}, {d*8*5120 + i*1024}")]
        if DBG.get("now2"): g = [S(f"s_mov_b32 s9, {HUGE}")]
        g += [S(f"s_add_u32 m0, {sL}, {slot + i*8192}"), DMA(vL16, 20, "s9", tag=("W2", d), mod="" if DBG.get("nosc1") else SC1)]
        ops.append(g)
    if d == 9: ops = [[Cond("s_cmp_lt_u32 s3, 2", sum(ops, []))]]
    return ops
def pf_w2(p, vT, vD, lane):
    return [S("s_bfe_u32 s8, s2, 0x30003"), S("s_lshl_b32 s8, s8, 3"), S("s_add_u32 s8, s8, s3"), S("s_mul_i32 s8, s8, 12"), S(f"s_add_u32 s8, s8, {p*768}"),
            S("s_min_u32 s8, s8, 2948"), S("s_lshl_b32 s8, s8, 7"), S("s_mul_i32 s9, s3, 5120"), S(f"s_sub_u32 s9, {sP2W}, s9"), S("s_add_u32 s9, s9, s8"),
            V("v_lshlrev_b32", vT, "7", lane), S("s_mov_b64 exec, 0xfff"), BLD(vD, 1, vT, 20, "s9", tag="pf", mod=SC1), S("s_mov_b64 exec, -1")]
def pf_act(g, vT, vD, lane):
    j0, n = [(0, 9), (9, 9), (18, 9), (27, 10)][g]
    return [S("s_lshr_b32 s8, s2, 6"), V("v_lshrrev_b32", vT, "3", lane), V("v_lshl_add_u32", vT, vT, "2", "s8"), V("v_min_u32", vT, str(n - 1), vT),
            V("v_lshlrev_b32", vT, "5", vT), V("v_and_or_b32", vT, lane, "7", vT), V("v_lshlrev_b32", vT, "7", vT),
            S(f"s_add_u32 s9, {sP2A}, {j0*4096}"), S("s_mov_b64 exec, 0xffffff"), BLD(vD, 1, vT, 20, "s9", tag="pf", mod=SC1), S("s_mov_b64 exec, -1")]
def p2_act(j, vL16):
    if DBG.get("noact"): return [S(f"s_mov_b32 s9, {HUGE}"), BLD(ACTB + 4 * j, 4, vL16, 20, "s9", mod=SC1)]
    if DBG.get("hot"): return [S(f"s_add_u32 s9, {sP2A}, {(j%4)*4096}"), BLD(ACTB + 4 * j, 4, vL16, 20, "s9", mod=SC1)]
    if DBG.get("rot2"):
        return [S(f"s_cmp_ge_u32 {sRot}, {GEND(j) - j}"), S(f"s_cselect_b32 s9, {GN(j)*4096}, 0"), S(f"s_sub_u32 s9, {sP2A}, s9"), S(f"s_add_u32 s9, s9, {j*4096}"),
                BLD(ACTB + 4 * j, 4, vL16, 20, "s9", mod=SC1)]
    return [S(f"s_add_u32 s9, {sP2A}, {j*4096}"), BLD(ACTB + 4 * j, 4, vL16, 20, "s9", mod="" if DBG.get("nosc1") else SC1)]

def phase2(a, st, cfg, vL16, lane, vPA, vP, pieces_done, act_done, rate, publish, epoch=False):
    E = a.emit
    PF = cfg.get("pf2", False)
    vRd = [68, 69, 70, 71, 72, 73]; vXO, vXO3, vWrt, vRr = 74, 75, 76, 77
    X0 = 78; t0, t1 = 84, 85
    EP = 86
    E(S("s_lshr_b32 s4, s3, 2")); E(S(f"s_mul_i32 s5, s4, {1024 + 3*8192}")); E(S(f"s_mul_i32 s6, s4, {1024 - 2*8192}")); E(S("s_add_u32 s6, s6, 16384"))
    E(V("v_add_u32", vRd[0], "s5", vL16)); E(V("v_add_u32", vRd[3], "s6", vL16))
    for b in (1, 2): E(V("v_add_u32", vRd[b], str(b << 16), vRd[0])); E(V("v_add_u32", vRd[3 + b], str(b << 16), vRd[3]))
    def reads(j):
        pos = ((j // 4) % 4) * 40960 + (j % 4) * 2048
        f = WF2 + 20 * (j % 2)
        o = []
        for l in range(5):
            p = pos + l * 8192 - (0 if l < 2 else 16384)
            o.append(DSR(f + 4 * l, 4, vRd[(p >> 16) + (0 if l < 2 else 3)], off=p & 0xffff))
        return o
    misc = [[V("v_lshrrev_b32", t0, "8", vL16), V("v_lshlrev_b32", t0, "3", t0), V("v_bfe_u32", t1, vL16, "4", "4"), V("v_mul_u32_u24", t1, "2560", t1), V("v_add_u32", vXO, t0, t1)],
            [S("s_cmp_lt_u32 s3, 4"), S(f"s_cselect_b32 s4, 64, {HUGE}"), V("v_add_u32", vXO3, "s4", vXO), BLD(X0, 2, vXO, 24, sP2X)],
            [BLD(X0 + 2, 2, vXO, 24, sP2X, off=32)], [Cond("s_cmp_lt_u32 s3, 4", [BLD(X0 + 4, 2, vXO3, 24, sP2X)])],
            [S("s_lshl_b32 s4, s3, 12"), S("s_add_u32 s4, s4, 81920"), V("v_add_u32", vWrt, "s4", vL16)],
            [S("s_xor_b32 s4, s3, 4"), S("s_lshl_b32 s4, s4, 12"), S("s_lshr_b32 s5, s3, 2"), S("s_lshl_b32 s5, s5, 10"), S("s_add_u32 s4, s4, s5"),
             S("s_add_u32 s4, s4, 81920"), V("v_add_u32", vRr, "s4", vL16)]]
    epl = [BLD(EP + 4 + i, 1, EP + i, 36, "0", off=4, mod=SC1) for i in range(4)]
    if epoch:
        misc.append([S("s_or_b32 s4, s2, s3"), Cond("s_cmp_eq_u32 s4, 0", [V("v_lshlrev_b32", EP, "3", vL16)] +
                    [V("v_add_u32", EP + i, str(i * 8192), EP) for i in range(1, 4)] + epl)])
    a.wait_tag(("W2", 0), lg=0); a.barrier()
    st("p2s")
    E(reads(0))
    q = []
    def push(need, g): q.append((need, len(q), g)); q.sort(key=lambda e: e[:2])
    def push_item(d, frm=0):
        for g in p2_w_item(d, vL16)[frm:]: push(4 * d - 1.5, g)
    for x in range(act_done, 9): push(x, p2_act(x, vL16))
    for d in range(4):
        if pieces_done < 5 * (d + 1): push_item(d, max(0, pieces_done - 5 * d))
    nitem = 4
    PUB, CB, P3, C3 = cfg.get("pub", 3), cfg.get("cb", 1), cfg.get("p3", 11), cfg.get("c3", 14)
    RATE = rate
    LEAD = cfg.get("lead", 5)
    credit = 0.0
    for g in misc: push(cfg.get("misc", 13), g)
    for j in range(37):
        f = WF2 + 20 * (j % 2)
        nxt = []
        while q and q[0][0] <= j: E(q.pop(0)[2])
        if j + 1 < 37:
            if j == PUB:
                a.wait_tag("st"); a.barrier(); E(publish); st("pub")
            if (j + 1) % 4 == 0:
                d = (j + 1) // 4
                a.wait_tag(("W2", d), lg=0); a.barrier()
                if nitem < 10: push_item(nitem); nitem += 1
            nxt = reads(j + 1)
        if j == CB:
            flg_check(a, vP, vPA, LV_B)
            if PF: E(pf_act(1, t0, 6, lane))
            for x in range(9, 18): push(x, p2_act(x, vL16))
        if j == P3: E(flg_poll(vP, vPA, LV_C))
        if j == C3:
            flg_check(a, vP, vPA, LV_C, sleep=1)
            st("c3")
            if PF: E(pf_act(2, t0, 6, lane)); E(pf_act(3, t0, 7, lane))
            for x in range(18, 18 + cfg.get("burst", 5)): E(p2_act(x, vL16))
            for x in range(18 + cfg.get("burst", 5), 37): push(x, p2_act(x, vL16))
            RATE = cfg.get("rate2", 1.5)
        st(f"g{j}")
        credit = min(credit + RATE, 4)
        for l in range(5):
            if cfg.get("nomfma") and l: pass
            else: E(MFMA16(ACC2 + 4 * l, f + 4 * l, ACTB + 4 * j, c="0" if j == 0 else None))
            if nxt:
                x_ = nxt.pop(0)
                if not (cfg.get("nords") and l): E(x_)
            if q and (credit >= 1 or q[0][0] <= j + LEAD):
                g = q.pop(0)[2]; E(g)
                if any(x.kind in ("vld", "dma") for x in g): credit -= 1
    fill = q
    assert not fill
    st("p2e")
    for i in range(3):
        x0 = X0 + 2 * i; o = 8 + 4 * i
        E(V("v_lshlrev_b32", o, "16", x0)); E(V("v_and_b32", o + 1, "0xffff0000", x0))
        E(V("v_lshlrev_b32", o + 2, "16", x0 + 1)); E(V("v_and_b32", o + 3, "0xffff0000", x0 + 1))
    for l in range(2, 5): E(DSW(vWrt, ACC2 + 4 * l, 4, off=(l - 2) * 1024))
    for i in range(3):
        for r in range(4): E(V("v_add_f32", 8 + 4 * i + r, 8 + 4 * i + r, ACC2 + 4 * i + r))
    a.wait(lg=0); a.barrier()
    st("red")
    RD = 96
    for i in range(3): E(DSR(RD + 4 * i, 4, vRr, off=i * 1024))
    for i in range(3):
        o = 8 + 4 * i
        for r in range(4): E(V("v_add_f32", o + r, o + r, RD + 4 * i + r))
        E(V("v_cvt_pk_bf16_f32", X0 + 2 * i, o, o + 1)); E(V("v_cvt_pk_bf16_f32", X0 + 2 * i + 1, o + 2, o + 3))
        E(BST(X0 + 2 * i, 2, vXO if i < 2 else vXO3, S_OUT, sP2X, off=32 * i if i < 2 else 0, mod=cfg.get("om", "")))
    st("out")
    if epoch:
        uid[0] += 1; Lb = f"L_ep{uid[0]}"
        E(S("s_or_b32 s4, s2, s3")); a.raw(f"s_cbranch_scc1 {Lb}")
        check(a, epl, tag_cmp([EP + 4, EP + 5, EP + 6, EP + 7], 24))
        E(V("v_mov_b32", 25, sTag)); E(V("v_lshlrev_b32", 24, "20", vL16)); E(S(f"s_mov_b32 s4, {EPO_OFF}"))
        E(BST(25, 1, 24, 20, "s4", mod=SC1))
        a.label(Lb)

def common_wait(a, stamps):
    E = a.emit
    a.raw("s_waitcnt lgkmcnt(0)")
    if stamps: a.raw("s_mov_b32 s77, s76")
    E(S(f"s_add_u32 s36, s20, {TOK_OFF}")); E(S("s_addc_u32 s37, s21, 0"))

def cost(o):
    if isinstance(o, list): return 1 + len(o) // 5 if o else 4
    return {"trans": 2, "perml": 2, "salu": 0.5}.get(o.kind, 1)

def gen_ffn(a, name, stamps, cfg):
    E = a.emit; st = Stamp(a, stamps, cfg.get("sel"))
    PFX = cfg.get("pf", False)
    sK, sKx = 40, 50
    XF, A0, A1, A2, WB = 96, 48, 64, 80, 28
    vL16, lane = 0, 1
    vWr = [2, 3, 4]; vDW, vSt, vCol = 5, 6, 7
    TOK = 8; AP = [12, 14]; T = 16
    vPA, vP, vF, vTt = 24, 25, 26, 27
    vDX, vDX2, vXr, vTokA = A2, A2 + 1, A2 + 2, A2 + 6
    TB = 208; XO = 9 * 16384 + 8192
    t0, t1, t2, t3 = T, T + 1, T + 2, T + 3
    sSt, sCb, sRb, sTok = "s13", "s14", "s15", "s19"
    RB = cfg.get("rblk", 1)
    o = L()
    o.s("s_mul_i32 s13, s11, 18", "s_add_u32 s13, s13, s12", f"s_lshr_b32 {sCb}, s13, 3", f"s_and_b32 {sRb}, s13, 7",
        f"s_mul_i32 s4, {sCb}, {cfg.get('rmul', 3)}", f"s_add_u32 s4, s4, {sRb}")
    o += mod_ops("s4", "s19", RB)
    o.s("s_lshl_b32 s5, s10, 3", f"s_add_u32 {sRb}, {sRb}, s5")
    o += rot_table("s19", sK, 64 * 3456, sKx, 0, 2, RB)
    o.s("s_and_b32 s4, s3, 3", "s_lshr_b32 s5, s3, 2", "s_lshl_b32 s6, s4, 3")
    o.v("v_lshrrev_b32", t0, "3", lane).v("v_and_b32", t1, "7", lane).v("v_add_u32", t2, "s6", t0)
    o.v("v_bfe_u32", t3, t2, "1", "3").v("v_xor_b32", t3, t1, t3)
    o.v("v_and_b32", vDX, "15", t2).v("v_lshrrev_b32", t2, "4", t2).v("v_lshl_add_u32", vDX, vDX, "1", t2)
    o.s(f"s_lshl_b32 s6, {sRb}, 7", "s_lshl_b32 s9, s5, 5", "s_add_u32 s6, s6, s9")
    o.v("v_add_u32", vDX, "s6", vDX).v("v_mul_u32_u24", vDX, "1280", vDX).v("v_lshl_add_u32", vDX, t3, "4", vDX).v("v_add_u32", vDX2, str(64 * 1280), vDX)
    o.v("v_lshrrev_b32", t2, "2", lane).v("v_and_b32", t2, "4", t2).v("v_xor_b32", t2, t1, t2)
    o.v("v_mul_u32_u24", vDW, "3456", t0).v("v_lshl_add_u32", vDW, t2, "4", vDW)
    o.s(f"s_mul_i32 s6, s3, {8*3456}", f"s_mul_i32 s9, {sCb}, 384", "s_add_u32 s6, s6, s9")
    o.v("v_add_u32", vDW, "s6", vDW)
    E(o); E(st_pre(TB, lane))
    items = {}
    free = list(range(10))
    qX = [("X", s) for s in range(10)]
    qW = [("W", s) for s in range(30)]
    dma_chunk = [0]
    def dma_ops(it, slot):
        kind, s = it
        base = slot * 16384
        m0 = lambda x: S(f"s_add_u32 m0, {sL}, {base+x}")
        if kind == "X":
            return [[m0(0), DMA(vDX, 24, f"s{sKx+s}", tag=it)], [m0(8192), DMA(vDX2, 24, f"s{sKx+s}", tag=it)]]
        if s < 10:
            return [[m0(0), DMA(vDW, 28, f"s{sK+s}", tag=it, mod=DBG.get("wm", ""))], [m0(8192), DMA(vDW, 32, f"s{sK+s}", tag=it, mod=DBG.get("wm", ""))]]
        p = (s - 10) // 5 + 1; j = (s - 10) % 5
        chunk = (p + 1) // 2; srdw = 28 if p % 2 == 1 else 32
        pre = []
        if chunk != dma_chunk[0]:
            dma_chunk[0] = chunk; pre = [V("v_add_u32", vDW, "128", vDW)]
        return [pre + [m0(0), DMA(vDW, srdw, f"s{sK+2*j}", tag=it, mod=DBG.get("wm", ""))], [m0(8192), DMA(vDW, srdw, f"s{sK+2*j+1}", tag=it, mod=DBG.get("wm", ""))]]
    def slot_of(it):
        kind, s = it
        return (s + 2) % 4 if kind == "X" else ([4, 5, 6, 7, 8, 4, 5, 6, 7, 4][s] if s < 10 else s % 10)
    def refill(maxstage=99):
        out = []
        while True:
            cands = []
            for q in (qX, qW):
                if q and q[0][1] <= maxstage and slot_of(q[0]) in free and not (q is qW and q[0][1] >= 10 and slot_of(q[0]) < 4 and any(slot_of(x) == slot_of(q[0]) for x in qX)):
                    cands.append((q[0][1], q is qW, q))
            if not cands: break
            cands.sort(key=lambda c: c[:2]); q = cands[0][2]
            it = q.pop(0); sl = slot_of(it); free.remove(sl); items[it] = sl; out += dma_ops(it, sl)
        if not qW and p2["go"]:
            while p2["pieces"] < 20 and p2["pieces"] // 2 in free:
                k = p2["pieces"]; out.append(p2_w_item(k // 5, vL16)[k % 5]); p2["pieces"] += 1
        return out
    p2 = {"pieces": 0, "act": 0, "go": False}
    o = L()
    o.s("s_bitcmp1_b32 s13, 0", "s_cselect_b32 s8, 57, 30", f"s_mov_b32 s{S_AUX+2}, {640*3456}", f"s_mov_b32 s{S_AUX+3}, 0x20000",
        f"s_mul_i32 s9, {sCb}, 3", "s_bfe_u32 s4, s13, 0x20001", "s_add_u32 s9, s9, s4", "s_add_u32 s8, s8, s9", "s_lshl_b32 s9, s9, 7", "s_cmp_lt_u32 s4, 3")
    o += col_pre(TB, lane, 3456)
    o.s("s_and_b32 s17, s13, 6")
    common_wait(a, stamps)
    E(st_issue(TB))
    o.s("s_bitcmp1_b32 s13, 0", f"s_cselect_b32 s{S_AUX}, s32, s28", f"s_cselect_b32 s{S_AUX+1}, s33, s29")
    ci = [[Cond("s_cmp_lt_u32 s17, 6", g)] for g in col_issue(TB, S_AUX, 3456)]
    dq = refill(0)
    paced(E, o, dq, cfg.get("pace0", 8))
    st("i0")
    dq += ci + refill(1)
    o0 = L()
    o0.s("s_mul_i32 s12, s10, 72", "s_add_u32 s12, s12, s13", "s_cmp_ge_u32 s12, 90",
        f"s_cselect_b32 s0, s{P_WO}, s{P_W2}", f"s_cselect_b32 s1, s{P_WO+1}, s{P_W2+1}")
    o0 += rot_table("s19", sK, 64 * 3456, sKx, 2, 10, RB)
    rp_pre = L()
    rp_pre.s("s_mul_i32 s10, s12, 57", "s_lshr_b32 s10, s10, 9", "s_mul_i32 s4, s10, 9", "s_sub_u32 s11, s12, s4",
        "s_sub_u32 s4, s12, 90", "s_lshr_b32 s5, s4, 2", "s_and_b32 s4, s4, 3", "s_cmp_ge_u32 s12, 90",
        "s_cselect_b32 s10, s5, s10", "s_cselect_b32 s11, s4, s11", "s_cselect_b32 s4, 5, 6", "s_cselect_b32 s5, 5, 2", "s_cselect_b32 s6, 54, 0",
        "s_cselect_b32 s7, 2, 18", "s_cselect_b32 s8, 9, 0",
        "s_add_u32 s8, s8, s11", "s_lshl_b32 s8, s8, 2",
        "s_mul_i32 s4, s4, s11", "s_lshr_b32 s9, s3, 2", "s_add_u32 s4, s4, s9",
        "s_mul_i32 s5, s5, s11", "s_add_u32 s5, s5, s6", "s_add_u32 s5, s5, s9",
        "s_lshl_b32 s4, s4, 2", "s_and_b32 s6, s3, 3", "s_add_u32 s4, s4, s6", f"s_mul_i32 s4, s4, {8*1280}", "s_lshl_b32 s9, s10, 7", "s_add_u32 s63, s4, s9",
        "s_add_u32 s8, s8, s9",
        "s_lshl_b32 s4, s10, 2", "s_add_u32 s4, s4, s6", "s_mul_i32 s6, s4, 52", "s_lshr_b32 s6, s6, 8", "s_mul_i32 s6, s6, 365", "s_add_u32 s6, s6, s4",
        "s_mul_i32 s5, s5, 5", "s_add_u32 s6, s6, s5", "s_lshl_b32 s6, s6, 10", f"s_add_u32 s76, s6, {W2F_OFF}",
        f"s_add_u32 s10, s8, {FLG_OFF + 32*128}",
        "s_cmp_lt_u32 s12, 130", f"s_cselect_b32 s76, s76, {0x70000000}", f"s_cselect_b32 s63, s63, {0x70000000}", f"s_cselect_b32 s10, s10, {0x30000000}",
        )
    rp_pre.v("v_lshrrev_b32", T + 4, "3", lane).v("v_mul_u32_u24", T + 4, "1280", T + 4).v("v_and_b32", T + 5, "7", lane).v("v_lshl_add_u32", T + 4, T + 5, "4", T + 4)
    rp_pre.v("v_lshrrev_b32", vP, "4", lane).v("v_lshlrev_b32", vP, "10", vP).v("v_bfe_u32", vTt, lane, "2", "2").v("v_lshl_add_u32", vP, vTt, "7", vP)
    rp_pre.v("v_and_b32", vTt, "3", lane).v("v_lshl_add_u32", vP, vTt, "3", vP)
    rp_pre.s("s_lshr_b32 s4, s3, 2", "s_lshl_b32 s4, s4, 12", "s_and_b32 s5, s3, 3", "s_lshl_b32 s5, s5, 5", "s_add_u32 s4, s4, s5", f"s_add_u32 s4, s4, {8*16384}").v("v_add_u32", vP, "s4", vP)
    o = L()
    o.s("s_and_b32 s4, s3, 3", "s_lshr_b32 s5, s3, 2")
    o.v("v_lshrrev_b32", t0, "5", lane).v("v_lshlrev_b32", t0, "10", t0).v("v_bfe_u32", t1, lane, "2", "2").v("v_lshl_add_u32", t0, t1, "7", t0)
    o.v("v_lshrrev_b32", t1, "1", t1).v("v_xor_b32", t1, "s5", t1).v("v_lshl_add_u32", t0, t1, "6", t0)
    o.v("v_bfe_u32", t1, lane, "4", "1").v("v_lshl_add_u32", t0, t1, "5", t0).v("v_and_b32", t1, "1", lane).v("v_lshl_add_u32", t0, t1, "4", t0)
    o.v("v_bfe_u32", t1, lane, "1", "1").v("v_lshl_add_u32", vWr[0], t1, "3", t0)
    o.v("v_add_u32", vWr[1], "0x10000", vWr[0]).v("v_add_u32", vWr[2], "0x20000", vWr[0])
    o.v("v_and_b32", t0, "31", lane).v("v_lshrrev_b32", t1, "5", lane).v("v_bfe_u32", t2, lane, "1", "3").v("v_xor_b32", t2, t1, t2)
    o.s("s_lshl_b32 s6, s4, 12")
    o.v("v_lshlrev_b32", t3, "7", t0).v("v_add_u32", t3, "s6", t3)
    for s4 in range(4): o.v("v_xor_b32", vXr + s4, str(2 * s4), t2).v("v_lshl_add_u32", vXr + s4, vXr + s4, "4", t3)
    o += rp_pre
    o += p2_setup(vPA, lane, "s4", "s11")
    paced(E, o0 + o, dq, cfg.get("pace", 40))
    st("i1")
    while any(x.kind == "vld" for g in dq for x in g): E(dq.pop(0))
    o = L()
    o += stats_ops(TB, XO)
    dq += refill(cfg.get("pre", 1))
    paced(E, o, dq, cfg.get("pace2", 16))
    E(Block("s_cmp_lt_u32 s17, 6", col_acc_ops(TB, lane, XO)))
    E(L().s(*PERMSEL))
    st("i3")
    D = L()
    D.append(list(L().s("s_and_b32 s4, s3, 3", "s_lshr_b32 s5, s3, 2", f"s_lshl_b32 s6, {sRb}, 2", "s_add_u32 s6, s6, s4", f"s_lshl_b32 {sTok}, s6, 9",
        "s_mul_i32 s6, s6, 74", f"s_lshl_b32 s7, {sCb}, 1", "s_add_u32 s6, s6, s7", "s_add_u32 s6, s6, s5", f"s_lshl_b32 {sSt}, s6, 11")))
    D.v("v_lshrrev_b32", t1, "5", lane).v("v_and_b32", t2, "15", lane).v("v_bfe_u32", t3, lane, "4", "1").v("v_lshl_add_u32", vTokA, t2, "1", t3).v("v_lshlrev_b32", vTokA, "4", vTokA)
    D.v("v_lshlrev_b32", vSt, "10", t3).v("v_lshl_add_u32", vSt, t1, "8", vSt).v("v_lshl_add_u32", vSt, t2, "4", vSt)
    D.v("v_and_b32", vCol, "19", lane).v("v_bfe_u32", t2, lane, "2", "1").v("v_lshl_add_u32", vCol, t2, "3", vCol)
    D.v("v_bfe_u32", t2, lane, "3", "1").v("v_lshl_add_u32", vCol, t2, "2", vCol)
    D.append(list(L().s(f"s_mul_i32 s6, {sCb}, 384", "s_lshr_b32 s5, s3, 2", "s_lshl_b32 s7, s5, 5", "s_add_u32 s6, s6, s7").v("v_add_u32", vCol, "s6", vCol)))
    D.v("v_lshlrev_b32", vCol, "3", vCol).v("v_lshl_add_u32", vCol, t1, "9", vCol)
    D.append(list(L().s(f"s_lshl_b32 {sOwn}, {sRb}, 7", f"s_lshl_b32 s6, {sCb}, 2", f"s_add_u32 {sOwn}, {sOwn}, s6", f"s_add_u32 {sOwn}, {sOwn}, {FLG_OFF}")))
    D.s(f"s_mov_b32 s14, {COL_OFF + 30*1024}", f"s_mov_b32 s15, {COL_OFF + 57*1024}")
    D.v("v_lshlrev_b32", vL16, "4", lane).v("v_or_b32", vF, sL, lane).v("v_min_u32", vF, "1", vF).v("v_lshlrev_b32", vF, "30", vF)
    def colload(dst, mat, chunk):
        return BLD(dst, 2, vCol, 20, "s14" if mat == 0 else "s15", off=chunk * 1024, tag="col", mod=SC1)
    def colchk(dst, mat, chunk):
        E(col_fix(dst))
    M = []
    for t in range(40):
        M.append((A0, t, t // 4, 0, t % 4)); M.append((A1, t, t // 4, 1, t % 4))
    for p, acc in ((1, A2), (2, A0), (3, A1), (4, A0)):
        for t in range(40):
            M.append((acc, t, 10 + 5 * (p - 1) + t // 8, (t // 4) % 2, t % 4))
    PF = 4; NB = 5
    def reads(n):
        acc, t, s, half, sub = M[n]
        pos = items[("W", s)] * 16384 + half * 8192 + sub * 2048
        b = WB + 4 * (n % NB)
        return [DSR(b, 2, vWr[pos >> 16], off=pos & 0xffff, tr=True), DSR(b + 2, 2, vWr[pos >> 16], off=(pos & 0xffff) + 512, tr=True)]
    fill = []
    def silu(G):
        ops = []
        if cfg.get("nosilu"): return ops
        for i in range(0, 16, 4):
            ops += [V("v_mul_f32", T + e, G + i + e, TOK + 2) for e in range(4)]
            ops += [V("v_exp_f32", T + e, T + e) for e in range(4)]
            ops += [V("v_fma_f32", T + e, T + e, TOK + 3, TOK + 3) for e in range(4)]
            ops += [V("v_rcp_f32", T + e, T + e) for e in range(4)]
            ops += [V("v_mul_f32", G + i + e, G + i + e, T + e) for e in range(4)]
        return ops
    def fin(G, U, chunk):
        ops = []
        for ip in range(2):
            ops += [V("v_mul_f32", G + 8 * ip + e, G + 8 * ip + e, U + 8 * ip + e) for e in range(8)]
            ops += [V("v_cvt_pk_bf16_f32", T + 4 + e, G + 8 * ip + 2 * e, G + 8 * ip + 2 * e + 1) for e in range(4)]
            mk = lambda: BST(T + 4, 4, vSt, 20, sSt, off=512 * ip, tag="st", mod=SC1)
            if cfg.get("stag") and chunk < 2: ops += [[Cond("s_cmp_lt_u32 s3, 4", [mk()])], [], [Cond("s_cmp_ge_u32 s3, 4", [mk()])]]
            else: ops.append(mk())
        if chunk < 2: ops.append(S(f"s_add_u32 {sSt}, {sSt}, {18*2048}"))
        return ops
    at_sync = {}
    def sync(s):
        its = [("W", s)] + ([("X", s)] if s < 10 else [])
        ex = at_sync.get(s, {})
        tags = its + ex.get("tags", [])
        while any(getattr(x, "tag", None) in tags for g in dq for x in g): E(dq.pop(0))
        for it in its: assert it in items
        for o_ in fill:
            for x_ in (o_ if isinstance(o_, list) else [o_]): assert getattr(x_, "tag", None) not in tags, (s, x_.text)
        tags.sort(key=lambda it: max([i for i, e in enumerate(a.vm) if e[1] == it] + [-1]))
        lg = None
        if 1 <= s <= 10:
            xr = set(rng(XF + 16 * (s - 1), 16))
            idx = [i for i, e in enumerate(a.lg) if e & xr]
            if idx: lg = len(a.lg) - 1 - max(idx)
        if s == 0: lg = 0
        if "lgw" in ex:
            idx = [i for i, e in enumerate(a.lg) if not e]
            if idx: lg = min(99 if lg is None else lg, len(a.lg) - 1 - max(idx))
        a.wait_tag(tags[-1], lg=lg)
        if not (cfg.get("nobar") and s > 11 and s % 2): a.barrier()
        st(f"s{s}")
        if 1 <= s <= 10: free.append(items[("X", s - 1)])
        if s >= 2: free.append(items[("W", s - 2)])
        free.extend(ex.get("free", []))
        if "post" in ex: ex["post"]()
        dq.extend(refill())
        if s < 10:
            for s4 in range(4):
                E(DSR(XF + 4 * (4 * s + s4), 4, vXr + s4, off=items[("X", s)] * 16384))
    def chk_empty(): assert not fill, len(fill)
    fill += tok_fin_ops(TB, XO)
    fill += [[Block(f"s_cmp_lt_u32 {sColSt}, {HUGE}", col_fin_ops(TB + 16, TB + 6, lane, XO))]] + D
    RS = [8, 9]
    def rp_issue():
        for x in RS: free.remove(x)
        dq.append(list(L().s(f"s_mov_b32 s{S_AUX}, s0", f"s_mov_b32 s{S_AUX+1}, s1", f"s_mov_b32 s{S_AUX+2}, {1728*1280}", f"s_mov_b32 s7, {18*5120}", "s_cmp_ge_u32 s12, 90",
              f"s_cselect_b32 s{S_AUX+2}, {640*1280}, s{S_AUX+2}", f"s_cselect_b32 s7, {2*5120}, s7", "s_add_u32 s0, s76, s7", "s_add_u32 s1, s0, s7")))
        dq.append(list(L().s("s_lshr_b32 s4, s3, 2", "s_mul_i32 s4, s4, s12", "s_cmp_ge_u32 s4, 90", f"s_cselect_b32 s1, {0x70000000}, s1")))
        for z in range(3):
            dq.append([S(f"s_add_u32 m0, {sL}, {RS[0]*16384 + z*8192}"), DMA(T + 4, S_AUX, "s63", tag="rp", mod=DBG.get("rm", " nt")), S(f"s_add_u32 s63, s63, {64*1280}")])
    def rp_rd(z): return [DSR(T + 4, 2, vP, off=z * 8192, tr=True), DSR(T + 6, 2, vP, off=z * 8192 + 512, tr=True)]
    def rp_st(z): return BST(T + 4, 4, vL16, 20, ["s76", "s0", "s1"][z], tag="rps", mod=SC1)
    at_sync[8] = dict(post=rp_issue)
    at_sync[11] = dict(tags=["rp"])
    at_sync[13] = dict(free=RS)
    at_sync[15] = dict(tags=["rps"], post=lambda: E(flag_st(vTt, vF, LV_W2, "s10")))
    at_sync[17] = dict(tags=["st"], post=lambda: E(flag_st(vTt, vF, LV_A)))
    at_sync[24] = dict(tags=["st"], post=lambda: E(flag_st(vTt, vF, LV_B)))
    sync(0)
    for n in range(PF): E(reads(n))
    def w2chk():
        flg_check(a, vP, vPA, LV_W2); p2["go"] = True
    def achk():
        flg_check(a, vP, vPA, LV_A)
    P1 = cfg.get("p1", 46); WC = cfg.get("wc", 176); AC = cfg.get("ac", 198)
    tokld = BLD(TOK, 4, vTokA, 36, sTok, tag="tok", mod=SC1)
    first = [tokld, colload(AP[0], 0, 0), colload(AP[1], 1, 0)] + \
            [BLD(T + i, 1, vCol, 20, "s14" if i % 2 == 0 else "s15", off=(1 + i // 2) * 1024 + 4, mod=SC1) for i in range(4)]
    after = {}
    def at(n, f): after.setdefault(n, []).append(f)
    for i, x in enumerate(first): at(P1 + 3 * i, lambda x=x: E(x))
    at(79, lambda: (check(a, first, tag_cmp([TOK + 1, AP[0] + 1, AP[1] + 1, T, T + 1, T + 2, T + 3], vTt)), E(col_fix(AP[0])), E(col_fix(AP[1])),
                    E(V("v_mov_b32", TOK + 1, TOK)), E(V("v_mul_f32", TOK + 2, NLOG2E, TOK + 2))))
    at(82, lambda: (E(MFMA32C(A0, AP[0], TOK)), E(MFMA32C(A1, AP[1], TOK)),
                    fill.extend([colload(AP[0], 0, 1), colload(AP[1], 1, 1), []] + silu(A0) + fin(A0, A1, 0))))
    for z in range(3):
        if cfg.get("stag"):
            at(85 + 5 * z, lambda z=z: E(rp_rd(z))); at(87 + 5 * z, lambda z=z: E(Cond("s_cmp_lt_u32 s3, 4", [rp_st(z)]))); at(89 + 5 * z, lambda z=z: E(Cond("s_cmp_ge_u32 s3, 4", [rp_st(z)])))
        else:
            at(86 + 4 * z, lambda z=z: E(rp_rd(z))); at(89 + 4 * z, lambda z=z: E(rp_st(z)))
    at(119, lambda: colchk(AP[0], 0, 1))
    at(122, lambda: (E(MFMA32C(A2, AP[0], TOK)), fill.extend([colload(AP[0], 0, 2), [], []] + silu(A2))))
    at(159, lambda: colchk(AP[1], 1, 1))
    at(162, lambda: (E(MFMA32C(A0, AP[1], TOK)), fill.extend([colload(AP[1], 1, 2), [], []] + fin(A2, A0, 1))))
    at(WC - cfg.get("pl", 14), lambda: E(flg_poll(vP, vPA, LV_W2))); at(WC, w2chk)
    if PFX:
        for p in range(1, 4): at(WC + 1 + cfg.get("pfs", 6) * (p - 1), lambda p=p: E(pf_w2(p, vTt, T + p, lane)))
    at(199, lambda: colchk(AP[0], 0, 2))
    at(202, lambda: (E(MFMA32C(A1, AP[0], TOK)), fill.extend([[], []] + silu(A1))))
    at(AC - cfg.get("pl", 14), lambda: E(flg_poll(vP, vPA, LV_A))); at(AC, achk)
    at(220, lambda: colchk(AP[1], 1, 2))
    at(236, lambda: E(flg_poll(3, vPA, LV_B)))
    for n in range(240):
        acc, t, s, half, sub = M[n]
        if n in (P1, 80, 120, 160, 200): chk_empty()
        E(MFMA32(acc, WB + 4 * (n % NB), XF + 4 * t, c="0" if t == 0 else None))
        m = n + PF
        if m < 240:
            if m % 8 == 0: sync(m // 8)
            E(reads(m))
        for f in after.get(n, []): f()
        b = cfg.get("b1", 4.5) if (80 <= n < 120) else cfg.get("b", 3.5)
        ph = m % 8
        okd = ph in cfg.get("ph0", [1, 2, 3, 4, 5, 6]) if n < 80 else ph in (cfg.get("ph2", [2, 4, 6]) if len(dq) > 2 else cfg.get("ph1", [3, 5]))
        if dq and (okd or not any(x.kind == "dma" for x in dq[0])):
            g_ = dq.pop(0)
            if cfg.get("nodma") and n >= 80: g_ = [x for x in g_ if x.kind != "dma"]
            E(g_); b -= 1
        elif n >= cfg.get("ago", 202) and ph in (1, 7) and p2["act"] < 9:
            assert p2["act"] <= t
            E(p2_act(p2["act"], vL16)); p2["act"] += 1; b -= 1
        while fill and b > 0:
            o_ = fill.pop(0); E(o_); b -= cost(o_)
    assert not fill and not dq
    st("p1e")
    E(MFMA32C(A0, AP[1], TOK))
    E(V("v_mov_b32", 2, vPA)); E(V("v_mov_b32", 4, vF))
    E(fin(A1, A0, 2))
    phase2(a, st, cfg, vL16, lane, 2, 3, p2["pieces"], p2["act"], cfg.get("rate", 3), flag_st(5, 4, LV_C), epoch=True)
    st.finish(1, name, cfg.get("stw", 0))
    a.raw("s_endpgm")

def gen_qkv(a, name, stamps, cfg):
    E = a.emit; st = Stamp(a, stamps, cfg.get("sel"))
    PFX = cfg.get("pf", False)
    sK, sKx = 40, 50
    vL16, lane = 0, 1
    ACC = 176; FR = [128, 152]; TB = 80
    vPA, vP, vF = 2, 3, 4
    vDW, vDX = 5, 6
    vWr, vXr = 9, 12
    TOK = 24; AP = 44; vQW = 46; T = 50
    vTt, vColA, vTokA = 57, 58, 87
    BC, BP, MC, MP, ONE, MG0 = 60, 64, 68, 70, 72, 76
    vQ, vQ2, vV, vV2, vOW, vOW2, vOR = 77, 78, 79, 80, 81, 82, 83
    n_, g_ = 85, 86
    vOG = 92
    t0, t1, t2, t3, t4 = T, T + 1, T + 2, T + 3, T + 4
    sHg, sB, sT0 = "s13", "s14", "s15"
    SLOT = 53248; WOFF = 20480; DUMMY = 3 * SLOT; XOFF = DUMMY + 1024
    sM3 = ["s68", "s69", "s70"]
    RB = cfg.get("rblkq", 5)
    E(st_pre(TB, lane, TOK))
    o = L()
    o.s("s_sub_u32 s12, s12, 18", f"s_mov_b32 s30, {640*3840}",
        "s_cmp_ge_u32 s12, 7", f"s_cselect_b32 {sHg}, 1, 0", f"s_cselect_b32 {sB}, 7, 0", f"s_sub_u32 {sB}, s12, {sB}",
        f"s_mul_i32 s4, {sHg}, {cfg.get('rmulq', 2)}", f"s_add_u32 s4, s4, {sB}")
    o += mod_ops("s4", "s19", RB)
    o.s("s_lshl_b32 s4, s11, 1", f"s_add_u32 {sHg}, {sHg}, s4", "s_mul_i32 s4, s10, 7", f"s_add_u32 {sB}, {sB}, s4")
    o += rot_table("s19", sK, 64 * 3840, sKx, 0, 1, RB)
    o.s("s_and_b32 s4, s3, 3", "s_lshr_b32 s5, s3, 2", "s_lshl_b32 s6, s4, 3")
    o.v("v_lshrrev_b32", t0, "3", lane).v("v_and_b32", t1, "7", lane).v("v_add_u32", t2, "s6", t0)
    o.v("v_bfe_u32", t3, t2, "1", "3").v("v_xor_b32", t3, t1, t3)
    o.v("v_and_b32", vDX, "15", t2).v("v_lshrrev_b32", t2, "4", t2).v("v_lshl_add_u32", vDX, vDX, "1", t2)
    o.s(f"s_mul_i32 {sT0}, {sB}, 146", "s_lshl_b32 s9, s5, 5", f"s_add_u32 s6, {sT0}, s9")
    o.v("v_add_u32", vDX, "s6", vDX).v("v_mul_u32_u24", vDX, "1280", vDX).v("v_lshl_add_u32", vDX, t3, "4", vDX).v("v_add_u32", vDX + 1, str(64 * 1280), vDX)
    o.v("v_add_u32", vDX + 2, str(128 * 1280), vDX)
    E(o)
    def dma_stage(s):
        z = s % 3; base = z * SLOT
        ops = [[S(f"s_add_u32 m0, {sL}, {base}"), DMA(vDX, 24, f"s{sKx+s}", tag=s)],
               [S(f"s_add_u32 m0, {sL}, {base+8192}"), DMA(vDX + 1, 24, f"s{sKx+s}", tag=s)],
               [Cond("s_cmp_lt_u32 s3, 4", [S(f"s_add_u32 m0, {sL}, {base+16384}"), DMA(vDX + 2, 24, f"s{sKx+s}", tag=s)])]]
        for e in range(4):
            g = [S(f"s_add_u32 m0, {sL}, {base+WOFF+e*8192}")]
            if e == 0: g.append(DMA(vDW, 28, f"s{sK+s}", tag=s, mod=DBG.get("wm", "")))
            else: g += [S(f"s_add_u32 s63, s{sK+s}, {e*16*3840}"), DMA(vDW, 28, "s63", tag=s, mod=DBG.get("wm", ""))]
            ops.append(g)
        return ops
    o = L()
    o.s("s_lshl_b32 s6, s3, 1")
    o.v("v_lshrrev_b32", t0, "5", lane).v("v_add_u32", t0, "s6", t0)
    o.v("v_and_b32", t1, "3", t0).v("v_lshlrev_b32", t1, "2", t1).v("v_and_b32", t2, "31", lane).v("v_xor_b32", t1, t1, t2)
    o.v("v_mul_u32_u24", t2, "26", t1).v("v_lshrrev_b32", t2, "8", t2)
    o.v("v_mul_u32_u24", t3, str(1280 - 160), t2).v("v_lshl_add_u32", t3, t1, "4", t3)
    o.v("v_add_u32", t1, "2", t1).v("v_lshrrev_b32", t1, "5", t1).v("v_lshl_add_u32", t3, t1, "30", t3)
    o.v("v_mul_u32_u24", vDW, "3840", t0).v("v_add_u32", vDW, vDW, t3)
    o.s(f"s_mul_i32 s6, {sHg}, 160").v("v_add_u32", vDW, "s6", vDW)
    E(o)
    common_wait(a, stamps)
    E(S(f"s_mov_b32 s28, s{P_QKV}")); E(S(f"s_mov_b32 s29, s{P_QKV+1}"))
    E(st_issue(TB, TOK))
    dq = dma_stage(0)
    paced(E, rot_table("s19", sK, 64 * 3840, sKx, 1, 10, RB), dq, cfg.get("paceq0", 12))
    st("i0")
    o = L()
    o.v("v_lshrrev_b32", t0, "5", lane).v("v_lshlrev_b32", t0, "12", t0).v("v_bfe_u32", t1, lane, "2", "2").v("v_lshl_add_u32", t0, t1, "9", t0)
    o.v("v_xor_b32", t1, "s3", t1).v("v_lshl_add_u32", t0, t1, "6", t0)
    o.v("v_bfe_u32", t1, lane, "4", "1").v("v_lshl_add_u32", t0, t1, "5", t0).v("v_and_b32", t1, "3", lane).v("v_lshl_add_u32", t0, t1, "3", t0)
    for z in range(3): o.v("v_add_u32", vWr + z, str(z * SLOT + WOFF), t0)
    o.v("v_and_b32", t0, "31", lane).v("v_lshrrev_b32", t1, "5", lane).v("v_bfe_u32", t2, lane, "1", "3").v("v_xor_b32", t2, t1, t2).v("v_lshlrev_b32", t3, "7", t0)
    for s4 in range(4):
        o.v("v_xor_b32", t4, str(2 * s4), t2).v("v_lshl_add_u32", vXr + s4, t4, "4", t3)
        for z in (1, 2): o.v("v_add_u32", vXr + 4 * z + s4, str(z * SLOT), vXr + s4)
    o.s("s_mul_i32 s4, s11, 15", "s_add_u32 s4, s4, 1", "s_lshr_b32 s4, s4, 1", "s_add_u32 s4, s4, s12",
        "s_mul_i32 s6, s4, 86", "s_lshr_b32 s6, s6, 8", "s_mul_i32 s7, s6, 3", "s_sub_u32 s4, s4, s7", "s_mul_i32 s8, s4, 10", "s_add_u32 s8, s8, s6",
        "s_lshl_b32 s9, s8, 7", "s_and_b32 s4, s11, 1", "s_add_u32 s4, s4, s12", "s_cmp_lt_u32 s4, 8")
    o += col_pre(TB, lane, 3840)
    o_pre = o
    QB = 81920
    D = L()
    D += p2_setup(vPA, lane)
    D.s(f"s_lshl_b32 {sOwn}, {sB}, 5", f"s_add_u32 {sOwn}, {sOwn}, {sHg}", f"s_lshl_b32 {sOwn}, {sOwn}, 2", f"s_add_u32 {sOwn}, {sOwn}, {FLG_OFF + 16*128}",
        f"s_mov_b32 s12, {COL_OFF}")
    D.v("v_lshlrev_b32", vL16, "4", lane).v("v_or_b32", vF, sL, lane).v("v_min_u32", vF, "1", vF).v("v_lshlrev_b32", vF, "30", vF)
    D.v("v_and_b32", t0, "31", lane).v("v_lshrrev_b32", t1, "5", lane)
    D.v("v_and_b32", t2, "15", lane).v("v_bfe_u32", t3, lane, "4", "1").v("v_lshl_add_u32", t4, t2, "1", t3).v("v_add_u32", t4, sT0, t4)
    for rg in range(5):
        D.v("v_add_u32", vTokA + rg, str(32 * rg), t4).v("v_min_u32", vTokA + rg, "2047", vTokA + rg).v("v_lshlrev_b32", vTokA + rg, "4", vTokA + rg)
    D.s("s_lshl_b32 s6, s3, 5").v("v_add_u32", t0, "s6", t0).v("v_min_u32", t0, "239", t0)
    D.v("v_mul_u32_u24", t4, "205", t0).v("v_lshrrev_b32", t4, "14", t4).v("v_mul_u32_u24", t4, "560", t4).v("v_add_u32", t4, t4, t0)
    D.s(f"s_mul_i32 s6, {sHg}, 80").v("v_add_u32", t4, "s6", t4)
    D.v("v_lshrrev_b32", vColA, "6", t4).v("v_lshlrev_b32", vColA, "10", vColA).v("v_and_b32", t4, "63", t4)
    D.v("v_lshl_add_u32", vColA, t4, "3", vColA).v("v_lshl_add_u32", vColA, t1, "9", vColA)
    D.v("v_mul_u32_u24", T + 5, "3200", t3).v("v_mul_u32_u24", T + 6, "40", t2).v("v_add_u32", T + 5, T + 5, T + 6).v("v_add_u32", T + 5, str(QB), T + 5)
    D.s("s_lshl_b32 s6, s3, 3")
    for i in range(4):
        D.v("v_add_u32", t0, "s6", t1)
        if i: D.v("v_add_u32", t0, str(2 * i), t0)
        D.v("v_mul_u32_u24", t4, "52", t0).v("v_lshrrev_b32", t4, "8", t4)
        D.v("v_mul_u32_u24", T + 6, str(6400 - 40), t4).v("v_lshl_add_u32", T + 6, t0, "3", T + 6).v("v_add_u32", vQW + i, T + 6, T + 5)
    D.v("v_and_b32", n_, "15", lane).v("v_lshrrev_b32", g_, "4", lane).v("v_lshlrev_b32", t0, "2", g_).v("v_sub_u32", t0, n_, t0)
    D.v("v_mov_b32", t4, "0xf149f2ca").v("v_mov_b32", T + 5, "0xffff").v("v_mov_b32", T + 6, "0xffff0000")
    for r in range(4):
        for (BB, MM, add) in ((BC, MC, 0), (BP, MP, 16)):
            D.v("v_add_u32", t1, str(add - r), t0)
            D.append(VCMP("v_cmp_gt_u32", "s[4:5]", "8", t1))
            D.v("v_cndmask_b32", BB + r, t4, "0", "s[4:5]")
            if r % 2 == 0: D.v("v_cndmask_b32", MM + r // 2, "0", T + 5, "s[4:5]")
            else: D.v("v_cndmask_b32", t3, "0", T + 6, "s[4:5]").v("v_or_b32", MM + r // 2, MM + r // 2, t3)
    for r in range(4): D.v("v_mov_b32", ONE + r, "0x3f803f80")
    D.append(VCMP("v_cmp_eq_u32", "s[4:5]", "0", g_))
    D.v("v_cndmask_b32", MG0, "0", "-1", "s[4:5]")
    D.s("s_mul_i32 s6, s3, 3200", f"s_add_u32 s6, s6, {QB}")
    D.v("v_mul_u32_u24", t0, "40", n_).v("v_add_u32", t0, "s6", t0).v("v_lshl_add_u32", vQ, g_, "3", t0).v("v_add_u32", vQ2, "32", t0)
    D.v("v_lshrrev_b32", t0, "2", lane).v("v_mul_u32_u24", t0, "40", t0).v("v_add_u32", t0, "s6", t0).v("v_add_u32", t0, str(51200), t0)
    D.v("v_and_b32", t1, "3", lane).v("v_lshl_add_u32", vV, t1, "3", t0).v("v_add_u32", vV2, "32", t0)
    OB = QB
    D.s(f"s_mul_i32 s7, {sB}, 73", "s_and_b32 s6, s7, 7", "s_lshl_b32 s6, s6, 4", "s_bitcmp1_b32 s3, 0")
    D[-1:] = [[D[-1], S(f"s_cselect_b32 s8, {OB + 1408}, {0}"), S(f"s_max_u32 s8, s8, {OB}"), S("s_add_u32 s6, s6, s8")]]
    D.v("v_lshl_add_u32", t1, n_, "4", "s6")
    D.s("s_lshr_b32 s6, s3, 1", "s_mul_i32 s6, s6, 5")
    for (dst, second) in ((vOW, False), (vOW2, True)):
        if second: D.s("s_add_u32 s6, s6, 4").v("v_mov_b32", t0, "s6")
        else: D.v("v_add_u32", t0, "s6", g_)
        D.v("v_lshrrev_b32", t2, "1", t0).v("v_mul_u32_u24", t2, "2816", t2).v("v_add_u32", dst, t2, t1)
        D.v("v_and_b32", t2, "1", t0).v("v_lshl_add_u32", dst, t2, "3", dst)
    D.v("v_mov_b32", T + 5, str(DUMMY)).v("v_cndmask_b32", vOW2, T + 5, vOW2, "s[4:5]")
    D.v("v_lshrrev_b32", t0, "4", sL) if False else None
    D.v("v_lshl_add_u32", vOR, lane, "4", sL).v("v_add_u32", vOR, str(OB), vOR)
    D.append([S(f"s_mul_i32 s7, {sB}, 73"), S("s_add_u32 s8, s7, 7"), S(f"s_cmp_eq_u32 {sB}, 0"), S("s_cselect_b32 s8, 0, s8"),
              S("s_add_u32 s35, s7, 80"), S("s_sub_u32 s34, s35, s8"), S("s_mov_b32 s33, s8"), S("s_and_b32 s32, s7, -8"),
              S(f"s_mul_i32 s71, {sHg}, 10")])
    D.v("v_mov_b32", T + 5, HUGE)
    for i in range(4):
        D.append([S("s_lshl_b32 s6, s3, 6"), S(f"s_add_u32 s6, s6, {512*i}"), V("v_add_u32", t0, "s6", lane)])
        D.v("v_mul_u32_u24", t1, "745", t0).v("v_lshrrev_b32", t1, "16", t1)
        D.v("v_mul_u32_u24", t2, "88", t1).v("v_sub_u32", t0, t0, t2).v("v_add_u32", t0, "s32", t0)
        D.v("v_lshrrev_b32", t2, "4", t0).v("v_mul_u32_u24", vOG + i, str(74 * 2048), t2)
        D.v("v_and_b32", t2, "15", t0).v("v_lshl_add_u32", vOG + i, t2, "4", vOG + i)
        D.v("v_and_b32", t2, "1", t1).v("v_lshl_add_u32", vOG + i, t2, "10", vOG + i)
        D.v("v_lshrrev_b32", t2, "1", t1).v("v_add_u32", t2, "s71", t2)
        D.v("v_lshrrev_b32", t3, "2", t2).v("v_lshl_add_u32", vOG + i, t3, "11", vOG + i)
        D.v("v_and_b32", t2, "3", t2).v("v_lshl_add_u32", vOG + i, t2, "8", vOG + i)
        D.v("v_subrev_u32", t0, "s33", t0)
        D.append(VCMP("v_cmp_gt_u32", "s[4:5]", "s34", t0))
        D.v("v_cndmask_b32", vOG + i, T + 5, vOG + i, "s[4:5]")
        if i == 3:
            D.append(VCMP("v_cmp_gt_u32", "s[4:5]", "20", t1))
            D.v("v_cndmask_b32", vOG + i, T + 5, vOG + i, "s[4:5]")
    dq += dma_stage(1)
    paced(E, o_pre + D + [S(x) for x in PERMSEL], dq, cfg.get("paceq", 36))
    st("i1")
    paced(E, stats_ops(TOK, XOFF), dq, 16)
    dq += dma_stage(2)
    st("i3")
    def reads(t):
        s, sub = t // 4, t % 4; z = s % 3; f = FR[t % 2]
        ops = [DSR(f, 2, vWr + z, off=sub * 8192, tr=True), DSR(f + 2, 2, vWr + z, off=sub * 8192 + 2048, tr=True)]
        for rg in range(5): ops.append(DSR(f + 4 + 4 * rg, 4, vXr + 4 * z + sub, off=rg * 4096))
        return ops
    tabld = [BLD(TOK + 4 * rg, 4, vTokA + rg, 36, "0", tag="tok", mod=SC1) for rg in range(5)] + [BLD(AP, 2, vColA, 20, "s12", tag="col", mod=SC1)]
    while any(x.tag == 0 for g in dq for x in g): E(dq.pop(0))
    if cfg.get("prio"): E(Cond("s_cmp_ge_u32 s3, 4", [S("s_setprio 1")]))
    a.wait_tag(0, lg=0); a.barrier()
    st("s0")
    E(reads(0))
    fill = tok_fin_ops(TB, XOFF, TOK)
    for t in range(40):
        f = FR[t % 2]
        nxt = []
        if t + 1 < 40:
            if (t + 1) % 4 == 0:
                s = (t + 1) // 4
                while any(x.tag == s for g in dq for x in g): E(dq.pop(0))
                a.wait_tag(s, lg=0); a.barrier()
                st(f"s{s}")
                if s + 2 < 10: dq += dma_stage(s + 2)
                CQ = cfg.get("cq", 1)
                if s in (CQ, CQ + 1):
                    cl_ = [[Cond(f"s_cmp_lt_u32 s78, {HUGE}", g)] for g in col_issue(TB, 28, 3840)]
                    dq += cl_[:3] if s == CQ else cl_[3:]
                if s == CQ + 2: fill = [[]] * 10 + col_acc_ops(TB, lane, XOFF, dot=False)
                if s == CQ + 5:
                    assert not fill; fill = [[Block(f"s_cmp_lt_u32 {sColSt}, {HUGE}", col_fin_ops(TB + 16, vTt, lane, XOFF))]]
                if s == 9:
                    assert not fill
                    dq += [[x] for x in tabld]
            nxt = reads(t + 1)
        if t == 39:
            check(a, tabld, tag_cmp([TOK + 4 * rg + 1 for rg in range(5)] + [AP + 1], vTt))
            fill = col_fix(AP) + [V("v_mov_b32", TOK + 4 * rg + 1, TOK + 4 * rg) for rg in range(5)]
        for rg in range(5):
            E(MFMA32(ACC + 16 * rg, f, f + 4 + 4 * rg, c="0" if t == 0 else None))
            for k in range(2):
                if nxt: E(nxt.pop(0))
            b = 2.5
            if (rg >= 3 or (rg >= 1 and len(dq) > 4)) and dq: E(dq.pop(0)); b -= 1
            while fill and b > 0:
                o_ = fill.pop(0); E(o_); b -= cost(o_)
    assert not fill and not dq
    st("ge")
    for rg in range(5): E(MFMA32C(ACC + 16 * rg, AP, TOK + 4 * rg))
    for rg in range(5):
        A = ACC + 16 * rg
        if rg == 2: E(flg_poll(vP, vPA, LV_W2))
        for i in range(4):
            for e in range(4): E(V("v_mul_f32", A + 4 * i + e, A + 4 * i + e, TOK + 4 * rg + 2))
            E(V("v_cvt_pk_bf16_f32", A + 4 * i, A + 4 * i, A + 4 * i + 1)); E(V("v_cvt_pk_bf16_f32", A + 4 * i + 1, A + 4 * i + 2, A + 4 * i + 3))
            E(DSW(vQW + i, A + 4 * i, 2, off=rg * 640))
    E(flg_poll(vTt, vPA, LV_A))
    a.wait(lg=0); a.barrier()
    st("at")
    Qr = [176 + 4 * j for j in range(5)]; Kr = [196 + 4 * j for j in range(5)]
    V0, V1 = 24, 36
    for j in range(5):
        E(DSR(Qr[j], 2, vQ, off=j * 640)); E(DSR(Qr[j] + 2, 2, vQ2, off=j * 640))
        E(DSR(Kr[j], 2, vQ, off=25600 + j * 640)); E(DSR(Kr[j] + 2, 2, vQ2, off=25600 + j * 640))
    for j in range(5):
        E(DSR(V0 + 2 * (j + 1), 2, vV, off=j * 640, tr=True)); E(DSR(V1 + 2 * (j + 1), 2, vV2, off=j * 640, tr=True))
    for r in (V0, V0 + 1, V1, V1 + 1): E(V("v_mov_b32", r, "0"))
    SC = [216 + 4 * j for j in range(5)]; SP = [236 + 4 * j for j in range(5)]
    for j in range(5):
        E(V("v_and_b32", Qr[j] + 2, Qr[j] + 2, MG0)); E(V("v_and_b32", Qr[j] + 3, Qr[j] + 3, MG0))
    for j in range(5):
        E(MFMA16C(SC[j], Kr[j], Qr[j], BC))
        if j > 0: E(MFMA16C(SP[j], Kr[j - 1], Qr[j], BP))
    MX = [5 + j for j in range(5)]; TT = [10 + j for j in range(5)]
    a.barrier()
    flg_check(a, vP, vPA, LV_W2)
    flg_check(a, vTt, vPA, LV_A)
    if PFX:
        for p in range(1, 4): E(pf_w2(p, vTt, 140 + p, lane))
    pre = merge(p2_w_item(0, vL16) + p2_w_item(1, vL16), [p2_act(x, vL16) for x in range(0, 9)])
    def pp(k=1):
        for _ in range(k):
            if pre: E(pre.pop(0))
    for j in range(5):
        if j > 0:
            for r in range(4): E(V("v_max_f32", SC[j] + r, SC[j] + r, SP[j] + r))
        E(V("v_max3_f32", MX[j], SC[j], SC[j] + 1, SC[j] + 2)); E(V("v_max_f32", MX[j], MX[j], SC[j] + 3))
        if j % 2: pp()
    for lvl in (16, 32):
        for j in range(5): E(V("v_mov_b32", TT[j], MX[j]))
        for j in range(5): E(SWAP(lvl, MX[j], TT[j]))
        for j in range(5): E(V("v_max_f32", MX[j], MX[j], TT[j]))
        pp()
    E(S(f"s_mov_b32 s7, {CSC}"))
    for j in range(5): E(V("v_mul_f32", MX[j], NCSC, MX[j]))
    PB = [236 + 4 * j for j in range(5)]
    for j in range(5):
        for r in range(4): E(V("v_fma_f32", SC[j] + r, SC[j] + r, "s7", MX[j]))
        for r in range(4): E(V("v_exp_f32", SC[j] + r, SC[j] + r))
        pp()
    for j in range(5):
        E(V("v_cvt_pk_bf16_f32", SC[j], SC[j], SC[j] + 1)); E(V("v_cvt_pk_bf16_f32", SC[j] + 1, SC[j] + 2, SC[j] + 3))
        for h in range(2):
            E(V("v_and_b32", PB[j] + h, SC[j] + h, MP + h)); E(V("v_and_b32", PB[j] + 2 + h, SC[j] + h, MC + h))
        if j % 2: pp()
    O0 = Qr; O1 = Kr; DN = SC
    for j in range(5):
        E(MFMA16(DN[j], ONE, PB[j], c="0")); E(MFMA16(O0[j], V0 + 2 * j, PB[j], c="0")); E(MFMA16(O1[j], V1 + 2 * j, PB[j], c="0"))
    srd(a, 28, "s20", "s21", ACT_SIZE)
    for j in range(5): E(V("v_rcp_f32", DN[j], DN[j]))
    for j in range(5):
        for O in (O0[j], O1[j]):
            for r in range(4): E(V("v_mul_f32", O + r, O + r, DN[j]))
            E(V("v_cvt_pk_bf16_f32", O, O, O + 1)); E(V("v_cvt_pk_bf16_f32", O + 1, O + 2, O + 3))
        E(DSW(vOW, O0[j], 2, off=j * 256)); E(DSW(vOW2, O1[j], 2, off=j * 256))
        pp()
    a.wait(lg=0); a.barrier()
    for i in range(4): E(DSR(216 + 4 * i, 4, vOR, off=i * 8192))
    E(S(f"s_mov_b32 s6, {54*2048}"))
    for i in range(4): E(BST(216 + 4 * i, 4, vOG + i, 28, "s6", tag="st", mod=SC1))
    st("p1e")
    pp(20)
    E(flg_poll(vP, vPA, LV_B))
    phase2(a, st, cfg, vL16, lane, vPA, vP, 10, 9, cfg.get("rateq", 3.5), flag_st(5, vF, LV_C))
    st.finish(2, name, cfg.get("stw", 0))
    a.raw("s_endpgm")

def gen_fused(name, stamps=False, cfg={}):
    DBG.update(cfg)
    a = Asm(); E = a.emit
    a.out.append(f".globl {name}\n.p2align 8\n.type {name},@function\n{name}:")
    E(S("s_cmp_ge_u32 s2, 256")); a.raw(f"s_cbranch_scc1 L_{name}_end")
    if stamps:
        a.raw("s_memrealtime s[76:77]"); a.raw("s_memtime s[80:81]")
    a.raw("s_load_dwordx2 s[24:25], s[0:1], 0")
    a.raw(f"s_load_dwordx4 s[{P_QKV}:{P_QKV+3}], s[0:1], 8")
    a.raw("s_load_dwordx2 s[28:29], s[0:1], 32"); a.raw("s_load_dwordx2 s[32:33], s[0:1], 40")
    a.raw(f"s_load_dwordx2 s[{P_W2}:{P_W2+1}], s[0:1], 48")
    a.raw(f"s_load_dwordx2 s[{S_OUT}:{S_OUT+1}], s[0:1], 56")
    a.raw("s_load_dwordx2 s[20:21], s[0:1], 72")
    E(V("v_lshrrev_b32", 2, "6", 0)); E(V("v_and_b32", 1, "63", 0))
    E(RFL("s3", 2))
    for (b, size) in ((20, WS_USED), (24, XBYTES), (S_OUT, XBYTES), (36, 2048 * 16), (28, 640 * 3456), (32, 640 * 3456)):
        E(S(f"s_mov_b32 s{b+2}, {size}")); E(S(f"s_mov_b32 s{b+3}, 0x20000"))
    E(S("s_and_b32 s11, s2, 3")); E(S("s_bfe_u32 s10, s2, 0x10002")); E(S("s_lshr_b32 s12, s2, 3"))
    E(S(f"s_lshl_b32 {sL}, s3, 10")); E(S(f"s_mov_b32 {sSpin}, 0"))
    E(S("s_cmp_lt_u32 s12, 18")); a.raw(f"s_cbranch_scc1 L_{name}_ffn")
    gen_qkv(a, name, stamps, cfg)
    a.label(f"L_{name}_ffn"); a.reset()
    gen_ffn(a, name, stamps, cfg)
    a.label(f"L_{name}_end"); a.raw("s_endpgm")
    return a.text(), kdesc(name, 256, 256, 102), 163840
```

```python
import re

def R(x, n=1):
    p, i = ('a', x - 256) if x >= 256 else ('v', x)
    return f"{p}{i}" if n == 1 else f"{p}[{i}:{i+n-1}]"

def rng(x, n): return list(range(x, x + n))

class Op:
    __slots__ = ("text", "kind", "r", "w", "tag", "c", "sr", "sw", "ghost")
    def __init__(self, text, kind, r=(), w=(), tag=None, c=(), sr=(), sw=()):
        self.text, self.kind, self.r, self.w, self.tag, self.c = text, kind, tuple(r), tuple(w), tag, tuple(c)
        self.sr, self.sw = tuple(sr), tuple(sw)
        self.ghost = False
    def __copy__(self):
        return Op(self.text, self.kind, self.r, self.w, self.tag, self.c, self.sr, self.sw)

VALUISH = ("valu", "trans", "dot", "dpp", "perml", "rfl")
MFMA_D2X = {"mfma32": 12, "mfma16": 8, "mfma32c": 12}
MFMA_D2C = {"mfma32": 10, "mfma16": 6, "mfma32c": 10}
MFMA_CWAR = {"mfma32": 7, "mfma16": 3, "mfma32c": 7}

class Asm:
    def __init__(self):
        self.out = []
        self.reset()
    def reset(self):
        self.pos = 0
        self.lg = []
        self.vm = []
        self.lastw = {}
        self.lastc = {}
        self.lastst = {}
        self.slastw = {}
    def raw(self, text, states=1):
        self.out.append("    " + text); self.pos += states
    def label(self, name): self.out.append(name + ":")
    def comment(self, t): self.out.append("    ; " + t)
    def nop(self, n):
        while n > 0:
            k = min(n, 16); self.raw(f"s_nop {k-1}", k); n -= k
    def wait(self, vm=None, lg=None):
        parts = []
        if vm is not None and vm < len(self.vm):
            keep = self.vm[len(self.vm) - vm:] if vm else []
            n = sum(1 for e in keep if not e[2])
            assert n <= 63
            parts.append(f"vmcnt({n})"); self.vm = keep
        if lg is not None and lg < len(self.lg):
            lgc = min(lg, 15)
            parts.append(f"lgkmcnt({lgc})"); self.lg = self.lg[len(self.lg) - lgc:] if lgc else []
        if parts: self.raw("s_waitcnt " + " ".join(parts))
    def wait_tag(self, tag, lg=None):
        idx = [i for i, e in enumerate(self.vm) if e[1] == tag]
        vm = None
        if idx: vm = len(self.vm) - 1 - max(idx)
        self.wait(vm=vm, lg=lg)
    def barrier(self): self.raw("s_barrier")
    def emit(self, op):
        if isinstance(op, (list, tuple)):
            for o in op: self.emit(o)
            return
        if callable(op): op(self); return
        regs = set(op.r) | set(op.w) | set(op.c)
        vm = lg = None
        for i, e in enumerate(self.vm):
            if e[0] & regs and not (op.kind == "vld" and op.tag == "cl" and e[1] == "cl"): vm = len(self.vm) - 1 - i
        for i, e in enumerate(self.lg):
            if e & regs: lg = len(self.lg) - 1 - i
        if op.kind in ("vld", "vst", "dma") and len(self.vm) >= 63: vm = 62 if vm is None else min(vm, 62)
        self.wait(vm=vm, lg=lg)
        need = 0
        k = op.kind
        def req(p, d):
            nonlocal need
            need = max(need, d - (self.pos - p - 1))
        for x in set(op.r) | set(op.c):
            if x in self.lastw:
                p, wk, dt = self.lastw[x]
                if wk in MFMA_D2X:
                    if k in MFMA_D2X:
                        if x in op.c and x not in op.r:
                            if not (dt == op.c and wk == k): req(p, MFMA_D2C[wk])
                        else: req(p, MFMA_D2X[wk])
                    else: req(p, MFMA_D2X[wk])
                elif wk in VALUISH:
                    if k in MFMA_D2X: req(p, 3 if wk == "dot" else 2)
                    if k in ("dpp", "perml"): req(p, 2)
                    if k == "rfl": req(p, 1)
                    if wk == "trans" and k in VALUISH and k != "trans": req(p, 1)
                    if wk == "trans" and k not in VALUISH: req(p, 1)
                    if wk == "dot":
                        if not (k == "dot" and x in op.c and x not in op.r): req(p, 3)
        for x in op.w:
            if x in self.lastw:
                p, wk, dt = self.lastw[x]
                if wk in MFMA_D2X and k not in MFMA_D2X: req(p, MFMA_D2X[wk])
                if wk in MFMA_D2X and k in MFMA_D2X and not (dt == tuple(op.w) and op.c == dt): req(p, MFMA_D2X[wk])
                if wk == "dot" and k != "dot": req(p, 3)
            if x in self.lastc and k not in MFMA_D2X:
                p, ck = self.lastc[x]; req(p, MFMA_CWAR[ck])
            if x in self.lastst: req(self.lastst[x], 2)
        for s in op.sr:
            if s in self.slastw:
                p, wk = self.slastw[s]
                if wk in VALUISH:
                    if k in ("vld", "vst", "dma"): req(p, 5)
                    elif k in VALUISH or k in MFMA_D2X: req(p, 4 if s == "exec" else 2)
                    else: req(p, 2)
                elif wk == "salu" and s == "m0" and k == "dma": req(p, 1)
        if need > 0: self.nop(need)
        p = self.pos
        self.raw(op.text)
        for x in op.w: self.lastw[x] = (p, k, tuple(op.w))
        if k in MFMA_D2X:
            for x in op.c: self.lastc[x] = (p, k)
        if k == "vst" and len(op.r) >= 4:
            for x in op.r: self.lastst[x] = p
        for s in op.sw: self.slastw[s] = (p, k)
        if k == "dsr": self.lg.append(set(op.w))
        elif k == "dsw": self.lg.append(set())
        elif k == "vld": self.vm.append((set(op.w), op.tag, op.ghost))
        elif k in ("vst", "dma"): self.vm.append((set(), op.tag, op.ghost))
        if len(self.lg) > 15: pass
    def text(self): return "\n".join(self.out) + "\n"

def _src(x):
    if isinstance(x, int): return R(x), [x], []
    if isinstance(x, str):
        if re.fullmatch(r"s\d+|vcc|exec|m0|vcc_lo|vcc_hi", x): return x, [], [x]
        m = re.fullmatch(r"s\[(\d+):(\d+)\]", x)
        if m: return x, [], [f"s{i}" for i in range(int(m.group(1)), int(m.group(2)) + 1)]
        m = re.fullmatch(r"(-?)v(\d+)", x)
        if m: return x, [int(m.group(2))], []
        return x, [], []
    if isinstance(x, tuple): return R(x[0], x[1]), rng(x[0], x[1]), []
    raise ValueError(x)

def V(name, d, *srcs, kind="valu", mod="", rmw=False):
    dt, dr, _ = _src(d)
    ts, r, sr = [], [], []
    for s in srcs:
        t, a, b = _src(s); ts.append(t); r += a; sr += b
    if name.startswith(("v_exp", "v_rcp", "v_rsq", "v_log", "v_sqrt")): kind = "trans"
    c = ()
    if name.startswith("v_dot2c"): kind = "dot"; c = dr
    elif rmw or name.startswith("v_fmac"): r = r + dr
    if name.startswith("v_cndmask") and len(srcs) == 2: sr = sr + ["vcc"]; ts.append("vcc")
    return Op(f"{name} {dt}, " + ", ".join(ts) + (" " + mod if mod else ""), kind, r=r, w=dr, c=c, sr=sr)

def VCMP(name, sd, a, b):
    ta, ra, sa = _src(a); tb, rb, sb = _src(b); _, _, sw = _src(sd)
    return Op(f"{name} {sd}, {ta}, {tb}", "valu", r=ra + rb, sr=sa + sb, sw=sw)

def RFL(sd, v): return Op(f"v_readfirstlane_b32 {sd}, {R(v)}", "rfl", r=[v], sw=[sd])

def S(text, sw=(), sr=()):
    m = re.match(r"(\S+)\s+([^,]+)(?:,(.*))?", text)
    w = []; r = []
    if m and not m.group(1).startswith(("s_cmp", "s_cbranch", "s_branch", "s_setprio", "s_nop", "s_sleep")):
        w = _src(m.group(2).strip())[2]
        rest = m.group(3) or ""
    else:
        rest = (m.group(2) + "," + (m.group(3) or "")) if m else ""
    for t in rest.split(","):
        t = t.strip()
        if t: r += _src(t)[2]
    return Op(text, "salu", sw=list(w) + list(sw), sr=list(r) + list(sr))

def MFMA32(d, a, b, c=None):
    ct = R(d, 16) if c is None else c
    return Op(f"v_mfma_f32_32x32x16_bf16 {R(d,16)}, {R(a,4)}, {R(b,4)}, {ct}", "mfma32",
              r=rng(a, 4) + rng(b, 4), w=rng(d, 16), c=rng(d, 16) if c is None else ())
def MFMA16(d, a, b, c=None):
    ct = R(d, 4) if c is None else c
    return Op(f"v_mfma_f32_16x16x32_bf16 {R(d,4)}, {R(a,4)}, {R(b,4)}, {ct}", "mfma16",
              r=rng(a, 4) + rng(b, 4), w=rng(d, 4), c=rng(d, 4) if c is None else ())

def MFMA32C(d, a, b):
    return Op(f"v_mfma_f32_32x32x8_bf16 {R(d,16)}, {R(a,2)}, {R(b,2)}, {R(d,16)}", "mfma32c",
              r=rng(a, 2) + rng(b, 2), w=rng(d, 16), c=rng(d, 16))
def MFMA16C(d, a, b, c):
    return Op(f"v_mfma_f32_16x16x32_bf16 {R(d,4)}, {R(a,4)}, {R(b,4)}, {R(c,4)}", "mfma16",
              r=rng(a, 4) + rng(b, 4), w=rng(d, 4), c=rng(c, 4))
def DPP(name, d, a, b, ctrl):
    return Op(f"{name}_dpp {R(d)}, {R(a)}, {R(b)} {ctrl} row_mask:0xf bank_mask:0xf", "dpp", r=[a, b], w=[d])
def SWAP(n, a, b):
    return Op(f"v_permlane{n}_swap_b32 {R(a)}, {R(b)}", "perml", r=[a, b], w=[a, b])

def _off(o): return f" offset:{o}" if o else ""
def DSR(d, n, addr, off=0, tr=False):
    assert 0 <= off < 65536, off
    name = {1: "ds_read_b32", 2: "ds_read_b64", 3: "ds_read_b96", 4: "ds_read_b128"}[n]
    if tr: name = "ds_read_b64_tr_b16"
    return Op(f"{name} {R(d,n)}, {R(addr)}{_off(off)}", "dsr", r=[addr], w=rng(d, n))
def DSW(addr, s, n, off=0):
    assert 0 <= off < 65536, off
    name = {1: "ds_write_b32", 2: "ds_write_b64", 4: "ds_write_b128"}[n]
    return Op(f"{name} {R(addr)}, {R(s,n)}{_off(off)}", "dsw", r=[addr] + rng(s, n))
def BLD(d, n, voff, srd, soff="0", off=0, tag=None, mod=""):
    assert 0 <= off < 4096, off
    name = {1: "buffer_load_dword", 2: "buffer_load_dwordx2", 4: "buffer_load_dwordx4"}[n]
    return Op(f"{name} {R(d,n)}, {R(voff)}, s[{srd}:{srd+3}], {soff} offen{_off(off)}{mod}", "vld", r=[voff], w=rng(d, n), tag=tag,
              sr=[f"s{srd+i}" for i in range(4)] + _src(soff)[2])
def BST(s, n, voff, srd, soff="0", off=0, tag=None, mod=""):
    assert 0 <= off < 4096, off
    name = {1: "buffer_store_dword", 2: "buffer_store_dwordx2", 4: "buffer_store_dwordx4"}[n]
    o = Op(f"{name} {R(s,n)}, {R(voff)}, s[{srd}:{srd+3}], {soff} offen{_off(off)}{mod}", "vst", r=rng(s, n) + [voff], tag=tag,
           sr=[f"s{srd+i}" for i in range(4)] + _src(soff)[2])
    return o
def DMA(voff, srd, soff, tag=None, mod=""):
    return Op(f"buffer_load_dwordx4 {R(voff)}, s[{srd}:{srd+3}], {soff} offen{mod} lds", "dma", r=[voff], tag=tag,
              sr=[f"s{srd+i}" for i in range(4)] + _src(soff)[2] + ["m0"])

def srd(a, d, lo, hi, size):
    a.emit(S(f"s_mov_b32 s{d}, {lo}")); a.emit(S(f"s_mov_b32 s{d+1}, {hi}"))
    a.emit(S(f"s_mov_b32 s{d+2}, {size}")); a.emit(S(f"s_mov_b32 s{d+3}, 0x20000"))

def kdesc(name, vgpr, accum, sgpr=96):
    return f""".section .rodata,"a"
.p2align 6
.amdhsa_kernel {name}
  .amdhsa_next_free_vgpr {vgpr}
  .amdhsa_next_free_sgpr {sgpr}
  .amdhsa_accum_offset {accum}
  .amdhsa_group_segment_fixed_size 0
  .amdhsa_kernarg_size 80
  .amdhsa_user_sgpr_count 2
  .amdhsa_user_sgpr_kernarg_segment_ptr 1
  .amdhsa_system_sgpr_workgroup_id_x 1
.end_amdhsa_kernel
"""

_gid = [0]
class Cond:
    kind = "cond"; tag = None; w = (); text = "cond"
    def __init__(self, cmp, ops):
        self.cmp, self.ops = cmp, ops
        for o in ops:
            if o.kind in ("vld", "vst", "dma"): o.ghost = True; self.tag = o.tag; self.kind = o.kind
    def __call__(self, a):
        _gid[0] += 1; L = f"L_c{_gid[0]}"
        regs = set()
        for o in self.ops: regs |= set(o.r) | set(o.w) | set(o.c)
        a.emit(Op("s_nop 0", "other", r=list(regs))) if any((e[0] & regs) for e in a.vm) or any((e & regs) for e in a.lg) else None
        a.emit(S(self.cmp)); a.raw(f"s_cbranch_scc0 {L}")
        p0 = a.pos
        n0 = len(a.out)
        for o in self.ops: a.emit(o)
        assert not any("s_waitcnt" in l for l in a.out[n0:])
        a.label(L)
        d = a.pos - p0
        for tbl in (a.lastw, a.lastc, a.slastw):
            for k, v in list(tbl.items()):
                if v[0] < p0: tbl[k] = (v[0] + d,) + tuple(v[1:])
        for k, v in list(a.lastst.items()):
            if v < p0: a.lastst[k] = v + d

class Block(Cond):
    def __init__(self, cmp, ops):
        flat = []
        def fl(x):
            for o in x:
                if isinstance(o, list): fl(o)
                else: flat.append(o)
        fl(ops)
        self.pre = cmp[:-1] if isinstance(cmp, list) else []
        Cond.__init__(self, cmp[-1] if isinstance(cmp, list) else cmp, flat)
    def __call__(self, a):
        _gid[0] += 1; L = f"L_b{_gid[0]}"
        for t in self.pre: a.emit(S(t))
        a.emit(S(self.cmp)); a.raw(f"s_cbranch_scc0 {L}")
        p0 = a.pos
        vm0, lg0 = list(a.vm), list(a.lg)
        ids = set(id(e) for e in vm0)
        used_lds = any(o.kind in ("dsr", "dsw") for o in self.ops)
        for o in self.ops: a.emit(o)
        if used_lds: a.wait(lg=0)
        a.nop(2)
        a.label(L)
        new = [e for e in a.vm if id(e) not in ids]
        a.vm = vm0 + new; a.lg = lg0
        d = a.pos - p0
        for tbl in (a.lastw, a.lastc, a.slastw):
            for k, v in list(tbl.items()):
                if v[0] < p0: tbl[k] = (v[0] + d,) + tuple(v[1:])
        for k, v in list(a.lastst.items()):
            if v < p0: a.lastst[k] = v + d
```

```python
from gasm import *
from common import *

NLOG2E = "0xbfb8aa3b"; CSC = "0x3ea52b5c"; NCSC = "0xbea52b5c"
HUGE = "0x7ff00000"
SC1 = " sc1"
S_OUT, S_AUX = 64, 68
sTag = "s60"
sP2A, sP2W, sP2X, sSpin, sFlg = "s72", "s73", "s74", "s75", "s76"
sColSt, sOwn, sL = "s18", "s17", "s16"
sRot, sItem = "s79", "s78"
P_QKV, P_WO, P_W2 = 52, 54, 56
NST = 18
DBG = {}
uid = [0]
STW = 0

class Stamp:
    def __init__(self, a, on, sel=None): self.a, self.on, self.n, self.sel, self.names = a, on, 0, sel, []
    def __call__(self, name="x", force=False):
        if not self.on: return
        if self.sel is not None and not force and name not in self.sel: return
        assert self.n < NST, name
        if self.n: self.a.raw(f"s_mov_b32 s{82+self.n-1}, s100")
        self.a.raw("s_memtime s[100:101]"); self.n += 1; self.names.append(name)
    def finish(self, role, name, wave=0):
        a = self.a
        if not self.on: return
        a.raw("s_waitcnt vmcnt(0)")
        self("end", True)
        a.raw("s_memrealtime s[4:5]"); a.raw("s_waitcnt lgkmcnt(0)")
        a.raw(f"s_mov_b32 s{82+self.n-1}, s100")
        a.raw(f"s_cmp_lg_u32 s3, {wave}"); a.raw(f"s_cbranch_scc1 L_{name}_end")
        for i in range(20):
            if i < self.n: a.raw(f"s_sub_u32 s6, s{82+i}, s80"); a.raw(f"v_mov_b32 v{i}, s6")
            else: a.raw(f"v_mov_b32 v{i}, 0")
        a.raw(f"v_mov_b32 v20, {sSpin}")
        a.raw(f"v_mov_b32 v21, {role}"); a.raw("v_mov_b32 v22, s77"); a.raw("v_mov_b32 v23, s4")
        a.raw("s_lshl_b32 s40, s2, 7"); a.raw(f"s_add_u32 s40, s40, {STAMP1}"); a.raw("v_mov_b32 v24, s40")
        a.raw("s_mov_b32 s22, 0x2000000"); a.raw("s_mov_b64 exec, 1")
        for i in range(6): a.raw(f"buffer_store_dwordx4 v[{4*i}:{4*i+3}], v24, s[20:23], 0 offen offset:{16*i}")
        a.comment(f"STAMPS role {role}: " + " ".join(self.names))

class L(list):
    def s(self, *ts):
        for t in ts: self.append(S(t))
        return self
    def v(self, *x, **k): self.append(V(*x, **k)); return self

def scc_live(ops):
    for o in ops:
        if isinstance(o, list): return False
        if o.kind != "salu": continue
        n = o.text.split()[0]
        if n.startswith(("s_cselect", "s_addc", "s_subb", "s_cbranch_scc")): return True
        if n.startswith(("s_mov", "s_mul_i32", "s_movk")): continue
        return False
    return False
def exec_dirty(ops):
    return False

def paced(E, ops, groups, every):
    k = 0
    for i, o in enumerate(ops):
        E(o); k += len(o) if isinstance(o, list) else 1
        if groups and k >= every and not scc_live(ops[i + 1:]):
            E(groups.pop(0)); k = 0

def rot_table(srot, sK, mulK, sKx, lo, hi, blk=10):
    o = L()
    for s in range(lo, hi):
        base = s // blk * blk
        if base: o.s(f"s_add_u32 s4, {srot}, {base}", f"s_mul_i32 s{sK+s}, s4, {mulK}", f"s_lshl_b32 s{sKx+s}, s4, 7")
        else: o.s(f"s_mul_i32 s{sK+s}, {srot}, {mulK}", f"s_lshl_b32 s{sKx+s}, {srot}, 7")
        if s < 9: o.s(f"s_add_u32 {srot}, {srot}, 1", f"s_cmp_eq_u32 {srot}, {blk}", f"s_cselect_b32 {srot}, 0, {srot}")
    return o
def mod_ops(src, dst, m):
    if m == 1: return [S(f"s_mov_b32 {dst}, 0")]
    if m == 2: return [S(f"s_and_b32 {dst}, {src}, 1")]
    k = {5: 52, 10: 26}[m]
    return [S(f"s_mul_i32 s5, {src}, {k}"), S("s_lshr_b32 s5, s5, 8"), S(f"s_mul_i32 s5, s5, {m}"), S(f"s_sub_u32 {dst}, {src}, s5")]

def check(a, load, cmp_ops, sleep=2):
    uid[0] += 1; Lb = f"L_ck{uid[0]}"
    a.emit(cmp_ops)
    a.raw(f"s_cbranch_scc0 {Lb}_ok")
    a.label(f"{Lb}_sp")
    a.raw(f"s_sleep {sleep}")
    for l in (load if isinstance(load, list) else [load]): a.raw(l.text)
    a.raw("s_waitcnt vmcnt(0)")
    a.raw(f"s_add_u32 {sSpin}, {sSpin}, 1"); a.raw(f"s_cmp_gt_u32 {sSpin}, 30000"); a.raw(f"s_cbranch_scc1 {Lb}_ok")
    for o in cmp_ops:
        a.raw(o.text); a.raw("s_nop 3")
    a.raw(f"s_cbranch_scc1 {Lb}_sp")
    a.label(f"{Lb}_ok")

M_FFN, M_Q, M_W2 = 0x1ff, 0xffff0000, 0x3ffffff << 32
LV_W2, LV_A, LV_B, LV_C = "W2", "A", "B", "C"
LV = {"W2": (0, M_W2), "A": (48 * 128, M_FFN), "B": (64 * 128, M_FFN), "C": (0, M_FFN | M_Q)}
def flg_poll(vP, vA, lv):
    off, m = LV[lv]
    return [S(f"s_mov_b32 s9, {FLG_OFF + off}"), S(f"s_mov_b32 exec_lo, {m & 0xffffffff}"), S(f"s_mov_b32 exec_hi, {m >> 32}"),
            BLD(vP, 1, vA, 20, "s9", tag="poll", mod=SC1), S("s_mov_b64 exec, -1")]
def flg_cmp(vP, lv):
    off, mask = LV[lv]
    o = [VCMP("v_cmp_ne_u32", "vcc", sTag, vP)]
    if mask >> 32 == 0: o.append(S(f"s_and_b32 vcc_lo, vcc_lo, {mask}", sr=["vcc"]))
    else: o.append(S(f"s_and_b32 vcc_hi, vcc_hi, {mask >> 32}", sr=["vcc"]))
    return o
def flg_check(a, vP, vA, lv, sleep=2): check(a, flg_poll(vP, vA, lv), flg_cmp(vP, lv), sleep)
def tag_cmp(regs, t):
    o = [V("v_xor_b32", t, sTag, regs[0])]
    for r in regs[1:]: o.append(Op(f"v_bitop3_b32 {R(t)}, {R(t)}, {R(r)}, {sTag} bitop3:0xf6", "valu", r=[t, r], w=[t], sr=[sTag]))
    return o + [VCMP("v_cmp_ne_u32", "vcc", "0", t), S("s_cmp_lg_u64 vcc, 0")]
def flag_st(vT, vF, lv, base=None):
    return [Cond("s_cmp_eq_u32 s3, 0", [S(f"s_add_u32 s9, {base or sOwn}, {LV[lv][0]}"), V("v_mov_b32", vT, sTag), BST(vT, 1, vF, 20, "s9", tag="flag", mod=SC1)])]
def col_fix(AP): return [V("v_perm_b32", AP + 1, AP, AP, "s62"), V("v_perm_b32", AP, AP, AP, "s61")]

def wsum(s, t):
    return [DPP("v_add_f32", s, s, s, "quad_perm:[1,0,3,2]"), DPP("v_add_f32", s, s, s, "quad_perm:[2,3,0,1]"), DPP("v_add_f32", s, s, s, "row_half_mirror"),
            DPP("v_add_f32", s, s, s, "row_ror:8"), V("v_mov_b32", t, s), SWAP(16, s, t), V("v_add_f32", s, s, t),
            V("v_mov_b32", t, s), SWAP(32, s, t), V("v_add_f32", s, s, t)]
def merge(a, b):
    o = []
    a, b = list(a), list(b)
    na, nb = len(a), len(b)
    while a or b:
        if a and (not b or len(a) * nb >= len(b) * na): o.append(a.pop(0))
        else: o.append(b.pop(0))
    return o

def st_pre(B, lane, Bs=None):
    Bs = B if Bs is None else Bs
    o = L()
    o.s("s_and_b32 s4, s2, 7", "s_lshl_b32 s4, s4, 5", "s_lshr_b32 s5, s2, 3", "s_add_u32 s4, s4, s5", "s_lshl_b32 s4, s4, 3", "s_add_u32 s4, s4, s3",
        "s_mul_i32 s63, s4, 1280", "s_lshl_b32 s61, s4, 4", f"s_mov_b32 s62, {EPO_OFF}")
    o.v("v_lshlrev_b32", B + 36, "4", lane).v("v_lshlrev_b32", B + 37, "2", lane).v("v_lshlrev_b32", Bs + 5, "24", lane)
    return o
def st_issue(B, Bs=None):
    Bs = B if Bs is None else Bs
    return [BLD(Bs + 5, 1, Bs + 5, 20, "s62", mod=SC1), BLD(Bs, 4, B + 36, 24, "s63"), BLD(Bs + 4, 1, B + 37, 24, "s63", off=1024), S("s_mov_b32 s81, s61")]
def col_pre(B, lane, pitch):
    o = L()
    o.s(f"s_cselect_b32 s9, s9, {HUGE}", "s_cselect_b32 s7, s3, 1",
        "s_lshl_b32 s5, s8, 10", "s_lshl_b32 s8, s10, 9", "s_add_u32 s5, s5, s8", f"s_add_u32 s5, s5, {COL_OFF}",
        "s_mul_i32 s8, s10, 40", "s_add_u32 s8, s8, s3", f"s_mul_i32 s8, s8, {8*pitch}", "s_add_u32 s78, s8, s9",
        "s_cmp_eq_u32 s7, 0", f"s_cselect_b32 {sColSt}, s5, {HUGE}")
    o.v("v_lshrrev_b32", B + 38, "3", lane).v("v_and_b32", B + 39, "7", lane)
    o.v("v_mul_u32_u24", B + 38, str(pitch), B + 38).v("v_lshl_add_u32", B + 38, B + 39, "4", B + 38)
    return o
def col_issue(B, srdn, pitch):
    return [[BLD(B + 16 + 4 * it, 4, B + 38, srdn, "s78", mod=DBG.get("cm", ""))] + ([S(f"s_add_u32 s78, s78, {64*pitch}")] if it < 4 else []) for it in range(5)]
def stats_ops(B, xoff):
    U = B + 6; s, t = B + 5, B + 4
    o = L()
    o.append(RFL(sTag, B + 5))
    for i in (4, 0, 1, 2, 3): o.v("v_lshlrev_b32", U + 2 * i, "16", B + i).v("v_and_b32", U + 2 * i + 1, "0xffff0000", B + i)
    o.s(f"s_mul_i32 {sTag}, {sTag}, 0x9e3779b1", f"s_add_u32 {sTag}, {sTag}, 0x7f4a7c15")
    o.v("v_add_f32", s, U, U + 1).v("v_add_f32", t, U + 2, U + 3)
    for i in range(4, 10, 2): o.v("v_add_f32", s, s, U + i).v("v_add_f32", t, t, U + i + 1)
    o.v("v_add_f32", s, s, t)
    o += wsum(s, t)
    o.v("v_mul_f32", s, "0xbacccccd", s)
    q = B + 1
    for i in range(10): o.v("v_add_f32", U + i, U + i, s)
    o.v("v_mul_f32", q, U, U).v("v_mul_f32", t, U + 1, U + 1)
    for i in range(2, 10, 2): o.v("v_fmac_f32", q, U + i, U + i).v("v_fmac_f32", t, U + i + 1, U + i + 1)
    o.v("v_add_f32", q, q, t)
    o += wsum(q, t)
    o.v("v_mov_b32", B + 3, "0x3727c5ac").v("v_fmac_f32", B + 3, "0x3acccccd", q).v("v_rsq_f32", B + 2, B + 3)
    o.v("v_cvt_pk_bf16_f32", t, s, s).v("v_lshlrev_b32", t, "16", t).v("v_sub_f32", t, s, t)
    o.v("v_cvt_pk_bf16_f32", B, s, t).v("v_mov_b32", B + 1, sTag)
    o.v("v_mov_b32", t, sL).v("v_lshrrev_b32", t, "6", t).v("v_add_u32", t, str(xoff + 2048), t)
    o.append(DSW(t, B, 4))
    return o
def tok_fin_ops(B, xoff, Bs=None):
    Bs = B if Bs is None else Bs
    o = L()
    o.v("v_and_b32", Bs + 4, "0x70", B + 36).v("v_add_u32", Bs + 4, str(xoff + 2048), Bs + 4)
    o.append(DSR(Bs, 4, Bs + 4))
    o.v("v_lshrrev_b32", Bs + 5, "7", B + 36).v("v_lshl_add_u32", Bs + 5, Bs + 5, "24", B + 36)
    o.s("s_sub_u32 s81, s81, 16")
    o.append(BST(Bs, 4, Bs + 5, 36, "s81", tag="tab", mod=SC1))
    return [[Block("s_cmp_eq_u32 s3, 1", o)]]
def col_add(A, r, first, t, dot):
    o = L()
    for j in range(4):
        if first: o.v("v_lshlrev_b32", A + 2 * j, "16", r + j).v("v_and_b32", A + 2 * j + 1, "0xffff0000", r + j)
        elif dot: o.v("v_dot2c_f32_bf16", A + 2 * j, "s61", r + j).v("v_dot2c_f32_bf16", A + 2 * j + 1, "s62", r + j)
        else: o.v("v_lshlrev_b32", t, "16", r + j).v("v_and_b32", r + j, "0xffff0000", r + j).v("v_add_f32", A + 2 * j, A + 2 * j, t).v("v_add_f32", A + 2 * j + 1, A + 2 * j + 1, r + j)
    return o
def col_red(A, t0, piece, lane, xoff):
    o = L()
    o.v("v_lshrrev_b32", t0, "4", lane).v("v_lshlrev_b32", t0, "3", t0).v("v_lshl_add_u32", t0, piece, "5", t0)
    for j in range(4): o.append(SWAP(32, A + j, A + j + 4))
    for j in range(4): o.v("v_add_f32", A + j, A + j, A + j + 4)
    o.v("v_mov_b32", t0 + 1, sL).v("v_lshrrev_b32", t0 + 1, "2", t0 + 1)
    for j in range(2): o.append(SWAP(16, A + j, A + j + 2))
    for j in range(2): o.v("v_add_f32", A + j, A + j, A + j + 2)
    o.v("v_add_u32", t0, t0, t0 + 1).v("v_add_u32", t0, str(xoff), t0)
    for j in range(2): o.append(DPP("v_add_f32", A + j, A + j, A + j, "row_ror:8"))
    o.append(DSW(t0, A, 2))
    return o
def col_acc_ops(B, lane, xoff, dot=True):
    A = B + 40
    o = L()
    if dot: o.s("s_mov_b32 s61, 0x3f80", "s_mov_b32 s62, 0x3f800000")
    for it in range(5): o += col_add(A, B + 16 + 4 * it, it == 0, B + 16, dot)
    o += col_red(A, B + 16, B + 39, lane, xoff)
    return o
PERMSEL = ["s_mov_b32 s61, 0x01000100", "s_mov_b32 s62, 0x03020302"]
def col_fin_ops(Rd, t, lane, xoff):
    o = L()
    o.v("v_lshlrev_b32", t, "2", lane).v("v_add_u32", t, str(xoff), t)
    for w in range(8): o.append(DSR(Rd + w, 1, t, off=w * 256))
    for w in range(4): o.v("v_add_f32", Rd + w, Rd + w, Rd + 4 + w)
    o.v("v_add_f32", Rd, Rd, Rd + 1).v("v_add_f32", Rd + 2, Rd + 2, Rd + 3).v("v_add_f32", Rd, Rd, Rd + 2)
    o.v("v_cvt_pk_bf16_f32", Rd + 4, Rd, Rd).v("v_lshlrev_b32", Rd + 6, "16", Rd + 4).v("v_sub_f32", Rd + 6, Rd, Rd + 6)
    o.v("v_cvt_pk_bf16_f32", Rd + 4, Rd, Rd + 6).v("v_mov_b32", Rd + 5, sTag).v("v_lshlrev_b32", t, "3", lane)
    o.append(BST(Rd + 4, 2, t, 20, sColSt, tag="tab", mod=SC1))
    return o

ACTB, ACC2, WF2 = 96, 48, 8
def p2_setup(vA, lane, rb="s10", cb="s11"):
    g = []
    o = L()
    o.s("s_bfe_u32 s10, s2, 0x20001", "s_lshl_b32 s10, s10, 3", "s_bfe_u32 s5, s2, 0x30003", "s_add_u32 s10, s10, s5",
        "s_and_b32 s11, s2, 1", "s_lshl_b32 s11, s11, 2", "s_lshr_b32 s6, s2, 6", "s_add_u32 s11, s11, s6"); g.append(list(o))
    o = L()
    o.s("s_bfe_u32 s6, s3, 0x10001", "s_lshl_b32 s9, s10, 1", "s_add_u32 s6, s6, s9",
        f"s_mul_i32 {sP2A}, s6, 74", "s_lshr_b32 s9, s3, 2", f"s_add_u32 {sP2A}, {sP2A}, s9", f"s_lshl_b32 {sP2A}, {sP2A}, 1",
        "s_and_b32 s9, s3, 1", f"s_add_u32 {sP2A}, {sP2A}, s9", f"s_lshl_b32 {sP2A}, {sP2A}, 10",
        "s_lshl_b32 s6, s6, 5", "s_add_u32 s6, s6, s9", f"s_mul_i32 {sP2X}, s6, 1280"); g.append(list(o))
    o = L()
    o.s(f"s_mul_i32 {sP2W}, s11, 74", f"s_add_u32 {sP2W}, {sP2W}, s3", f"s_mul_i32 {sP2W}, {sP2W}, 5120", f"s_add_u32 {sP2W}, {sP2W}, {W2F_OFF}",
        "s_mul_i32 s6, s11, 160", f"s_add_u32 {sP2X}, {sP2X}, s6", "s_lshr_b32 s6, s3, 2", "s_mul_i32 s6, s6, 96", f"s_add_u32 {sP2X}, {sP2X}, s6",
        ); g.append(list(o))
    if DBG.get("rot2"):
        o = L()
        o.s("s_bfe_u32 s6, s2, 0x30003", "s_lshr_b32 s9, s2, 6", "s_lshl_b32 s9, s9, 1", "s_add_u32 s6, s6, s9", "s_cmp_ge_u32 s6, 9", "s_cselect_b32 s9, 9, 0", f"s_sub_u32 {sRot}, s6, s9",
            f"s_lshl_b32 s6, {sRot}, 12", f"s_add_u32 {sP2A}, {sP2A}, s6", f"s_mul_i32 s6, {sRot}, 10240", f"s_add_u32 {sP2W}, {sP2W}, s6"); g.append(list(o))
    def part(o, lo, n):
        m = ((1 << n) - 1) << lo
        o.s("s_lshl_b32 s6, s6, 7", f"s_sub_u32 s6, s6, {lo*4}", f"s_mov_b32 exec_lo, {m & 0xffffffff}", f"s_mov_b32 exec_hi, {m >> 32}")
        o.v("v_lshl_add_u32", vA, lane, "2", "s6"); o.s("s_mov_b64 exec, -1"); g.append(list(o))
    part(L().s("s_lshr_b32 s6, s10, 1"), 0, 16)
    for (lo, add) in ((16, 0), (24, 63)):
        part(L().s("s_lshl_b32 s6, s10, 6", f"s_add_u32 s6, s6, {add}", "s_max_u32 s6, s6, 14", "s_sub_u32 s6, s6, 14",
                   "s_mul_i32 s6, s6, 7183", "s_lshr_b32 s6, s6, 20", "s_add_u32 s6, s6, 16"), lo, 8)
    for (i, add) in ((0, 0), (1, 4)):
        part(L().s("s_mul_i32 s6, s11, 5", f"s_add_u32 s6, s6, {add + 128}", "s_lshr_b32 s6, s6, 2"), 32 + 13 * i, 13 if i == 0 else 19)
    g = [[S(x.text.replace("s10", rb).replace("s11", cb)) if x.kind == "salu" else x for x in grp] for grp in g]
    return g

def GEND(j): return 9 if j < 9 else 18 if j < 18 else 27 if j < 27 else 37
def GN(j): return 10 if j >= 27 else 9
def p2_w_item(d, vL16):
    slot = (d % 4) * 40960
    ops = []
    for i in range(5):
        g = [S(f"s_add_u32 s9, {sP2W}, {(d%2 if DBG.get('hot') else d)*8*5120 + i*1024}")]
        if DBG.get("rot2"):
            pre = []
            if i == 0:
                ends = sorted(set(GEND(j) for j in range(4 * d, min(4 * d + 4, 37))))
                pre = [S("s_lshr_b32 s8, s3, 1")]
                if len(ends) == 1:
                    pre += [S(f"s_add_u32 s8, s8, {sRot}"), S(f"s_cmp_ge_u32 s8, {ends[0] - 4*d}"), S(f"s_cselect_b32 {sItem}, {GN(4*d)*10240}, 0")]
                else:
                    pre += [S(f"s_cmp_ge_u32 s8, {ends[0] - 4*d}"), S(f"s_cselect_b32 s7, {ends[1] - 4*d}, {ends[0] - 4*d}"),
                            S(f"s_cselect_b32 {sItem}, {GN(ends[0])}, {GN(4*d)}"), S(f"s_mul_i32 {sItem}, {sItem}, 10240"),
                            S(f"s_add_u32 s8, s8, {sRot}"), S("s_cmp_ge_u32 s8, s7"), S(f"s_cselect_b32 {sItem}, {sItem}, 0")]
                pre.append(S(f"s_sub_u32 {sItem}, {sP2W}, {sItem}"))
            g = pre + [S(f"s_add_u32 s9, {sItem}, {d*8*5120 + i*1024}")]
        if DBG.get("now2"): g = [S(f"s_mov_b32 s9, {HUGE}")]
        g += [S(f"s_add_u32 m0, {sL}, {slot + i*8192}"), DMA(vL16, 20, "s9", tag=("W2", d), mod="" if DBG.get("nosc1") else SC1)]
        ops.append(g)
    if d == 9: ops = [[Cond("s_cmp_lt_u32 s3, 2", sum(ops, []))]]
    return ops
def pf_w2(p, vT, vD, lane):
    return [S("s_bfe_u32 s8, s2, 0x30003"), S("s_lshl_b32 s8, s8, 3"), S("s_add_u32 s8, s8, s3"), S("s_mul_i32 s8, s8, 12"), S(f"s_add_u32 s8, s8, {p*768}"),
            S("s_min_u32 s8, s8, 2948"), S("s_lshl_b32 s8, s8, 7"), S("s_mul_i32 s9, s3, 5120"), S(f"s_sub_u32 s9, {sP2W}, s9"), S("s_add_u32 s9, s9, s8"),
            V("v_lshlrev_b32", vT, "7", lane), S("s_mov_b64 exec, 0xfff"), BLD(vD, 1, vT, 20, "s9", tag="pf", mod=SC1), S("s_mov_b64 exec, -1")]
def pf_act(g, vT, vD, lane):
    j0, n = [(0, 9), (9, 9), (18, 9), (27, 10)][g]
    return [S("s_lshr_b32 s8, s2, 6"), V("v_lshrrev_b32", vT, "3", lane), V("v_lshl_add_u32", vT, vT, "2", "s8"), V("v_min_u32", vT, str(n - 1), vT),
            V("v_lshlrev_b32", vT, "5", vT), V("v_and_or_b32", vT, lane, "7", vT), V("v_lshlrev_b32", vT, "7", vT),
            S(f"s_add_u32 s9, {sP2A}, {j0*4096}"), S("s_mov_b64 exec, 0xffffff"), BLD(vD, 1, vT, 20, "s9", tag="pf", mod=SC1), S("s_mov_b64 exec, -1")]
def p2_act(j, vL16):
    if DBG.get("noact"): return [S(f"s_mov_b32 s9, {HUGE}"), BLD(ACTB + 4 * j, 4, vL16, 20, "s9", mod=SC1)]
    if DBG.get("hot"): return [S(f"s_add_u32 s9, {sP2A}, {(j%4)*4096}"), BLD(ACTB + 4 * j, 4, vL16, 20, "s9", mod=SC1)]
    if DBG.get("rot2"):
        return [S(f"s_cmp_ge_u32 {sRot}, {GEND(j) - j}"), S(f"s_cselect_b32 s9, {GN(j)*4096}, 0"), S(f"s_sub_u32 s9, {sP2A}, s9"), S(f"s_add_u32 s9, s9, {j*4096}"),
                BLD(ACTB + 4 * j, 4, vL16, 20, "s9", mod=SC1)]
    return [S(f"s_add_u32 s9, {sP2A}, {j*4096}"), BLD(ACTB + 4 * j, 4, vL16, 20, "s9", mod="" if DBG.get("nosc1") else SC1)]

def phase2(a, st, cfg, vL16, lane, vPA, vP, pieces_done, act_done, rate, publish, epoch=False, parked=[]):
    E = a.emit
    PF = cfg.get("pf2", False)
    vRd = [68, 69, 70, 71, 72, 73]; vXO, vXO3, vWrt, vRr = 74, 75, 76, 77
    X0 = 78; t0, t1 = 84, 85
    EP = 86
    E(S("s_lshr_b32 s4, s3, 2")); E(S(f"s_mul_i32 s5, s4, {1024 + 3*8192}")); E(S(f"s_mul_i32 s6, s4, {1024 - 2*8192}")); E(S("s_add_u32 s6, s6, 16384"))
    E(V("v_add_u32", vRd[0], "s5", vL16)); E(V("v_add_u32", vRd[3], "s6", vL16))
    for b in (1, 2): E(V("v_add_u32", vRd[b], str(b << 16), vRd[0])); E(V("v_add_u32", vRd[3 + b], str(b << 16), vRd[3]))
    def reads(j):
        pos = ((j // 4) % 4) * 40960 + (j % 4) * 2048
        f = WF2 + 20 * (j % 2)
        o = []
        for l in range(5):
            p = pos + l * 8192 - (0 if l < 2 else 16384)
            o.append(DSR(f + 4 * l, 4, vRd[(p >> 16) + (0 if l < 2 else 3)], off=p & 0xffff))
        return o
    misc = [[V("v_lshrrev_b32", t0, "8", vL16), V("v_lshlrev_b32", t0, "3", t0), V("v_bfe_u32", t1, vL16, "4", "4"), V("v_mul_u32_u24", t1, "2560", t1), V("v_add_u32", vXO, t0, t1)],
            [S("s_cmp_lt_u32 s3, 4"), S(f"s_cselect_b32 s4, 64, {HUGE}"), V("v_add_u32", vXO3, "s4", vXO), BLD(X0, 2, vXO, 24, sP2X)],
            [BLD(X0 + 2, 2, vXO, 24, sP2X, off=32)], [Cond("s_cmp_lt_u32 s3, 4", [BLD(X0 + 4, 2, vXO3, 24, sP2X)])],
            [S("s_lshl_b32 s4, s3, 12"), S("s_add_u32 s4, s4, 81920"), V("v_add_u32", vWrt, "s4", vL16)],
            [S("s_xor_b32 s4, s3, 4"), S("s_lshl_b32 s4, s4, 12"), S("s_lshr_b32 s5, s3, 2"), S("s_lshl_b32 s5, s5, 10"), S("s_add_u32 s4, s4, s5"),
             S("s_add_u32 s4, s4, 81920"), V("v_add_u32", vRr, "s4", vL16)]]
    epl = [BLD(EP + 4 + i, 1, EP + i, 36, "0", off=4, mod=SC1) for i in range(4)]
    if epoch:
        misc.append([S("s_or_b32 s4, s2, s3"), Cond("s_cmp_eq_u32 s4, 0", [V("v_lshlrev_b32", EP, "3", vL16)] +
                    [V("v_add_u32", EP + i, str(i * 8192), EP) for i in range(1, 4)] + epl)])
    a.wait_tag(("W2", 0), lg=0); a.barrier()
    st("p2s")
    E(reads(0))
    if parked:
        assert pieces_done == parked[0][0], pieces_done
        E(V("v_add_u32", 6, sL, vL16)); E(V("v_add_u32", 7, "0x20000", 6)); E(V("v_add_u32", 6, "0x10000", 6))
        for (k, r) in parked: E(DSW(6 + (k * 8192 >> 16) - 1, r, 4, off=(k * 8192) & 0xffff))
        pieces_done += len(parked)
    q = []
    def push(need, g): q.append((need, len(q), g)); q.sort(key=lambda e: e[:2])
    def push_item(d, frm=0):
        for g in p2_w_item(d, vL16)[frm:]: push(4 * d - 1.5, g)
    for x in range(act_done, 9): push(x, p2_act(x, vL16))
    for d in range(4):
        if pieces_done < 5 * (d + 1): push_item(d, max(0, pieces_done - 5 * d))
    nitem = 4
    PUB, CB, P3, C3 = cfg.get("pub", 3), cfg.get("cb", 1), cfg.get("p3", 11), cfg.get("c3", 14)
    RATE = rate
    LEAD = cfg.get("lead", 5)
    credit = 0.0
    for g in misc: push(cfg.get("misc", 13), g)
    for j in range(37):
        f = WF2 + 20 * (j % 2)
        nxt = []
        while q and q[0][0] <= j: E(q.pop(0)[2])
        if j + 1 < 37:
            if j == PUB:
                a.wait_tag("st"); a.barrier(); E(publish); st("pub")
            if (j + 1) % 4 == 0:
                d = (j + 1) // 4
                a.wait_tag(("W2", d), lg=0); a.barrier()
                if nitem < 10: push_item(nitem); nitem += 1
            nxt = reads(j + 1)
        if j == CB:
            flg_check(a, vP, vPA, LV_B)
            if PF: E(pf_act(1, t0, 6, lane))
            for x in range(9, 18): push(x, p2_act(x, vL16))
        if j == P3: E(flg_poll(vP, vPA, LV_C))
        if j == C3:
            flg_check(a, vP, vPA, LV_C, sleep=1)
            st("c3")
            if PF: E(pf_act(2, t0, 6, lane)); E(pf_act(3, t0, 7, lane))
            for x in range(18, 18 + cfg.get("burst", 5)): E(p2_act(x, vL16))
            for x in range(18 + cfg.get("burst", 5), 37): push(x, p2_act(x, vL16))
            RATE = cfg.get("rate2", 1.5)
        st(f"g{j}")
        credit = min(credit + RATE, 4)
        for l in range(5):
            if cfg.get("nomfma") and l: pass
            else: E(MFMA16(ACC2 + 4 * l, f + 4 * l, ACTB + 4 * j, c="0" if j == 0 else None))
            if nxt:
                x_ = nxt.pop(0)
                if not (cfg.get("nords") and l): E(x_)
            if q and (credit >= 1 or q[0][0] <= j + LEAD):
                g = q.pop(0)[2]; E(g)
                if any(x.kind in ("vld", "dma") for x in g): credit -= 1
    fill = q
    assert not fill
    st("p2e")
    for i in range(3):
        x0 = X0 + 2 * i; o = 8 + 4 * i
        E(V("v_lshlrev_b32", o, "16", x0)); E(V("v_and_b32", o + 1, "0xffff0000", x0))
        E(V("v_lshlrev_b32", o + 2, "16", x0 + 1)); E(V("v_and_b32", o + 3, "0xffff0000", x0 + 1))
    for l in range(2, 5): E(DSW(vWrt, ACC2 + 4 * l, 4, off=(l - 2) * 1024))
    for i in range(3):
        for r in range(4): E(V("v_add_f32", 8 + 4 * i + r, 8 + 4 * i + r, ACC2 + 4 * i + r))
    a.wait(lg=0); a.barrier()
    st("red")
    RD = 96
    for i in range(3): E(DSR(RD + 4 * i, 4, vRr, off=i * 1024))
    for i in range(3):
        o = 8 + 4 * i
        for r in range(4): E(V("v_add_f32", o + r, o + r, RD + 4 * i + r))
        E(V("v_cvt_pk_bf16_f32", X0 + 2 * i, o, o + 1)); E(V("v_cvt_pk_bf16_f32", X0 + 2 * i + 1, o + 2, o + 3))
        E(BST(X0 + 2 * i, 2, vXO if i < 2 else vXO3, S_OUT, sP2X, off=32 * i if i < 2 else 0, mod=cfg.get("om", "")))
    st("out")
    if epoch:
        uid[0] += 1; Lb = f"L_ep{uid[0]}"
        E(S("s_or_b32 s4, s2, s3")); a.raw(f"s_cbranch_scc1 {Lb}")
        check(a, epl, tag_cmp([EP + 4, EP + 5, EP + 6, EP + 7], 24))
        E(V("v_mov_b32", 25, sTag)); E(V("v_lshlrev_b32", 24, "20", vL16)); E(S(f"s_mov_b32 s4, {EPO_OFF}"))
        E(BST(25, 1, 24, 20, "s4", mod=SC1))
        a.label(Lb)

def common_wait(a, stamps):
    E = a.emit
    a.raw("s_waitcnt lgkmcnt(0)")
    if stamps: a.raw("s_mov_b32 s77, s76")
    E(S(f"s_add_u32 s36, s20, {TOK_OFF}")); E(S("s_addc_u32 s37, s21, 0"))

def cost(o):
    if isinstance(o, list): return 1 + len(o) // 5 if o else 4
    return {"trans": 2, "perml": 2, "salu": 0.5}.get(o.kind, 1)

def gen_ffn(a, name, stamps, cfg):
    E = a.emit; st = Stamp(a, stamps, cfg.get("sel"))
    PFX = cfg.get("pf", False)
    sK, sKx = 40, 50
    XF, A0, A1, A2, WB = 96, 48, 64, 80, 28
    vL16, lane = 0, 1
    vWr = [2, 3, 4]; vDW, vSt, vCol = 5, 6, 7
    TOK = 8; AP = [12, 14]; T = 16
    vPA, vP, vF, vTt = 24, 25, 26, 27
    vDX, vDX2, vXr, vTokA = A2, A2 + 1, A2 + 2, A2 + 6
    TB = 208; XO = 9 * 16384 + 8192
    t0, t1, t2, t3 = T, T + 1, T + 2, T + 3
    sSt, sCb, sRb, sTok = "s13", "s14", "s15", "s19"
    RB = cfg.get("rblk", 1)
    o = L()
    o.s("s_mul_i32 s13, s11, 18", "s_add_u32 s13, s13, s12", f"s_lshr_b32 {sCb}, s13, 3", f"s_and_b32 {sRb}, s13, 7",
        f"s_mul_i32 s4, {sCb}, {cfg.get('rmul', 3)}", f"s_add_u32 s4, s4, {sRb}")
    o += mod_ops("s4", "s19", RB)
    o.s("s_lshl_b32 s5, s10, 3", f"s_add_u32 {sRb}, {sRb}, s5")
    o += rot_table("s19", sK, 64 * 3456, sKx, 0, 2, RB)
    o.s("s_and_b32 s4, s3, 3", "s_lshr_b32 s5, s3, 2", "s_lshl_b32 s6, s4, 3")
    o.v("v_lshrrev_b32", t0, "3", lane).v("v_and_b32", t1, "7", lane).v("v_add_u32", t2, "s6", t0)
    o.v("v_bfe_u32", t3, t2, "1", "3").v("v_xor_b32", t3, t1, t3)
    o.v("v_and_b32", vDX, "15", t2).v("v_lshrrev_b32", t2, "4", t2).v("v_lshl_add_u32", vDX, vDX, "1", t2)
    o.s(f"s_lshl_b32 s6, {sRb}, 7", "s_lshl_b32 s9, s5, 5", "s_add_u32 s6, s6, s9")
    o.v("v_add_u32", vDX, "s6", vDX).v("v_mul_u32_u24", vDX, "1280", vDX).v("v_lshl_add_u32", vDX, t3, "4", vDX).v("v_add_u32", vDX2, str(64 * 1280), vDX)
    o.v("v_lshrrev_b32", t2, "2", lane).v("v_and_b32", t2, "4", t2).v("v_xor_b32", t2, t1, t2)
    o.v("v_mul_u32_u24", vDW, "3456", t0).v("v_lshl_add_u32", vDW, t2, "4", vDW)
    o.s(f"s_mul_i32 s6, s3, {8*3456}", f"s_mul_i32 s9, {sCb}, 384", "s_add_u32 s6, s6, s9")
    o.v("v_add_u32", vDW, "s6", vDW)
    E(o); E(st_pre(TB, lane))
    items = {}
    free = list(range(10))
    qX = [("X", s) for s in range(10)]
    qW = [("W", s) for s in range(30)]
    dma_chunk = [0]
    def dma_ops(it, slot):
        kind, s = it
        base = slot * 16384
        m0 = lambda x: S(f"s_add_u32 m0, {sL}, {base+x}")
        if kind == "X":
            return [[m0(0), DMA(vDX, 24, f"s{sKx+s}", tag=it)], [m0(8192), DMA(vDX2, 24, f"s{sKx+s}", tag=it)]]
        if s < 10:
            return [[m0(0), DMA(vDW, 28, f"s{sK+s}", tag=it, mod=DBG.get("wm", ""))], [m0(8192), DMA(vDW, 32, f"s{sK+s}", tag=it, mod=DBG.get("wm", ""))]]
        p = (s - 10) // 5 + 1; j = (s - 10) % 5
        chunk = (p + 1) // 2; srdw = 28 if p % 2 == 1 else 32
        pre = []
        if chunk != dma_chunk[0]:
            dma_chunk[0] = chunk; pre = [V("v_add_u32", vDW, "128", vDW)]
        return [pre + [m0(0), DMA(vDW, srdw, f"s{sK+2*j}", tag=it, mod=DBG.get("wm", ""))], [m0(8192), DMA(vDW, srdw, f"s{sK+2*j+1}", tag=it, mod=DBG.get("wm", ""))]]
    def slot_of(it):
        kind, s = it
        return (s + 2) % 4 if kind == "X" else ([4, 5, 6, 7, 8, 4, 5, 6, 7, 4][s] if s < 10 else s % 10)
    def refill(maxstage=99):
        out = []
        while True:
            cands = []
            for q in (qX, qW):
                if q and q[0][1] <= maxstage and slot_of(q[0]) in free and not (q is qW and q[0][1] >= 10 and slot_of(q[0]) < 4 and any(slot_of(x) == slot_of(q[0]) for x in qX)):
                    cands.append((q[0][1], q is qW, q))
            if not cands: break
            cands.sort(key=lambda c: c[:2]); q = cands[0][2]
            it = q.pop(0); sl = slot_of(it); free.remove(sl); items[it] = sl; out += dma_ops(it, sl)
        if not qW and p2["go"]:
            while p2["pieces"] < 20 and p2["pieces"] // 2 in free:
                k = p2["pieces"]; out.append(p2_w_item(k // 5, vL16)[k % 5]); p2["pieces"] += 1
        return out
    p2 = {"pieces": 0, "act": 0, "go": False}
    o = L()
    o.s("s_bitcmp1_b32 s13, 0", "s_cselect_b32 s8, 57, 30", f"s_mov_b32 s{S_AUX+2}, {640*3456}", f"s_mov_b32 s{S_AUX+3}, 0x20000",
        f"s_mul_i32 s9, {sCb}, 3", "s_bfe_u32 s4, s13, 0x20001", "s_add_u32 s9, s9, s4", "s_add_u32 s8, s8, s9", "s_lshl_b32 s9, s9, 7", "s_cmp_lt_u32 s4, 3")
    o += col_pre(TB, lane, 3456)
    o.s("s_and_b32 s17, s13, 6")
    common_wait(a, stamps)
    E(st_issue(TB))
    o.s("s_bitcmp1_b32 s13, 0", f"s_cselect_b32 s{S_AUX}, s32, s28", f"s_cselect_b32 s{S_AUX+1}, s33, s29")
    ci = [[Cond("s_cmp_lt_u32 s17, 6", g)] for g in col_issue(TB, S_AUX, 3456)]
    dq = refill(0)
    paced(E, o, dq, cfg.get("pace0", 8))
    st("i0")
    dq += ci + refill(1)
    o0 = L()
    o0.s("s_mul_i32 s12, s10, 72", "s_add_u32 s12, s12, s13", "s_cmp_ge_u32 s12, 90",
        f"s_cselect_b32 s0, s{P_WO}, s{P_W2}", f"s_cselect_b32 s1, s{P_WO+1}, s{P_W2+1}")
    o0 += rot_table("s19", sK, 64 * 3456, sKx, 2, 10, RB)
    rp_pre = L()
    rp_pre.s("s_mul_i32 s10, s12, 57", "s_lshr_b32 s10, s10, 9", "s_mul_i32 s4, s10, 9", "s_sub_u32 s11, s12, s4",
        "s_sub_u32 s4, s12, 90", "s_lshr_b32 s5, s4, 2", "s_and_b32 s4, s4, 3", "s_cmp_ge_u32 s12, 90",
        "s_cselect_b32 s10, s5, s10", "s_cselect_b32 s11, s4, s11", "s_cselect_b32 s4, 5, 6", "s_cselect_b32 s5, 5, 2", "s_cselect_b32 s6, 54, 0",
        "s_cselect_b32 s7, 2, 18", "s_cselect_b32 s8, 9, 0",
        "s_add_u32 s8, s8, s11", "s_lshl_b32 s8, s8, 2",
        "s_mul_i32 s4, s4, s11", "s_lshr_b32 s9, s3, 2", "s_add_u32 s4, s4, s9",
        "s_mul_i32 s5, s5, s11", "s_add_u32 s5, s5, s6", "s_add_u32 s5, s5, s9",
        "s_lshl_b32 s4, s4, 2", "s_and_b32 s6, s3, 3", "s_add_u32 s4, s4, s6", f"s_mul_i32 s4, s4, {8*1280}", "s_lshl_b32 s9, s10, 7", "s_add_u32 s63, s4, s9",
        "s_add_u32 s8, s8, s9",
        "s_lshl_b32 s4, s10, 2", "s_add_u32 s4, s4, s6", "s_mul_i32 s6, s4, 52", "s_lshr_b32 s6, s6, 8", "s_mul_i32 s6, s6, 365", "s_add_u32 s6, s6, s4",
        "s_mul_i32 s5, s5, 5", "s_add_u32 s6, s6, s5", "s_lshl_b32 s6, s6, 10", f"s_add_u32 s76, s6, {W2F_OFF}",
        f"s_add_u32 s10, s8, {FLG_OFF + 32*128}",
        "s_cmp_lt_u32 s12, 130", f"s_cselect_b32 s76, s76, {0x70000000}", f"s_cselect_b32 s63, s63, {0x70000000}", f"s_cselect_b32 s10, s10, {0x30000000}",
        )
    rp_pre.v("v_lshrrev_b32", T + 4, "3", lane).v("v_mul_u32_u24", T + 4, "1280", T + 4).v("v_and_b32", T + 5, "7", lane).v("v_lshl_add_u32", T + 4, T + 5, "4", T + 4)
    rp_pre.v("v_lshrrev_b32", vP, "4", lane).v("v_lshlrev_b32", vP, "10", vP).v("v_bfe_u32", vTt, lane, "2", "2").v("v_lshl_add_u32", vP, vTt, "7", vP)
    rp_pre.v("v_and_b32", vTt, "3", lane).v("v_lshl_add_u32", vP, vTt, "3", vP)
    rp_pre.s("s_lshr_b32 s4, s3, 2", "s_lshl_b32 s4, s4, 12", "s_and_b32 s5, s3, 3", "s_lshl_b32 s5, s5, 5", "s_add_u32 s4, s4, s5", f"s_add_u32 s4, s4, {8*16384}").v("v_add_u32", vP, "s4", vP)
    o = L()
    o.s("s_and_b32 s4, s3, 3", "s_lshr_b32 s5, s3, 2")
    o.v("v_lshrrev_b32", t0, "5", lane).v("v_lshlrev_b32", t0, "10", t0).v("v_bfe_u32", t1, lane, "2", "2").v("v_lshl_add_u32", t0, t1, "7", t0)
    o.v("v_lshrrev_b32", t1, "1", t1).v("v_xor_b32", t1, "s5", t1).v("v_lshl_add_u32", t0, t1, "6", t0)
    o.v("v_bfe_u32", t1, lane, "4", "1").v("v_lshl_add_u32", t0, t1, "5", t0).v("v_and_b32", t1, "1", lane).v("v_lshl_add_u32", t0, t1, "4", t0)
    o.v("v_bfe_u32", t1, lane, "1", "1").v("v_lshl_add_u32", vWr[0], t1, "3", t0)
    o.v("v_add_u32", vWr[1], "0x10000", vWr[0]).v("v_add_u32", vWr[2], "0x20000", vWr[0])
    o.v("v_and_b32", t0, "31", lane).v("v_lshrrev_b32", t1, "5", lane).v("v_bfe_u32", t2, lane, "1", "3").v("v_xor_b32", t2, t1, t2)
    o.s("s_lshl_b32 s6, s4, 12")
    o.v("v_lshlrev_b32", t3, "7", t0).v("v_add_u32", t3, "s6", t3)
    for s4 in range(4): o.v("v_xor_b32", vXr + s4, str(2 * s4), t2).v("v_lshl_add_u32", vXr + s4, vXr + s4, "4", t3)
    o += rp_pre
    o += p2_setup(vPA, lane, "s4", "s11")
    paced(E, o0 + o, dq, cfg.get("pace", 40))
    st("i1")
    while any(x.kind == "vld" for g in dq for x in g): E(dq.pop(0))
    o = L()
    o += stats_ops(TB, XO)
    dq += refill(cfg.get("pre", 1))
    paced(E, o, dq, cfg.get("pace2", 16))
    E(Block("s_cmp_lt_u32 s17, 6", col_acc_ops(TB, lane, XO)))
    E(L().s(*PERMSEL))
    st("i3")
    D = L()
    D.append(list(L().s("s_and_b32 s4, s3, 3", "s_lshr_b32 s5, s3, 2", f"s_lshl_b32 s6, {sRb}, 2", "s_add_u32 s6, s6, s4", f"s_lshl_b32 {sTok}, s6, 9",
        "s_mul_i32 s6, s6, 74", f"s_lshl_b32 s7, {sCb}, 1", "s_add_u32 s6, s6, s7", "s_add_u32 s6, s6, s5", f"s_lshl_b32 {sSt}, s6, 11")))
    D.v("v_lshrrev_b32", t1, "5", lane).v("v_and_b32", t2, "15", lane).v("v_bfe_u32", t3, lane, "4", "1").v("v_lshl_add_u32", vTokA, t2, "1", t3).v("v_lshlrev_b32", vTokA, "4", vTokA)
    D.v("v_lshlrev_b32", vSt, "10", t3).v("v_lshl_add_u32", vSt, t1, "8", vSt).v("v_lshl_add_u32", vSt, t2, "4", vSt)
    D.v("v_and_b32", vCol, "19", lane).v("v_bfe_u32", t2, lane, "2", "1").v("v_lshl_add_u32", vCol, t2, "3", vCol)
    D.v("v_bfe_u32", t2, lane, "3", "1").v("v_lshl_add_u32", vCol, t2, "2", vCol)
    D.append(list(L().s(f"s_mul_i32 s6, {sCb}, 384", "s_lshr_b32 s5, s3, 2", "s_lshl_b32 s7, s5, 5", "s_add_u32 s6, s6, s7").v("v_add_u32", vCol, "s6", vCol)))
    D.v("v_lshlrev_b32", vCol, "3", vCol).v("v_lshl_add_u32", vCol, t1, "9", vCol)
    D.append(list(L().s(f"s_lshl_b32 {sOwn}, {sRb}, 7", f"s_lshl_b32 s6, {sCb}, 2", f"s_add_u32 {sOwn}, {sOwn}, s6", f"s_add_u32 {sOwn}, {sOwn}, {FLG_OFF}")))
    D.s(f"s_mov_b32 s14, {COL_OFF + 30*1024}", f"s_mov_b32 s15, {COL_OFF + 57*1024}")
    D.v("v_lshlrev_b32", vL16, "4", lane).v("v_or_b32", vF, sL, lane).v("v_min_u32", vF, "1", vF).v("v_lshlrev_b32", vF, "30", vF)
    def colload(dst, mat, chunk):
        return BLD(dst, 2, vCol, 20, "s14" if mat == 0 else "s15", off=chunk * 1024, tag="col", mod=SC1)
    def colchk(dst, mat, chunk):
        E(col_fix(dst))
    M = []
    for t in range(40):
        M.append((A0, t, t // 4, 0, t % 4)); M.append((A1, t, t // 4, 1, t % 4))
    for p, acc in ((1, A2), (2, A0), (3, A1), (4, A0)):
        for t in range(40):
            M.append((acc, t, 10 + 5 * (p - 1) + t // 8, (t // 4) % 2, t % 4))
    PF = 4; NB = 5
    def reads(n):
        acc, t, s, half, sub = M[n]
        pos = items[("W", s)] * 16384 + half * 8192 + sub * 2048
        b = WB + 4 * (n % NB)
        return [DSR(b, 2, vWr[pos >> 16], off=pos & 0xffff, tr=True), DSR(b + 2, 2, vWr[pos >> 16], off=(pos & 0xffff) + 512, tr=True)]
    fill = []
    def silu(G):
        ops = []
        if cfg.get("nosilu"): return ops
        for i in range(0, 16, 4):
            ops += [V("v_mul_f32", T + e, G + i + e, TOK + 2) for e in range(4)]
            ops += [V("v_exp_f32", T + e, T + e) for e in range(4)]
            ops += [V("v_fma_f32", T + e, T + e, TOK + 3, TOK + 3) for e in range(4)]
            ops += [V("v_rcp_f32", T + e, T + e) for e in range(4)]
            ops += [V("v_mul_f32", G + i + e, G + i + e, T + e) for e in range(4)]
        return ops
    def fin(G, U, chunk):
        ops = []
        for ip in range(2):
            ops += [V("v_mul_f32", G + 8 * ip + e, G + 8 * ip + e, U + 8 * ip + e) for e in range(8)]
            ops += [V("v_cvt_pk_bf16_f32", T + 4 + e, G + 8 * ip + 2 * e, G + 8 * ip + 2 * e + 1) for e in range(4)]
            mk = lambda: BST(T + 4, 4, vSt, 20, sSt, off=512 * ip, tag="st", mod=SC1)
            if cfg.get("stag") and chunk < 2: ops += [[Cond("s_cmp_lt_u32 s3, 4", [mk()])], [], [Cond("s_cmp_ge_u32 s3, 4", [mk()])]]
            else: ops.append(mk())
        if chunk < 2: ops.append(S(f"s_add_u32 {sSt}, {sSt}, {18*2048}"))
        return ops
    at_sync = {}
    def sync(s):
        its = [("W", s)] + ([("X", s)] if s < 10 else [])
        ex = at_sync.get(s, {})
        tags = its + ex.get("tags", [])
        while any(getattr(x, "tag", None) in tags for g in dq for x in g): E(dq.pop(0))
        for it in its: assert it in items
        for o_ in fill:
            for x_ in (o_ if isinstance(o_, list) else [o_]): assert getattr(x_, "tag", None) not in tags, (s, x_.text)
        tags.sort(key=lambda it: max([i for i, e in enumerate(a.vm) if e[1] == it] + [-1]))
        lg = None
        if 1 <= s <= 10:
            xr = set(rng(XF + 16 * (s - 1), 16))
            idx = [i for i, e in enumerate(a.lg) if e & xr]
            if idx: lg = len(a.lg) - 1 - max(idx)
        if s == 0: lg = 0
        if "lgw" in ex:
            idx = [i for i, e in enumerate(a.lg) if not e]
            if idx: lg = min(99 if lg is None else lg, len(a.lg) - 1 - max(idx))
        a.wait_tag(tags[-1], lg=lg)
        if not (cfg.get("nobar") and s > 11 and s % 2): a.barrier()
        st(f"s{s}")
        if 1 <= s <= 10: free.append(items[("X", s - 1)])
        if s >= 2: free.append(items[("W", s - 2)])
        free.extend(ex.get("free", []))
        if "post" in ex: ex["post"]()
        dq.extend(refill())
        if s < 10:
            for s4 in range(4):
                E(DSR(XF + 4 * (4 * s + s4), 4, vXr + s4, off=items[("X", s)] * 16384))
    def chk_empty(): assert not fill, len(fill)
    fill += tok_fin_ops(TB, XO)
    fill += [[Block(f"s_cmp_lt_u32 {sColSt}, {HUGE}", col_fin_ops(TB + 16, TB + 6, lane, XO))]] + D
    RS = [8, 9]
    def rp_issue():
        for x in RS: free.remove(x)
        dq.append(list(L().s(f"s_mov_b32 s{S_AUX}, s0", f"s_mov_b32 s{S_AUX+1}, s1", f"s_mov_b32 s{S_AUX+2}, {1728*1280}", f"s_mov_b32 s7, {18*5120}", "s_cmp_ge_u32 s12, 90",
              f"s_cselect_b32 s{S_AUX+2}, {640*1280}, s{S_AUX+2}", f"s_cselect_b32 s7, {2*5120}, s7", "s_add_u32 s0, s76, s7", "s_add_u32 s1, s0, s7")))
        dq.append(list(L().s("s_lshr_b32 s4, s3, 2", "s_mul_i32 s4, s4, s12", "s_cmp_ge_u32 s4, 90", f"s_cselect_b32 s1, {0x70000000}, s1")))
        for z in range(3):
            dq.append([S(f"s_add_u32 m0, {sL}, {RS[0]*16384 + z*8192}"), DMA(T + 4, S_AUX, "s63", tag="rp", mod=DBG.get("rm", " nt")), S(f"s_add_u32 s63, s63, {64*1280}")])
    def rp_rd(z): return [DSR(T + 4, 2, vP, off=z * 8192, tr=True), DSR(T + 6, 2, vP, off=z * 8192 + 512, tr=True)]
    def rp_st(z): return BST(T + 4, 4, vL16, 20, ["s76", "s0", "s1"][z], tag="rps", mod=SC1)
    at_sync[8] = dict(post=rp_issue)
    at_sync[11] = dict(tags=["rp"])
    at_sync[13] = dict(free=RS)
    at_sync[15] = dict(tags=["rps"], post=lambda: E(flag_st(vTt, vF, LV_W2, "s10")))
    at_sync[17] = dict(tags=["st"], post=lambda: E(flag_st(vTt, vF, LV_A)))
    at_sync[cfg.get("fb", 24)] = dict(tags=["st"], post=lambda: E(flag_st(vTt, vF, LV_B)))
    sync(0)
    for n in range(PF): E(reads(n))
    def w2chk():
        flg_check(a, vP, vPA, LV_W2); p2["go"] = True
    def achk():
        flg_check(a, vP, vPA, LV_A)
    P1 = cfg.get("p1", 46); WC = cfg.get("wc", 168); AC = cfg.get("ac", 198)
    tokld = BLD(TOK, 4, vTokA, 36, sTok, tag="tok", mod=SC1)
    first = [tokld, colload(AP[0], 0, 0), colload(AP[1], 1, 0)] + \
            [BLD(T + i, 1, vCol, 20, "s14" if i % 2 == 0 else "s15", off=(1 + i // 2) * 1024 + 4, mod=SC1) for i in range(4)]
    after = {}
    def at(n, f): after.setdefault(n, []).append(f)
    for i, x in enumerate(first): at(P1 + 3 * i, lambda x=x: E(x))
    at(79, lambda: (check(a, first, tag_cmp([TOK + 1, AP[0] + 1, AP[1] + 1, T, T + 1, T + 2, T + 3], vTt)), E(col_fix(AP[0])), E(col_fix(AP[1])),
                    E(V("v_mov_b32", TOK + 1, TOK)), E(V("v_mul_f32", TOK + 2, NLOG2E, TOK + 2))))
    at(82, lambda: (E(MFMA32C(A0, AP[0], TOK)), E(MFMA32C(A1, AP[1], TOK)),
                    fill.extend([colload(AP[0], 0, 1), colload(AP[1], 1, 1), []] + silu(A0) + fin(A0, A1, 0))))
    for z in range(3):
        if cfg.get("stag"):
            at(85 + 5 * z, lambda z=z: E(rp_rd(z))); at(87 + 5 * z, lambda z=z: E(Cond("s_cmp_lt_u32 s3, 4", [rp_st(z)]))); at(89 + 5 * z, lambda z=z: E(Cond("s_cmp_ge_u32 s3, 4", [rp_st(z)])))
        else:
            at(86 + 4 * z, lambda z=z: E(rp_rd(z))); at(89 + 4 * z, lambda z=z: E(rp_st(z)))
    at(119, lambda: colchk(AP[0], 0, 1))
    at(122, lambda: (E(MFMA32C(A2, AP[0], TOK)), fill.extend([colload(AP[0], 0, 2), [], []] + silu(A2))))
    at(159, lambda: colchk(AP[1], 1, 1))
    at(162, lambda: (E(MFMA32C(A0, AP[1], TOK)), fill.extend([colload(AP[1], 1, 2), [], []] + fin(A2, A0, 1))))
    at(WC - cfg.get("pl", 14), lambda: E(flg_poll(vP, vPA, LV_W2))); at(WC, w2chk)
    if PFX:
        for p in range(1, 4): at(WC + 1 + cfg.get("pfs", 6) * (p - 1), lambda p=p: E(pf_w2(p, vTt, T + p, lane)))
    at(199, lambda: colchk(AP[0], 0, 2))
    at(202, lambda: (E(MFMA32C(A1, AP[0], TOK)), fill.extend([[], []] + silu(A1))))
    at(AC - cfg.get("pl", 14), lambda: E(flg_poll(vP, vPA, LV_A))); at(AC, achk)
    at(220, lambda: colchk(AP[1], 1, 2))
    PARK = cfg.get("park", 0)
    if PARK:
        for i in range(4):
            at(PARK + 6 * i, lambda i=i: (chk_empty(), E([S(f"s_add_u32 s9, {sP2W}, {3*8*5120 + (i+1)*1024}"), BLD(A2 + 4 * i, 4, vL16, 20, "s9", mod=SC1)])))
    at(236, lambda: E(flg_poll(3, vPA, LV_B)))
    for n in range(240):
        acc, t, s, half, sub = M[n]
        if n in (P1, 80, 120, 200): chk_empty()
        E(MFMA32(acc, WB + 4 * (n % NB), XF + 4 * t, c="0" if t == 0 else None))
        m = n + PF
        if m < 240:
            if m % 8 == 0: sync(m // 8)
            E(reads(m))
        for f in after.get(n, []): f()
        b = cfg.get("b1", 4.5) if (80 <= n < 120) else cfg.get("b2", 3.5) if 120 <= n < 200 else cfg.get("b", 3.5)
        ph = m % 8
        okd = ph in cfg.get("ph0", [1, 2, 3, 4, 5, 6]) if n < 80 else ph in (cfg.get("ph2", [2, 4, 6]) if len(dq) > 2 else cfg.get("ph1", [3, 5]))
        if dq and (okd or not any(x.kind == "dma" for x in dq[0])):
            g_ = dq.pop(0)
            if cfg.get("nodma") and n >= 80: g_ = [x for x in g_ if x.kind != "dma"]
            E(g_); b -= 1
        elif n >= cfg.get("ago", 202) and ph in (1, 7) and p2["act"] < 9:
            assert p2["act"] <= t
            E(p2_act(p2["act"], vL16)); p2["act"] += 1; b -= 1
        while fill and b > 0:
            o_ = fill.pop(0); E(o_); b -= cost(o_)
    assert not fill and not dq
    st("p1e")
    E(MFMA32C(A0, AP[1], TOK))
    E(V("v_mov_b32", 2, vPA)); E(V("v_mov_b32", 4, vF))
    E(fin(A1, A0, 2))
    phase2(a, st, cfg, vL16, lane, 2, 3, p2["pieces"], p2["act"], cfg.get("rate", 3), flag_st(5, 4, LV_C), epoch=True,
           parked=[(16 + i, A2 + 4 * i) for i in range(4)] if PARK else [])
    st.finish(1, name, cfg.get("stw", 0))
    a.raw("s_endpgm")

def gen_qkv(a, name, stamps, cfg):
    E = a.emit; st = Stamp(a, stamps, cfg.get("sel"))
    PFX = cfg.get("pf", False)
    sK, sKx = 40, 50
    vL16, lane = 0, 1
    ACC = 176; FR = [128, 152]; TB = 80
    vPA, vP, vF = 2, 3, 4
    vDW, vDX = 5, 6
    vWr, vXr = 9, 12
    TOK = 24; AP = 44; vQW = 46; T = 50
    vTt, vColA, vTokA = 57, 58, 87
    BC, BP, MC, MP, ONE, MG0 = 60, 64, 68, 70, 72, 76
    vQ, vQ2, vV, vV2, vOW, vOW2, vOR = 77, 78, 79, 80, 81, 82, 83
    n_, g_ = 85, 86
    vOG = 92
    t0, t1, t2, t3, t4 = T, T + 1, T + 2, T + 3, T + 4
    sHg, sB, sT0 = "s13", "s14", "s15"
    SLOT = 53248; WOFF = 20480; DUMMY = 3 * SLOT; XOFF = DUMMY + 1024
    sM3 = ["s68", "s69", "s70"]
    RB = cfg.get("rblkq", 5)
    E(st_pre(TB, lane, TOK))
    o = L()
    o.s("s_sub_u32 s12, s12, 18", f"s_mov_b32 s30, {640*3840}",
        "s_cmp_ge_u32 s12, 7", f"s_cselect_b32 {sHg}, 1, 0", f"s_cselect_b32 {sB}, 7, 0", f"s_sub_u32 {sB}, s12, {sB}",
        f"s_mul_i32 s4, {sHg}, {cfg.get('rmulq', 2)}", f"s_add_u32 s4, s4, {sB}")
    o += mod_ops("s4", "s19", RB)
    o.s("s_lshl_b32 s4, s11, 1", f"s_add_u32 {sHg}, {sHg}, s4", "s_mul_i32 s4, s10, 7", f"s_add_u32 {sB}, {sB}, s4")
    o += rot_table("s19", sK, 64 * 3840, sKx, 0, 1, RB)
    o.s("s_and_b32 s4, s3, 3", "s_lshr_b32 s5, s3, 2", "s_lshl_b32 s6, s4, 3")
    o.v("v_lshrrev_b32", t0, "3", lane).v("v_and_b32", t1, "7", lane).v("v_add_u32", t2, "s6", t0)
    o.v("v_bfe_u32", t3, t2, "1", "3").v("v_xor_b32", t3, t1, t3)
    o.v("v_and_b32", vDX, "15", t2).v("v_lshrrev_b32", t2, "4", t2).v("v_lshl_add_u32", vDX, vDX, "1", t2)
    o.s(f"s_mul_i32 {sT0}, {sB}, 146", "s_lshl_b32 s9, s5, 5", f"s_add_u32 s6, {sT0}, s9")
    o.v("v_add_u32", vDX, "s6", vDX).v("v_mul_u32_u24", vDX, "1280", vDX).v("v_lshl_add_u32", vDX, t3, "4", vDX).v("v_add_u32", vDX + 1, str(64 * 1280), vDX)
    o.v("v_add_u32", vDX + 2, str(128 * 1280), vDX)
    E(o)
    def dma_stage(s):
        z = s % 3; base = z * SLOT
        ops = [[S(f"s_add_u32 m0, {sL}, {base}"), DMA(vDX, 24, f"s{sKx+s}", tag=s)],
               [S(f"s_add_u32 m0, {sL}, {base+8192}"), DMA(vDX + 1, 24, f"s{sKx+s}", tag=s)],
               [Cond("s_cmp_lt_u32 s3, 4", [S(f"s_add_u32 m0, {sL}, {base+16384}"), DMA(vDX + 2, 24, f"s{sKx+s}", tag=s)])]]
        for e in range(4):
            g = [S(f"s_add_u32 m0, {sL}, {base+WOFF+e*8192}")]
            if e == 0: g.append(DMA(vDW, 28, f"s{sK+s}", tag=s, mod=DBG.get("wm", "")))
            else: g += [S(f"s_add_u32 s63, s{sK+s}, {e*16*3840}"), DMA(vDW, 28, "s63", tag=s, mod=DBG.get("wm", ""))]
            ops.append(g)
        return ops
    o = L()
    o.s("s_lshl_b32 s6, s3, 1")
    o.v("v_lshrrev_b32", t0, "5", lane).v("v_add_u32", t0, "s6", t0)
    o.v("v_and_b32", t1, "3", t0).v("v_lshlrev_b32", t1, "2", t1).v("v_and_b32", t2, "31", lane).v("v_xor_b32", t1, t1, t2)
    o.v("v_mul_u32_u24", t2, "26", t1).v("v_lshrrev_b32", t2, "8", t2)
    o.v("v_mul_u32_u24", t3, str(1280 - 160), t2).v("v_lshl_add_u32", t3, t1, "4", t3)
    o.v("v_add_u32", t1, "2", t1).v("v_lshrrev_b32", t1, "5", t1).v("v_lshl_add_u32", t3, t1, "30", t3)
    o.v("v_mul_u32_u24", vDW, "3840", t0).v("v_add_u32", vDW, vDW, t3)
    o.s(f"s_mul_i32 s6, {sHg}, 160").v("v_add_u32", vDW, "s6", vDW)
    E(o)
    common_wait(a, stamps)
    E(S(f"s_mov_b32 s28, s{P_QKV}")); E(S(f"s_mov_b32 s29, s{P_QKV+1}"))
    E(st_issue(TB, TOK))
    dq = dma_stage(0)
    paced(E, rot_table("s19", sK, 64 * 3840, sKx, 1, 10, RB), dq, cfg.get("paceq0", 12))
    st("i0")
    o = L()
    o.v("v_lshrrev_b32", t0, "5", lane).v("v_lshlrev_b32", t0, "12", t0).v("v_bfe_u32", t1, lane, "2", "2").v("v_lshl_add_u32", t0, t1, "9", t0)
    o.v("v_xor_b32", t1, "s3", t1).v("v_lshl_add_u32", t0, t1, "6", t0)
    o.v("v_bfe_u32", t1, lane, "4", "1").v("v_lshl_add_u32", t0, t1, "5", t0).v("v_and_b32", t1, "3", lane).v("v_lshl_add_u32", t0, t1, "3", t0)
    for z in range(3): o.v("v_add_u32", vWr + z, str(z * SLOT + WOFF), t0)
    o.v("v_and_b32", t0, "31", lane).v("v_lshrrev_b32", t1, "5", lane).v("v_bfe_u32", t2, lane, "1", "3").v("v_xor_b32", t2, t1, t2).v("v_lshlrev_b32", t3, "7", t0)
    for s4 in range(4):
        o.v("v_xor_b32", t4, str(2 * s4), t2).v("v_lshl_add_u32", vXr + s4, t4, "4", t3)
        for z in (1, 2): o.v("v_add_u32", vXr + 4 * z + s4, str(z * SLOT), vXr + s4)
    o.s("s_mul_i32 s4, s11, 15", "s_add_u32 s4, s4, 1", "s_lshr_b32 s4, s4, 1", "s_add_u32 s4, s4, s12",
        "s_mul_i32 s6, s4, 86", "s_lshr_b32 s6, s6, 8", "s_mul_i32 s7, s6, 3", "s_sub_u32 s4, s4, s7", "s_mul_i32 s8, s4, 10", "s_add_u32 s8, s8, s6",
        "s_lshl_b32 s9, s8, 7", "s_and_b32 s4, s11, 1", "s_add_u32 s4, s4, s12", "s_cmp_lt_u32 s4, 8")
    o += col_pre(TB, lane, 3840)
    o_pre = o
    QB = 81920
    D = L()
    D += p2_setup(vPA, lane)
    D.s(f"s_lshl_b32 {sOwn}, {sB}, 5", f"s_add_u32 {sOwn}, {sOwn}, {sHg}", f"s_lshl_b32 {sOwn}, {sOwn}, 2", f"s_add_u32 {sOwn}, {sOwn}, {FLG_OFF + 16*128}",
        f"s_mov_b32 s12, {COL_OFF}")
    D.v("v_lshlrev_b32", vL16, "4", lane).v("v_or_b32", vF, sL, lane).v("v_min_u32", vF, "1", vF).v("v_lshlrev_b32", vF, "30", vF)
    D.v("v_and_b32", t0, "31", lane).v("v_lshrrev_b32", t1, "5", lane)
    D.v("v_and_b32", t2, "15", lane).v("v_bfe_u32", t3, lane, "4", "1").v("v_lshl_add_u32", t4, t2, "1", t3).v("v_add_u32", t4, sT0, t4)
    for rg in range(5):
        D.v("v_add_u32", vTokA + rg, str(32 * rg), t4).v("v_min_u32", vTokA + rg, "2047", vTokA + rg).v("v_lshlrev_b32", vTokA + rg, "4", vTokA + rg)
    D.s("s_lshl_b32 s6, s3, 5").v("v_add_u32", t0, "s6", t0).v("v_min_u32", t0, "239", t0)
    D.v("v_mul_u32_u24", t4, "205", t0).v("v_lshrrev_b32", t4, "14", t4).v("v_mul_u32_u24", t4, "560", t4).v("v_add_u32", t4, t4, t0)
    D.s(f"s_mul_i32 s6, {sHg}, 80").v("v_add_u32", t4, "s6", t4)
    D.v("v_lshrrev_b32", vColA, "6", t4).v("v_lshlrev_b32", vColA, "10", vColA).v("v_and_b32", t4, "63", t4)
    D.v("v_lshl_add_u32", vColA, t4, "3", vColA).v("v_lshl_add_u32", vColA, t1, "9", vColA)
    D.v("v_mul_u32_u24", T + 5, "3200", t3).v("v_mul_u32_u24", T + 6, "40", t2).v("v_add_u32", T + 5, T + 5, T + 6).v("v_add_u32", T + 5, str(QB), T + 5)
    D.s("s_lshl_b32 s6, s3, 3")
    for i in range(4):
        D.v("v_add_u32", t0, "s6", t1)
        if i: D.v("v_add_u32", t0, str(2 * i), t0)
        D.v("v_mul_u32_u24", t4, "52", t0).v("v_lshrrev_b32", t4, "8", t4)
        D.v("v_mul_u32_u24", T + 6, str(6400 - 40), t4).v("v_lshl_add_u32", T + 6, t0, "3", T + 6).v("v_add_u32", vQW + i, T + 6, T + 5)
    D.v("v_and_b32", n_, "15", lane).v("v_lshrrev_b32", g_, "4", lane).v("v_lshlrev_b32", t0, "2", g_).v("v_sub_u32", t0, n_, t0)
    D.v("v_mov_b32", t4, "0xf149f2ca").v("v_mov_b32", T + 5, "0xffff").v("v_mov_b32", T + 6, "0xffff0000")
    for r in range(4):
        for (BB, MM, add) in ((BC, MC, 0), (BP, MP, 16)):
            D.v("v_add_u32", t1, str(add - r), t0)
            D.append(VCMP("v_cmp_gt_u32", "s[4:5]", "8", t1))
            D.v("v_cndmask_b32", BB + r, t4, "0", "s[4:5]")
            if r % 2 == 0: D.v("v_cndmask_b32", MM + r // 2, "0", T + 5, "s[4:5]")
            else: D.v("v_cndmask_b32", t3, "0", T + 6, "s[4:5]").v("v_or_b32", MM + r // 2, MM + r // 2, t3)
    for r in range(4): D.v("v_mov_b32", ONE + r, "0x3f803f80")
    D.append(VCMP("v_cmp_eq_u32", "s[4:5]", "0", g_))
    D.v("v_cndmask_b32", MG0, "0", "-1", "s[4:5]")
    D.s("s_mul_i32 s6, s3, 3200", f"s_add_u32 s6, s6, {QB}")
    D.v("v_mul_u32_u24", t0, "40", n_).v("v_add_u32", t0, "s6", t0).v("v_lshl_add_u32", vQ, g_, "3", t0).v("v_add_u32", vQ2, "32", t0)
    D.v("v_lshrrev_b32", t0, "2", lane).v("v_mul_u32_u24", t0, "40", t0).v("v_add_u32", t0, "s6", t0).v("v_add_u32", t0, str(51200), t0)
    D.v("v_and_b32", t1, "3", lane).v("v_lshl_add_u32", vV, t1, "3", t0).v("v_add_u32", vV2, "32", t0)
    OB = QB
    D.s(f"s_mul_i32 s7, {sB}, 73", "s_and_b32 s6, s7, 7", "s_lshl_b32 s6, s6, 4", "s_bitcmp1_b32 s3, 0")
    D[-1:] = [[D[-1], S(f"s_cselect_b32 s8, {OB + 1408}, {0}"), S(f"s_max_u32 s8, s8, {OB}"), S("s_add_u32 s6, s6, s8")]]
    D.v("v_lshl_add_u32", t1, n_, "4", "s6")
    D.s("s_lshr_b32 s6, s3, 1", "s_mul_i32 s6, s6, 5")
    for (dst, second) in ((vOW, False), (vOW2, True)):
        if second: D.s("s_add_u32 s6, s6, 4").v("v_mov_b32", t0, "s6")
        else: D.v("v_add_u32", t0, "s6", g_)
        D.v("v_lshrrev_b32", t2, "1", t0).v("v_mul_u32_u24", t2, "2816", t2).v("v_add_u32", dst, t2, t1)
        D.v("v_and_b32", t2, "1", t0).v("v_lshl_add_u32", dst, t2, "3", dst)
    D.v("v_mov_b32", T + 5, str(DUMMY)).v("v_cndmask_b32", vOW2, T + 5, vOW2, "s[4:5]")
    D.v("v_lshrrev_b32", t0, "4", sL) if False else None
    D.v("v_lshl_add_u32", vOR, lane, "4", sL).v("v_add_u32", vOR, str(OB), vOR)
    D.append([S(f"s_mul_i32 s7, {sB}, 73"), S("s_add_u32 s8, s7, 7"), S(f"s_cmp_eq_u32 {sB}, 0"), S("s_cselect_b32 s8, 0, s8"),
              S("s_add_u32 s35, s7, 80"), S("s_sub_u32 s34, s35, s8"), S("s_mov_b32 s33, s8"), S("s_and_b32 s32, s7, -8"),
              S(f"s_mul_i32 s71, {sHg}, 10")])
    D.v("v_mov_b32", T + 5, HUGE)
    for i in range(4):
        D.append([S("s_lshl_b32 s6, s3, 6"), S(f"s_add_u32 s6, s6, {512*i}"), V("v_add_u32", t0, "s6", lane)])
        D.v("v_mul_u32_u24", t1, "745", t0).v("v_lshrrev_b32", t1, "16", t1)
        D.v("v_mul_u32_u24", t2, "88", t1).v("v_sub_u32", t0, t0, t2).v("v_add_u32", t0, "s32", t0)
        D.v("v_lshrrev_b32", t2, "4", t0).v("v_mul_u32_u24", vOG + i, str(74 * 2048), t2)
        D.v("v_and_b32", t2, "15", t0).v("v_lshl_add_u32", vOG + i, t2, "4", vOG + i)
        D.v("v_and_b32", t2, "1", t1).v("v_lshl_add_u32", vOG + i, t2, "10", vOG + i)
        D.v("v_lshrrev_b32", t2, "1", t1).v("v_add_u32", t2, "s71", t2)
        D.v("v_lshrrev_b32", t3, "2", t2).v("v_lshl_add_u32", vOG + i, t3, "11", vOG + i)
        D.v("v_and_b32", t2, "3", t2).v("v_lshl_add_u32", vOG + i, t2, "8", vOG + i)
        D.v("v_subrev_u32", t0, "s33", t0)
        D.append(VCMP("v_cmp_gt_u32", "s[4:5]", "s34", t0))
        D.v("v_cndmask_b32", vOG + i, T + 5, vOG + i, "s[4:5]")
        if i == 3:
            D.append(VCMP("v_cmp_gt_u32", "s[4:5]", "20", t1))
            D.v("v_cndmask_b32", vOG + i, T + 5, vOG + i, "s[4:5]")
    dq += dma_stage(1)
    paced(E, o_pre + D + [S(x) for x in PERMSEL], dq, cfg.get("paceq", 36))
    st("i1")
    paced(E, stats_ops(TOK, XOFF), dq, 16)
    dq += dma_stage(2)
    st("i3")
    def reads(t):
        s, sub = t // 4, t % 4; z = s % 3; f = FR[t % 2]
        ops = [DSR(f, 2, vWr + z, off=sub * 8192, tr=True), DSR(f + 2, 2, vWr + z, off=sub * 8192 + 2048, tr=True)]
        for rg in range(5): ops.append(DSR(f + 4 + 4 * rg, 4, vXr + 4 * z + sub, off=rg * 4096))
        return ops
    tabld = [BLD(TOK + 4 * rg, 4, vTokA + rg, 36, "0", tag="tok", mod=SC1) for rg in range(5)] + [BLD(AP, 2, vColA, 20, "s12", tag="col", mod=SC1)]
    while any(x.tag == 0 for g in dq for x in g): E(dq.pop(0))
    if cfg.get("prio"): E(Cond("s_cmp_ge_u32 s3, 4", [S("s_setprio 1")]))
    a.wait_tag(0, lg=0); a.barrier()
    st("s0")
    E(reads(0))
    fill = tok_fin_ops(TB, XOFF, TOK)
    for t in range(40):
        f = FR[t % 2]
        nxt = []
        if t + 1 < 40:
            if (t + 1) % 4 == 0:
                s = (t + 1) // 4
                while any(x.tag == s for g in dq for x in g): E(dq.pop(0))
                a.wait_tag(s, lg=0); a.barrier()
                st(f"s{s}")
                if s + 2 < 10: dq += dma_stage(s + 2)
                CQ = cfg.get("cq", 1)
                if s in (CQ, CQ + 1):
                    cl_ = [[Cond(f"s_cmp_lt_u32 s78, {HUGE}", g)] for g in col_issue(TB, 28, 3840)]
                    dq += cl_[:3] if s == CQ else cl_[3:]
                if s == CQ + 2: fill = [[]] * 10 + col_acc_ops(TB, lane, XOFF, dot=False)
                if s == CQ + 5:
                    assert not fill; fill = [[Block(f"s_cmp_lt_u32 {sColSt}, {HUGE}", col_fin_ops(TB + 16, vTt, lane, XOFF))]]
                if s == 9:
                    assert not fill
                    dq += [[x] for x in tabld]
            nxt = reads(t + 1)
        if t == 39:
            check(a, tabld, tag_cmp([TOK + 4 * rg + 1 for rg in range(5)] + [AP + 1], vTt))
            fill = col_fix(AP) + [V("v_mov_b32", TOK + 4 * rg + 1, TOK + 4 * rg) for rg in range(5)]
        for rg in range(5):
            E(MFMA32(ACC + 16 * rg, f, f + 4 + 4 * rg, c="0" if t == 0 else None))
            for k in range(2):
                if nxt: E(nxt.pop(0))
            b = 2.5
            if (rg >= 3 or (rg >= 1 and len(dq) > 4)) and dq: E(dq.pop(0)); b -= 1
            while fill and b > 0:
                o_ = fill.pop(0); E(o_); b -= cost(o_)
    assert not fill and not dq
    st("ge")
    for rg in range(5): E(MFMA32C(ACC + 16 * rg, AP, TOK + 4 * rg))
    for rg in range(5):
        A = ACC + 16 * rg
        if rg == 2: E(flg_poll(vP, vPA, LV_W2))
        for i in range(4):
            for e in range(4): E(V("v_mul_f32", A + 4 * i + e, A + 4 * i + e, TOK + 4 * rg + 2))
            E(V("v_cvt_pk_bf16_f32", A + 4 * i, A + 4 * i, A + 4 * i + 1)); E(V("v_cvt_pk_bf16_f32", A + 4 * i + 1, A + 4 * i + 2, A + 4 * i + 3))
            E(DSW(vQW + i, A + 4 * i, 2, off=rg * 640))
    E(flg_poll(vTt, vPA, LV_A))
    a.wait(lg=0); a.barrier()
    st("at")
    Qr = [176 + 4 * j for j in range(5)]; Kr = [196 + 4 * j for j in range(5)]
    V0, V1 = 24, 36
    for j in range(5):
        E(DSR(Qr[j], 2, vQ, off=j * 640)); E(DSR(Qr[j] + 2, 2, vQ2, off=j * 640))
        E(DSR(Kr[j], 2, vQ, off=25600 + j * 640)); E(DSR(Kr[j] + 2, 2, vQ2, off=25600 + j * 640))
    for j in range(5):
        E(DSR(V0 + 2 * (j + 1), 2, vV, off=j * 640, tr=True)); E(DSR(V1 + 2 * (j + 1), 2, vV2, off=j * 640, tr=True))
    for r in (V0, V0 + 1, V1, V1 + 1): E(V("v_mov_b32", r, "0"))
    SC = [216 + 4 * j for j in range(5)]; SP = [236 + 4 * j for j in range(5)]
    for j in range(5):
        E(V("v_and_b32", Qr[j] + 2, Qr[j] + 2, MG0)); E(V("v_and_b32", Qr[j] + 3, Qr[j] + 3, MG0))
    for j in range(5):
        E(MFMA16C(SC[j], Kr[j], Qr[j], BC))
        if j > 0: E(MFMA16C(SP[j], Kr[j - 1], Qr[j], BP))
    MX = [5 + j for j in range(5)]; TT = [10 + j for j in range(5)]
    a.barrier()
    flg_check(a, vP, vPA, LV_W2)
    flg_check(a, vTt, vPA, LV_A)
    if PFX:
        for p in range(1, 4): E(pf_w2(p, vTt, 140 + p, lane))
    pre = merge(p2_w_item(0, vL16) + p2_w_item(1, vL16), [p2_act(x, vL16) for x in range(0, 9)])
    def pp(k=1):
        for _ in range(k):
            if pre: E(pre.pop(0))
    for j in range(5):
        if j > 0:
            for r in range(4): E(V("v_max_f32", SC[j] + r, SC[j] + r, SP[j] + r))
        E(V("v_max3_f32", MX[j], SC[j], SC[j] + 1, SC[j] + 2)); E(V("v_max_f32", MX[j], MX[j], SC[j] + 3))
        if j % 2: pp()
    for lvl in (16, 32):
        for j in range(5): E(V("v_mov_b32", TT[j], MX[j]))
        for j in range(5): E(SWAP(lvl, MX[j], TT[j]))
        for j in range(5): E(V("v_max_f32", MX[j], MX[j], TT[j]))
        pp()
    E(S(f"s_mov_b32 s7, {CSC}"))
    for j in range(5): E(V("v_mul_f32", MX[j], NCSC, MX[j]))
    PB = [236 + 4 * j for j in range(5)]
    for j in range(5):
        for r in range(4): E(V("v_fma_f32", SC[j] + r, SC[j] + r, "s7", MX[j]))
        for r in range(4): E(V("v_exp_f32", SC[j] + r, SC[j] + r))
        pp()
    for j in range(5):
        E(V("v_cvt_pk_bf16_f32", SC[j], SC[j], SC[j] + 1)); E(V("v_cvt_pk_bf16_f32", SC[j] + 1, SC[j] + 2, SC[j] + 3))
        for h in range(2):
            E(V("v_and_b32", PB[j] + h, SC[j] + h, MP + h)); E(V("v_and_b32", PB[j] + 2 + h, SC[j] + h, MC + h))
        if j % 2: pp()
    O0 = Qr; O1 = Kr; DN = SC
    for j in range(5):
        E(MFMA16(DN[j], ONE, PB[j], c="0")); E(MFMA16(O0[j], V0 + 2 * j, PB[j], c="0")); E(MFMA16(O1[j], V1 + 2 * j, PB[j], c="0"))
    srd(a, 28, "s20", "s21", ACT_SIZE)
    for j in range(5): E(V("v_rcp_f32", DN[j], DN[j]))
    for j in range(5):
        for O in (O0[j], O1[j]):
            for r in range(4): E(V("v_mul_f32", O + r, O + r, DN[j]))
            E(V("v_cvt_pk_bf16_f32", O, O, O + 1)); E(V("v_cvt_pk_bf16_f32", O + 1, O + 2, O + 3))
        E(DSW(vOW, O0[j], 2, off=j * 256)); E(DSW(vOW2, O1[j], 2, off=j * 256))
        pp()
    a.wait(lg=0); a.barrier()
    for i in range(4): E(DSR(216 + 4 * i, 4, vOR, off=i * 8192))
    E(S(f"s_mov_b32 s6, {54*2048}"))
    for i in range(4): E(BST(216 + 4 * i, 4, vOG + i, 28, "s6", tag="st", mod=SC1))
    st("p1e")
    pp(20)
    E(flg_poll(vP, vPA, LV_B))
    phase2(a, st, cfg, vL16, lane, vPA, vP, 10, 9, cfg.get("rateq", 3.5), flag_st(5, vF, LV_C))
    st.finish(2, name, cfg.get("stw", 0))
    a.raw("s_endpgm")

def gen_fused(name, stamps=False, cfg={}):
    DBG.update(cfg)
    a = Asm(); E = a.emit
    a.out.append(f".globl {name}\n.p2align 8\n.type {name},@function\n{name}:")
    E(S("s_cmp_ge_u32 s2, 256")); a.raw(f"s_cbranch_scc1 L_{name}_end")
    if stamps:
        a.raw("s_memrealtime s[76:77]"); a.raw("s_memtime s[80:81]")
    a.raw("s_load_dwordx2 s[24:25], s[0:1], 0")
    a.raw(f"s_load_dwordx4 s[{P_QKV}:{P_QKV+3}], s[0:1], 8")
    a.raw("s_load_dwordx2 s[28:29], s[0:1], 32"); a.raw("s_load_dwordx2 s[32:33], s[0:1], 40")
    a.raw(f"s_load_dwordx2 s[{P_W2}:{P_W2+1}], s[0:1], 48")
    a.raw(f"s_load_dwordx2 s[{S_OUT}:{S_OUT+1}], s[0:1], 56")
    a.raw("s_load_dwordx2 s[20:21], s[0:1], 72")
    E(V("v_lshrrev_b32", 2, "6", 0)); E(V("v_and_b32", 1, "63", 0))
    E(RFL("s3", 2))
    for (b, size) in ((20, WS_USED), (24, XBYTES), (S_OUT, XBYTES), (36, 2048 * 16), (28, 640 * 3456), (32, 640 * 3456)):
        E(S(f"s_mov_b32 s{b+2}, {size}")); E(S(f"s_mov_b32 s{b+3}, 0x20000"))
    E(S("s_and_b32 s11, s2, 3")); E(S("s_bfe_u32 s10, s2, 0x10002")); E(S("s_lshr_b32 s12, s2, 3"))
    E(S(f"s_lshl_b32 {sL}, s3, 10")); E(S(f"s_mov_b32 {sSpin}, 0"))
    E(S("s_cmp_lt_u32 s12, 18")); a.raw(f"s_cbranch_scc1 L_{name}_ffn")
    gen_qkv(a, name, stamps, cfg)
    a.label(f"L_{name}_ffn"); a.reset()
    gen_ffn(a, name, stamps, cfg)
    a.label(f"L_{name}_end"); a.raw("s_endpgm")
    return a.text(), kdesc(name, 256, 256, 102), 163840
```

```python
from gasm import *
from common import *

NLOG2E = "0xbfb8aa3b"; CSC = "0x3ea52b5c"; NCSC = "0xbea52b5c"
HUGE = "0x7ff00000"
SC1 = " sc1"
S_OUT, S_AUX = 64, 68
sTag = "s60"
sP2A, sP2W, sP2X, sSpin, sFlg = "s72", "s73", "s74", "s75", "s76"
sColSt, sOwn, sL = "s18", "s17", "s16"
sRot, sItem = "s79", "s78"
P_QKV, P_WO, P_W2 = 52, 54, 56
NST = 18
DBG = {}
uid = [0]
STW = 0

class Stamp:
    def __init__(self, a, on, sel=None): self.a, self.on, self.n, self.sel, self.names = a, on, 0, sel, []
    def __call__(self, name="x", force=False):
        if not self.on: return
        if self.sel is not None and not force and name not in self.sel: return
        assert self.n < NST, name
        if self.n: self.a.raw(f"s_mov_b32 s{82+self.n-1}, s100")
        self.a.raw("s_memtime s[100:101]"); self.n += 1; self.names.append(name)
    def finish(self, role, name, wave=0):
        a = self.a
        if not self.on: return
        a.raw("s_waitcnt vmcnt(0)")
        self("end", True)
        a.raw("s_memrealtime s[4:5]"); a.raw("s_waitcnt lgkmcnt(0)")
        a.raw(f"s_mov_b32 s{82+self.n-1}, s100")
        a.raw(f"s_cmp_lg_u32 s3, {wave}"); a.raw(f"s_cbranch_scc1 L_{name}_end")
        for i in range(20):
            if i < self.n: a.raw(f"s_sub_u32 s6, s{82+i}, s80"); a.raw(f"v_mov_b32 v{i}, s6")
            else: a.raw(f"v_mov_b32 v{i}, 0")
        a.raw(f"v_mov_b32 v20, {sSpin}")
        a.raw(f"v_mov_b32 v21, {role}"); a.raw("v_mov_b32 v22, s77"); a.raw("v_mov_b32 v23, s4")
        a.raw("s_lshl_b32 s40, s2, 7"); a.raw(f"s_add_u32 s40, s40, {STAMP1}"); a.raw("v_mov_b32 v24, s40")
        a.raw("s_mov_b32 s22, 0x2000000"); a.raw("s_mov_b64 exec, 1")
        for i in range(6): a.raw(f"buffer_store_dwordx4 v[{4*i}:{4*i+3}], v24, s[20:23], 0 offen offset:{16*i}")
        a.comment(f"STAMPS role {role}: " + " ".join(self.names))

class L(list):
    def s(self, *ts):
        for t in ts: self.append(S(t))
        return self
    def v(self, *x, **k): self.append(V(*x, **k)); return self

def scc_live(ops):
    for o in ops:
        if isinstance(o, list): return False
        if o.kind != "salu": continue
        n = o.text.split()[0]
        if n.startswith(("s_cselect", "s_addc", "s_subb", "s_cbranch_scc")): return True
        if n.startswith(("s_mov", "s_mul_i32", "s_movk")): continue
        return False
    return False
def exec_dirty(ops):
    return False

def paced(E, ops, groups, every):
    k = 0
    for i, o in enumerate(ops):
        E(o); k += len(o) if isinstance(o, list) else 1
        if groups and k >= every and not scc_live(ops[i + 1:]):
            E(groups.pop(0)); k = 0

def rot_table(srot, sK, mulK, sKx, lo, hi, blk=10):
    o = L()
    for s in range(lo, hi):
        base = s // blk * blk
        if base: o.s(f"s_add_u32 s4, {srot}, {base}", f"s_mul_i32 s{sK+s}, s4, {mulK}", f"s_lshl_b32 s{sKx+s}, s4, 7")
        else: o.s(f"s_mul_i32 s{sK+s}, {srot}, {mulK}", f"s_lshl_b32 s{sKx+s}, {srot}, 7")
        if s < 9: o.s(f"s_add_u32 {srot}, {srot}, 1", f"s_cmp_eq_u32 {srot}, {blk}", f"s_cselect_b32 {srot}, 0, {srot}")
    return o
def mod_ops(src, dst, m):
    if m == 1: return [S(f"s_mov_b32 {dst}, 0")]
    if m == 2: return [S(f"s_and_b32 {dst}, {src}, 1")]
    k = {5: 52, 10: 26}[m]
    return [S(f"s_mul_i32 s5, {src}, {k}"), S("s_lshr_b32 s5, s5, 8"), S(f"s_mul_i32 s5, s5, {m}"), S(f"s_sub_u32 {dst}, {src}, s5")]

def check(a, load, cmp_ops, sleep=2):
    uid[0] += 1; Lb = f"L_ck{uid[0]}"
    a.emit(cmp_ops)
    a.raw(f"s_cbranch_scc0 {Lb}_ok")
    a.label(f"{Lb}_sp")
    a.raw(f"s_sleep {sleep}")
    for l in (load if isinstance(load, list) else [load]): a.raw(l.text)
    a.raw("s_waitcnt vmcnt(0)")
    a.raw(f"s_add_u32 {sSpin}, {sSpin}, 1"); a.raw(f"s_cmp_gt_u32 {sSpin}, 30000"); a.raw(f"s_cbranch_scc1 {Lb}_ok")
    for o in cmp_ops:
        a.raw(o.text); a.raw("s_nop 3")
    a.raw(f"s_cbranch_scc1 {Lb}_sp")
    a.label(f"{Lb}_ok")

M_FFN, M_Q, M_W2 = 0x1ff, 0xffff0000, 0x3ffffff << 32
LV_W2, LV_A, LV_B, LV_C = "W2", "A", "B", "C"
LV = {"W2": (0, M_W2), "A": (48 * 128, M_FFN), "B": (64 * 128, M_FFN), "C": (0, M_FFN | M_Q)}
def flg_poll(vP, vA, lv):
    off, m = LV[lv]
    return [S(f"s_mov_b32 s9, {FLG_OFF + off}"), S(f"s_mov_b32 exec_lo, {m & 0xffffffff}"), S(f"s_mov_b32 exec_hi, {m >> 32}"),
            BLD(vP, 1, vA, 20, "s9", tag="poll", mod=SC1), S("s_mov_b64 exec, -1")]
def flg_cmp(vP, lv):
    off, mask = LV[lv]
    o = [VCMP("v_cmp_ne_u32", "vcc", sTag, vP)]
    if mask >> 32 == 0: o.append(S(f"s_and_b32 vcc_lo, vcc_lo, {mask}", sr=["vcc"]))
    else: o.append(S(f"s_and_b32 vcc_hi, vcc_hi, {mask >> 32}", sr=["vcc"]))
    return o
def flg_check(a, vP, vA, lv, sleep=2): check(a, flg_poll(vP, vA, lv), flg_cmp(vP, lv), sleep)
def tag_cmp(regs, t):
    o = [V("v_xor_b32", t, sTag, regs[0])]
    for r in regs[1:]: o.append(Op(f"v_bitop3_b32 {R(t)}, {R(t)}, {R(r)}, {sTag} bitop3:0xf6", "valu", r=[t, r], w=[t], sr=[sTag]))
    return o + [VCMP("v_cmp_ne_u32", "vcc", "0", t), S("s_cmp_lg_u64 vcc, 0")]
def flag_st(vT, vF, lv, base=None):
    return [Cond("s_cmp_eq_u32 s3, 0", [S(f"s_add_u32 s9, {base or sOwn}, {LV[lv][0]}"), V("v_mov_b32", vT, sTag), BST(vT, 1, vF, 20, "s9", tag="flag", mod=SC1)])]
def col_fix(AP): return [V("v_perm_b32", AP + 1, AP, AP, "s62"), V("v_perm_b32", AP, AP, AP, "s61")]

def wsum(s, t):
    return [DPP("v_add_f32", s, s, s, "quad_perm:[1,0,3,2]"), DPP("v_add_f32", s, s, s, "quad_perm:[2,3,0,1]"), DPP("v_add_f32", s, s, s, "row_half_mirror"),
            DPP("v_add_f32", s, s, s, "row_ror:8"), V("v_mov_b32", t, s), SWAP(16, s, t), V("v_add_f32", s, s, t),
            V("v_mov_b32", t, s), SWAP(32, s, t), V("v_add_f32", s, s, t)]
def merge(a, b):
    o = []
    a, b = list(a), list(b)
    na, nb = len(a), len(b)
    while a or b:
        if a and (not b or len(a) * nb >= len(b) * na): o.append(a.pop(0))
        else: o.append(b.pop(0))
    return o

def st_pre(B, lane, Bs=None):
    Bs = B if Bs is None else Bs
    o = L()
    o.s("s_and_b32 s4, s2, 7", "s_lshl_b32 s4, s4, 5", "s_lshr_b32 s5, s2, 3", "s_add_u32 s4, s4, s5", "s_lshl_b32 s4, s4, 3", "s_add_u32 s4, s4, s3",
        "s_mul_i32 s63, s4, 1280", "s_lshl_b32 s61, s4, 4", f"s_mov_b32 s62, {EPO_OFF}")
    o.v("v_lshlrev_b32", B + 36, "4", lane).v("v_lshlrev_b32", B + 37, "2", lane).v("v_lshlrev_b32", Bs + 5, "24", lane)
    return o
def st_issue(B, Bs=None):
    Bs = B if Bs is None else Bs
    return [BLD(Bs + 5, 1, Bs + 5, 20, "s62", mod=SC1), BLD(Bs, 4, B + 36, 24, "s63"), BLD(Bs + 4, 1, B + 37, 24, "s63", off=1024), S("s_mov_b32 s81, s61")]
def col_pre(B, lane, pitch):
    o = L()
    o.s(f"s_cselect_b32 s9, s9, {HUGE}", "s_cselect_b32 s7, s3, 1",
        "s_lshl_b32 s5, s8, 10", "s_lshl_b32 s8, s10, 9", "s_add_u32 s5, s5, s8", f"s_add_u32 s5, s5, {COL_OFF}",
        "s_mul_i32 s8, s10, 40", "s_add_u32 s8, s8, s3", f"s_mul_i32 s8, s8, {8*pitch}", "s_add_u32 s78, s8, s9",
        "s_cmp_eq_u32 s7, 0", f"s_cselect_b32 {sColSt}, s5, {HUGE}")
    o.v("v_lshrrev_b32", B + 38, "3", lane).v("v_and_b32", B + 39, "7", lane)
    o.v("v_mul_u32_u24", B + 38, str(pitch), B + 38).v("v_lshl_add_u32", B + 38, B + 39, "4", B + 38)
    return o
def col_issue(B, srdn, pitch):
    return [[BLD(B + 16 + 4 * it, 4, B + 38, srdn, "s78", mod=DBG.get("cm", ""))] + ([S(f"s_add_u32 s78, s78, {64*pitch}")] if it < 4 else []) for it in range(5)]
def stats_ops(B, xoff):
    U = B + 6; s, t = B + 5, B + 4
    o = L()
    o.append(RFL(sTag, B + 5))
    for i in (4, 0, 1, 2, 3): o.v("v_lshlrev_b32", U + 2 * i, "16", B + i).v("v_and_b32", U + 2 * i + 1, "0xffff0000", B + i)
    o.s(f"s_mul_i32 {sTag}, {sTag}, 0x9e3779b1", f"s_add_u32 {sTag}, {sTag}, 0x7f4a7c15")
    o.v("v_add_f32", s, U, U + 1).v("v_add_f32", t, U + 2, U + 3)
    for i in range(4, 10, 2): o.v("v_add_f32", s, s, U + i).v("v_add_f32", t, t, U + i + 1)
    o.v("v_add_f32", s, s, t)
    o += wsum(s, t)
    o.v("v_mul_f32", s, "0xbacccccd", s)
    q = B + 1
    for i in range(10): o.v("v_add_f32", U + i, U + i, s)
    o.v("v_mul_f32", q, U, U).v("v_mul_f32", t, U + 1, U + 1)
    for i in range(2, 10, 2): o.v("v_fmac_f32", q, U + i, U + i).v("v_fmac_f32", t, U + i + 1, U + i + 1)
    o.v("v_add_f32", q, q, t)
    o += wsum(q, t)
    o.v("v_mov_b32", B + 3, "0x3727c5ac").v("v_fmac_f32", B + 3, "0x3acccccd", q).v("v_rsq_f32", B + 2, B + 3)
    o.v("v_cvt_pk_bf16_f32", t, s, s).v("v_lshlrev_b32", t, "16", t).v("v_sub_f32", t, s, t)
    o.v("v_cvt_pk_bf16_f32", B, s, t).v("v_mov_b32", B + 1, sTag)
    o.v("v_mov_b32", t, sL).v("v_lshrrev_b32", t, "6", t).v("v_add_u32", t, str(xoff + 2048), t)
    o.append(DSW(t, B, 4))
    return o
def tok_fin_ops(B, xoff, Bs=None):
    Bs = B if Bs is None else Bs
    o = L()
    o.v("v_and_b32", Bs + 4, "0x70", B + 36).v("v_add_u32", Bs + 4, str(xoff + 2048), Bs + 4)
    o.append(DSR(Bs, 4, Bs + 4))
    o.v("v_lshrrev_b32", Bs + 5, "7", B + 36).v("v_lshl_add_u32", Bs + 5, Bs + 5, "24", B + 36)
    o.s("s_sub_u32 s81, s81, 16")
    o.append(BST(Bs, 4, Bs + 5, 36, "s81", tag="tab", mod=SC1))
    return [[Block("s_cmp_eq_u32 s3, 1", o)]]
def col_add(A, r, first, t, dot):
    o = L()
    for j in range(4):
        if first: o.v("v_lshlrev_b32", A + 2 * j, "16", r + j).v("v_and_b32", A + 2 * j + 1, "0xffff0000", r + j)
        elif dot: o.v("v_dot2c_f32_bf16", A + 2 * j, "s61", r + j).v("v_dot2c_f32_bf16", A + 2 * j + 1, "s62", r + j)
        else: o.v("v_lshlrev_b32", t, "16", r + j).v("v_and_b32", r + j, "0xffff0000", r + j).v("v_add_f32", A + 2 * j, A + 2 * j, t).v("v_add_f32", A + 2 * j + 1, A + 2 * j + 1, r + j)
    return o
def col_red(A, t0, piece, lane, xoff):
    o = L()
    o.v("v_lshrrev_b32", t0, "4", lane).v("v_lshlrev_b32", t0, "3", t0).v("v_lshl_add_u32", t0, piece, "5", t0)
    for j in range(4): o.append(SWAP(32, A + j, A + j + 4))
    for j in range(4): o.v("v_add_f32", A + j, A + j, A + j + 4)
    o.v("v_mov_b32", t0 + 1, sL).v("v_lshrrev_b32", t0 + 1, "2", t0 + 1)
    for j in range(2): o.append(SWAP(16, A + j, A + j + 2))
    for j in range(2): o.v("v_add_f32", A + j, A + j, A + j + 2)
    o.v("v_add_u32", t0, t0, t0 + 1).v("v_add_u32", t0, str(xoff), t0)
    for j in range(2): o.append(DPP("v_add_f32", A + j, A + j, A + j, "row_ror:8"))
    o.append(DSW(t0, A, 2))
    return o
def col_acc_ops(B, lane, xoff, dot=True):
    A = B + 40
    o = L()
    if dot: o.s("s_mov_b32 s61, 0x3f80", "s_mov_b32 s62, 0x3f800000")
    for it in range(5): o += col_add(A, B + 16 + 4 * it, it == 0, B + 16, dot)
    o += col_red(A, B + 16, B + 39, lane, xoff)
    return o
PERMSEL = ["s_mov_b32 s61, 0x01000100", "s_mov_b32 s62, 0x03020302"]
def col_fin_ops(Rd, t, lane, xoff):
    o = L()
    o.v("v_lshlrev_b32", t, "2", lane).v("v_add_u32", t, str(xoff), t)
    for w in range(8): o.append(DSR(Rd + w, 1, t, off=w * 256))
    for w in range(4): o.v("v_add_f32", Rd + w, Rd + w, Rd + 4 + w)
    o.v("v_add_f32", Rd, Rd, Rd + 1).v("v_add_f32", Rd + 2, Rd + 2, Rd + 3).v("v_add_f32", Rd, Rd, Rd + 2)
    o.v("v_cvt_pk_bf16_f32", Rd + 4, Rd, Rd).v("v_lshlrev_b32", Rd + 6, "16", Rd + 4).v("v_sub_f32", Rd + 6, Rd, Rd + 6)
    o.v("v_cvt_pk_bf16_f32", Rd + 4, Rd, Rd + 6).v("v_mov_b32", Rd + 5, sTag).v("v_lshlrev_b32", t, "3", lane)
    o.append(BST(Rd + 4, 2, t, 20, sColSt, tag="tab", mod=SC1))
    return o

ACTB, ACC2, WF2 = 96, 48, 8
def p2_setup(vA, lane, rb="s10", cb="s11"):
    g = []
    o = L()
    o.s("s_bfe_u32 s10, s2, 0x20001", "s_lshl_b32 s10, s10, 3", "s_bfe_u32 s5, s2, 0x30003", "s_add_u32 s10, s10, s5",
        "s_and_b32 s11, s2, 1", "s_lshl_b32 s11, s11, 2", "s_lshr_b32 s6, s2, 6", "s_add_u32 s11, s11, s6"); g.append(list(o))
    o = L()
    o.s("s_bfe_u32 s6, s3, 0x10001", "s_lshl_b32 s9, s10, 1", "s_add_u32 s6, s6, s9",
        f"s_mul_i32 {sP2A}, s6, 74", "s_lshr_b32 s9, s3, 2", f"s_add_u32 {sP2A}, {sP2A}, s9", f"s_lshl_b32 {sP2A}, {sP2A}, 1",
        "s_and_b32 s9, s3, 1", f"s_add_u32 {sP2A}, {sP2A}, s9", f"s_lshl_b32 {sP2A}, {sP2A}, 10",
        "s_lshl_b32 s6, s6, 5", "s_add_u32 s6, s6, s9", f"s_mul_i32 {sP2X}, s6, 1280"); g.append(list(o))
    o = L()
    o.s(f"s_mul_i32 {sP2W}, s11, 74", f"s_add_u32 {sP2W}, {sP2W}, s3", f"s_mul_i32 {sP2W}, {sP2W}, 5120", f"s_add_u32 {sP2W}, {sP2W}, {W2F_OFF}",
        "s_mul_i32 s6, s11, 160", f"s_add_u32 {sP2X}, {sP2X}, s6", "s_lshr_b32 s6, s3, 2", "s_mul_i32 s6, s6, 96", f"s_add_u32 {sP2X}, {sP2X}, s6",
        ); g.append(list(o))
    if DBG.get("rot2"):
        o = L()
        o.s("s_bfe_u32 s6, s2, 0x30003", "s_lshr_b32 s9, s2, 6", "s_lshl_b32 s9, s9, 1", "s_add_u32 s6, s6, s9", "s_cmp_ge_u32 s6, 9", "s_cselect_b32 s9, 9, 0", f"s_sub_u32 {sRot}, s6, s9",
            f"s_lshl_b32 s6, {sRot}, 12", f"s_add_u32 {sP2A}, {sP2A}, s6", f"s_mul_i32 s6, {sRot}, 10240", f"s_add_u32 {sP2W}, {sP2W}, s6"); g.append(list(o))
    def part(o, lo, n):
        m = ((1 << n) - 1) << lo
        o.s("s_lshl_b32 s6, s6, 7", f"s_sub_u32 s6, s6, {lo*4}", f"s_mov_b32 exec_lo, {m & 0xffffffff}", f"s_mov_b32 exec_hi, {m >> 32}")
        o.v("v_lshl_add_u32", vA, lane, "2", "s6"); o.s("s_mov_b64 exec, -1"); g.append(list(o))
    part(L().s("s_lshr_b32 s6, s10, 1"), 0, 16)
    for (lo, add) in ((16, 0), (24, 63)):
        part(L().s("s_lshl_b32 s6, s10, 6", f"s_add_u32 s6, s6, {add}", "s_max_u32 s6, s6, 14", "s_sub_u32 s6, s6, 14",
                   "s_mul_i32 s6, s6, 7183", "s_lshr_b32 s6, s6, 20", "s_add_u32 s6, s6, 16"), lo, 8)
    for (i, add) in ((0, 0), (1, 4)):
        part(L().s("s_mul_i32 s6, s11, 5", f"s_add_u32 s6, s6, {add + 128}", "s_lshr_b32 s6, s6, 2"), 32 + 13 * i, 13 if i == 0 else 19)
    g = [[S(x.text.replace("s10", rb).replace("s11", cb)) if x.kind == "salu" else x for x in grp] for grp in g]
    return g

def GEND(j): return 9 if j < 9 else 18 if j < 18 else 27 if j < 27 else 37
def GN(j): return 10 if j >= 27 else 9
def p2_w_item(d, vL16):
    slot = (d % 4) * 40960
    ops = []
    for i in range(5):
        g = [S(f"s_add_u32 s9, {sP2W}, {(d%2 if DBG.get('hot') else d)*8*5120 + i*1024}")]
        if DBG.get("rot2"):
            pre = []
            if i == 0:
                ends = sorted(set(GEND(j) for j in range(4 * d, min(4 * d + 4, 37))))
                pre = [S("s_lshr_b32 s8, s3, 1")]
                if len(ends) == 1:
                    pre += [S(f"s_add_u32 s8, s8, {sRot}"), S(f"s_cmp_ge_u32 s8, {ends[0] - 4*d}"), S(f"s_cselect_b32 {sItem}, {GN(4*d)*10240}, 0")]
                else:
                    pre += [S(f"s_cmp_ge_u32 s8, {ends[0] - 4*d}"), S(f"s_cselect_b32 s7, {ends[1] - 4*d}, {ends[0] - 4*d}"),
                            S(f"s_cselect_b32 {sItem}, {GN(ends[0])}, {GN(4*d)}"), S(f"s_mul_i32 {sItem}, {sItem}, 10240"),
                            S(f"s_add_u32 s8, s8, {sRot}"), S("s_cmp_ge_u32 s8, s7"), S(f"s_cselect_b32 {sItem}, {sItem}, 0")]
                pre.append(S(f"s_sub_u32 {sItem}, {sP2W}, {sItem}"))
            g = pre + [S(f"s_add_u32 s9, {sItem}, {d*8*5120 + i*1024}")]
        if DBG.get("now2"): g = [S(f"s_mov_b32 s9, {HUGE}")]
        g += [S(f"s_add_u32 m0, {sL}, {slot + i*8192}"), DMA(vL16, 20, "s9", tag=("W2", d), mod="" if DBG.get("nosc1") else SC1)]
        ops.append(g)
    if d == 9: ops = [[Cond("s_cmp_lt_u32 s3, 2", sum(ops, []))]]
    return ops
def pf_w2(p, vT, vD, lane):
    return [S("s_bfe_u32 s8, s2, 0x30003"), S("s_lshl_b32 s8, s8, 3"), S("s_add_u32 s8, s8, s3"), S("s_mul_i32 s8, s8, 12"), S(f"s_add_u32 s8, s8, {p*768}"),
            S("s_min_u32 s8, s8, 2948"), S("s_lshl_b32 s8, s8, 7"), S("s_mul_i32 s9, s3, 5120"), S(f"s_sub_u32 s9, {sP2W}, s9"), S("s_add_u32 s9, s9, s8"),
            V("v_lshlrev_b32", vT, "7", lane), S("s_mov_b64 exec, 0xfff"), BLD(vD, 1, vT, 20, "s9", tag="pf", mod=SC1), S("s_mov_b64 exec, -1")]
def pf_act(g, vT, vD, lane):
    j0, n = [(0, 9), (9, 9), (18, 9), (27, 10)][g]
    return [S("s_lshr_b32 s8, s2, 6"), V("v_lshrrev_b32", vT, "3", lane), V("v_lshl_add_u32", vT, vT, "2", "s8"), V("v_min_u32", vT, str(n - 1), vT),
            V("v_lshlrev_b32", vT, "5", vT), V("v_and_or_b32", vT, lane, "7", vT), V("v_lshlrev_b32", vT, "7", vT),
            S(f"s_add_u32 s9, {sP2A}, {j0*4096}"), S("s_mov_b64 exec, 0xffffff"), BLD(vD, 1, vT, 20, "s9", tag="pf", mod=SC1), S("s_mov_b64 exec, -1")]
def p2_act(j, vL16):
    if DBG.get("noact"): return [S(f"s_mov_b32 s9, {HUGE}"), BLD(ACTB + 4 * j, 4, vL16, 20, "s9", mod=SC1)]
    if DBG.get("hot"): return [S(f"s_add_u32 s9, {sP2A}, {(j%4)*4096}"), BLD(ACTB + 4 * j, 4, vL16, 20, "s9", mod=SC1)]
    if DBG.get("rot2"):
        return [S(f"s_cmp_ge_u32 {sRot}, {GEND(j) - j}"), S(f"s_cselect_b32 s9, {GN(j)*4096}, 0"), S(f"s_sub_u32 s9, {sP2A}, s9"), S(f"s_add_u32 s9, s9, {j*4096}"),
                BLD(ACTB + 4 * j, 4, vL16, 20, "s9", mod=SC1)]
    return [S(f"s_add_u32 s9, {sP2A}, {j*4096}"), BLD(ACTB + 4 * j, 4, vL16, 20, "s9", mod="" if DBG.get("nosc1") else SC1)]

def phase2(a, st, cfg, vL16, lane, vPA, vP, pieces_done, act_done, rate, publish, epoch=False, parked=[]):
    E = a.emit
    PF = cfg.get("pf2", False)
    vRd = [68, 69, 70, 71, 72, 73]; vXO, vXO3, vWrt, vRr = 74, 75, 76, 77
    X0 = 78; t0, t1 = 84, 85
    EP = 86
    E(S("s_lshr_b32 s4, s3, 2")); E(S(f"s_mul_i32 s5, s4, {1024 + 3*8192}")); E(S(f"s_mul_i32 s6, s4, {1024 - 2*8192}")); E(S("s_add_u32 s6, s6, 16384"))
    E(V("v_add_u32", vRd[0], "s5", vL16)); E(V("v_add_u32", vRd[3], "s6", vL16))
    for b in (1, 2): E(V("v_add_u32", vRd[b], str(b << 16), vRd[0])); E(V("v_add_u32", vRd[3 + b], str(b << 16), vRd[3]))
    def reads(j):
        pos = ((j // 4) % 4) * 40960 + (j % 4) * 2048
        f = WF2 + 20 * (j % 2)
        o = []
        for l in range(5):
            p = pos + l * 8192 - (0 if l < 2 else 16384)
            o.append(DSR(f + 4 * l, 4, vRd[(p >> 16) + (0 if l < 2 else 3)], off=p & 0xffff))
        return o
    misc = [[V("v_lshrrev_b32", t0, "8", vL16), V("v_lshlrev_b32", t0, "3", t0), V("v_bfe_u32", t1, vL16, "4", "4"), V("v_mul_u32_u24", t1, "2560", t1), V("v_add_u32", vXO, t0, t1)],
            [S("s_cmp_lt_u32 s3, 4"), S(f"s_cselect_b32 s4, 64, {HUGE}"), V("v_add_u32", vXO3, "s4", vXO), BLD(X0, 2, vXO, 24, sP2X)],
            [BLD(X0 + 2, 2, vXO, 24, sP2X, off=32)], [Cond("s_cmp_lt_u32 s3, 4", [BLD(X0 + 4, 2, vXO3, 24, sP2X)])],
            [S("s_lshl_b32 s4, s3, 12"), S("s_add_u32 s4, s4, 81920"), V("v_add_u32", vWrt, "s4", vL16)],
            [S("s_xor_b32 s4, s3, 4"), S("s_lshl_b32 s4, s4, 12"), S("s_lshr_b32 s5, s3, 2"), S("s_lshl_b32 s5, s5, 10"), S("s_add_u32 s4, s4, s5"),
             S("s_add_u32 s4, s4, 81920"), V("v_add_u32", vRr, "s4", vL16)]]
    epl = [BLD(EP + 4 + i, 1, EP + i, 36, "0", off=4, mod=SC1) for i in range(4)]
    if epoch:
        misc.append([S("s_or_b32 s4, s2, s3"), Cond("s_cmp_eq_u32 s4, 0", [V("v_lshlrev_b32", EP, "3", vL16)] +
                    [V("v_add_u32", EP + i, str(i * 8192), EP) for i in range(1, 4)] + epl)])
    a.wait_tag(("W2", 0), lg=0); a.barrier()
    st("p2s")
    E(reads(0))
    if parked:
        assert pieces_done == parked[0][0], pieces_done
        E(V("v_add_u32", 6, sL, vL16)); E(V("v_add_u32", 7, "0x20000", 6)); E(V("v_add_u32", 6, "0x10000", 6))
        for (k, r) in parked: E(DSW(6 + (k * 8192 >> 16) - 1, r, 4, off=(k * 8192) & 0xffff))
        pieces_done += len(parked)
    q = []
    def push(need, g): q.append((need, len(q), g)); q.sort(key=lambda e: e[:2])
    def push_item(d, frm=0):
        for g in p2_w_item(d, vL16)[frm:]: push(4 * d - 1.5, g)
    for x in range(act_done, 9): push(x, p2_act(x, vL16))
    for d in range(4):
        if pieces_done < 5 * (d + 1): push_item(d, max(0, pieces_done - 5 * d))
    nitem = 4
    PUB, CB, P3, C3 = cfg.get("pub", 3), cfg.get("cb", 1), cfg.get("p3", 11), cfg.get("c3", 14)
    RATE = rate
    LEAD = cfg.get("lead", 5)
    credit = 0.0
    for g in misc: push(cfg.get("misc", 13), g)
    for j in range(37):
        f = WF2 + 20 * (j % 2)
        nxt = []
        while q and q[0][0] <= j: E(q.pop(0)[2])
        if j + 1 < 37:
            if j == PUB:
                a.wait_tag("st"); a.barrier(); E(publish); st("pub")
            if (j + 1) % 4 == 0:
                d = (j + 1) // 4
                a.wait_tag(("W2", d), lg=0); a.barrier()
                if nitem < 10: push_item(nitem); nitem += 1
            nxt = reads(j + 1)
        if j == CB:
            flg_check(a, vP, vPA, LV_B)
            if PF: E(pf_act(1, t0, 6, lane))
            for x in range(9, 18): push(x, p2_act(x, vL16))
        if j == P3: E(flg_poll(vP, vPA, LV_C))
        if j == C3:
            flg_check(a, vP, vPA, LV_C, sleep=1)
            st("c3")
            if PF: E(pf_act(2, t0, 6, lane)); E(pf_act(3, t0, 7, lane))
            for x in range(18, 18 + cfg.get("burst", 5)): E(p2_act(x, vL16))
            for x in range(18 + cfg.get("burst", 5), 37): push(x, p2_act(x, vL16))
            RATE = cfg.get("rate2", 1.5)
        st(f"g{j}")
        credit = min(credit + RATE, 4)
        for l in range(5):
            if cfg.get("nomfma") and l: pass
            else: E(MFMA16(ACC2 + 4 * l, f + 4 * l, ACTB + 4 * j, c="0" if j == 0 else None))
            if nxt:
                x_ = nxt.pop(0)
                if not (cfg.get("nords") and l): E(x_)
            if q and (credit >= 1 or q[0][0] <= j + LEAD):
                g = q.pop(0)[2]; E(g)
                if any(x.kind in ("vld", "dma") for x in g): credit -= 1
    fill = q
    assert not fill
    st("p2e")
    for i in range(3):
        x0 = X0 + 2 * i; o = 8 + 4 * i
        E(V("v_lshlrev_b32", o, "16", x0)); E(V("v_and_b32", o + 1, "0xffff0000", x0))
        E(V("v_lshlrev_b32", o + 2, "16", x0 + 1)); E(V("v_and_b32", o + 3, "0xffff0000", x0 + 1))
    for l in range(2, 5): E(DSW(vWrt, ACC2 + 4 * l, 4, off=(l - 2) * 1024))
    for i in range(3):
        for r in range(4): E(V("v_add_f32", 8 + 4 * i + r, 8 + 4 * i + r, ACC2 + 4 * i + r))
    a.wait(lg=0); a.barrier()
    st("red")
    RD = 96
    for i in range(3): E(DSR(RD + 4 * i, 4, vRr, off=i * 1024))
    for i in range(3):
        o = 8 + 4 * i
        for r in range(4): E(V("v_add_f32", o + r, o + r, RD + 4 * i + r))
        E(V("v_cvt_pk_bf16_f32", X0 + 2 * i, o, o + 1)); E(V("v_cvt_pk_bf16_f32", X0 + 2 * i + 1, o + 2, o + 3))
        E(BST(X0 + 2 * i, 2, vXO if i < 2 else vXO3, S_OUT, sP2X, off=32 * i if i < 2 else 0, mod=cfg.get("om", "")))
    st("out")
    if epoch:
        uid[0] += 1; Lb = f"L_ep{uid[0]}"
        E(S("s_or_b32 s4, s2, s3")); a.raw(f"s_cbranch_scc1 {Lb}")
        check(a, epl, tag_cmp([EP + 4, EP + 5, EP + 6, EP + 7], 24))
        E(V("v_mov_b32", 25, sTag)); E(V("v_lshlrev_b32", 24, "20", vL16)); E(S(f"s_mov_b32 s4, {EPO_OFF}"))
        E(BST(25, 1, 24, 20, "s4", mod=SC1))
        a.label(Lb)

def common_wait(a, stamps):
    E = a.emit
    a.raw("s_waitcnt lgkmcnt(0)")
    if stamps: a.raw("s_mov_b32 s77, s76")
    E(S(f"s_add_u32 s36, s20, {TOK_OFF}")); E(S("s_addc_u32 s37, s21, 0"))

def cost(o):
    if isinstance(o, list): return 1 + len(o) // 5 if o else 4
    return {"trans": 2, "perml": 2, "salu": 0.5}.get(o.kind, 1)

def gen_ffn(a, name, stamps, cfg):
    E = a.emit; st = Stamp(a, stamps, cfg.get("sel"))
    PFX = cfg.get("pf", False)
    sK, sKx = 40, 50
    XF, A0, A1, A2, WB = 96, 48, 64, 80, 28
    vL16, lane = 0, 1
    vWr = [2, 3, 4]; vDW, vSt, vCol = 5, 6, 7
    TOK = 8; AP = [12, 14]; T = 16
    vPA, vP, vF, vTt = 24, 25, 26, 27
    vDX, vDX2, vXr, vTokA = A2, A2 + 1, A2 + 2, A2 + 6
    TB = 208; XO = 9 * 16384 + 8192
    t0, t1, t2, t3 = T, T + 1, T + 2, T + 3
    sSt, sCb, sRb, sTok = "s13", "s14", "s15", "s19"
    RB = cfg.get("rblk", 1)
    o = L()
    o.s("s_mul_i32 s13, s11, 18", "s_add_u32 s13, s13, s12", f"s_lshr_b32 {sCb}, s13, 3", f"s_and_b32 {sRb}, s13, 7",
        f"s_mul_i32 s4, {sCb}, {cfg.get('rmul', 3)}", f"s_add_u32 s4, s4, {sRb}")
    o += mod_ops("s4", "s19", RB)
    o.s("s_lshl_b32 s5, s10, 3", f"s_add_u32 {sRb}, {sRb}, s5")
    o += rot_table("s19", sK, 64 * 3456, sKx, 0, 2, RB)
    o.s("s_and_b32 s4, s3, 3", "s_lshr_b32 s5, s3, 2", "s_lshl_b32 s6, s4, 3")
    o.v("v_lshrrev_b32", t0, "3", lane).v("v_and_b32", t1, "7", lane).v("v_add_u32", t2, "s6", t0)
    o.v("v_bfe_u32", t3, t2, "1", "3").v("v_xor_b32", t3, t1, t3)
    o.v("v_and_b32", vDX, "15", t2).v("v_lshrrev_b32", t2, "4", t2).v("v_lshl_add_u32", vDX, vDX, "1", t2)
    o.s(f"s_lshl_b32 s6, {sRb}, 7", "s_lshl_b32 s9, s5, 5", "s_add_u32 s6, s6, s9")
    o.v("v_add_u32", vDX, "s6", vDX).v("v_mul_u32_u24", vDX, "1280", vDX).v("v_lshl_add_u32", vDX, t3, "4", vDX).v("v_add_u32", vDX2, str(64 * 1280), vDX)
    o.v("v_lshrrev_b32", t2, "2", lane).v("v_and_b32", t2, "4", t2).v("v_xor_b32", t2, t1, t2)
    o.v("v_mul_u32_u24", vDW, "3456", t0).v("v_lshl_add_u32", vDW, t2, "4", vDW)
    o.s(f"s_mul_i32 s6, s3, {8*3456}", f"s_mul_i32 s9, {sCb}, 384", "s_add_u32 s6, s6, s9")
    o.v("v_add_u32", vDW, "s6", vDW)
    E(o); E(st_pre(TB, lane))
    items = {}
    free = list(range(10))
    qX = [("X", s) for s in range(10)]
    qW = [("W", s) for s in range(30)]
    dma_chunk = [0]
    def dma_ops(it, slot):
        kind, s = it
        base = slot * 16384
        m0 = lambda x: S(f"s_add_u32 m0, {sL}, {base+x}")
        if kind == "X":
            return [[m0(0), DMA(vDX, 24, f"s{sKx+s}", tag=it)], [m0(8192), DMA(vDX2, 24, f"s{sKx+s}", tag=it)]]
        if s < 10:
            return [[m0(0), DMA(vDW, 28, f"s{sK+s}", tag=it, mod=DBG.get("wm", ""))], [m0(8192), DMA(vDW, 32, f"s{sK+s}", tag=it, mod=DBG.get("wm", ""))]]
        p = (s - 10) // 5 + 1; j = (s - 10) % 5
        chunk = (p + 1) // 2; srdw = 28 if p % 2 == 1 else 32
        pre = []
        if chunk != dma_chunk[0]:
            dma_chunk[0] = chunk; pre = [V("v_add_u32", vDW, "128", vDW)]
        return [pre + [m0(0), DMA(vDW, srdw, f"s{sK+2*j}", tag=it, mod=DBG.get("wm", ""))], [m0(8192), DMA(vDW, srdw, f"s{sK+2*j+1}", tag=it, mod=DBG.get("wm", ""))]]
    def slot_of(it):
        kind, s = it
        return (s + 2) % 4 if kind == "X" else ([4, 5, 6, 7, 8, 4, 5, 6, 7, 4][s] if s < 10 else s % 10)
    def refill(maxstage=99):
        out = []
        while True:
            cands = []
            for q in (qX, qW):
                if q and q[0][1] <= maxstage and slot_of(q[0]) in free and not (q is qW and q[0][1] >= 10 and slot_of(q[0]) < 4 and any(slot_of(x) == slot_of(q[0]) for x in qX)):
                    cands.append((q[0][1], q is qW, q))
            if not cands: break
            cands.sort(key=lambda c: c[:2]); q = cands[0][2]
            it = q.pop(0); sl = slot_of(it); free.remove(sl); items[it] = sl; out += dma_ops(it, sl)
        if not qW and p2["go"]:
            while p2["pieces"] < 20 and p2["pieces"] // 2 in free:
                k = p2["pieces"]; out.append(p2_w_item(k // 5, vL16)[k % 5]); p2["pieces"] += 1
        return out
    p2 = {"pieces": 0, "act": 0, "go": False}
    o = L()
    o.s("s_bitcmp1_b32 s13, 0", "s_cselect_b32 s8, 57, 30", f"s_mov_b32 s{S_AUX+2}, {640*3456}", f"s_mov_b32 s{S_AUX+3}, 0x20000",
        f"s_mul_i32 s9, {sCb}, 3", "s_bfe_u32 s4, s13, 0x20001", "s_add_u32 s9, s9, s4", "s_add_u32 s8, s8, s9", "s_lshl_b32 s9, s9, 7", "s_cmp_lt_u32 s4, 3")
    o += col_pre(TB, lane, 3456)
    o.s("s_and_b32 s17, s13, 6")
    common_wait(a, stamps)
    E(st_issue(TB))
    o.s("s_bitcmp1_b32 s13, 0", f"s_cselect_b32 s{S_AUX}, s32, s28", f"s_cselect_b32 s{S_AUX+1}, s33, s29")
    ci = [[Cond("s_cmp_lt_u32 s17, 6", g)] for g in col_issue(TB, S_AUX, 3456)]
    dq = refill(0)
    paced(E, o, dq, cfg.get("pace0", 8))
    st("i0")
    dq += ci + refill(1)
    o0 = L()
    o0.s("s_mul_i32 s12, s10, 72", "s_add_u32 s12, s12, s13", "s_cmp_ge_u32 s12, 90",
        f"s_cselect_b32 s0, s{P_WO}, s{P_W2}", f"s_cselect_b32 s1, s{P_WO+1}, s{P_W2+1}")
    o0 += rot_table("s19", sK, 64 * 3456, sKx, 2, 10, RB)
    rp_pre = L()
    rp_pre.s("s_mul_i32 s10, s12, 57", "s_lshr_b32 s10, s10, 9", "s_mul_i32 s4, s10, 9", "s_sub_u32 s11, s12, s4",
        "s_sub_u32 s4, s12, 90", "s_lshr_b32 s5, s4, 2", "s_and_b32 s4, s4, 3", "s_cmp_ge_u32 s12, 90",
        "s_cselect_b32 s10, s5, s10", "s_cselect_b32 s11, s4, s11", "s_cselect_b32 s4, 5, 6", "s_cselect_b32 s5, 5, 2", "s_cselect_b32 s6, 54, 0",
        "s_cselect_b32 s7, 2, 18", "s_cselect_b32 s8, 9, 0",
        "s_add_u32 s8, s8, s11", "s_lshl_b32 s8, s8, 2",
        "s_mul_i32 s4, s4, s11", "s_lshr_b32 s9, s3, 2", "s_add_u32 s4, s4, s9",
        "s_mul_i32 s5, s5, s11", "s_add_u32 s5, s5, s6", "s_add_u32 s5, s5, s9",
        "s_lshl_b32 s4, s4, 2", "s_and_b32 s6, s3, 3", "s_add_u32 s4, s4, s6", f"s_mul_i32 s4, s4, {8*1280}", "s_lshl_b32 s9, s10, 7", "s_add_u32 s63, s4, s9",
        "s_add_u32 s8, s8, s9",
        "s_lshl_b32 s4, s10, 2", "s_add_u32 s4, s4, s6", "s_mul_i32 s6, s4, 52", "s_lshr_b32 s6, s6, 8", "s_mul_i32 s6, s6, 365", "s_add_u32 s6, s6, s4",
        "s_mul_i32 s5, s5, 5", "s_add_u32 s6, s6, s5", "s_lshl_b32 s6, s6, 10", f"s_add_u32 s76, s6, {W2F_OFF}",
        f"s_add_u32 s10, s8, {FLG_OFF + 32*128}",
        "s_cmp_lt_u32 s12, 130", f"s_cselect_b32 s76, s76, {0x70000000}", f"s_cselect_b32 s63, s63, {0x70000000}", f"s_cselect_b32 s10, s10, {0x30000000}",
        )
    rp_pre.v("v_lshrrev_b32", T + 4, "3", lane).v("v_mul_u32_u24", T + 4, "1280", T + 4).v("v_and_b32", T + 5, "7", lane).v("v_lshl_add_u32", T + 4, T + 5, "4", T + 4)
    rp_pre.v("v_lshrrev_b32", vP, "4", lane).v("v_lshlrev_b32", vP, "10", vP).v("v_bfe_u32", vTt, lane, "2", "2").v("v_lshl_add_u32", vP, vTt, "7", vP)
    rp_pre.v("v_and_b32", vTt, "3", lane).v("v_lshl_add_u32", vP, vTt, "3", vP)
    rp_pre.s("s_lshr_b32 s4, s3, 2", "s_lshl_b32 s4, s4, 12", "s_and_b32 s5, s3, 3", "s_lshl_b32 s5, s5, 5", "s_add_u32 s4, s4, s5", f"s_add_u32 s4, s4, {8*16384}").v("v_add_u32", vP, "s4", vP)
    o = L()
    o.s("s_and_b32 s4, s3, 3", "s_lshr_b32 s5, s3, 2")
    o.v("v_lshrrev_b32", t0, "5", lane).v("v_lshlrev_b32", t0, "10", t0).v("v_bfe_u32", t1, lane, "2", "2").v("v_lshl_add_u32", t0, t1, "7", t0)
    o.v("v_lshrrev_b32", t1, "1", t1).v("v_xor_b32", t1, "s5", t1).v("v_lshl_add_u32", t0, t1, "6", t0)
    o.v("v_bfe_u32", t1, lane, "4", "1").v("v_lshl_add_u32", t0, t1, "5", t0).v("v_and_b32", t1, "1", lane).v("v_lshl_add_u32", t0, t1, "4", t0)
    o.v("v_bfe_u32", t1, lane, "1", "1").v("v_lshl_add_u32", vWr[0], t1, "3", t0)
    o.v("v_add_u32", vWr[1], "0x10000", vWr[0]).v("v_add_u32", vWr[2], "0x20000", vWr[0])
    o.v("v_and_b32", t0, "31", lane).v("v_lshrrev_b32", t1, "5", lane).v("v_bfe_u32", t2, lane, "1", "3").v("v_xor_b32", t2, t1, t2)
    o.s("s_lshl_b32 s6, s4, 12")
    o.v("v_lshlrev_b32", t3, "7", t0).v("v_add_u32", t3, "s6", t3)
    for s4 in range(4): o.v("v_xor_b32", vXr + s4, str(2 * s4), t2).v("v_lshl_add_u32", vXr + s4, vXr + s4, "4", t3)
    o += rp_pre
    o += p2_setup(vPA, lane, "s4", "s11")
    paced(E, o0 + o, dq, cfg.get("pace", 40))
    st("i1")
    while any(x.kind == "vld" for g in dq for x in g): E(dq.pop(0))
    o = L()
    o += stats_ops(TB, XO)
    dq += refill(cfg.get("pre", 1))
    paced(E, o, dq, cfg.get("pace2", 16))
    E(Block("s_cmp_lt_u32 s17, 6", col_acc_ops(TB, lane, XO)))
    E(L().s(*PERMSEL))
    st("i3")
    D = L()
    D.append(list(L().s("s_and_b32 s4, s3, 3", "s_lshr_b32 s5, s3, 2", f"s_lshl_b32 s6, {sRb}, 2", "s_add_u32 s6, s6, s4", f"s_lshl_b32 {sTok}, s6, 9",
        "s_mul_i32 s6, s6, 74", f"s_lshl_b32 s7, {sCb}, 1", "s_add_u32 s6, s6, s7", "s_add_u32 s6, s6, s5", f"s_lshl_b32 {sSt}, s6, 11")))
    D.v("v_lshrrev_b32", t1, "5", lane).v("v_and_b32", t2, "15", lane).v("v_bfe_u32", t3, lane, "4", "1").v("v_lshl_add_u32", vTokA, t2, "1", t3).v("v_lshlrev_b32", vTokA, "4", vTokA)
    D.v("v_lshlrev_b32", vSt, "10", t3).v("v_lshl_add_u32", vSt, t1, "8", vSt).v("v_lshl_add_u32", vSt, t2, "4", vSt)
    D.v("v_and_b32", vCol, "19", lane).v("v_bfe_u32", t2, lane, "2", "1").v("v_lshl_add_u32", vCol, t2, "3", vCol)
    D.v("v_bfe_u32", t2, lane, "3", "1").v("v_lshl_add_u32", vCol, t2, "2", vCol)
    D.append(list(L().s(f"s_mul_i32 s6, {sCb}, 384", "s_lshr_b32 s5, s3, 2", "s_lshl_b32 s7, s5, 5", "s_add_u32 s6, s6, s7").v("v_add_u32", vCol, "s6", vCol)))
    D.v("v_lshlrev_b32", vCol, "3", vCol).v("v_lshl_add_u32", vCol, t1, "9", vCol)
    D.append(list(L().s(f"s_lshl_b32 {sOwn}, {sRb}, 7", f"s_lshl_b32 s6, {sCb}, 2", f"s_add_u32 {sOwn}, {sOwn}, s6", f"s_add_u32 {sOwn}, {sOwn}, {FLG_OFF}")))
    D.s(f"s_mov_b32 s14, {COL_OFF + 30*1024}", f"s_mov_b32 s15, {COL_OFF + 57*1024}")
    D.v("v_lshlrev_b32", vL16, "4", lane).v("v_or_b32", vF, sL, lane).v("v_min_u32", vF, "1", vF).v("v_lshlrev_b32", vF, "30", vF)
    def colload(dst, mat, chunk):
        return BLD(dst, 2, vCol, 20, "s14" if mat == 0 else "s15", off=chunk * 1024, tag="col", mod=SC1)
    def colchk(dst, mat, chunk):
        E(col_fix(dst))
    M = []
    for t in range(40):
        M.append((A0, t, t // 4, 0, t % 4)); M.append((A1, t, t // 4, 1, t % 4))
    for p, acc in ((1, A2), (2, A0), (3, A1), (4, A0)):
        for t in range(40):
            M.append((acc, t, 10 + 5 * (p - 1) + t // 8, (t // 4) % 2, t % 4))
    PF = 4; NB = 5
    def reads(n):
        acc, t, s, half, sub = M[n]
        pos = items[("W", s)] * 16384 + half * 8192 + sub * 2048
        b = WB + 4 * (n % NB)
        return [DSR(b, 2, vWr[pos >> 16], off=pos & 0xffff, tr=True), DSR(b + 2, 2, vWr[pos >> 16], off=(pos & 0xffff) + 512, tr=True)]
    fill = []
    def silu(G):
        ops = []
        if cfg.get("nosilu"): return ops
        for i in range(0, 16, 4):
            ops += [V("v_mul_f32", T + e, G + i + e, TOK + 2) for e in range(4)]
            ops += [V("v_exp_f32", T + e, T + e) for e in range(4)]
            ops += [V("v_fma_f32", T + e, T + e, TOK + 3, TOK + 3) for e in range(4)]
            ops += [V("v_rcp_f32", T + e, T + e) for e in range(4)]
            ops += [V("v_mul_f32", G + i + e, G + i + e, T + e) for e in range(4)]
        return ops
    def fin(G, U, chunk):
        ops = []
        for ip in range(2):
            ops += [V("v_mul_f32", G + 8 * ip + e, G + 8 * ip + e, U + 8 * ip + e) for e in range(8)]
            ops += [V("v_cvt_pk_bf16_f32", T + 4 + e, G + 8 * ip + 2 * e, G + 8 * ip + 2 * e + 1) for e in range(4)]
            mk = lambda: BST(T + 4, 4, vSt, 20, sSt, off=512 * ip, tag="st", mod=SC1)
            if cfg.get("stag") and chunk < 2: ops += [[Cond("s_cmp_lt_u32 s3, 4", [mk()])], [], [Cond("s_cmp_ge_u32 s3, 4", [mk()])]]
            else: ops.append(mk())
        if chunk < 2: ops.append(S(f"s_add_u32 {sSt}, {sSt}, {18*2048}"))
        return ops
    at_sync = {}
    def sync(s):
        its = [("W", s)] + ([("X", s)] if s < 10 else [])
        ex = at_sync.get(s, {})
        tags = its + ex.get("tags", [])
        while any(getattr(x, "tag", None) in tags for g in dq for x in g): E(dq.pop(0))
        for it in its: assert it in items
        for o_ in fill:
            for x_ in (o_ if isinstance(o_, list) else [o_]): assert getattr(x_, "tag", None) not in tags, (s, x_.text)
        tags.sort(key=lambda it: max([i for i, e in enumerate(a.vm) if e[1] == it] + [-1]))
        lg = None
        if 1 <= s <= 10:
            xr = set(rng(XF + 16 * (s - 1), 16))
            idx = [i for i, e in enumerate(a.lg) if e & xr]
            if idx: lg = len(a.lg) - 1 - max(idx)
        if s == 0: lg = 0
        if "lgw" in ex:
            idx = [i for i, e in enumerate(a.lg) if not e]
            if idx: lg = min(99 if lg is None else lg, len(a.lg) - 1 - max(idx))
        a.wait_tag(tags[-1], lg=lg)
        if not (cfg.get("nobar") and s > 11 and s % 2): a.barrier()
        st(f"s{s}")
        if 1 <= s <= 10: free.append(items[("X", s - 1)])
        if s >= 2: free.append(items[("W", s - 2)])
        free.extend(ex.get("free", []))
        if "post" in ex: ex["post"]()
        dq.extend(refill())
        if s < 10:
            for s4 in range(4):
                E(DSR(XF + 4 * (4 * s + s4), 4, vXr + s4, off=items[("X", s)] * 16384))
    def chk_empty(): assert not fill, len(fill)
    fill += tok_fin_ops(TB, XO)
    fill += [[Block(f"s_cmp_lt_u32 {sColSt}, {HUGE}", col_fin_ops(TB + 16, TB + 6, lane, XO))]] + D
    RS = [8, 9]
    def rp_issue():
        for x in RS: free.remove(x)
        dq.append(list(L().s(f"s_mov_b32 s{S_AUX}, s0", f"s_mov_b32 s{S_AUX+1}, s1", f"s_mov_b32 s{S_AUX+2}, {1728*1280}", f"s_mov_b32 s7, {18*5120}", "s_cmp_ge_u32 s12, 90",
              f"s_cselect_b32 s{S_AUX+2}, {640*1280}, s{S_AUX+2}", f"s_cselect_b32 s7, {2*5120}, s7", "s_add_u32 s0, s76, s7", "s_add_u32 s1, s0, s7")))
        dq.append(list(L().s("s_lshr_b32 s4, s3, 2", "s_mul_i32 s4, s4, s12", "s_cmp_ge_u32 s4, 90", f"s_cselect_b32 s1, {0x70000000}, s1")))
        for z in range(3):
            dq.append([S(f"s_add_u32 m0, {sL}, {RS[0]*16384 + z*8192}"), DMA(T + 4, S_AUX, "s63", tag="rp", mod=DBG.get("rm", " nt")), S(f"s_add_u32 s63, s63, {64*1280}")])
    def rp_rd(z): return [DSR(T + 4, 2, vP, off=z * 8192, tr=True), DSR(T + 6, 2, vP, off=z * 8192 + 512, tr=True)]
    def rp_st(z): return BST(T + 4, 4, vL16, 20, ["s76", "s0", "s1"][z], tag="rps", mod=SC1)
    at_sync[8] = dict(post=rp_issue)
    at_sync[11] = dict(tags=["rp"])
    at_sync[13] = dict(free=RS)
    at_sync[cfg.get("fw", 15)] = dict(tags=["rps"], post=lambda: E(flag_st(vTt, vF, LV_W2, "s10")))
    at_sync[17] = dict(tags=["st"], post=lambda: E(flag_st(vTt, vF, LV_A)))
    at_sync[cfg.get("fb", 24)] = dict(tags=["st"], post=lambda: E(flag_st(vTt, vF, LV_B)))
    sync(0)
    for n in range(PF): E(reads(n))
    def w2chk():
        flg_check(a, vP, vPA, LV_W2); p2["go"] = True
    def achk():
        flg_check(a, vP, vPA, LV_A)
    P1 = cfg.get("p1", 46); WC = cfg.get("wc", 168); AC = cfg.get("ac", 198)
    tokld = BLD(TOK, 4, vTokA, 36, sTok, tag="tok", mod=SC1)
    first = [tokld, colload(AP[0], 0, 0), colload(AP[1], 1, 0)] + \
            [BLD(T + i, 1, vCol, 20, "s14" if i % 2 == 0 else "s15", off=(1 + i // 2) * 1024 + 4, mod=SC1) for i in range(4)]
    after = {}
    def at(n, f): after.setdefault(n, []).append(f)
    for i, x in enumerate(first): at(P1 + 3 * i, lambda x=x: E(x))
    at(79, lambda: (check(a, first, tag_cmp([TOK + 1, AP[0] + 1, AP[1] + 1, T, T + 1, T + 2, T + 3], vTt)), E(col_fix(AP[0])), E(col_fix(AP[1])),
                    E(V("v_mov_b32", TOK + 1, TOK)), E(V("v_mul_f32", TOK + 2, NLOG2E, TOK + 2))))
    at(82, lambda: (E(MFMA32C(A0, AP[0], TOK)), E(MFMA32C(A1, AP[1], TOK)),
                    fill.extend([colload(AP[0], 0, 1), colload(AP[1], 1, 1), []] + silu(A0) + fin(A0, A1, 0))))
    for z in range(3):
        if cfg.get("stag"):
            at(85 + 5 * z, lambda z=z: E(rp_rd(z))); at(87 + 5 * z, lambda z=z: E(Cond("s_cmp_lt_u32 s3, 4", [rp_st(z)]))); at(89 + 5 * z, lambda z=z: E(Cond("s_cmp_ge_u32 s3, 4", [rp_st(z)])))
        else:
            at(86 + 4 * z, lambda z=z: E(rp_rd(z))); at(89 + 4 * z, lambda z=z: E(rp_st(z)))
    at(119, lambda: colchk(AP[0], 0, 1))
    at(122, lambda: (E(MFMA32C(A2, AP[0], TOK)), fill.extend([colload(AP[0], 0, 2), [], []] + silu(A2))))
    at(159, lambda: colchk(AP[1], 1, 1))
    at(162, lambda: (E(MFMA32C(A0, AP[1], TOK)), fill.extend([colload(AP[1], 1, 2), [], []] + fin(A2, A0, 1))))
    at(WC - cfg.get("pl", 14), lambda: E(flg_poll(vP, vPA, LV_W2))); at(WC, w2chk)
    if PFX:
        for p in range(1, 4): at(WC + 1 + cfg.get("pfs", 6) * (p - 1), lambda p=p: E(pf_w2(p, vTt, T + p, lane)))
    at(199, lambda: colchk(AP[0], 0, 2))
    at(202, lambda: (E(MFMA32C(A1, AP[0], TOK)), fill.extend([[], []] + silu(A1))))
    at(AC - cfg.get("pl", 14), lambda: E(flg_poll(vP, vPA, LV_A))); at(AC, achk)
    at(220, lambda: colchk(AP[1], 1, 2))
    PARK = cfg.get("park", 0)
    if PARK:
        for i in range(4):
            at(PARK + 6 * i, lambda i=i: (chk_empty(), E([S(f"s_add_u32 s9, {sP2W}, {3*8*5120 + (i+1)*1024}"), BLD(A2 + 4 * i, 4, vL16, 20, "s9", mod=SC1)])))
    at(236, lambda: E(flg_poll(3, vPA, LV_B)))
    for n in range(240):
        acc, t, s, half, sub = M[n]
        if n in (P1, 80, 120, 200): chk_empty()
        E(MFMA32(acc, WB + 4 * (n % NB), XF + 4 * t, c="0" if t == 0 else None))
        m = n + PF
        if m < 240:
            if m % 8 == 0: sync(m // 8)
            E(reads(m))
        for f in after.get(n, []): f()
        b = cfg.get("b1", 4.5) if (80 <= n < 120) else cfg.get("b2", 3.5) if 120 <= n < 200 else cfg.get("b", 3.5)
        ph = m % 8
        okd = ph in cfg.get("ph0", [1, 2, 3, 4, 5, 6]) if n < 80 else ph in (cfg.get("ph2", [2, 4, 6]) if len(dq) > 2 else cfg.get("ph1", [3, 5]))
        if dq and (okd or not any(x.kind == "dma" for x in dq[0])):
            g_ = dq.pop(0)
            if cfg.get("nodma") and n >= 80: g_ = [x for x in g_ if x.kind != "dma"]
            E(g_); b -= 1
        elif n >= cfg.get("ago", 202) and ph in (1, 7) and p2["act"] < 9:
            assert p2["act"] <= t
            E(p2_act(p2["act"], vL16)); p2["act"] += 1; b -= 1
        while fill and b > 0:
            o_ = fill.pop(0); E(o_); b -= cost(o_)
    assert not fill and not dq
    st("p1e")
    E(MFMA32C(A0, AP[1], TOK))
    E(V("v_mov_b32", 2, vPA)); E(V("v_mov_b32", 4, vF))
    E(fin(A1, A0, 2))
    phase2(a, st, cfg, vL16, lane, 2, 3, p2["pieces"], p2["act"], cfg.get("rate", 3), flag_st(5, 4, LV_C), epoch=True,
           parked=[(16 + i, A2 + 4 * i) for i in range(4)] if PARK else [])
    st.finish(1, name, cfg.get("stw", 0))
    a.raw("s_endpgm")

def gen_qkv(a, name, stamps, cfg):
    E = a.emit; st = Stamp(a, stamps, cfg.get("sel"))
    PFX = cfg.get("pf", False)
    sK, sKx = 40, 50
    vL16, lane = 0, 1
    ACC = 176; FR = [128, 152]; TB = 80
    vPA, vP, vF = 2, 3, 4
    vDW, vDX = 5, 6
    vWr, vXr = 9, 12
    TOK = 24; AP = 44; vQW = 46; T = 50
    vTt, vColA, vTokA = 57, 58, 87
    BC, BP, MC, MP, ONE, MG0 = 60, 64, 68, 70, 72, 76
    vQ, vQ2, vV, vV2, vOW, vOW2, vOR = 77, 78, 79, 80, 81, 82, 83
    n_, g_ = 85, 86
    vOG = 92
    t0, t1, t2, t3, t4 = T, T + 1, T + 2, T + 3, T + 4
    sHg, sB, sT0 = "s13", "s14", "s15"
    SLOT = 53248; WOFF = 20480; DUMMY = 3 * SLOT; XOFF = DUMMY + 1024
    sM3 = ["s68", "s69", "s70"]
    RB = cfg.get("rblkq", 5)
    E(st_pre(TB, lane, TOK))
    o = L()
    o.s("s_sub_u32 s12, s12, 18", f"s_mov_b32 s30, {640*3840}",
        "s_cmp_ge_u32 s12, 7", f"s_cselect_b32 {sHg}, 1, 0", f"s_cselect_b32 {sB}, 7, 0", f"s_sub_u32 {sB}, s12, {sB}",
        f"s_mul_i32 s4, {sHg}, {cfg.get('rmulq', 2)}", f"s_add_u32 s4, s4, {sB}")
    o += mod_ops("s4", "s19", RB)
    o.s("s_lshl_b32 s4, s11, 1", f"s_add_u32 {sHg}, {sHg}, s4", "s_mul_i32 s4, s10, 7", f"s_add_u32 {sB}, {sB}, s4")
    o += rot_table("s19", sK, 64 * 3840, sKx, 0, 1, RB)
    o.s("s_and_b32 s4, s3, 3", "s_lshr_b32 s5, s3, 2", "s_lshl_b32 s6, s4, 3")
    o.v("v_lshrrev_b32", t0, "3", lane).v("v_and_b32", t1, "7", lane).v("v_add_u32", t2, "s6", t0)
    o.v("v_bfe_u32", t3, t2, "1", "3").v("v_xor_b32", t3, t1, t3)
    o.v("v_and_b32", vDX, "15", t2).v("v_lshrrev_b32", t2, "4", t2).v("v_lshl_add_u32", vDX, vDX, "1", t2)
    o.s(f"s_mul_i32 {sT0}, {sB}, 146", "s_lshl_b32 s9, s5, 5", f"s_add_u32 s6, {sT0}, s9")
    o.v("v_add_u32", vDX, "s6", vDX).v("v_mul_u32_u24", vDX, "1280", vDX).v("v_lshl_add_u32", vDX, t3, "4", vDX).v("v_add_u32", vDX + 1, str(64 * 1280), vDX)
    o.v("v_add_u32", vDX + 2, str(128 * 1280), vDX)
    E(o)
    def dma_stage(s):
        z = s % 3; base = z * SLOT
        ops = [[S(f"s_add_u32 m0, {sL}, {base}"), DMA(vDX, 24, f"s{sKx+s}", tag=s)],
               [S(f"s_add_u32 m0, {sL}, {base+8192}"), DMA(vDX + 1, 24, f"s{sKx+s}", tag=s)],
               [Cond("s_cmp_lt_u32 s3, 4", [S(f"s_add_u32 m0, {sL}, {base+16384}"), DMA(vDX + 2, 24, f"s{sKx+s}", tag=s)])]]
        for e in range(4):
            g = [S(f"s_add_u32 m0, {sL}, {base+WOFF+e*8192}")]
            if e == 0: g.append(DMA(vDW, 28, f"s{sK+s}", tag=s, mod=DBG.get("wm", "")))
            else: g += [S(f"s_add_u32 s63, s{sK+s}, {e*16*3840}"), DMA(vDW, 28, "s63", tag=s, mod=DBG.get("wm", ""))]
            ops.append(g)
        return ops
    o = L()
    o.s("s_lshl_b32 s6, s3, 1")
    o.v("v_lshrrev_b32", t0, "5", lane).v("v_add_u32", t0, "s6", t0)
    o.v("v_and_b32", t1, "3", t0).v("v_lshlrev_b32", t1, "2", t1).v("v_and_b32", t2, "31", lane).v("v_xor_b32", t1, t1, t2)
    o.v("v_mul_u32_u24", t2, "26", t1).v("v_lshrrev_b32", t2, "8", t2)
    o.v("v_mul_u32_u24", t3, str(1280 - 160), t2).v("v_lshl_add_u32", t3, t1, "4", t3)
    o.v("v_add_u32", t1, "2", t1).v("v_lshrrev_b32", t1, "5", t1).v("v_lshl_add_u32", t3, t1, "30", t3)
    o.v("v_mul_u32_u24", vDW, "3840", t0).v("v_add_u32", vDW, vDW, t3)
    o.s(f"s_mul_i32 s6, {sHg}, 160").v("v_add_u32", vDW, "s6", vDW)
    E(o)
    common_wait(a, stamps)
    E(S(f"s_mov_b32 s28, s{P_QKV}")); E(S(f"s_mov_b32 s29, s{P_QKV+1}"))
    E(st_issue(TB, TOK))
    dq = dma_stage(0)
    paced(E, rot_table("s19", sK, 64 * 3840, sKx, 1, 10, RB), dq, cfg.get("paceq0", 12))
    st("i0")
    o = L()
    o.v("v_lshrrev_b32", t0, "5", lane).v("v_lshlrev_b32", t0, "12", t0).v("v_bfe_u32", t1, lane, "2", "2").v("v_lshl_add_u32", t0, t1, "9", t0)
    o.v("v_xor_b32", t1, "s3", t1).v("v_lshl_add_u32", t0, t1, "6", t0)
    o.v("v_bfe_u32", t1, lane, "4", "1").v("v_lshl_add_u32", t0, t1, "5", t0).v("v_and_b32", t1, "3", lane).v("v_lshl_add_u32", t0, t1, "3", t0)
    for z in range(3): o.v("v_add_u32", vWr + z, str(z * SLOT + WOFF), t0)
    o.v("v_and_b32", t0, "31", lane).v("v_lshrrev_b32", t1, "5", lane).v("v_bfe_u32", t2, lane, "1", "3").v("v_xor_b32", t2, t1, t2).v("v_lshlrev_b32", t3, "7", t0)
    for s4 in range(4):
        o.v("v_xor_b32", t4, str(2 * s4), t2).v("v_lshl_add_u32", vXr + s4, t4, "4", t3)
        for z in (1, 2): o.v("v_add_u32", vXr + 4 * z + s4, str(z * SLOT), vXr + s4)
    o.s("s_mul_i32 s4, s11, 15", "s_add_u32 s4, s4, 1", "s_lshr_b32 s4, s4, 1", "s_add_u32 s4, s4, s12",
        "s_mul_i32 s6, s4, 86", "s_lshr_b32 s6, s6, 8", "s_mul_i32 s7, s6, 3", "s_sub_u32 s4, s4, s7", "s_mul_i32 s8, s4, 10", "s_add_u32 s8, s8, s6",
        "s_lshl_b32 s9, s8, 7", "s_and_b32 s4, s11, 1", "s_add_u32 s4, s4, s12", "s_cmp_lt_u32 s4, 8")
    o += col_pre(TB, lane, 3840)
    o_pre = o
    QB = 81920
    D = L()
    D += p2_setup(vPA, lane)
    D.s(f"s_lshl_b32 {sOwn}, {sB}, 5", f"s_add_u32 {sOwn}, {sOwn}, {sHg}", f"s_lshl_b32 {sOwn}, {sOwn}, 2", f"s_add_u32 {sOwn}, {sOwn}, {FLG_OFF + 16*128}",
        f"s_mov_b32 s12, {COL_OFF}")
    D.v("v_lshlrev_b32", vL16, "4", lane).v("v_or_b32", vF, sL, lane).v("v_min_u32", vF, "1", vF).v("v_lshlrev_b32", vF, "30", vF)
    D.v("v_and_b32", t0, "31", lane).v("v_lshrrev_b32", t1, "5", lane)
    D.v("v_and_b32", t2, "15", lane).v("v_bfe_u32", t3, lane, "4", "1").v("v_lshl_add_u32", t4, t2, "1", t3).v("v_add_u32", t4, sT0, t4)
    for rg in range(5):
        D.v("v_add_u32", vTokA + rg, str(32 * rg), t4).v("v_min_u32", vTokA + rg, "2047", vTokA + rg).v("v_lshlrev_b32", vTokA + rg, "4", vTokA + rg)
    D.s("s_lshl_b32 s6, s3, 5").v("v_add_u32", t0, "s6", t0).v("v_min_u32", t0, "239", t0)
    D.v("v_mul_u32_u24", t4, "205", t0).v("v_lshrrev_b32", t4, "14", t4).v("v_mul_u32_u24", t4, "560", t4).v("v_add_u32", t4, t4, t0)
    D.s(f"s_mul_i32 s6, {sHg}, 80").v("v_add_u32", t4, "s6", t4)
    D.v("v_lshrrev_b32", vColA, "6", t4).v("v_lshlrev_b32", vColA, "10", vColA).v("v_and_b32", t4, "63", t4)
    D.v("v_lshl_add_u32", vColA, t4, "3", vColA).v("v_lshl_add_u32", vColA, t1, "9", vColA)
    D.v("v_mul_u32_u24", T + 5, "3200", t3).v("v_mul_u32_u24", T + 6, "40", t2).v("v_add_u32", T + 5, T + 5, T + 6).v("v_add_u32", T + 5, str(QB), T + 5)
    D.s("s_lshl_b32 s6, s3, 3")
    for i in range(4):
        D.v("v_add_u32", t0, "s6", t1)
        if i: D.v("v_add_u32", t0, str(2 * i), t0)
        D.v("v_mul_u32_u24", t4, "52", t0).v("v_lshrrev_b32", t4, "8", t4)
        D.v("v_mul_u32_u24", T + 6, str(6400 - 40), t4).v("v_lshl_add_u32", T + 6, t0, "3", T + 6).v("v_add_u32", vQW + i, T + 6, T + 5)
    D.v("v_and_b32", n_, "15", lane).v("v_lshrrev_b32", g_, "4", lane).v("v_lshlrev_b32", t0, "2", g_).v("v_sub_u32", t0, n_, t0)
    D.v("v_mov_b32", t4, "0xf149f2ca").v("v_mov_b32", T + 5, "0xffff").v("v_mov_b32", T + 6, "0xffff0000")
    for r in range(4):
        for (BB, MM, add) in ((BC, MC, 0), (BP, MP, 16)):
            D.v("v_add_u32", t1, str(add - r), t0)
            D.append(VCMP("v_cmp_gt_u32", "s[4:5]", "8", t1))
            D.v("v_cndmask_b32", BB + r, t4, "0", "s[4:5]")
            if r % 2 == 0: D.v("v_cndmask_b32", MM + r // 2, "0", T + 5, "s[4:5]")
            else: D.v("v_cndmask_b32", t3, "0", T + 6, "s[4:5]").v("v_or_b32", MM + r // 2, MM + r // 2, t3)
    for r in range(4): D.v("v_mov_b32", ONE + r, "0x3f803f80")
    D.append(VCMP("v_cmp_eq_u32", "s[4:5]", "0", g_))
    D.v("v_cndmask_b32", MG0, "0", "-1", "s[4:5]")
    D.s("s_mul_i32 s6, s3, 3200", f"s_add_u32 s6, s6, {QB}")
    D.v("v_mul_u32_u24", t0, "40", n_).v("v_add_u32", t0, "s6", t0).v("v_lshl_add_u32", vQ, g_, "3", t0).v("v_add_u32", vQ2, "32", t0)
    D.v("v_lshrrev_b32", t0, "2", lane).v("v_mul_u32_u24", t0, "40", t0).v("v_add_u32", t0, "s6", t0).v("v_add_u32", t0, str(51200), t0)
    D.v("v_and_b32", t1, "3", lane).v("v_lshl_add_u32", vV, t1, "3", t0).v("v_add_u32", vV2, "32", t0)
    OB = QB
    D.s(f"s_mul_i32 s7, {sB}, 73", "s_and_b32 s6, s7, 7", "s_lshl_b32 s6, s6, 4", "s_bitcmp1_b32 s3, 0")
    D[-1:] = [[D[-1], S(f"s_cselect_b32 s8, {OB + 1408}, {0}"), S(f"s_max_u32 s8, s8, {OB}"), S("s_add_u32 s6, s6, s8")]]
    D.v("v_lshl_add_u32", t1, n_, "4", "s6")
    D.s("s_lshr_b32 s6, s3, 1", "s_mul_i32 s6, s6, 5")
    for (dst, second) in ((vOW, False), (vOW2, True)):
        if second: D.s("s_add_u32 s6, s6, 4").v("v_mov_b32", t0, "s6")
        else: D.v("v_add_u32", t0, "s6", g_)
        D.v("v_lshrrev_b32", t2, "1", t0).v("v_mul_u32_u24", t2, "2816", t2).v("v_add_u32", dst, t2, t1)
        D.v("v_and_b32", t2, "1", t0).v("v_lshl_add_u32", dst, t2, "3", dst)
    D.v("v_mov_b32", T + 5, str(DUMMY)).v("v_cndmask_b32", vOW2, T + 5, vOW2, "s[4:5]")
    D.v("v_lshrrev_b32", t0, "4", sL) if False else None
    D.v("v_lshl_add_u32", vOR, lane, "4", sL).v("v_add_u32", vOR, str(OB), vOR)
    D.append([S(f"s_mul_i32 s7, {sB}, 73"), S("s_add_u32 s8, s7, 7"), S(f"s_cmp_eq_u32 {sB}, 0"), S("s_cselect_b32 s8, 0, s8"),
              S("s_add_u32 s35, s7, 80"), S("s_sub_u32 s34, s35, s8"), S("s_mov_b32 s33, s8"), S("s_and_b32 s32, s7, -8"),
              S(f"s_mul_i32 s71, {sHg}, 10")])
    D.v("v_mov_b32", T + 5, HUGE)
    for i in range(4):
        D.append([S("s_lshl_b32 s6, s3, 6"), S(f"s_add_u32 s6, s6, {512*i}"), V("v_add_u32", t0, "s6", lane)])
        D.v("v_mul_u32_u24", t1, "745", t0).v("v_lshrrev_b32", t1, "16", t1)
        D.v("v_mul_u32_u24", t2, "88", t1).v("v_sub_u32", t0, t0, t2).v("v_add_u32", t0, "s32", t0)
        D.v("v_lshrrev_b32", t2, "4", t0).v("v_mul_u32_u24", vOG + i, str(74 * 2048), t2)
        D.v("v_and_b32", t2, "15", t0).v("v_lshl_add_u32", vOG + i, t2, "4", vOG + i)
        D.v("v_and_b32", t2, "1", t1).v("v_lshl_add_u32", vOG + i, t2, "10", vOG + i)
        D.v("v_lshrrev_b32", t2, "1", t1).v("v_add_u32", t2, "s71", t2)
        D.v("v_lshrrev_b32", t3, "2", t2).v("v_lshl_add_u32", vOG + i, t3, "11", vOG + i)
        D.v("v_and_b32", t2, "3", t2).v("v_lshl_add_u32", vOG + i, t2, "8", vOG + i)
        D.v("v_subrev_u32", t0, "s33", t0)
        D.append(VCMP("v_cmp_gt_u32", "s[4:5]", "s34", t0))
        D.v("v_cndmask_b32", vOG + i, T + 5, vOG + i, "s[4:5]")
        if i == 3:
            D.append(VCMP("v_cmp_gt_u32", "s[4:5]", "20", t1))
            D.v("v_cndmask_b32", vOG + i, T + 5, vOG + i, "s[4:5]")
    dq += dma_stage(1)
    paced(E, o_pre + D + [S(x) for x in PERMSEL], dq, cfg.get("paceq", 36))
    st("i1")
    paced(E, stats_ops(TOK, XOFF), dq, 16)
    dq += dma_stage(2)
    st("i3")
    def reads(t):
        s, sub = t // 4, t % 4; z = s % 3; f = FR[t % 2]
        ops = [DSR(f, 2, vWr + z, off=sub * 8192, tr=True), DSR(f + 2, 2, vWr + z, off=sub * 8192 + 2048, tr=True)]
        for rg in range(5): ops.append(DSR(f + 4 + 4 * rg, 4, vXr + 4 * z + sub, off=rg * 4096))
        return ops
    tabld = [BLD(TOK + 4 * rg, 4, vTokA + rg, 36, "0", tag="tok", mod=SC1) for rg in range(5)] + [BLD(AP, 2, vColA, 20, "s12", tag="col", mod=SC1)]
    while any(x.tag == 0 for g in dq for x in g): E(dq.pop(0))
    if cfg.get("prio"): E(Cond("s_cmp_ge_u32 s3, 4", [S("s_setprio 1")]))
    a.wait_tag(0, lg=0); a.barrier()
    st("s0")
    E(reads(0))
    fill = tok_fin_ops(TB, XOFF, TOK)
    for t in range(40):
        f = FR[t % 2]
        nxt = []
        if t + 1 < 40:
            if (t + 1) % 4 == 0:
                s = (t + 1) // 4
                while any(x.tag == s for g in dq for x in g): E(dq.pop(0))
                a.wait_tag(s, lg=0); a.barrier()
                st(f"s{s}")
                if s + 2 < 10: dq += dma_stage(s + 2)
                CQ = cfg.get("cq", 1)
                if s in (CQ, CQ + 1):
                    cl_ = [[Cond(f"s_cmp_lt_u32 s78, {HUGE}", g)] for g in col_issue(TB, 28, 3840)]
                    dq += cl_[:3] if s == CQ else cl_[3:]
                if s == CQ + 2: fill = [[]] * 10 + col_acc_ops(TB, lane, XOFF, dot=False)
                if s == CQ + 5:
                    assert not fill; fill = [[Block(f"s_cmp_lt_u32 {sColSt}, {HUGE}", col_fin_ops(TB + 16, vTt, lane, XOFF))]]
                if s == 9:
                    assert not fill
                    dq += [[x] for x in tabld]
                    if cfg.get("qpark", 0): dq.append(flg_poll(vP, vPA, LV_W2))
            nxt = reads(t + 1)
        if t == 39:
            check(a, tabld, tag_cmp([TOK + 4 * rg + 1 for rg in range(5)] + [AP + 1], vTt))
            fill = col_fix(AP) + [V("v_mov_b32", TOK + 4 * rg + 1, TOK + 4 * rg) for rg in range(5)]
        for rg in range(5):
            E(MFMA32(ACC + 16 * rg, f, f + 4 + 4 * rg, c="0" if t == 0 else None))
            for k in range(2):
                if nxt: E(nxt.pop(0))
            b = 2.5
            if (rg >= 3 or (rg >= 1 and len(dq) > 4)) and dq: E(dq.pop(0)); b -= 1
            while fill and b > 0:
                o_ = fill.pop(0); E(o_); b -= cost(o_)
    assert not fill and not dq
    st("ge")
    for rg in range(5): E(MFMA32C(ACC + 16 * rg, AP, TOK + 4 * rg))
    QP = cfg.get("qpark", 0)
    early = []
    if QP:
        flg_check(a, vP, vPA, LV_W2)
        early = p2_w_item(1, vL16)[2:] + [[S(f"s_add_u32 s9, {sP2W}, {(k//5)*8*5120 + (k%5)*1024}"), BLD(132 + 4 * (k - 10), 4, vL16, 20, "s9", mod=SC1)] for k in range(10, 10 + QP)]
    for rg in range(5):
        A = ACC + 16 * rg
        if rg == 2 and not QP: E(flg_poll(vP, vPA, LV_W2))
        for i in range(4):
            if early and i != 3: E(early.pop(0))
            for e in range(4): E(V("v_mul_f32", A + 4 * i + e, A + 4 * i + e, TOK + 4 * rg + 2))
            E(V("v_cvt_pk_bf16_f32", A + 4 * i, A + 4 * i, A + 4 * i + 1)); E(V("v_cvt_pk_bf16_f32", A + 4 * i + 1, A + 4 * i + 2, A + 4 * i + 3))
            E(DSW(vQW + i, A + 4 * i, 2, off=rg * 640))
    E(flg_poll(vTt, vPA, LV_A))
    a.wait(lg=0); a.barrier()
    st("at")
    Qr = [176 + 4 * j for j in range(5)]; Kr = [196 + 4 * j for j in range(5)]
    V0, V1 = 24, 36
    for j in range(5):
        E(DSR(Qr[j], 2, vQ, off=j * 640)); E(DSR(Qr[j] + 2, 2, vQ2, off=j * 640))
        E(DSR(Kr[j], 2, vQ, off=25600 + j * 640)); E(DSR(Kr[j] + 2, 2, vQ2, off=25600 + j * 640))
    for j in range(5):
        E(DSR(V0 + 2 * (j + 1), 2, vV, off=j * 640, tr=True)); E(DSR(V1 + 2 * (j + 1), 2, vV2, off=j * 640, tr=True))
    for r in (V0, V0 + 1, V1, V1 + 1): E(V("v_mov_b32", r, "0"))
    SC = [216 + 4 * j for j in range(5)]; SP = [236 + 4 * j for j in range(5)]
    for j in range(5):
        E(V("v_and_b32", Qr[j] + 2, Qr[j] + 2, MG0)); E(V("v_and_b32", Qr[j] + 3, Qr[j] + 3, MG0))
    for j in range(5):
        E(MFMA16C(SC[j], Kr[j], Qr[j], BC))
        if j > 0: E(MFMA16C(SP[j], Kr[j - 1], Qr[j], BP))
    MX = [5 + j for j in range(5)]; TT = [10 + j for j in range(5)]
    a.barrier()
    assert not early
    st("a1")
    if not QP: flg_check(a, vP, vPA, LV_W2)
    flg_check(a, vTt, vPA, LV_A)
    if PFX:
        for p in range(1, 4): E(pf_w2(p, vTt, 140 + p, lane))
    pre = merge(p2_w_item(0, vL16) + p2_w_item(1, vL16)[:2 if QP else 5], [p2_act(x, vL16) for x in range(0, 9)])
    st("a2")
    if cfg.get("nopre"): post = pre; pre = []
    def pp(k=1):
        for _ in range(k):
            if pre: E(pre.pop(0))
    for j in range(5):
        if j > 0:
            for r in range(4): E(V("v_max_f32", SC[j] + r, SC[j] + r, SP[j] + r))
        E(V("v_max3_f32", MX[j], SC[j], SC[j] + 1, SC[j] + 2)); E(V("v_max_f32", MX[j], MX[j], SC[j] + 3))
        if j % 2: pp()
    for lvl in (16, 32):
        for j in range(5): E(V("v_mov_b32", TT[j], MX[j]))
        for j in range(5): E(SWAP(lvl, MX[j], TT[j]))
        for j in range(5): E(V("v_max_f32", MX[j], MX[j], TT[j]))
        pp()
    st("a3")
    E(S(f"s_mov_b32 s7, {CSC}"))
    for j in range(5): E(V("v_mul_f32", MX[j], NCSC, MX[j]))
    PB = [236 + 4 * j for j in range(5)]
    for j in range(5):
        for r in range(4): E(V("v_fma_f32", SC[j] + r, SC[j] + r, "s7", MX[j]))
        for r in range(4): E(V("v_exp_f32", SC[j] + r, SC[j] + r))
        pp()
    for j in range(5):
        E(V("v_cvt_pk_bf16_f32", SC[j], SC[j], SC[j] + 1)); E(V("v_cvt_pk_bf16_f32", SC[j] + 1, SC[j] + 2, SC[j] + 3))
        for h in range(2):
            E(V("v_and_b32", PB[j] + h, SC[j] + h, MP + h)); E(V("v_and_b32", PB[j] + 2 + h, SC[j] + h, MC + h))
        if j % 2: pp()
    st("a4")
    O0 = Qr; O1 = Kr; DN = SC
    for j in range(5):
        E(MFMA16(DN[j], ONE, PB[j], c="0")); E(MFMA16(O0[j], V0 + 2 * j, PB[j], c="0")); E(MFMA16(O1[j], V1 + 2 * j, PB[j], c="0"))
    srd(a, 28, "s20", "s21", ACT_SIZE)
    for j in range(5): E(V("v_rcp_f32", DN[j], DN[j]))
    for j in range(5):
        for O in (O0[j], O1[j]):
            for r in range(4): E(V("v_mul_f32", O + r, O + r, DN[j]))
            E(V("v_cvt_pk_bf16_f32", O, O, O + 1)); E(V("v_cvt_pk_bf16_f32", O + 1, O + 2, O + 3))
        E(DSW(vOW, O0[j], 2, off=j * 256)); E(DSW(vOW2, O1[j], 2, off=j * 256))
        pp()
    st("a5")
    a.wait(lg=0); a.barrier()
    st("a6")
    for i in range(4): E(DSR(216 + 4 * i, 4, vOR, off=i * 8192))
    E(S(f"s_mov_b32 s6, {54*2048}"))
    for i in range(4): E(BST(216 + 4 * i, 4, vOG + i, 28, "s6", tag="st", mod=SC1))
    st("p1e")
    if cfg.get("nopre"): pre = post
    pp(20)
    E(flg_poll(vP, vPA, LV_B))
    phase2(a, st, cfg, vL16, lane, vPA, vP, 10, 9, cfg.get("rateq", 3.5), flag_st(5, vF, LV_C), parked=[(10 + i, 132 + 4 * i) for i in range(QP)])
    st.finish(2, name, cfg.get("stw", 0))
    a.raw("s_endpgm")

def gen_fused(name, stamps=False, cfg={}):
    DBG.update(cfg)
    a = Asm(); E = a.emit
    a.out.append(f".globl {name}\n.p2align 8\n.type {name},@function\n{name}:")
    E(S("s_cmp_ge_u32 s2, 256")); a.raw(f"s_cbranch_scc1 L_{name}_end")
    if stamps:
        a.raw("s_memrealtime s[76:77]"); a.raw("s_memtime s[80:81]")
    a.raw("s_load_dwordx2 s[24:25], s[0:1], 0")
    a.raw(f"s_load_dwordx4 s[{P_QKV}:{P_QKV+3}], s[0:1], 8")
    a.raw("s_load_dwordx2 s[28:29], s[0:1], 32"); a.raw("s_load_dwordx2 s[32:33], s[0:1], 40")
    a.raw(f"s_load_dwordx2 s[{P_W2}:{P_W2+1}], s[0:1], 48")
    a.raw(f"s_load_dwordx2 s[{S_OUT}:{S_OUT+1}], s[0:1], 56")
    a.raw("s_load_dwordx2 s[20:21], s[0:1], 72")
    E(V("v_lshrrev_b32", 2, "6", 0)); E(V("v_and_b32", 1, "63", 0))
    E(RFL("s3", 2))
    for (b, size) in ((20, WS_USED), (24, XBYTES), (S_OUT, XBYTES), (36, 2048 * 16), (28, 640 * 3456), (32, 640 * 3456)):
        E(S(f"s_mov_b32 s{b+2}, {size}")); E(S(f"s_mov_b32 s{b+3}, 0x20000"))
    E(S("s_and_b32 s11, s2, 3")); E(S("s_bfe_u32 s10, s2, 0x10002")); E(S("s_lshr_b32 s12, s2, 3"))
    E(S(f"s_lshl_b32 {sL}, s3, 10")); E(S(f"s_mov_b32 {sSpin}, 0"))
    E(S("s_cmp_lt_u32 s12, 18")); a.raw(f"s_cbranch_scc1 L_{name}_ffn")
    gen_qkv(a, name, stamps, cfg)
    a.label(f"L_{name}_ffn"); a.reset()
    gen_ffn(a, name, stamps, cfg)
    a.label(f"L_{name}_end"); a.raw("s_endpgm")
    return a.text(), kdesc(name, 256, 256, 102), 163840
```

```python
from gasm import *
from common import *

NLOG2E = "0xbfb8aa3b"; CSC = "0x3ea52b5c"; NCSC = "0xbea52b5c"
HUGE = "0x7ff00000"
SC1 = " sc1"
S_OUT, S_AUX = 64, 68
sTag = "s60"
sP2A, sP2W, sP2X, sSpin, sFlg = "s72", "s73", "s74", "s75", "s76"
sColSt, sOwn, sL = "s18", "s17", "s16"
sRot, sItem = "s79", "s78"
P_QKV, P_WO, P_W2 = 52, 54, 56
NST = 18
DBG = {}
uid = [0]
STW = 0

class Stamp:
    def __init__(self, a, on, sel=None): self.a, self.on, self.n, self.sel, self.names = a, on, 0, sel, []
    def __call__(self, name="x", force=False):
        if not self.on: return
        if self.sel is not None and not force and name not in self.sel: return
        assert self.n < NST, name
        if self.n: self.a.raw(f"s_mov_b32 s{82+self.n-1}, s100")
        self.a.raw("s_memtime s[100:101]"); self.n += 1; self.names.append(name)
    def finish(self, role, name, wave=0):
        a = self.a
        if not self.on: return
        a.raw("s_waitcnt vmcnt(0)")
        self("end", True)
        a.raw("s_memrealtime s[4:5]"); a.raw("s_waitcnt lgkmcnt(0)")
        a.raw(f"s_mov_b32 s{82+self.n-1}, s100")
        a.raw(f"s_cmp_lg_u32 s3, {wave}"); a.raw(f"s_cbranch_scc1 L_{name}_end")
        for i in range(20):
            if i < self.n: a.raw(f"s_sub_u32 s6, s{82+i}, s80"); a.raw(f"v_mov_b32 v{i}, s6")
            else: a.raw(f"v_mov_b32 v{i}, 0")
        a.raw(f"v_mov_b32 v20, {sSpin}")
        a.raw(f"v_mov_b32 v21, {role}"); a.raw("v_mov_b32 v22, s77"); a.raw("v_mov_b32 v23, s4")
        a.raw("s_lshl_b32 s40, s2, 7"); a.raw(f"s_add_u32 s40, s40, {STAMP1}"); a.raw("v_mov_b32 v24, s40")
        a.raw("s_mov_b32 s22, 0x2000000"); a.raw("s_mov_b64 exec, 1")
        for i in range(6): a.raw(f"buffer_store_dwordx4 v[{4*i}:{4*i+3}], v24, s[20:23], 0 offen offset:{16*i}")
        a.comment(f"STAMPS role {role}: " + " ".join(self.names))

class L(list):
    def s(self, *ts):
        for t in ts: self.append(S(t))
        return self
    def v(self, *x, **k): self.append(V(*x, **k)); return self

def scc_live(ops):
    for o in ops:
        if isinstance(o, list): return False
        if o.kind != "salu": continue
        n = o.text.split()[0]
        if n.startswith(("s_cselect", "s_addc", "s_subb", "s_cbranch_scc")): return True
        if n.startswith(("s_mov", "s_mul_i32", "s_movk")): continue
        return False
    return False
def exec_dirty(ops):
    return False

def paced(E, ops, groups, every):
    k = 0
    for i, o in enumerate(ops):
        E(o); k += len(o) if isinstance(o, list) else 1
        if groups and k >= every and not scc_live(ops[i + 1:]):
            E(groups.pop(0)); k = 0

def rot_table(srot, sK, mulK, sKx, lo, hi, blk=10):
    o = L()
    for s in range(lo, hi):
        base = s // blk * blk
        if base: o.s(f"s_add_u32 s4, {srot}, {base}", f"s_mul_i32 s{sK+s}, s4, {mulK}", f"s_lshl_b32 s{sKx+s}, s4, 7")
        else: o.s(f"s_mul_i32 s{sK+s}, {srot}, {mulK}", f"s_lshl_b32 s{sKx+s}, {srot}, 7")
        if s < 9: o.s(f"s_add_u32 {srot}, {srot}, 1", f"s_cmp_eq_u32 {srot}, {blk}", f"s_cselect_b32 {srot}, 0, {srot}")
    return o
def mod_ops(src, dst, m):
    if m == 1: return [S(f"s_mov_b32 {dst}, 0")]
    if m == 2: return [S(f"s_and_b32 {dst}, {src}, 1")]
    k = {5: 52, 10: 26}[m]
    return [S(f"s_mul_i32 s5, {src}, {k}"), S("s_lshr_b32 s5, s5, 8"), S(f"s_mul_i32 s5, s5, {m}"), S(f"s_sub_u32 {dst}, {src}, s5")]

def check(a, load, cmp_ops, sleep=2):
    uid[0] += 1; Lb = f"L_ck{uid[0]}"
    a.emit(cmp_ops)
    a.raw(f"s_cbranch_scc0 {Lb}_ok")
    a.label(f"{Lb}_sp")
    a.raw(f"s_sleep {sleep}")
    for l in (load if isinstance(load, list) else [load]): a.raw(l.text)
    a.raw("s_waitcnt vmcnt(0)")
    a.raw(f"s_add_u32 {sSpin}, {sSpin}, 1"); a.raw(f"s_cmp_gt_u32 {sSpin}, 30000"); a.raw(f"s_cbranch_scc1 {Lb}_ok")
    for o in cmp_ops:
        a.raw(o.text); a.raw("s_nop 3")
    a.raw(f"s_cbranch_scc1 {Lb}_sp")
    a.label(f"{Lb}_ok")

M_FFN, M_Q, M_W2 = 0x1ff, 0xffff0000, 0x3ffffff << 32
LV_W2, LV_A, LV_B, LV_C = "W2", "A", "B", "C"
LV = {"W2": (0, M_W2), "A": (48 * 128, M_FFN), "B": (64 * 128, M_FFN), "C": (0, M_FFN | M_Q)}
def flg_poll(vP, vA, lv):
    off, m = LV[lv]
    return [S(f"s_mov_b32 s9, {FLG_OFF + off}"), S(f"s_mov_b32 exec_lo, {m & 0xffffffff}"), S(f"s_mov_b32 exec_hi, {m >> 32}"),
            BLD(vP, 1, vA, 20, "s9", tag="poll", mod=SC1), S("s_mov_b64 exec, -1")]
def flg_cmp(vP, lv):
    off, mask = LV[lv]
    o = [VCMP("v_cmp_ne_u32", "vcc", sTag, vP)]
    if mask >> 32 == 0: o.append(S(f"s_and_b32 vcc_lo, vcc_lo, {mask}", sr=["vcc"]))
    else: o.append(S(f"s_and_b32 vcc_hi, vcc_hi, {mask >> 32}", sr=["vcc"]))
    return o
def flg_check(a, vP, vA, lv, sleep=2): check(a, flg_poll(vP, vA, lv), flg_cmp(vP, lv), sleep)
def tag_cmp(regs, t):
    o = [V("v_xor_b32", t, sTag, regs[0])]
    for r in regs[1:]: o.append(Op(f"v_bitop3_b32 {R(t)}, {R(t)}, {R(r)}, {sTag} bitop3:0xf6", "valu", r=[t, r], w=[t], sr=[sTag]))
    return o + [VCMP("v_cmp_ne_u32", "vcc", "0", t), S("s_cmp_lg_u64 vcc, 0")]
def flag_st(vT, vF, lv, base=None):
    return [Cond("s_cmp_eq_u32 s3, 0", [S(f"s_add_u32 s9, {base or sOwn}, {LV[lv][0]}"), V("v_mov_b32", vT, sTag), BST(vT, 1, vF, 20, "s9", tag="flag", mod=SC1)])]
def col_fix(AP): return [V("v_perm_b32", AP + 1, AP, AP, "s62"), V("v_perm_b32", AP, AP, AP, "s61")]

def wsum(s, t):
    return [DPP("v_add_f32", s, s, s, "quad_perm:[1,0,3,2]"), DPP("v_add_f32", s, s, s, "quad_perm:[2,3,0,1]"), DPP("v_add_f32", s, s, s, "row_half_mirror"),
            DPP("v_add_f32", s, s, s, "row_ror:8"), V("v_mov_b32", t, s), SWAP(16, s, t), V("v_add_f32", s, s, t),
            V("v_mov_b32", t, s), SWAP(32, s, t), V("v_add_f32", s, s, t)]
def merge(a, b):
    o = []
    a, b = list(a), list(b)
    na, nb = len(a), len(b)
    while a or b:
        if a and (not b or len(a) * nb >= len(b) * na): o.append(a.pop(0))
        else: o.append(b.pop(0))
    return o

def st_pre(B, lane, Bs=None):
    Bs = B if Bs is None else Bs
    o = L()
    o.s("s_and_b32 s4, s2, 7", "s_lshl_b32 s4, s4, 5", "s_lshr_b32 s5, s2, 3", "s_add_u32 s4, s4, s5", "s_lshl_b32 s4, s4, 3", "s_add_u32 s4, s4, s3",
        "s_mul_i32 s63, s4, 1280", "s_lshl_b32 s61, s4, 4", f"s_mov_b32 s62, {EPO_OFF}")
    o.v("v_lshlrev_b32", B + 36, "4", lane).v("v_lshlrev_b32", B + 37, "2", lane).v("v_lshlrev_b32", Bs + 5, "24", lane)
    return o
def st_issue(B, Bs=None):
    Bs = B if Bs is None else Bs
    return [BLD(Bs + 5, 1, Bs + 5, 20, "s62", mod=SC1), BLD(Bs, 4, B + 36, 24, "s63"), BLD(Bs + 4, 1, B + 37, 24, "s63", off=1024), S("s_mov_b32 s81, s61")]
def col_pre(B, lane, pitch):
    o = L()
    o.s(f"s_cselect_b32 s9, s9, {HUGE}", "s_cselect_b32 s7, s3, 1",
        "s_lshl_b32 s5, s8, 10", "s_lshl_b32 s8, s10, 9", "s_add_u32 s5, s5, s8", f"s_add_u32 s5, s5, {COL_OFF}",
        "s_mul_i32 s8, s10, 40", "s_add_u32 s8, s8, s3", f"s_mul_i32 s8, s8, {8*pitch}", "s_add_u32 s78, s8, s9",
        "s_cmp_eq_u32 s7, 0", f"s_cselect_b32 {sColSt}, s5, {HUGE}")
    o.v("v_lshrrev_b32", B + 38, "3", lane).v("v_and_b32", B + 39, "7", lane)
    o.v("v_mul_u32_u24", B + 38, str(pitch), B + 38).v("v_lshl_add_u32", B + 38, B + 39, "4", B + 38)
    return o
def col_issue(B, srdn, pitch):
    return [[BLD(B + 16 + 4 * it, 4, B + 38, srdn, "s78", mod=DBG.get("cm", ""))] + ([S(f"s_add_u32 s78, s78, {64*pitch}")] if it < 4 else []) for it in range(5)]
def stats_ops(B, xoff):
    U = B + 6; s, t = B + 5, B + 4
    o = L()
    o.append(RFL(sTag, B + 5))
    for i in (4, 0, 1, 2, 3): o.v("v_lshlrev_b32", U + 2 * i, "16", B + i).v("v_and_b32", U + 2 * i + 1, "0xffff0000", B + i)
    o.s(f"s_mul_i32 {sTag}, {sTag}, 0x9e3779b1", f"s_add_u32 {sTag}, {sTag}, 0x7f4a7c15")
    o.v("v_add_f32", s, U, U + 1).v("v_add_f32", t, U + 2, U + 3)
    for i in range(4, 10, 2): o.v("v_add_f32", s, s, U + i).v("v_add_f32", t, t, U + i + 1)
    o.v("v_add_f32", s, s, t)
    o += wsum(s, t)
    o.v("v_mul_f32", s, "0xbacccccd", s)
    q = B + 1
    for i in range(10): o.v("v_add_f32", U + i, U + i, s)
    o.v("v_mul_f32", q, U, U).v("v_mul_f32", t, U + 1, U + 1)
    for i in range(2, 10, 2): o.v("v_fmac_f32", q, U + i, U + i).v("v_fmac_f32", t, U + i + 1, U + i + 1)
    o.v("v_add_f32", q, q, t)
    o += wsum(q, t)
    o.v("v_mov_b32", B + 3, "0x3727c5ac").v("v_fmac_f32", B + 3, "0x3acccccd", q).v("v_rsq_f32", B + 2, B + 3)
    o.v("v_cvt_pk_bf16_f32", t, s, s).v("v_lshlrev_b32", t, "16", t).v("v_sub_f32", t, s, t)
    o.v("v_cvt_pk_bf16_f32", B, s, t).v("v_mov_b32", B + 1, sTag)
    o.v("v_mov_b32", t, sL).v("v_lshrrev_b32", t, "6", t).v("v_add_u32", t, str(xoff + 2048), t)
    o.append(DSW(t, B, 4))
    return o
def tok_fin_ops(B, xoff, Bs=None):
    Bs = B if Bs is None else Bs
    o = L()
    o.v("v_and_b32", Bs + 4, "0x70", B + 36).v("v_add_u32", Bs + 4, str(xoff + 2048), Bs + 4)
    o.append(DSR(Bs, 4, Bs + 4))
    o.v("v_lshrrev_b32", Bs + 5, "7", B + 36).v("v_lshl_add_u32", Bs + 5, Bs + 5, "24", B + 36)
    o.s("s_sub_u32 s81, s81, 16")
    o.append(BST(Bs, 4, Bs + 5, 36, "s81", tag="tab", mod=SC1))
    return [[Block("s_cmp_eq_u32 s3, 1", o)]]
def col_add(A, r, first, t, dot):
    o = L()
    for j in range(4):
        if first: o.v("v_lshlrev_b32", A + 2 * j, "16", r + j).v("v_and_b32", A + 2 * j + 1, "0xffff0000", r + j)
        elif dot: o.v("v_dot2c_f32_bf16", A + 2 * j, "s61", r + j).v("v_dot2c_f32_bf16", A + 2 * j + 1, "s62", r + j)
        else: o.v("v_lshlrev_b32", t, "16", r + j).v("v_and_b32", r + j, "0xffff0000", r + j).v("v_add_f32", A + 2 * j, A + 2 * j, t).v("v_add_f32", A + 2 * j + 1, A + 2 * j + 1, r + j)
    return o
def col_red(A, t0, piece, lane, xoff):
    o = L()
    o.v("v_lshrrev_b32", t0, "4", lane).v("v_lshlrev_b32", t0, "3", t0).v("v_lshl_add_u32", t0, piece, "5", t0)
    for j in range(4): o.append(SWAP(32, A + j, A + j + 4))
    for j in range(4): o.v("v_add_f32", A + j, A + j, A + j + 4)
    o.v("v_mov_b32", t0 + 1, sL).v("v_lshrrev_b32", t0 + 1, "2", t0 + 1)
    for j in range(2): o.append(SWAP(16, A + j, A + j + 2))
    for j in range(2): o.v("v_add_f32", A + j, A + j, A + j + 2)
    o.v("v_add_u32", t0, t0, t0 + 1).v("v_add_u32", t0, str(xoff), t0)
    for j in range(2): o.append(DPP("v_add_f32", A + j, A + j, A + j, "row_ror:8"))
    o.append(DSW(t0, A, 2))
    return o
def col_acc_ops(B, lane, xoff, dot=True):
    A = B + 40
    o = L()
    if dot: o.s("s_mov_b32 s61, 0x3f80", "s_mov_b32 s62, 0x3f800000")
    for it in range(5): o += col_add(A, B + 16 + 4 * it, it == 0, B + 16, dot)
    o += col_red(A, B + 16, B + 39, lane, xoff)
    return o
PERMSEL = ["s_mov_b32 s61, 0x01000100", "s_mov_b32 s62, 0x03020302"]
def col_fin_ops(Rd, t, lane, xoff):
    o = L()
    o.v("v_lshlrev_b32", t, "2", lane).v("v_add_u32", t, str(xoff), t)
    for w in range(8): o.append(DSR(Rd + w, 1, t, off=w * 256))
    for w in range(4): o.v("v_add_f32", Rd + w, Rd + w, Rd + 4 + w)
    o.v("v_add_f32", Rd, Rd, Rd + 1).v("v_add_f32", Rd + 2, Rd + 2, Rd + 3).v("v_add_f32", Rd, Rd, Rd + 2)
    o.v("v_cvt_pk_bf16_f32", Rd + 4, Rd, Rd).v("v_lshlrev_b32", Rd + 6, "16", Rd + 4).v("v_sub_f32", Rd + 6, Rd, Rd + 6)
    o.v("v_cvt_pk_bf16_f32", Rd + 4, Rd, Rd + 6).v("v_mov_b32", Rd + 5, sTag).v("v_lshlrev_b32", t, "3", lane)
    o.append(BST(Rd + 4, 2, t, 20, sColSt, tag="tab", mod=SC1))
    return o

ACTB, ACC2, WF2 = 96, 48, 8
def p2_setup(vA, lane, rb="s10", cb="s11"):
    g = []
    o = L()
    o.s("s_bfe_u32 s10, s2, 0x20001", "s_lshl_b32 s10, s10, 3", "s_bfe_u32 s5, s2, 0x30003", "s_add_u32 s10, s10, s5",
        "s_and_b32 s11, s2, 1", "s_lshl_b32 s11, s11, 2", "s_lshr_b32 s6, s2, 6", "s_add_u32 s11, s11, s6"); g.append(list(o))
    o = L()
    o.s("s_bfe_u32 s6, s3, 0x10001", "s_lshl_b32 s9, s10, 1", "s_add_u32 s6, s6, s9",
        f"s_mul_i32 {sP2A}, s6, 74", "s_lshr_b32 s9, s3, 2", f"s_add_u32 {sP2A}, {sP2A}, s9", f"s_lshl_b32 {sP2A}, {sP2A}, 1",
        "s_and_b32 s9, s3, 1", f"s_add_u32 {sP2A}, {sP2A}, s9", f"s_lshl_b32 {sP2A}, {sP2A}, 10",
        "s_lshl_b32 s6, s6, 5", "s_add_u32 s6, s6, s9", f"s_mul_i32 {sP2X}, s6, 1280"); g.append(list(o))
    o = L()
    o.s(f"s_mul_i32 {sP2W}, s11, 74", f"s_add_u32 {sP2W}, {sP2W}, s3", f"s_mul_i32 {sP2W}, {sP2W}, 5120", f"s_add_u32 {sP2W}, {sP2W}, {W2F_OFF}",
        "s_mul_i32 s6, s11, 160", f"s_add_u32 {sP2X}, {sP2X}, s6", "s_lshr_b32 s6, s3, 2", "s_mul_i32 s6, s6, 96", f"s_add_u32 {sP2X}, {sP2X}, s6",
        ); g.append(list(o))
    if DBG.get("rot2"):
        o = L()
        o.s("s_bfe_u32 s6, s2, 0x30003", "s_lshr_b32 s9, s2, 6", "s_lshl_b32 s9, s9, 1", "s_add_u32 s6, s6, s9", "s_cmp_ge_u32 s6, 9", "s_cselect_b32 s9, 9, 0", f"s_sub_u32 {sRot}, s6, s9",
            f"s_lshl_b32 s6, {sRot}, 12", f"s_add_u32 {sP2A}, {sP2A}, s6", f"s_mul_i32 s6, {sRot}, 10240", f"s_add_u32 {sP2W}, {sP2W}, s6"); g.append(list(o))
    def part(o, lo, n):
        m = ((1 << n) - 1) << lo
        o.s("s_lshl_b32 s6, s6, 7", f"s_sub_u32 s6, s6, {lo*4}", f"s_mov_b32 exec_lo, {m & 0xffffffff}", f"s_mov_b32 exec_hi, {m >> 32}")
        o.v("v_lshl_add_u32", vA, lane, "2", "s6"); o.s("s_mov_b64 exec, -1"); g.append(list(o))
    part(L().s("s_lshr_b32 s6, s10, 1"), 0, 16)
    for (lo, add) in ((16, 0), (24, 63)):
        part(L().s("s_lshl_b32 s6, s10, 6", f"s_add_u32 s6, s6, {add}", "s_max_u32 s6, s6, 14", "s_sub_u32 s6, s6, 14",
                   "s_mul_i32 s6, s6, 7183", "s_lshr_b32 s6, s6, 20", "s_add_u32 s6, s6, 16"), lo, 8)
    for (i, add) in ((0, 0), (1, 4)):
        part(L().s("s_mul_i32 s6, s11, 5", f"s_add_u32 s6, s6, {add + 128}", "s_lshr_b32 s6, s6, 2"), 32 + 13 * i, 13 if i == 0 else 19)
    g = [[S(x.text.replace("s10", rb).replace("s11", cb)) if x.kind == "salu" else x for x in grp] for grp in g]
    return g

def GEND(j): return 9 if j < 9 else 18 if j < 18 else 27 if j < 27 else 37
def GN(j): return 10 if j >= 27 else 9
def p2_w_item(d, vL16):
    slot = (d % 4) * 40960
    ops = []
    for i in range(5):
        g = [S(f"s_add_u32 s9, {sP2W}, {(d%2 if DBG.get('hot') else d)*8*5120 + i*1024}")]
        if DBG.get("rot2"):
            pre = []
            if i == 0:
                ends = sorted(set(GEND(j) for j in range(4 * d, min(4 * d + 4, 37))))
                pre = [S("s_lshr_b32 s8, s3, 1")]
                if len(ends) == 1:
                    pre += [S(f"s_add_u32 s8, s8, {sRot}"), S(f"s_cmp_ge_u32 s8, {ends[0] - 4*d}"), S(f"s_cselect_b32 {sItem}, {GN(4*d)*10240}, 0")]
                else:
                    pre += [S(f"s_cmp_ge_u32 s8, {ends[0] - 4*d}"), S(f"s_cselect_b32 s7, {ends[1] - 4*d}, {ends[0] - 4*d}"),
                            S(f"s_cselect_b32 {sItem}, {GN(ends[0])}, {GN(4*d)}"), S(f"s_mul_i32 {sItem}, {sItem}, 10240"),
                            S(f"s_add_u32 s8, s8, {sRot}"), S("s_cmp_ge_u32 s8, s7"), S(f"s_cselect_b32 {sItem}, {sItem}, 0")]
                pre.append(S(f"s_sub_u32 {sItem}, {sP2W}, {sItem}"))
            g = pre + [S(f"s_add_u32 s9, {sItem}, {d*8*5120 + i*1024}")]
        if DBG.get("now2"): g = [S(f"s_mov_b32 s9, {HUGE}")]
        g += [S(f"s_add_u32 m0, {sL}, {slot + i*8192}"), DMA(vL16, 20, "s9", tag=("W2", d), mod="" if DBG.get("nosc1") else SC1)]
        ops.append(g)
    if d == 9: ops = [[Cond("s_cmp_lt_u32 s3, 2", sum(ops, []))]]
    return ops
def pf_w2(p, vT, vD, lane):
    return [S("s_bfe_u32 s8, s2, 0x30003"), S("s_lshl_b32 s8, s8, 3"), S("s_add_u32 s8, s8, s3"), S("s_mul_i32 s8, s8, 12"), S(f"s_add_u32 s8, s8, {p*768}"),
            S("s_min_u32 s8, s8, 2948"), S("s_lshl_b32 s8, s8, 7"), S("s_mul_i32 s9, s3, 5120"), S(f"s_sub_u32 s9, {sP2W}, s9"), S("s_add_u32 s9, s9, s8"),
            V("v_lshlrev_b32", vT, "7", lane), S("s_mov_b64 exec, 0xfff"), BLD(vD, 1, vT, 20, "s9", tag="pf", mod=SC1), S("s_mov_b64 exec, -1")]
def pf_act(g, vT, vD, lane):
    j0, n = [(0, 9), (9, 9), (18, 9), (27, 10)][g]
    return [S("s_lshr_b32 s8, s2, 6"), V("v_lshrrev_b32", vT, "3", lane), V("v_lshl_add_u32", vT, vT, "2", "s8"), V("v_min_u32", vT, str(n - 1), vT),
            V("v_lshlrev_b32", vT, "5", vT), V("v_and_or_b32", vT, lane, "7", vT), V("v_lshlrev_b32", vT, "7", vT),
            S(f"s_add_u32 s9, {sP2A}, {j0*4096}"), S("s_mov_b64 exec, 0xffffff"), BLD(vD, 1, vT, 20, "s9", tag="pf", mod=SC1), S("s_mov_b64 exec, -1")]
def p2_act(j, vL16):
    if DBG.get("noact"): return [S(f"s_mov_b32 s9, {HUGE}"), BLD(ACTB + 4 * j, 4, vL16, 20, "s9", mod=SC1)]
    if DBG.get("hot"): return [S(f"s_add_u32 s9, {sP2A}, {(j%4)*4096}"), BLD(ACTB + 4 * j, 4, vL16, 20, "s9", mod=SC1)]
    if DBG.get("rot2"):
        return [S(f"s_cmp_ge_u32 {sRot}, {GEND(j) - j}"), S(f"s_cselect_b32 s9, {GN(j)*4096}, 0"), S(f"s_sub_u32 s9, {sP2A}, s9"), S(f"s_add_u32 s9, s9, {j*4096}"),
                BLD(ACTB + 4 * j, 4, vL16, 20, "s9", mod=SC1)]
    return [S(f"s_add_u32 s9, {sP2A}, {j*4096}"), BLD(ACTB + 4 * j, 4, vL16, 20, "s9", mod="" if DBG.get("nosc1") else SC1)]

def phase2(a, st, cfg, vL16, lane, vPA, vP, pieces_done, act_done, rate, publish, epoch=False, parked=[]):
    E = a.emit
    PF = cfg.get("pf2", False)
    vRd = [68, 69, 70, 71, 72, 73]; vXO, vXO3, vWrt, vRr = 74, 75, 76, 77
    X0 = 78; t0, t1 = 84, 85
    EP = 86
    E(S("s_lshr_b32 s4, s3, 2")); E(S(f"s_mul_i32 s5, s4, {1024 + 3*8192}")); E(S(f"s_mul_i32 s6, s4, {1024 - 2*8192}")); E(S("s_add_u32 s6, s6, 16384"))
    E(V("v_add_u32", vRd[0], "s5", vL16)); E(V("v_add_u32", vRd[3], "s6", vL16))
    for b in (1, 2): E(V("v_add_u32", vRd[b], str(b << 16), vRd[0])); E(V("v_add_u32", vRd[3 + b], str(b << 16), vRd[3]))
    def reads(j):
        pos = ((j // 4) % 4) * 40960 + (j % 4) * 2048
        f = WF2 + 20 * (j % 2)
        o = []
        for l in range(5):
            p = pos + l * 8192 - (0 if l < 2 else 16384)
            o.append(DSR(f + 4 * l, 4, vRd[(p >> 16) + (0 if l < 2 else 3)], off=p & 0xffff))
        return o
    misc = [[V("v_lshrrev_b32", t0, "8", vL16), V("v_lshlrev_b32", t0, "3", t0), V("v_bfe_u32", t1, vL16, "4", "4"), V("v_mul_u32_u24", t1, "2560", t1), V("v_add_u32", vXO, t0, t1)],
            [S("s_cmp_lt_u32 s3, 4"), S(f"s_cselect_b32 s4, 64, {HUGE}"), V("v_add_u32", vXO3, "s4", vXO), BLD(X0, 2, vXO, 24, sP2X)],
            [BLD(X0 + 2, 2, vXO, 24, sP2X, off=32)], [Cond("s_cmp_lt_u32 s3, 4", [BLD(X0 + 4, 2, vXO3, 24, sP2X)])],
            [S("s_lshl_b32 s4, s3, 12"), S("s_add_u32 s4, s4, 81920"), V("v_add_u32", vWrt, "s4", vL16)],
            [S("s_xor_b32 s4, s3, 4"), S("s_lshl_b32 s4, s4, 12"), S("s_lshr_b32 s5, s3, 2"), S("s_lshl_b32 s5, s5, 10"), S("s_add_u32 s4, s4, s5"),
             S("s_add_u32 s4, s4, 81920"), V("v_add_u32", vRr, "s4", vL16)]]
    epl = [BLD(EP + 4 + i, 1, EP + i, 36, "0", off=4, mod=SC1) for i in range(4)]
    if epoch:
        misc.append([S("s_or_b32 s4, s2, s3"), Cond("s_cmp_eq_u32 s4, 0", [V("v_lshlrev_b32", EP, "3", vL16)] +
                    [V("v_add_u32", EP + i, str(i * 8192), EP) for i in range(1, 4)] + epl)])
    a.wait_tag(("W2", 0), lg=0); a.barrier()
    st("p2s")
    E(reads(0))
    if parked:
        assert pieces_done == parked[0][0], pieces_done
        E(V("v_add_u32", 6, sL, vL16)); E(V("v_add_u32", 7, "0x20000", 6)); E(V("v_add_u32", 6, "0x10000", 6))
        for (k, r) in parked: E(DSW(6 + (k * 8192 >> 16) - 1, r, 4, off=(k * 8192) & 0xffff))
        pieces_done += len(parked)
    q = []
    def push(need, g): q.append((need, len(q), g)); q.sort(key=lambda e: e[:2])
    def push_item(d, frm=0):
        for g in p2_w_item(d, vL16)[frm:]: push(4 * d - 1.5, g)
    for x in range(act_done, 9): push(x, p2_act(x, vL16))
    for d in range(4):
        if pieces_done < 5 * (d + 1): push_item(d, max(0, pieces_done - 5 * d))
    nitem = 4
    PUB, CB, P3, C3 = cfg.get("pub", 6), cfg.get("cb", 1), cfg.get("p3", 13), cfg.get("c3", 16)
    RATE = rate
    LEAD = cfg.get("lead", 5)
    credit = 0.0
    for g in misc: push(cfg.get("misc", 19), g)
    for j in range(37):
        f = WF2 + 20 * (j % 2)
        nxt = []
        while q and q[0][0] <= j: E(q.pop(0)[2])
        if j + 1 < 37:
            if j == PUB:
                a.wait_tag("st"); a.barrier(); E(publish); st("pub")
            if (j + 1) % 4 == 0:
                d = (j + 1) // 4
                a.wait_tag(("W2", d), lg=0); a.barrier()
                if nitem < 10: push_item(nitem); nitem += 1
            nxt = reads(j + 1)
        if j == CB:
            flg_check(a, vP, vPA, LV_B)
            if PF: E(pf_act(1, t0, 6, lane))
            for x in range(9, 18): push(x, p2_act(x, vL16))
        if j == P3: E(flg_poll(vP, vPA, LV_C))
        if j == C3:
            flg_check(a, vP, vPA, LV_C, sleep=1)
            st("c3")
            if PF: E(pf_act(2, t0, 6, lane)); E(pf_act(3, t0, 7, lane))
            for x in range(18, 18 + cfg.get("burst", 6)): E(p2_act(x, vL16))
            for x in range(18 + cfg.get("burst", 6), 37): push(x, p2_act(x, vL16))
            RATE = cfg.get("rate2", 1.4)
        st(f"g{j}")
        credit = min(credit + RATE, 4)
        for l in range(5):
            if cfg.get("nomfma") and l: pass
            else: E(MFMA16(ACC2 + 4 * l, f + 4 * l, ACTB + 4 * j, c="0" if j == 0 else None))
            if nxt:
                x_ = nxt.pop(0)
                if not (cfg.get("nords") and l): E(x_)
            if q and (credit >= 1 or q[0][0] <= j + LEAD):
                g = q.pop(0)[2]; E(g)
                if any(x.kind in ("vld", "dma") for x in g): credit -= 1
    fill = q
    assert not fill
    st("p2e")
    for i in range(3):
        x0 = X0 + 2 * i; o = 8 + 4 * i
        E(V("v_lshlrev_b32", o, "16", x0)); E(V("v_and_b32", o + 1, "0xffff0000", x0))
        E(V("v_lshlrev_b32", o + 2, "16", x0 + 1)); E(V("v_and_b32", o + 3, "0xffff0000", x0 + 1))
    for l in range(2, 5): E(DSW(vWrt, ACC2 + 4 * l, 4, off=(l - 2) * 1024))
    for i in range(3):
        for r in range(4): E(V("v_add_f32", 8 + 4 * i + r, 8 + 4 * i + r, ACC2 + 4 * i + r))
    a.wait(lg=0); a.barrier()
    st("red")
    RD = 96
    for i in range(3): E(DSR(RD + 4 * i, 4, vRr, off=i * 1024))
    for i in range(3):
        o = 8 + 4 * i
        for r in range(4): E(V("v_add_f32", o + r, o + r, RD + 4 * i + r))
        E(V("v_cvt_pk_bf16_f32", X0 + 2 * i, o, o + 1)); E(V("v_cvt_pk_bf16_f32", X0 + 2 * i + 1, o + 2, o + 3))
        E(BST(X0 + 2 * i, 2, vXO if i < 2 else vXO3, S_OUT, sP2X, off=32 * i if i < 2 else 0, mod=cfg.get("om", "")))
    st("out")
    if epoch:
        uid[0] += 1; Lb = f"L_ep{uid[0]}"
        E(S("s_or_b32 s4, s2, s3")); a.raw(f"s_cbranch_scc1 {Lb}")
        check(a, epl, tag_cmp([EP + 4, EP + 5, EP + 6, EP + 7], 24))
        E(V("v_mov_b32", 25, sTag)); E(V("v_lshlrev_b32", 24, "20", vL16)); E(S(f"s_mov_b32 s4, {EPO_OFF}"))
        E(BST(25, 1, 24, 20, "s4", mod=SC1))
        a.label(Lb)

def common_wait(a, stamps):
    E = a.emit
    a.raw("s_waitcnt lgkmcnt(0)")
    if stamps: a.raw("s_mov_b32 s77, s76")
    E(S(f"s_add_u32 s36, s20, {TOK_OFF}")); E(S("s_addc_u32 s37, s21, 0"))

def cost(o):
    if isinstance(o, list): return 1 + len(o) // 5 if o else 4
    return {"trans": 2, "perml": 2, "salu": 0.5}.get(o.kind, 1)

def gen_ffn(a, name, stamps, cfg):
    E = a.emit; st = Stamp(a, stamps, cfg.get("sel"))
    PFX = cfg.get("pf", False)
    sK, sKx = 40, 50
    XF, A0, A1, A2, WB = 96, 48, 64, 80, 28
    vL16, lane = 0, 1
    vWr = [2, 3, 4]; vDW, vSt, vCol = 5, 6, 7
    TOK = 8; AP = [12, 14]; T = 16
    vPA, vP, vF, vTt = 24, 25, 26, 27
    vDX, vDX2, vXr, vTokA = A2, A2 + 1, A2 + 2, A2 + 6
    TB = 208; XO = 9 * 16384 + 8192
    t0, t1, t2, t3 = T, T + 1, T + 2, T + 3
    sSt, sCb, sRb, sTok = "s13", "s14", "s15", "s19"
    RB = cfg.get("rblk", 1)
    o = L()
    o.s("s_mul_i32 s13, s11, 18", "s_add_u32 s13, s13, s12", f"s_lshr_b32 {sCb}, s13, 3", f"s_and_b32 {sRb}, s13, 7",
        f"s_mul_i32 s4, {sCb}, {cfg.get('rmul', 3)}", f"s_add_u32 s4, s4, {sRb}")
    o += mod_ops("s4", "s19", RB)
    o.s("s_lshl_b32 s5, s10, 3", f"s_add_u32 {sRb}, {sRb}, s5")
    o += rot_table("s19", sK, 64 * 3456, sKx, 0, 2, RB)
    o.s("s_and_b32 s4, s3, 3", "s_lshr_b32 s5, s3, 2", "s_lshl_b32 s6, s4, 3")
    o.v("v_lshrrev_b32", t0, "3", lane).v("v_and_b32", t1, "7", lane).v("v_add_u32", t2, "s6", t0)
    o.v("v_bfe_u32", t3, t2, "1", "3").v("v_xor_b32", t3, t1, t3)
    o.v("v_and_b32", vDX, "15", t2).v("v_lshrrev_b32", t2, "4", t2).v("v_lshl_add_u32", vDX, vDX, "1", t2)
    o.s(f"s_lshl_b32 s6, {sRb}, 7", "s_lshl_b32 s9, s5, 5", "s_add_u32 s6, s6, s9")
    o.v("v_add_u32", vDX, "s6", vDX).v("v_mul_u32_u24", vDX, "1280", vDX).v("v_lshl_add_u32", vDX, t3, "4", vDX).v("v_add_u32", vDX2, str(64 * 1280), vDX)
    o.v("v_lshrrev_b32", t2, "2", lane).v("v_and_b32", t2, "4", t2).v("v_xor_b32", t2, t1, t2)
    o.v("v_mul_u32_u24", vDW, "3456", t0).v("v_lshl_add_u32", vDW, t2, "4", vDW)
    o.s(f"s_mul_i32 s6, s3, {8*3456}", f"s_mul_i32 s9, {sCb}, 384", "s_add_u32 s6, s6, s9")
    o.v("v_add_u32", vDW, "s6", vDW)
    E(o); E(st_pre(TB, lane))
    items = {}
    free = list(range(10))
    qX = [("X", s) for s in range(10)]
    qW = [("W", s) for s in range(30)]
    dma_chunk = [0]
    def dma_ops(it, slot):
        kind, s = it
        base = slot * 16384
        m0 = lambda x: S(f"s_add_u32 m0, {sL}, {base+x}")
        if kind == "X":
            return [[m0(0), DMA(vDX, 24, f"s{sKx+s}", tag=it)], [m0(8192), DMA(vDX2, 24, f"s{sKx+s}", tag=it)]]
        if s < 10:
            return [[m0(0), DMA(vDW, 28, f"s{sK+s}", tag=it, mod=DBG.get("wm", ""))], [m0(8192), DMA(vDW, 32, f"s{sK+s}", tag=it, mod=DBG.get("wm", ""))]]
        p = (s - 10) // 5 + 1; j = (s - 10) % 5
        chunk = (p + 1) // 2; srdw = 28 if p % 2 == 1 else 32
        pre = []
        if chunk != dma_chunk[0]:
            dma_chunk[0] = chunk; pre = [V("v_add_u32", vDW, "128", vDW)]
        return [pre + [m0(0), DMA(vDW, srdw, f"s{sK+2*j}", tag=it, mod=DBG.get("wm", ""))], [m0(8192), DMA(vDW, srdw, f"s{sK+2*j+1}", tag=it, mod=DBG.get("wm", ""))]]
    def slot_of(it):
        kind, s = it
        return (s + 2) % 4 if kind == "X" else ([4, 5, 6, 7, 8, 4, 5, 6, 7, 4][s] if s < 10 else s % 10)
    def refill(maxstage=99):
        out = []
        while True:
            cands = []
            for q in (qX, qW):
                if q and q[0][1] <= maxstage and slot_of(q[0]) in free and not (q is qW and q[0][1] >= 10 and slot_of(q[0]) < 4 and any(slot_of(x) == slot_of(q[0]) for x in qX)):
                    cands.append((q[0][1], q is qW, q))
            if not cands: break
            cands.sort(key=lambda c: c[:2]); q = cands[0][2]
            it = q.pop(0); sl = slot_of(it); free.remove(sl); items[it] = sl; out += dma_ops(it, sl)
        if not qW and p2["go"]:
            while p2["pieces"] < 20 and p2["pieces"] // 2 in free:
                k = p2["pieces"]; out.append(p2_w_item(k // 5, vL16)[k % 5]); p2["pieces"] += 1
        return out
    p2 = {"pieces": 0, "act": 0, "go": False}
    o = L()
    o.s("s_bitcmp1_b32 s13, 0", "s_cselect_b32 s8, 57, 30", f"s_mov_b32 s{S_AUX+2}, {640*3456}", f"s_mov_b32 s{S_AUX+3}, 0x20000",
        f"s_mul_i32 s9, {sCb}, 3", "s_bfe_u32 s4, s13, 0x20001", "s_add_u32 s9, s9, s4", "s_add_u32 s8, s8, s9", "s_lshl_b32 s9, s9, 7", "s_cmp_lt_u32 s4, 3")
    o += col_pre(TB, lane, 3456)
    o.s("s_and_b32 s17, s13, 6")
    common_wait(a, stamps)
    E(st_issue(TB))
    o.s("s_bitcmp1_b32 s13, 0", f"s_cselect_b32 s{S_AUX}, s32, s28", f"s_cselect_b32 s{S_AUX+1}, s33, s29")
    ci = [[Cond("s_cmp_lt_u32 s17, 6", g)] for g in col_issue(TB, S_AUX, 3456)]
    if cfg.get("nocol") == 1: ci = []
    if cfg.get("nocol") == 2:
        ci = [[V("v_mul_u32_u24", TB + 16, "3456", lane)], [Cond("s_cmp_lt_u32 s17, 6", [S("s_mul_i32 s9, s3, %d" % (32 * 3456)), S("s_add_u32 s9, s9, s78"), S("s_mov_b32 exec_hi, 0xff"),
              BLD(TB + 17, 1, TB + 16, S_AUX, "s9"), S("s_mov_b64 exec, -1")])]]
    dq = refill(0)
    paced(E, o, dq, cfg.get("pace0", 8))
    st("i0")
    dq += ci + refill(1)
    o0 = L()
    o0.s("s_mul_i32 s12, s10, 72", "s_add_u32 s12, s12, s13", "s_cmp_ge_u32 s12, 90",
        f"s_cselect_b32 s0, s{P_WO}, s{P_W2}", f"s_cselect_b32 s1, s{P_WO+1}, s{P_W2+1}")
    o0 += rot_table("s19", sK, 64 * 3456, sKx, 2, 10, RB)
    rp_pre = L()
    rp_pre.s("s_mul_i32 s10, s12, 57", "s_lshr_b32 s10, s10, 9", "s_mul_i32 s4, s10, 9", "s_sub_u32 s11, s12, s4",
        "s_sub_u32 s4, s12, 90", "s_lshr_b32 s5, s4, 2", "s_and_b32 s4, s4, 3", "s_cmp_ge_u32 s12, 90",
        "s_cselect_b32 s10, s5, s10", "s_cselect_b32 s11, s4, s11", "s_cselect_b32 s4, 5, 6", "s_cselect_b32 s5, 5, 2", "s_cselect_b32 s6, 54, 0",
        "s_cselect_b32 s7, 2, 18", "s_cselect_b32 s8, 9, 0",
        "s_add_u32 s8, s8, s11", "s_lshl_b32 s8, s8, 2",
        "s_mul_i32 s4, s4, s11", "s_lshr_b32 s9, s3, 2", "s_add_u32 s4, s4, s9",
        "s_mul_i32 s5, s5, s11", "s_add_u32 s5, s5, s6", "s_add_u32 s5, s5, s9",
        "s_lshl_b32 s4, s4, 2", "s_and_b32 s6, s3, 3", "s_add_u32 s4, s4, s6", f"s_mul_i32 s4, s4, {8*1280}", "s_lshl_b32 s9, s10, 7", "s_add_u32 s63, s4, s9",
        "s_add_u32 s8, s8, s9",
        "s_lshl_b32 s4, s10, 2", "s_add_u32 s4, s4, s6", "s_mul_i32 s6, s4, 52", "s_lshr_b32 s6, s6, 8", "s_mul_i32 s6, s6, 365", "s_add_u32 s6, s6, s4",
        "s_mul_i32 s5, s5, 5", "s_add_u32 s6, s6, s5", "s_lshl_b32 s6, s6, 10", f"s_add_u32 s76, s6, {W2F_OFF}",
        f"s_add_u32 s10, s8, {FLG_OFF + 32*128}",
        "s_cmp_lt_u32 s12, 130", f"s_cselect_b32 s76, s76, {0x70000000}", f"s_cselect_b32 s63, s63, {0x70000000}", f"s_cselect_b32 s10, s10, {0x30000000}",
        )
    rp_pre.v("v_lshrrev_b32", T + 4, "3", lane).v("v_mul_u32_u24", T + 4, "1280", T + 4).v("v_and_b32", T + 5, "7", lane).v("v_lshl_add_u32", T + 4, T + 5, "4", T + 4)
    rp_pre.v("v_lshrrev_b32", vP, "4", lane).v("v_lshlrev_b32", vP, "10", vP).v("v_bfe_u32", vTt, lane, "2", "2").v("v_lshl_add_u32", vP, vTt, "7", vP)
    rp_pre.v("v_and_b32", vTt, "3", lane).v("v_lshl_add_u32", vP, vTt, "3", vP)
    rp_pre.s("s_lshr_b32 s4, s3, 2", "s_lshl_b32 s4, s4, 12", "s_and_b32 s5, s3, 3", "s_lshl_b32 s5, s5, 5", "s_add_u32 s4, s4, s5", f"s_add_u32 s4, s4, {8*16384}").v("v_add_u32", vP, "s4", vP)
    o = L()
    o.s("s_and_b32 s4, s3, 3", "s_lshr_b32 s5, s3, 2")
    o.v("v_lshrrev_b32", t0, "5", lane).v("v_lshlrev_b32", t0, "10", t0).v("v_bfe_u32", t1, lane, "2", "2").v("v_lshl_add_u32", t0, t1, "7", t0)
    o.v("v_lshrrev_b32", t1, "1", t1).v("v_xor_b32", t1, "s5", t1).v("v_lshl_add_u32", t0, t1, "6", t0)
    o.v("v_bfe_u32", t1, lane, "4", "1").v("v_lshl_add_u32", t0, t1, "5", t0).v("v_and_b32", t1, "1", lane).v("v_lshl_add_u32", t0, t1, "4", t0)
    o.v("v_bfe_u32", t1, lane, "1", "1").v("v_lshl_add_u32", vWr[0], t1, "3", t0)
    o.v("v_add_u32", vWr[1], "0x10000", vWr[0]).v("v_add_u32", vWr[2], "0x20000", vWr[0])
    o.v("v_and_b32", t0, "31", lane).v("v_lshrrev_b32", t1, "5", lane).v("v_bfe_u32", t2, lane, "1", "3").v("v_xor_b32", t2, t1, t2)
    o.s("s_lshl_b32 s6, s4, 12")
    o.v("v_lshlrev_b32", t3, "7", t0).v("v_add_u32", t3, "s6", t3)
    for s4 in range(4): o.v("v_xor_b32", vXr + s4, str(2 * s4), t2).v("v_lshl_add_u32", vXr + s4, vXr + s4, "4", t3)
    o += rp_pre
    o += p2_setup(vPA, lane, "s4", "s11")
    paced(E, o0 + o, dq, cfg.get("pace", 40))
    st("i1")
    while any(x.kind == "vld" for g in dq for x in g): E(dq.pop(0))
    o = L()
    o += stats_ops(TB, XO)
    dq += refill(cfg.get("pre", 1))
    paced(E, o, dq, cfg.get("pace2", 16))
    E(Block("s_cmp_lt_u32 s17, 6", col_acc_ops(TB, lane, XO)))
    E(L().s(*PERMSEL))
    st("i3")
    D = L()
    D.append(list(L().s("s_and_b32 s4, s3, 3", "s_lshr_b32 s5, s3, 2", f"s_lshl_b32 s6, {sRb}, 2", "s_add_u32 s6, s6, s4", f"s_lshl_b32 {sTok}, s6, 9",
        "s_mul_i32 s6, s6, 74", f"s_lshl_b32 s7, {sCb}, 1", "s_add_u32 s6, s6, s7", "s_add_u32 s6, s6, s5", f"s_lshl_b32 {sSt}, s6, 11")))
    D.v("v_lshrrev_b32", t1, "5", lane).v("v_and_b32", t2, "15", lane).v("v_bfe_u32", t3, lane, "4", "1").v("v_lshl_add_u32", vTokA, t2, "1", t3).v("v_lshlrev_b32", vTokA, "4", vTokA)
    D.v("v_lshlrev_b32", vSt, "10", t3).v("v_lshl_add_u32", vSt, t1, "8", vSt).v("v_lshl_add_u32", vSt, t2, "4", vSt)
    D.v("v_and_b32", vCol, "19", lane).v("v_bfe_u32", t2, lane, "2", "1").v("v_lshl_add_u32", vCol, t2, "3", vCol)
    D.v("v_bfe_u32", t2, lane, "3", "1").v("v_lshl_add_u32", vCol, t2, "2", vCol)
    D.append(list(L().s(f"s_mul_i32 s6, {sCb}, 384", "s_lshr_b32 s5, s3, 2", "s_lshl_b32 s7, s5, 5", "s_add_u32 s6, s6, s7").v("v_add_u32", vCol, "s6", vCol)))
    D.v("v_lshlrev_b32", vCol, "3", vCol).v("v_lshl_add_u32", vCol, t1, "9", vCol)
    D.append(list(L().s(f"s_lshl_b32 {sOwn}, {sRb}, 7", f"s_lshl_b32 s6, {sCb}, 2", f"s_add_u32 {sOwn}, {sOwn}, s6", f"s_add_u32 {sOwn}, {sOwn}, {FLG_OFF}")))
    D.s(f"s_mov_b32 s14, {COL_OFF + 30*1024}", f"s_mov_b32 s15, {COL_OFF + 57*1024}")
    D.v("v_lshlrev_b32", vL16, "4", lane).v("v_or_b32", vF, sL, lane).v("v_min_u32", vF, "1", vF).v("v_lshlrev_b32", vF, "30", vF)
    def colload(dst, mat, chunk):
        return BLD(dst, 2, vCol, 20, "s14" if mat == 0 else "s15", off=chunk * 1024, tag="col", mod=SC1)
    def colchk(dst, mat, chunk):
        E(col_fix(dst))
    M = []
    for t in range(40):
        M.append((A0, t, t // 4, 0, t % 4)); M.append((A1, t, t // 4, 1, t % 4))
    for p, acc in ((1, A2), (2, A0), (3, A1), (4, A0)):
        for t in range(40):
            M.append((acc, t, 10 + 5 * (p - 1) + t // 8, (t // 4) % 2, t % 4))
    PF = 4; NB = 5
    def reads(n):
        acc, t, s, half, sub = M[n]
        pos = items[("W", s)] * 16384 + half * 8192 + sub * 2048
        b = WB + 4 * (n % NB)
        return [DSR(b, 2, vWr[pos >> 16], off=pos & 0xffff, tr=True), DSR(b + 2, 2, vWr[pos >> 16], off=(pos & 0xffff) + 512, tr=True)]
    fill = []
    def silu(G):
        ops = []
        if cfg.get("nosilu"): return ops
        for i in range(0, 16, 4):
            ops += [V("v_mul_f32", T + e, G + i + e, TOK + 2) for e in range(4)]
            ops += [V("v_exp_f32", T + e, T + e) for e in range(4)]
            ops += [V("v_fma_f32", T + e, T + e, TOK + 3, TOK + 3) for e in range(4)]
            ops += [V("v_rcp_f32", T + e, T + e) for e in range(4)]
            ops += [V("v_mul_f32", G + i + e, G + i + e, T + e) for e in range(4)]
        return ops
    def fin(G, U, chunk):
        ops = []
        for ip in range(2):
            ops += [V("v_mul_f32", G + 8 * ip + e, G + 8 * ip + e, U + 8 * ip + e) for e in range(8)]
            ops += [V("v_cvt_pk_bf16_f32", T + 4 + e, G + 8 * ip + 2 * e, G + 8 * ip + 2 * e + 1) for e in range(4)]
            mk = lambda: BST(T + 4, 4, vSt, 20, sSt, off=512 * ip, tag="st", mod=SC1)
            if cfg.get("stag") and chunk < 2: ops += [[Cond("s_cmp_lt_u32 s3, 4", [mk()])], [], [Cond("s_cmp_ge_u32 s3, 4", [mk()])]]
            else: ops.append(mk())
        if chunk < 2: ops.append(S(f"s_add_u32 {sSt}, {sSt}, {18*2048}"))
        return ops
    at_sync = {}
    def sync(s):
        its = [("W", s)] + ([("X", s)] if s < 10 else [])
        ex = at_sync.get(s, {})
        tags = its + ex.get("tags", [])
        while any(getattr(x, "tag", None) in tags for g in dq for x in g): E(dq.pop(0))
        for it in its: assert it in items
        for o_ in fill:
            for x_ in (o_ if isinstance(o_, list) else [o_]): assert getattr(x_, "tag", None) not in tags, (s, x_.text)
        tags.sort(key=lambda it: max([i for i, e in enumerate(a.vm) if e[1] == it] + [-1]))
        lg = None
        if 1 <= s <= 10:
            xr = set(rng(XF + 16 * (s - 1), 16))
            idx = [i for i, e in enumerate(a.lg) if e & xr]
            if idx: lg = len(a.lg) - 1 - max(idx)
        if s == 0: lg = 0
        if "lgw" in ex:
            idx = [i for i, e in enumerate(a.lg) if not e]
            if idx: lg = min(99 if lg is None else lg, len(a.lg) - 1 - max(idx))
        a.wait_tag(tags[-1], lg=lg)
        if not (cfg.get("nobar") and s > 11 and s % 2): a.barrier()
        st(f"s{s}")
        if 1 <= s <= 10: free.append(items[("X", s - 1)])
        if s >= 2: free.append(items[("W", s - 2)])
        free.extend(ex.get("free", []))
        if "post" in ex: ex["post"]()
        dq.extend(refill())
        if s < 10:
            for s4 in range(4):
                E(DSR(XF + 4 * (4 * s + s4), 4, vXr + s4, off=items[("X", s)] * 16384))
    def chk_empty(): assert not fill, len(fill)
    fill += tok_fin_ops(TB, XO)
    fill += [[Block(f"s_cmp_lt_u32 {sColSt}, {HUGE}", col_fin_ops(TB + 16, TB + 6, lane, XO))]] + D
    RS = [8, 9]
    def rp_issue():
        for x in RS: free.remove(x)
        dq.append(list(L().s(f"s_mov_b32 s{S_AUX}, s0", f"s_mov_b32 s{S_AUX+1}, s1", f"s_mov_b32 s{S_AUX+2}, {1728*1280}", f"s_mov_b32 s7, {18*5120}", "s_cmp_ge_u32 s12, 90",
              f"s_cselect_b32 s{S_AUX+2}, {640*1280}, s{S_AUX+2}", f"s_cselect_b32 s7, {2*5120}, s7", "s_add_u32 s0, s76, s7", "s_add_u32 s1, s0, s7")))
        dq.append(list(L().s("s_lshr_b32 s4, s3, 2", "s_mul_i32 s4, s4, s12", "s_cmp_ge_u32 s4, 90", f"s_cselect_b32 s1, {0x70000000}, s1")))
        for z in range(3):
            dq.append([S(f"s_add_u32 m0, {sL}, {RS[0]*16384 + z*8192}"), DMA(T + 4, S_AUX, "s63", tag="rp", mod=DBG.get("rm", " nt")), S(f"s_add_u32 s63, s63, {64*1280}")])
    def rp_rd(z): return [DSR(T + 4, 2, vP, off=z * 8192, tr=True), DSR(T + 6, 2, vP, off=z * 8192 + 512, tr=True)]
    def rp_st(z): return BST(T + 4, 4, vL16, 20, ["s76", "s0", "s1"][z], tag="rps", mod=SC1)
    at_sync[8] = dict(post=rp_issue)
    at_sync[11] = dict(tags=["rp"])
    at_sync[13] = dict(free=RS)
    at_sync[cfg.get("fw", 14)] = dict(tags=["rps"], post=lambda: E(flag_st(vTt, vF, LV_W2, "s10")))
    at_sync[17] = dict(tags=["st"], post=lambda: E(flag_st(vTt, vF, LV_A)))
    at_sync[cfg.get("fb", 24)] = dict(tags=["st"], post=lambda: E(flag_st(vTt, vF, LV_B)))
    sync(0)
    for n in range(PF): E(reads(n))
    def w2chk():
        flg_check(a, vP, vPA, LV_W2); p2["go"] = True
    def achk():
        flg_check(a, vP, vPA, LV_A)
    P1 = cfg.get("p1", 46); WC = cfg.get("wc", 168); AC = cfg.get("ac", 198)
    tokld = BLD(TOK, 4, vTokA, 36, sTok, tag="tok", mod=SC1)
    first = [tokld, colload(AP[0], 0, 0), colload(AP[1], 1, 0)] + \
            [BLD(T + i, 1, vCol, 20, "s14" if i % 2 == 0 else "s15", off=(1 + i // 2) * 1024 + 4, mod=SC1) for i in range(4)]
    after = {}
    def at(n, f): after.setdefault(n, []).append(f)
    if cfg.get("tag1", 1):
        import copy
        at(P1, lambda: E([V("v_mov_b32", T + i, sTag) for i in range(4)] + [S("s_and_b32 s4, s3, 3"), Cond("s_cmp_eq_u32 s4, 0", [copy.copy(x) for x in first[3:]])]))
        for i, x in enumerate(first[:3]): at(P1 + 8 + 4 * i, lambda x=x: E(x))
    else:
        for i, x in enumerate(first): at(P1 + 3 * i, lambda x=x: E(x))
    at(79, lambda: (check(a, first, tag_cmp([TOK + 1, AP[0] + 1, AP[1] + 1, T, T + 1, T + 2, T + 3], vTt)), E(col_fix(AP[0])), E(col_fix(AP[1])),
                    E(V("v_mov_b32", TOK + 1, TOK)), E(V("v_mul_f32", TOK + 2, NLOG2E, TOK + 2))))
    at(82, lambda: (E(MFMA32C(A0, AP[0], TOK)), E(MFMA32C(A1, AP[1], TOK)),
                    fill.extend([[], []] + silu(A0) + fin(A0, A1, 0))))
    for z in range(3):
        if cfg.get("stag"):
            at(85 + 5 * z, lambda z=z: E(rp_rd(z))); at(87 + 5 * z, lambda z=z: E(Cond("s_cmp_lt_u32 s3, 4", [rp_st(z)]))); at(89 + 5 * z, lambda z=z: E(Cond("s_cmp_ge_u32 s3, 4", [rp_st(z)])))
        else:
            at(86 + 4 * z, lambda z=z: E(rp_rd(z))); at(89 + 4 * z, lambda z=z: E(rp_st(z)))
    at(101, lambda: E(colload(AP[0], 0, 1))); at(105, lambda: E(colload(AP[1], 1, 1)))
    at(119, lambda: colchk(AP[0], 0, 1))
    at(122, lambda: (E(MFMA32C(A2, AP[0], TOK)), fill.extend([colload(AP[0], 0, 2), [], []] + silu(A2))))
    at(159, lambda: colchk(AP[1], 1, 1))
    at(162, lambda: (E(MFMA32C(A0, AP[1], TOK)), fill.extend([colload(AP[1], 1, 2), [], []] + fin(A2, A0, 1))))
    at(WC - cfg.get("pl", 14), lambda: E(flg_poll(vP, vPA, LV_W2))); at(WC, w2chk)
    if PFX:
        for p in range(1, 4): at(WC + 1 + cfg.get("pfs", 6) * (p - 1), lambda p=p: E(pf_w2(p, vTt, T + p, lane)))
    at(199, lambda: colchk(AP[0], 0, 2))
    at(202, lambda: (E(MFMA32C(A1, AP[0], TOK)), fill.extend([[], []] + silu(A1))))
    at(AC - cfg.get("pl", 14), lambda: E(flg_poll(vP, vPA, LV_A))); at(AC, achk)
    at(220, lambda: colchk(AP[1], 1, 2))
    PARK = cfg.get("park", 177)
    if PARK:
        for i in range(4):
            at(PARK + 6 * i, lambda i=i: (chk_empty(), E([S(f"s_add_u32 s9, {sP2W}, {3*8*5120 + (i+1)*1024}"), BLD(A2 + 4 * i, 4, vL16, 20, "s9", mod=SC1)])))
    at(236, lambda: E(flg_poll(3, vPA, LV_B)))
    for n in range(240):
        acc, t, s, half, sub = M[n]
        if n in (P1, 80, 120, 200): chk_empty()
        E(MFMA32(acc, WB + 4 * (n % NB), XF + 4 * t, c="0" if t == 0 else None))
        m = n + PF
        if m < 240:
            if m % 8 == 0: sync(m // 8)
            E(reads(m))
        for f in after.get(n, []): f()
        b = cfg.get("b1", 4.5) if (80 <= n < 120) else cfg.get("b2", 3.5) if 120 <= n < 200 else cfg.get("b", 3.5)
        ph = m % 8
        okd = ph in cfg.get("ph0", [1, 2, 3, 4, 5, 6]) if n < 80 else ph in ((cfg.get("ph2", [2, 4, 6]) if n >= cfg.get("cu", 80) else cfg.get("ph3", [3, 5])) if len(dq) > 2 else cfg.get("ph1", [3, 5]))
        if dq and (okd or not any(x.kind == "dma" for x in dq[0])):
            g_ = dq.pop(0)
            if cfg.get("nodma") and n >= 80: g_ = [x for x in g_ if x.kind != "dma"]
            E(g_); b -= 1
        elif n >= cfg.get("ago", 202) and ph in (1, 7) and p2["act"] < 9:
            assert p2["act"] <= t
            E(p2_act(p2["act"], vL16)); p2["act"] += 1; b -= 1
        while fill and b > 0:
            o_ = fill.pop(0); E(o_); b -= cost(o_)
    assert not fill and not dq
    st("p1e")
    E(MFMA32C(A0, AP[1], TOK))
    E(V("v_mov_b32", 2, vPA)); E(V("v_mov_b32", 4, vF))
    E(fin(A1, A0, 2))
    phase2(a, st, cfg, vL16, lane, 2, 3, p2["pieces"], p2["act"], cfg.get("rate", 2.1), flag_st(5, 4, LV_C), epoch=True,
           parked=[(16 + i, A2 + 4 * i) for i in range(4)] if PARK else [])
    st.finish(1, name, cfg.get("stw", 0))
    a.raw("s_endpgm")

def gen_qkv(a, name, stamps, cfg):
    E = a.emit; st = Stamp(a, stamps, cfg.get("sel"))
    PFX = cfg.get("pf", False)
    sK, sKx = 40, 50
    vL16, lane = 0, 1
    ACC = 176; FR = [128, 152]; TB = 80
    vPA, vP, vF = 2, 3, 4
    vDW, vDX = 5, 6
    vWr, vXr = 9, 12
    TOK = 24; AP = 44; vQW = 46; T = 50
    vTt, vColA, vTokA = 57, 58, 87
    BC, BP, MC, MP, ONE, MG0 = 60, 64, 68, 70, 72, 76
    vQ, vQ2, vV, vV2, vOW, vOW2, vOR = 77, 78, 79, 80, 81, 82, 83
    n_, g_ = 85, 86
    vOG = 92
    t0, t1, t2, t3, t4 = T, T + 1, T + 2, T + 3, T + 4
    sHg, sB, sT0 = "s13", "s14", "s15"
    SLOT = 53248; WOFF = 20480; DUMMY = 3 * SLOT; XOFF = DUMMY + 1024
    sM3 = ["s68", "s69", "s70"]
    RB = cfg.get("rblkq", 5)
    E(st_pre(TB, lane, TOK))
    o = L()
    o.s("s_sub_u32 s12, s12, 18", f"s_mov_b32 s30, {640*3840}",
        "s_cmp_ge_u32 s12, 7", f"s_cselect_b32 {sHg}, 1, 0", f"s_cselect_b32 {sB}, 7, 0", f"s_sub_u32 {sB}, s12, {sB}",
        f"s_mul_i32 s4, {sHg}, {cfg.get('rmulq', 2)}", f"s_add_u32 s4, s4, {sB}")
    o += mod_ops("s4", "s19", RB)
    o.s("s_lshl_b32 s4, s11, 1", f"s_add_u32 {sHg}, {sHg}, s4", "s_mul_i32 s4, s10, 7", f"s_add_u32 {sB}, {sB}, s4")
    o += rot_table("s19", sK, 64 * 3840, sKx, 0, 1, RB)
    o.s("s_and_b32 s4, s3, 3", "s_lshr_b32 s5, s3, 2", "s_lshl_b32 s6, s4, 3")
    o.v("v_lshrrev_b32", t0, "3", lane).v("v_and_b32", t1, "7", lane).v("v_add_u32", t2, "s6", t0)
    o.v("v_bfe_u32", t3, t2, "1", "3").v("v_xor_b32", t3, t1, t3)
    o.v("v_and_b32", vDX, "15", t2).v("v_lshrrev_b32", t2, "4", t2).v("v_lshl_add_u32", vDX, vDX, "1", t2)
    o.s(f"s_mul_i32 {sT0}, {sB}, 146", "s_lshl_b32 s9, s5, 5", f"s_add_u32 s6, {sT0}, s9")
    o.v("v_add_u32", vDX, "s6", vDX).v("v_mul_u32_u24", vDX, "1280", vDX).v("v_lshl_add_u32", vDX, t3, "4", vDX).v("v_add_u32", vDX + 1, str(64 * 1280), vDX)
    o.v("v_add_u32", vDX + 2, str(128 * 1280), vDX)
    E(o)
    def dma_stage(s):
        z = s % 3; base = z * SLOT
        ops = [[S(f"s_add_u32 m0, {sL}, {base}"), DMA(vDX, 24, f"s{sKx+s}", tag=s)],
               [S(f"s_add_u32 m0, {sL}, {base+8192}"), DMA(vDX + 1, 24, f"s{sKx+s}", tag=s)],
               [Cond("s_cmp_lt_u32 s3, 4", [S(f"s_add_u32 m0, {sL}, {base+16384}"), DMA(vDX + 2, 24, f"s{sKx+s}", tag=s)])]]
        for e in range(4):
            g = [S(f"s_add_u32 m0, {sL}, {base+WOFF+e*8192}")]
            if e == 0: g.append(DMA(vDW, 28, f"s{sK+s}", tag=s, mod=DBG.get("wm", "")))
            else: g += [S(f"s_add_u32 s63, s{sK+s}, {e*16*3840}"), DMA(vDW, 28, "s63", tag=s, mod=DBG.get("wm", ""))]
            ops.append(g)
        return ops
    o = L()
    o.s("s_lshl_b32 s6, s3, 1")
    o.v("v_lshrrev_b32", t0, "5", lane).v("v_add_u32", t0, "s6", t0)
    o.v("v_and_b32", t1, "3", t0).v("v_lshlrev_b32", t1, "2", t1).v("v_and_b32", t2, "31", lane).v("v_xor_b32", t1, t1, t2)
    o.v("v_mul_u32_u24", t2, "26", t1).v("v_lshrrev_b32", t2, "8", t2)
    o.v("v_mul_u32_u24", t3, str(1280 - 160), t2).v("v_lshl_add_u32", t3, t1, "4", t3)
    o.v("v_add_u32", t1, "2", t1).v("v_lshrrev_b32", t1, "5", t1).v("v_lshl_add_u32", t3, t1, "30", t3)
    o.v("v_mul_u32_u24", vDW, "3840", t0).v("v_add_u32", vDW, vDW, t3)
    o.s(f"s_mul_i32 s6, {sHg}, 160").v("v_add_u32", vDW, "s6", vDW)
    E(o)
    common_wait(a, stamps)
    E(S(f"s_mov_b32 s28, s{P_QKV}")); E(S(f"s_mov_b32 s29, s{P_QKV+1}"))
    E(st_issue(TB, TOK))
    dq = dma_stage(0)
    paced(E, rot_table("s19", sK, 64 * 3840, sKx, 1, 10, RB), dq, cfg.get("paceq0", 12))
    st("i0")
    o = L()
    o.v("v_lshrrev_b32", t0, "5", lane).v("v_lshlrev_b32", t0, "12", t0).v("v_bfe_u32", t1, lane, "2", "2").v("v_lshl_add_u32", t0, t1, "9", t0)
    o.v("v_xor_b32", t1, "s3", t1).v("v_lshl_add_u32", t0, t1, "6", t0)
    o.v("v_bfe_u32", t1, lane, "4", "1").v("v_lshl_add_u32", t0, t1, "5", t0).v("v_and_b32", t1, "3", lane).v("v_lshl_add_u32", t0, t1, "3", t0)
    for z in range(3): o.v("v_add_u32", vWr + z, str(z * SLOT + WOFF), t0)
    o.v("v_and_b32", t0, "31", lane).v("v_lshrrev_b32", t1, "5", lane).v("v_bfe_u32", t2, lane, "1", "3").v("v_xor_b32", t2, t1, t2).v("v_lshlrev_b32", t3, "7", t0)
    for s4 in range(4):
        o.v("v_xor_b32", t4, str(2 * s4), t2).v("v_lshl_add_u32", vXr + s4, t4, "4", t3)
        for z in (1, 2): o.v("v_add_u32", vXr + 4 * z + s4, str(z * SLOT), vXr + s4)
    o.s("s_mul_i32 s4, s11, 15", "s_add_u32 s4, s4, 1", "s_lshr_b32 s4, s4, 1", "s_add_u32 s4, s4, s12",
        "s_mul_i32 s6, s4, 86", "s_lshr_b32 s6, s6, 8", "s_mul_i32 s7, s6, 3", "s_sub_u32 s4, s4, s7", "s_mul_i32 s8, s4, 10", "s_add_u32 s8, s8, s6",
        "s_lshl_b32 s9, s8, 7", "s_and_b32 s4, s11, 1", "s_add_u32 s4, s4, s12", "s_cmp_lt_u32 s4, 8")
    o += col_pre(TB, lane, 3840)
    o_pre = o
    QB = 81920
    D = L()
    D += p2_setup(vPA, lane)
    D.s(f"s_lshl_b32 {sOwn}, {sB}, 5", f"s_add_u32 {sOwn}, {sOwn}, {sHg}", f"s_lshl_b32 {sOwn}, {sOwn}, 2", f"s_add_u32 {sOwn}, {sOwn}, {FLG_OFF + 16*128}",
        f"s_mov_b32 s12, {COL_OFF}")
    D.v("v_lshlrev_b32", vL16, "4", lane).v("v_or_b32", vF, sL, lane).v("v_min_u32", vF, "1", vF).v("v_lshlrev_b32", vF, "30", vF)
    D.v("v_and_b32", t0, "31", lane).v("v_lshrrev_b32", t1, "5", lane)
    D.v("v_and_b32", t2, "15", lane).v("v_bfe_u32", t3, lane, "4", "1").v("v_lshl_add_u32", t4, t2, "1", t3).v("v_add_u32", t4, sT0, t4)
    for rg in range(5):
        D.v("v_add_u32", vTokA + rg, str(32 * rg), t4).v("v_min_u32", vTokA + rg, "2047", vTokA + rg).v("v_lshlrev_b32", vTokA + rg, "4", vTokA + rg)
    D.s("s_lshl_b32 s6, s3, 5").v("v_add_u32", t0, "s6", t0).v("v_min_u32", t0, "239", t0)
    D.v("v_mul_u32_u24", t4, "205", t0).v("v_lshrrev_b32", t4, "14", t4).v("v_mul_u32_u24", t4, "560", t4).v("v_add_u32", t4, t4, t0)
    D.s(f"s_mul_i32 s6, {sHg}, 80").v("v_add_u32", t4, "s6", t4)
    D.v("v_lshrrev_b32", vColA, "6", t4).v("v_lshlrev_b32", vColA, "10", vColA).v("v_and_b32", t4, "63", t4)
    D.v("v_lshl_add_u32", vColA, t4, "3", vColA).v("v_lshl_add_u32", vColA, t1, "9", vColA)
    D.v("v_mul_u32_u24", T + 5, "3200", t3).v("v_mul_u32_u24", T + 6, "40", t2).v("v_add_u32", T + 5, T + 5, T + 6).v("v_add_u32", T + 5, str(QB), T + 5)
    D.s("s_lshl_b32 s6, s3, 3")
    for i in range(4):
        D.v("v_add_u32", t0, "s6", t1)
        if i: D.v("v_add_u32", t0, str(2 * i), t0)
        D.v("v_mul_u32_u24", t4, "52", t0).v("v_lshrrev_b32", t4, "8", t4)
        D.v("v_mul_u32_u24", T + 6, str(6400 - 40), t4).v("v_lshl_add_u32", T + 6, t0, "3", T + 6).v("v_add_u32", vQW + i, T + 6, T + 5)
    D.v("v_and_b32", n_, "15", lane).v("v_lshrrev_b32", g_, "4", lane).v("v_lshlrev_b32", t0, "2", g_).v("v_sub_u32", t0, n_, t0)
    D.v("v_mov_b32", t4, "0xf149f2ca").v("v_mov_b32", T + 5, "0xffff").v("v_mov_b32", T + 6, "0xffff0000")
    for r in range(4):
        for (BB, MM, add) in ((BC, MC, 0), (BP, MP, 16)):
            D.v("v_add_u32", t1, str(add - r), t0)
            D.append(VCMP("v_cmp_gt_u32", "s[4:5]", "8", t1))
            D.v("v_cndmask_b32", BB + r, t4, "0", "s[4:5]")
            if r % 2 == 0: D.v("v_cndmask_b32", MM + r // 2, "0", T + 5, "s[4:5]")
            else: D.v("v_cndmask_b32", t3, "0", T + 6, "s[4:5]").v("v_or_b32", MM + r // 2, MM + r // 2, t3)
    for r in range(4): D.v("v_mov_b32", ONE + r, "0x3f803f80")
    D.append(VCMP("v_cmp_eq_u32", "s[4:5]", "0", g_))
    D.v("v_cndmask_b32", MG0, "0", "-1", "s[4:5]")
    D.s("s_mul_i32 s6, s3, 3200", f"s_add_u32 s6, s6, {QB}")
    D.v("v_mul_u32_u24", t0, "40", n_).v("v_add_u32", t0, "s6", t0).v("v_lshl_add_u32", vQ, g_, "3", t0).v("v_add_u32", vQ2, "32", t0)
    D.v("v_lshrrev_b32", t0, "2", lane).v("v_mul_u32_u24", t0, "40", t0).v("v_add_u32", t0, "s6", t0).v("v_add_u32", t0, str(51200), t0)
    D.v("v_and_b32", t1, "3", lane).v("v_lshl_add_u32", vV, t1, "3", t0).v("v_add_u32", vV2, "32", t0)
    OB = QB
    D.s(f"s_mul_i32 s7, {sB}, 73", "s_and_b32 s6, s7, 7", "s_lshl_b32 s6, s6, 4", "s_bitcmp1_b32 s3, 0")
    D[-1:] = [[D[-1], S(f"s_cselect_b32 s8, {OB + 1408}, {0}"), S(f"s_max_u32 s8, s8, {OB}"), S("s_add_u32 s6, s6, s8")]]
    D.v("v_lshl_add_u32", t1, n_, "4", "s6")
    D.s("s_lshr_b32 s6, s3, 1", "s_mul_i32 s6, s6, 5")
    for (dst, second) in ((vOW, False), (vOW2, True)):
        if second: D.s("s_add_u32 s6, s6, 4").v("v_mov_b32", t0, "s6")
        else: D.v("v_add_u32", t0, "s6", g_)
        D.v("v_lshrrev_b32", t2, "1", t0).v("v_mul_u32_u24", t2, "2816", t2).v("v_add_u32", dst, t2, t1)
        D.v("v_and_b32", t2, "1", t0).v("v_lshl_add_u32", dst, t2, "3", dst)
    D.v("v_mov_b32", T + 5, str(DUMMY)).v("v_cndmask_b32", vOW2, T + 5, vOW2, "s[4:5]")
    D.v("v_lshrrev_b32", t0, "4", sL) if False else None
    D.v("v_lshl_add_u32", vOR, lane, "4", sL).v("v_add_u32", vOR, str(OB), vOR)
    D.append([S(f"s_mul_i32 s7, {sB}, 73"), S("s_add_u32 s8, s7, 7"), S(f"s_cmp_eq_u32 {sB}, 0"), S("s_cselect_b32 s8, 0, s8"),
              S("s_add_u32 s35, s7, 80"), S("s_sub_u32 s34, s35, s8"), S("s_mov_b32 s33, s8"), S("s_and_b32 s32, s7, -8"),
              S(f"s_mul_i32 s71, {sHg}, 10")])
    D.v("v_mov_b32", T + 5, HUGE)
    for i in range(4):
        D.append([S("s_lshl_b32 s6, s3, 6"), S(f"s_add_u32 s6, s6, {512*i}"), V("v_add_u32", t0, "s6", lane)])
        D.v("v_mul_u32_u24", t1, "745", t0).v("v_lshrrev_b32", t1, "16", t1)
        D.v("v_mul_u32_u24", t2, "88", t1).v("v_sub_u32", t0, t0, t2).v("v_add_u32", t0, "s32", t0)
        D.v("v_lshrrev_b32", t2, "4", t0).v("v_mul_u32_u24", vOG + i, str(74 * 2048), t2)
        D.v("v_and_b32", t2, "15", t0).v("v_lshl_add_u32", vOG + i, t2, "4", vOG + i)
        D.v("v_and_b32", t2, "1", t1).v("v_lshl_add_u32", vOG + i, t2, "10", vOG + i)
        D.v("v_lshrrev_b32", t2, "1", t1).v("v_add_u32", t2, "s71", t2)
        D.v("v_lshrrev_b32", t3, "2", t2).v("v_lshl_add_u32", vOG + i, t3, "11", vOG + i)
        D.v("v_and_b32", t2, "3", t2).v("v_lshl_add_u32", vOG + i, t2, "8", vOG + i)
        D.v("v_subrev_u32", t0, "s33", t0)
        D.append(VCMP("v_cmp_gt_u32", "s[4:5]", "s34", t0))
        D.v("v_cndmask_b32", vOG + i, T + 5, vOG + i, "s[4:5]")
        if i == 3:
            D.append(VCMP("v_cmp_gt_u32", "s[4:5]", "20", t1))
            D.v("v_cndmask_b32", vOG + i, T + 5, vOG + i, "s[4:5]")
    dq += dma_stage(1)
    paced(E, o_pre + D + [S(x) for x in PERMSEL], dq, cfg.get("paceq", 36))
    st("i1")
    paced(E, stats_ops(TOK, XOFF), dq, 16)
    dq += dma_stage(2)
    st("i3")
    def reads(t):
        s, sub = t // 4, t % 4; z = s % 3; f = FR[t % 2]
        ops = [DSR(f, 2, vWr + z, off=sub * 8192, tr=True), DSR(f + 2, 2, vWr + z, off=sub * 8192 + 2048, tr=True)]
        for rg in range(5): ops.append(DSR(f + 4 + 4 * rg, 4, vXr + 4 * z + sub, off=rg * 4096))
        return ops
    tabld = [BLD(TOK + 4 * rg, 4, vTokA + rg, 36, "0", tag="tok", mod=SC1) for rg in range(5)] + [BLD(AP, 2, vColA, 20, "s12", tag="col", mod=SC1)]
    while any(x.tag == 0 for g in dq for x in g): E(dq.pop(0))
    if cfg.get("prio"): E(Cond("s_cmp_ge_u32 s3, 4", [S("s_setprio 1")]))
    a.wait_tag(0, lg=0); a.barrier()
    st("s0")
    E(reads(0))
    fill = tok_fin_ops(TB, XOFF, TOK)
    for t in range(40):
        f = FR[t % 2]
        nxt = []
        if t + 1 < 40:
            if (t + 1) % 4 == 0:
                s = (t + 1) // 4
                while any(x.tag == s for g in dq for x in g): E(dq.pop(0))
                a.wait_tag(s, lg=0); a.barrier()
                st(f"s{s}")
                if s + 2 < 10: dq += dma_stage(s + 2)
                CQ = cfg.get("cq", 1)
                if s in (CQ, CQ + 1):
                    cl_ = [[Cond(f"s_cmp_lt_u32 s78, {HUGE}", g)] for g in col_issue(TB, 28, 3840)]
                    dq += cl_[:3] if s == CQ else cl_[3:]
                if s == CQ + 2: fill = [[]] * 10 + col_acc_ops(TB, lane, XOFF, dot=False)
                if s == CQ + 5:
                    assert not fill; fill = [[Block(f"s_cmp_lt_u32 {sColSt}, {HUGE}", col_fin_ops(TB + 16, vTt, lane, XOFF))]]
                if s == 9:
                    assert not fill
                    dq += [[x] for x in tabld]
                    if cfg.get("qpark", 10): dq.append(flg_poll(vP, vPA, LV_W2))
            nxt = reads(t + 1)
        if t == 39:
            check(a, tabld, tag_cmp([TOK + 4 * rg + 1 for rg in range(5)] + [AP + 1], vTt))
            fill = col_fix(AP) + [V("v_mov_b32", TOK + 4 * rg + 1, TOK + 4 * rg) for rg in range(5)]
        for rg in range(5):
            E(MFMA32(ACC + 16 * rg, f, f + 4 + 4 * rg, c="0" if t == 0 else None))
            for k in range(2):
                if nxt: E(nxt.pop(0))
            b = 2.5
            if (rg >= 3 or (rg >= 1 and len(dq) > 4)) and dq: E(dq.pop(0)); b -= 1
            while fill and b > 0:
                o_ = fill.pop(0); E(o_); b -= cost(o_)
    assert not fill and not dq
    st("ge")
    for rg in range(5): E(MFMA32C(ACC + 16 * rg, AP, TOK + 4 * rg))
    QP = cfg.get("qpark", 10)
    early = []
    if QP:
        flg_check(a, vP, vPA, LV_W2)
        early = p2_w_item(1, vL16)[2:] + [[S(f"s_add_u32 s9, {sP2W}, {(k//5)*8*5120 + (k%5)*1024}"), BLD(132 + 4 * (k - 10), 4, vL16, 20, "s9", mod=SC1)] for k in range(10, 10 + QP)]
    for rg in range(5):
        A = ACC + 16 * rg
        if rg == 2 and not QP: E(flg_poll(vP, vPA, LV_W2))
        for i in range(4):
            if early and i != 3: E(early.pop(0))
            for e in range(4): E(V("v_mul_f32", A + 4 * i + e, A + 4 * i + e, TOK + 4 * rg + 2))
            E(V("v_cvt_pk_bf16_f32", A + 4 * i, A + 4 * i, A + 4 * i + 1)); E(V("v_cvt_pk_bf16_f32", A + 4 * i + 1, A + 4 * i + 2, A + 4 * i + 3))
            E(DSW(vQW + i, A + 4 * i, 2, off=rg * 640))
    E(flg_poll(vTt, vPA, LV_A))
    a.wait(lg=0); a.barrier()
    st("at")
    Qr = [176 + 4 * j for j in range(5)]; Kr = [196 + 4 * j for j in range(5)]
    V0, V1 = 24, 36
    for j in range(5):
        E(DSR(Qr[j], 2, vQ, off=j * 640)); E(DSR(Qr[j] + 2, 2, vQ2, off=j * 640))
        E(DSR(Kr[j], 2, vQ, off=25600 + j * 640)); E(DSR(Kr[j] + 2, 2, vQ2, off=25600 + j * 640))
    for j in range(5):
        E(DSR(V0 + 2 * (j + 1), 2, vV, off=j * 640, tr=True)); E(DSR(V1 + 2 * (j + 1), 2, vV2, off=j * 640, tr=True))
    for r in (V0, V0 + 1, V1, V1 + 1): E(V("v_mov_b32", r, "0"))
    SC = [216 + 4 * j for j in range(5)]; SP = [236 + 4 * j for j in range(5)]
    for j in range(5):
        E(V("v_and_b32", Qr[j] + 2, Qr[j] + 2, MG0)); E(V("v_and_b32", Qr[j] + 3, Qr[j] + 3, MG0))
    for j in range(5):
        E(MFMA16C(SC[j], Kr[j], Qr[j], BC))
        if j > 0: E(MFMA16C(SP[j], Kr[j - 1], Qr[j], BP))
    MX = [5 + j for j in range(5)]; TT = [10 + j for j in range(5)]
    a.barrier()
    assert not early
    st("a1")
    if not QP: flg_check(a, vP, vPA, LV_W2)
    flg_check(a, vTt, vPA, LV_A)
    if PFX:
        for p in range(1, 4): E(pf_w2(p, vTt, 140 + p, lane))
    pre = merge(p2_w_item(0, vL16) + p2_w_item(1, vL16)[:2 if QP else 5], [p2_act(x, vL16) for x in range(0, 9)])
    st("a2")
    if cfg.get("nopre"): post = pre; pre = []
    def pp(k=1):
        for _ in range(k):
            if pre: E(pre.pop(0))
    for j in range(5):
        if j > 0:
            for r in range(4): E(V("v_max_f32", SC[j] + r, SC[j] + r, SP[j] + r))
        E(V("v_max3_f32", MX[j], SC[j], SC[j] + 1, SC[j] + 2)); E(V("v_max_f32", MX[j], MX[j], SC[j] + 3))
        if j % 2: pp()
    for lvl in (16, 32):
        for j in range(5): E(V("v_mov_b32", TT[j], MX[j]))
        for j in range(5): E(SWAP(lvl, MX[j], TT[j]))
        for j in range(5): E(V("v_max_f32", MX[j], MX[j], TT[j]))
        pp()
    st("a3")
    E(S(f"s_mov_b32 s7, {CSC}"))
    for j in range(5): E(V("v_mul_f32", MX[j], NCSC, MX[j]))
    PB = [236 + 4 * j for j in range(5)]
    for j in range(5):
        for r in range(4): E(V("v_fma_f32", SC[j] + r, SC[j] + r, "s7", MX[j]))
        for r in range(4): E(V("v_exp_f32", SC[j] + r, SC[j] + r))
        pp()
    for j in range(5):
        E(V("v_cvt_pk_bf16_f32", SC[j], SC[j], SC[j] + 1)); E(V("v_cvt_pk_bf16_f32", SC[j] + 1, SC[j] + 2, SC[j] + 3))
        for h in range(2):
            E(V("v_and_b32", PB[j] + h, SC[j] + h, MP + h)); E(V("v_and_b32", PB[j] + 2 + h, SC[j] + h, MC + h))
        if j % 2: pp()
    st("a4")
    O0 = Qr; O1 = Kr; DN = SC
    for j in range(5):
        E(MFMA16(DN[j], ONE, PB[j], c="0")); E(MFMA16(O0[j], V0 + 2 * j, PB[j], c="0")); E(MFMA16(O1[j], V1 + 2 * j, PB[j], c="0"))
    srd(a, 28, "s20", "s21", ACT_SIZE)
    for j in range(5): E(V("v_rcp_f32", DN[j], DN[j]))
    for j in range(5):
        for O in (O0[j], O1[j]):
            for r in range(4): E(V("v_mul_f32", O + r, O + r, DN[j]))
            E(V("v_cvt_pk_bf16_f32", O, O, O + 1)); E(V("v_cvt_pk_bf16_f32", O + 1, O + 2, O + 3))
        E(DSW(vOW, O0[j], 2, off=j * 256)); E(DSW(vOW2, O1[j], 2, off=j * 256))
        pp()
    st("a5")
    a.wait(lg=0); a.barrier()
    st("a6")
    for i in range(4): E(DSR(216 + 4 * i, 4, vOR, off=i * 8192))
    E(S(f"s_mov_b32 s6, {54*2048}"))
    for i in range(4): E(BST(216 + 4 * i, 4, vOG + i, 28, "s6", tag="st", mod=SC1))
    st("p1e")
    if cfg.get("nopre"): pre = post
    pp(20)
    E(flg_poll(vP, vPA, LV_B))
    phase2(a, st, cfg, vL16, lane, vPA, vP, 10, 9, cfg.get("rateq", 2.1), flag_st(5, vF, LV_C), parked=[(10 + i, 132 + 4 * i) for i in range(QP)])
    st.finish(2, name, cfg.get("stw", 0))
    a.raw("s_endpgm")

def gen_fused(name, stamps=False, cfg={}):
    DBG.update(cfg)
    a = Asm(); E = a.emit
    a.out.append(f".globl {name}\n.p2align 8\n.type {name},@function\n{name}:")
    E(S("s_cmp_ge_u32 s2, 256")); a.raw(f"s_cbranch_scc1 L_{name}_end")
    if stamps:
        a.raw("s_memrealtime s[76:77]"); a.raw("s_memtime s[80:81]")
    a.raw("s_load_dwordx2 s[24:25], s[0:1], 0")
    a.raw(f"s_load_dwordx4 s[{P_QKV}:{P_QKV+3}], s[0:1], 8")
    a.raw("s_load_dwordx2 s[28:29], s[0:1], 32"); a.raw("s_load_dwordx2 s[32:33], s[0:1], 40")
    a.raw(f"s_load_dwordx2 s[{P_W2}:{P_W2+1}], s[0:1], 48")
    a.raw(f"s_load_dwordx2 s[{S_OUT}:{S_OUT+1}], s[0:1], 56")
    a.raw("s_load_dwordx2 s[20:21], s[0:1], 72")
    E(V("v_lshrrev_b32", 2, "6", 0)); E(V("v_and_b32", 1, "63", 0))
    E(RFL("s3", 2))
    for (b, size) in ((20, WS_USED), (24, XBYTES), (S_OUT, XBYTES), (36, 2048 * 16), (28, 640 * 3456), (32, 640 * 3456)):
        E(S(f"s_mov_b32 s{b+2}, {size}")); E(S(f"s_mov_b32 s{b+3}, 0x20000"))
    E(S("s_and_b32 s11, s2, 3")); E(S("s_bfe_u32 s10, s2, 0x10002")); E(S("s_lshr_b32 s12, s2, 3"))
    E(S(f"s_lshl_b32 {sL}, s3, 10")); E(S(f"s_mov_b32 {sSpin}, 0"))
    E(S("s_cmp_lt_u32 s12, 18")); a.raw(f"s_cbranch_scc1 L_{name}_ffn")
    gen_qkv(a, name, stamps, cfg)
    a.label(f"L_{name}_ffn"); a.reset()
    gen_ffn(a, name, stamps, cfg)
    a.label(f"L_{name}_end"); a.raw("s_endpgm")
    return a.text(), kdesc(name, 256, 256, 102), 163840
```

```python
from gasm import *
from common import *

NLOG2E = "0xbfb8aa3b"; CSC = "0x3ea52b5c"; NCSC = "0xbea52b5c"
HUGE = "0x7ff00000"
SC1 = " sc1"
S_OUT, S_AUX = 64, 68
sTag = "s60"
sP2A, sP2W, sP2X, sSpin, sFlg = "s72", "s73", "s74", "s75", "s76"
sColSt, sOwn, sL = "s18", "s17", "s16"
sRot, sItem = "s79", "s78"
P_QKV, P_WO, P_W2 = 52, 54, 56
NST = 18
DBG = {}
uid = [0]
STW = 0

class Stamp:
    def __init__(self, a, on, sel=None): self.a, self.on, self.n, self.sel, self.names = a, on, 0, sel, []
    def __call__(self, name="x", force=False):
        if not self.on: return
        if self.sel is not None and not force and name not in self.sel: return
        assert self.n < NST, name
        if self.n: self.a.raw(f"s_mov_b32 s{82+self.n-1}, s100")
        self.a.raw("s_memtime s[100:101]"); self.n += 1; self.names.append(name)
    def finish(self, role, name, wave=0):
        a = self.a
        if not self.on: return
        a.raw("s_waitcnt vmcnt(0)")
        self("end", True)
        a.raw("s_memrealtime s[4:5]"); a.raw("s_waitcnt lgkmcnt(0)")
        a.raw(f"s_mov_b32 s{82+self.n-1}, s100")
        a.raw(f"s_cmp_lg_u32 s3, {wave}"); a.raw(f"s_cbranch_scc1 L_{name}_end")
        for i in range(20):
            if i < self.n: a.raw(f"s_sub_u32 s6, s{82+i}, s80"); a.raw(f"v_mov_b32 v{i}, s6")
            else: a.raw(f"v_mov_b32 v{i}, 0")
        a.raw(f"v_mov_b32 v20, {sSpin}")
        a.raw(f"v_mov_b32 v21, {role}"); a.raw("v_mov_b32 v22, s77"); a.raw("v_mov_b32 v23, s4")
        a.raw("s_lshl_b32 s40, s2, 7"); a.raw(f"s_add_u32 s40, s40, {STAMP1}"); a.raw("v_mov_b32 v24, s40")
        a.raw("s_mov_b32 s22, 0x2000000"); a.raw("s_mov_b64 exec, 1")
        for i in range(6): a.raw(f"buffer_store_dwordx4 v[{4*i}:{4*i+3}], v24, s[20:23], 0 offen offset:{16*i}")
        a.comment(f"STAMPS role {role}: " + " ".join(self.names))

class L(list):
    def s(self, *ts):
        for t in ts: self.append(S(t))
        return self
    def v(self, *x, **k): self.append(V(*x, **k)); return self

def scc_live(ops):
    for o in ops:
        if isinstance(o, list): return False
        if o.kind != "salu": continue
        n = o.text.split()[0]
        if n.startswith(("s_cselect", "s_addc", "s_subb", "s_cbranch_scc")): return True
        if n.startswith(("s_mov", "s_mul_i32", "s_movk")): continue
        return False
    return False
def exec_dirty(ops):
    return False

def paced(E, ops, groups, every):
    k = 0
    for i, o in enumerate(ops):
        E(o); k += len(o) if isinstance(o, list) else 1
        if groups and k >= every and not scc_live(ops[i + 1:]):
            E(groups.pop(0)); k = 0

def rot_table(srot, sK, mulK, sKx, lo, hi, blk=10):
    o = L()
    for s in range(lo, hi):
        base = s // blk * blk
        if base: o.s(f"s_add_u32 s4, {srot}, {base}", f"s_mul_i32 s{sK+s}, s4, {mulK}", f"s_lshl_b32 s{sKx+s}, s4, 7")
        else: o.s(f"s_mul_i32 s{sK+s}, {srot}, {mulK}", f"s_lshl_b32 s{sKx+s}, {srot}, 7")
        if s < 9: o.s(f"s_add_u32 {srot}, {srot}, 1", f"s_cmp_eq_u32 {srot}, {blk}", f"s_cselect_b32 {srot}, 0, {srot}")
    return o
def mod_ops(src, dst, m):
    if m == 1: return [S(f"s_mov_b32 {dst}, 0")]
    if m == 2: return [S(f"s_and_b32 {dst}, {src}, 1")]
    k = {5: 52, 10: 26}[m]
    return [S(f"s_mul_i32 s5, {src}, {k}"), S("s_lshr_b32 s5, s5, 8"), S(f"s_mul_i32 s5, s5, {m}"), S(f"s_sub_u32 {dst}, {src}, s5")]

def check(a, load, cmp_ops, sleep=2):
    uid[0] += 1; Lb = f"L_ck{uid[0]}"
    a.emit(cmp_ops)
    a.raw(f"s_cbranch_scc0 {Lb}_ok")
    a.label(f"{Lb}_sp")
    a.raw(f"s_sleep {sleep}")
    for l in (load if isinstance(load, list) else [load]): a.raw(l.text)
    a.raw("s_waitcnt vmcnt(0)")
    a.raw(f"s_add_u32 {sSpin}, {sSpin}, 1"); a.raw(f"s_cmp_gt_u32 {sSpin}, 30000"); a.raw(f"s_cbranch_scc1 {Lb}_ok")
    for o in cmp_ops:
        a.raw(o.text); a.raw("s_nop 3")
    a.raw(f"s_cbranch_scc1 {Lb}_sp")
    a.label(f"{Lb}_ok")

M_FFN, M_Q, M_W2 = 0x1ff, 0xffff0000, 0x3ffffff << 32
LV_W2, LV_A, LV_B, LV_C = "W2", "A", "B", "C"
LV = {"W2": (0, M_W2), "A": (48 * 128, M_FFN), "B": (64 * 128, M_FFN), "C": (0, M_FFN | M_Q)}
def flg_poll(vP, vA, lv):
    off, m = LV[lv]
    return [S(f"s_mov_b32 s9, {FLG_OFF + off}"), S(f"s_mov_b32 exec_lo, {m & 0xffffffff}"), S(f"s_mov_b32 exec_hi, {m >> 32}"),
            BLD(vP, 1, vA, 20, "s9", tag="poll", mod=SC1), S("s_mov_b64 exec, -1")]
def flg_cmp(vP, lv):
    off, mask = LV[lv]
    o = [VCMP("v_cmp_ne_u32", "vcc", sTag, vP)]
    if mask >> 32 == 0: o.append(S(f"s_and_b32 vcc_lo, vcc_lo, {mask}", sr=["vcc"]))
    else: o.append(S(f"s_and_b32 vcc_hi, vcc_hi, {mask >> 32}", sr=["vcc"]))
    return o
def flg_check(a, vP, vA, lv, sleep=2): check(a, flg_poll(vP, vA, lv), flg_cmp(vP, lv), sleep)
def tag_cmp(regs, t):
    o = [V("v_xor_b32", t, sTag, regs[0])]
    for r in regs[1:]: o.append(Op(f"v_bitop3_b32 {R(t)}, {R(t)}, {R(r)}, {sTag} bitop3:0xf6", "valu", r=[t, r], w=[t], sr=[sTag]))
    return o + [VCMP("v_cmp_ne_u32", "vcc", "0", t), S("s_cmp_lg_u64 vcc, 0")]
def flag_st(vT, vF, lv, base=None):
    return [Cond("s_cmp_eq_u32 s3, 0", [S(f"s_add_u32 s9, {base or sOwn}, {LV[lv][0]}"), V("v_mov_b32", vT, sTag), BST(vT, 1, vF, 20, "s9", tag="flag", mod=SC1)])]
def col_fix(AP): return [V("v_perm_b32", AP + 1, AP, AP, "s62"), V("v_perm_b32", AP, AP, AP, "s61")]

def wsum(s, t):
    return [DPP("v_add_f32", s, s, s, "quad_perm:[1,0,3,2]"), DPP("v_add_f32", s, s, s, "quad_perm:[2,3,0,1]"), DPP("v_add_f32", s, s, s, "row_half_mirror"),
            DPP("v_add_f32", s, s, s, "row_ror:8"), V("v_mov_b32", t, s), SWAP(16, s, t), V("v_add_f32", s, s, t),
            V("v_mov_b32", t, s), SWAP(32, s, t), V("v_add_f32", s, s, t)]
def merge(a, b):
    o = []
    a, b = list(a), list(b)
    na, nb = len(a), len(b)
    while a or b:
        if a and (not b or len(a) * nb >= len(b) * na): o.append(a.pop(0))
        else: o.append(b.pop(0))
    return o

def st_pre(B, lane, Bs=None):
    Bs = B if Bs is None else Bs
    o = L()
    o.s("s_and_b32 s4, s2, 7", "s_lshl_b32 s4, s4, 5", "s_lshr_b32 s5, s2, 3", "s_add_u32 s4, s4, s5", "s_lshl_b32 s4, s4, 3", "s_add_u32 s4, s4, s3",
        "s_mul_i32 s63, s4, 1280", "s_lshl_b32 s61, s4, 4", f"s_mov_b32 s62, {EPO_OFF}")
    o.v("v_lshlrev_b32", B + 36, "4", lane).v("v_lshlrev_b32", B + 37, "2", lane).v("v_lshlrev_b32", Bs + 5, "24", lane)
    return o
def st_issue(B, Bs=None):
    Bs = B if Bs is None else Bs
    return [BLD(Bs + 5, 1, Bs + 5, 20, "s62", mod=SC1), BLD(Bs, 4, B + 36, 24, "s63"), BLD(Bs + 4, 1, B + 37, 24, "s63", off=1024), S("s_mov_b32 s81, s61")]
def col_pre(B, lane, pitch):
    o = L()
    o.s(f"s_cselect_b32 s9, s9, {HUGE}", "s_cselect_b32 s7, s3, 1",
        "s_lshl_b32 s5, s8, 10", "s_lshl_b32 s8, s10, 9", "s_add_u32 s5, s5, s8", f"s_add_u32 s5, s5, {COL_OFF}",
        "s_mul_i32 s8, s10, 40", "s_add_u32 s8, s8, s3", f"s_mul_i32 s8, s8, {8*pitch}", "s_add_u32 s78, s8, s9",
        "s_cmp_eq_u32 s7, 0", f"s_cselect_b32 {sColSt}, s5, {HUGE}")
    o.v("v_lshrrev_b32", B + 38, "3", lane).v("v_and_b32", B + 39, "7", lane)
    o.v("v_mul_u32_u24", B + 38, str(pitch), B + 38).v("v_lshl_add_u32", B + 38, B + 39, "4", B + 38)
    return o
def col_issue(B, srdn, pitch):
    return [[BLD(B + 16 + 4 * it, 4, B + 38, srdn, "s78", mod=DBG.get("cm", ""))] + ([S(f"s_add_u32 s78, s78, {64*pitch}")] if it < 4 else []) for it in range(5)]
def stats_ops(B, xoff):
    U = B + 6; s, t = B + 5, B + 4
    o = L()
    o.append(RFL(sTag, B + 5))
    for i in (4, 0, 1, 2, 3): o.v("v_lshlrev_b32", U + 2 * i, "16", B + i).v("v_and_b32", U + 2 * i + 1, "0xffff0000", B + i)
    o.s(f"s_mul_i32 {sTag}, {sTag}, 0x9e3779b1", f"s_add_u32 {sTag}, {sTag}, 0x7f4a7c15")
    o.v("v_add_f32", s, U, U + 1).v("v_add_f32", t, U + 2, U + 3)
    for i in range(4, 10, 2): o.v("v_add_f32", s, s, U + i).v("v_add_f32", t, t, U + i + 1)
    o.v("v_add_f32", s, s, t)
    o += wsum(s, t)
    o.v("v_mul_f32", s, "0xbacccccd", s)
    q = B + 1
    for i in range(10): o.v("v_add_f32", U + i, U + i, s)
    o.v("v_mul_f32", q, U, U).v("v_mul_f32", t, U + 1, U + 1)
    for i in range(2, 10, 2): o.v("v_fmac_f32", q, U + i, U + i).v("v_fmac_f32", t, U + i + 1, U + i + 1)
    o.v("v_add_f32", q, q, t)
    o += wsum(q, t)
    o.v("v_mov_b32", B + 3, "0x3727c5ac").v("v_fmac_f32", B + 3, "0x3acccccd", q).v("v_rsq_f32", B + 2, B + 3)
    o.v("v_cvt_pk_bf16_f32", t, s, s).v("v_lshlrev_b32", t, "16", t).v("v_sub_f32", t, s, t)
    o.v("v_cvt_pk_bf16_f32", B, s, t).v("v_mov_b32", B + 1, sTag)
    o.v("v_mov_b32", t, sL).v("v_lshrrev_b32", t, "6", t).v("v_add_u32", t, str(xoff + 2048), t)
    o.append(DSW(t, B, 4))
    return o
def tok_fin_ops(B, xoff, Bs=None):
    Bs = B if Bs is None else Bs
    o = L()
    o.v("v_and_b32", Bs + 4, "0x70", B + 36).v("v_add_u32", Bs + 4, str(xoff + 2048), Bs + 4)
    o.append(DSR(Bs, 4, Bs + 4))
    o.v("v_lshrrev_b32", Bs + 5, "7", B + 36).v("v_lshl_add_u32", Bs + 5, Bs + 5, "24", B + 36)
    o.s("s_sub_u32 s81, s81, 16")
    o.append(BST(Bs, 4, Bs + 5, 36, "s81", tag="tab", mod=SC1))
    return [[Block("s_cmp_eq_u32 s3, 1", o)]]
def col_add(A, r, first, t, dot):
    o = L()
    for j in range(4):
        if first: o.v("v_lshlrev_b32", A + 2 * j, "16", r + j).v("v_and_b32", A + 2 * j + 1, "0xffff0000", r + j)
        elif dot: o.v("v_dot2c_f32_bf16", A + 2 * j, "s61", r + j).v("v_dot2c_f32_bf16", A + 2 * j + 1, "s62", r + j)
        else: o.v("v_lshlrev_b32", t, "16", r + j).v("v_and_b32", r + j, "0xffff0000", r + j).v("v_add_f32", A + 2 * j, A + 2 * j, t).v("v_add_f32", A + 2 * j + 1, A + 2 * j + 1, r + j)
    return o
def col_red(A, t0, piece, lane, xoff):
    o = L()
    o.v("v_lshrrev_b32", t0, "4", lane).v("v_lshlrev_b32", t0, "3", t0).v("v_lshl_add_u32", t0, piece, "5", t0)
    for j in range(4): o.append(SWAP(32, A + j, A + j + 4))
    for j in range(4): o.v("v_add_f32", A + j, A + j, A + j + 4)
    o.v("v_mov_b32", t0 + 1, sL).v("v_lshrrev_b32", t0 + 1, "2", t0 + 1)
    for j in range(2): o.append(SWAP(16, A + j, A + j + 2))
    for j in range(2): o.v("v_add_f32", A + j, A + j, A + j + 2)
    o.v("v_add_u32", t0, t0, t0 + 1).v("v_add_u32", t0, str(xoff), t0)
    for j in range(2): o.append(DPP("v_add_f32", A + j, A + j, A + j, "row_ror:8"))
    o.append(DSW(t0, A, 2))
    return o
def col_acc_ops(B, lane, xoff, dot=True):
    A = B + 40
    o = L()
    if dot: o.s("s_mov_b32 s61, 0x3f80", "s_mov_b32 s62, 0x3f800000")
    for it in range(5): o += col_add(A, B + 16 + 4 * it, it == 0, B + 16, dot)
    o += col_red(A, B + 16, B + 39, lane, xoff)
    return o
PERMSEL = ["s_mov_b32 s61, 0x01000100", "s_mov_b32 s62, 0x03020302"]
def col_fin_ops(Rd, t, lane, xoff):
    o = L()
    o.v("v_lshlrev_b32", t, "2", lane).v("v_add_u32", t, str(xoff), t)
    for w in range(8): o.append(DSR(Rd + w, 1, t, off=w * 256))
    for w in range(4): o.v("v_add_f32", Rd + w, Rd + w, Rd + 4 + w)
    o.v("v_add_f32", Rd, Rd, Rd + 1).v("v_add_f32", Rd + 2, Rd + 2, Rd + 3).v("v_add_f32", Rd, Rd, Rd + 2)
    o.v("v_cvt_pk_bf16_f32", Rd + 4, Rd, Rd).v("v_lshlrev_b32", Rd + 6, "16", Rd + 4).v("v_sub_f32", Rd + 6, Rd, Rd + 6)
    o.v("v_cvt_pk_bf16_f32", Rd + 4, Rd, Rd + 6).v("v_mov_b32", Rd + 5, sTag).v("v_lshlrev_b32", t, "3", lane)
    o.append(BST(Rd + 4, 2, t, 20, sColSt, tag="tab", mod=SC1))
    return o

ACTB, ACC2, WF2 = 96, 48, 8
def p2_setup(vA, lane, rb="s10", cb="s11"):
    g = []
    o = L()
    o.s("s_bfe_u32 s10, s2, 0x20001", "s_lshl_b32 s10, s10, 3", "s_bfe_u32 s5, s2, 0x30003", "s_add_u32 s10, s10, s5",
        "s_and_b32 s11, s2, 1", "s_lshl_b32 s11, s11, 2", "s_lshr_b32 s6, s2, 6", "s_add_u32 s11, s11, s6"); g.append(list(o))
    o = L()
    o.s("s_bfe_u32 s6, s3, 0x10001", "s_lshl_b32 s9, s10, 1", "s_add_u32 s6, s6, s9",
        f"s_mul_i32 {sP2A}, s6, 74", "s_lshr_b32 s9, s3, 2", f"s_add_u32 {sP2A}, {sP2A}, s9", f"s_lshl_b32 {sP2A}, {sP2A}, 1",
        "s_and_b32 s9, s3, 1", f"s_add_u32 {sP2A}, {sP2A}, s9", f"s_lshl_b32 {sP2A}, {sP2A}, 10",
        f"s_mul_i32 {sP2X}, s10, {64*1280}"); g.append(list(o))
    o = L()
    o.s(f"s_mul_i32 {sP2W}, s11, 74", f"s_add_u32 {sP2W}, {sP2W}, s3", f"s_mul_i32 {sP2W}, {sP2W}, 5120", f"s_add_u32 {sP2W}, {sP2W}, {W2F_OFF}",
        "s_mul_i32 s6, s11, 160", f"s_add_u32 {sP2X}, {sP2X}, s6",
        ); g.append(list(o))
    if DBG.get("rot2"):
        o = L()
        o.s("s_bfe_u32 s6, s2, 0x30003", "s_lshr_b32 s9, s2, 6", "s_lshl_b32 s9, s9, 1", "s_add_u32 s6, s6, s9", "s_cmp_ge_u32 s6, 9", "s_cselect_b32 s9, 9, 0", f"s_sub_u32 {sRot}, s6, s9",
            f"s_lshl_b32 s6, {sRot}, 12", f"s_add_u32 {sP2A}, {sP2A}, s6", f"s_mul_i32 s6, {sRot}, 10240", f"s_add_u32 {sP2W}, {sP2W}, s6"); g.append(list(o))
    def part(o, lo, n):
        m = ((1 << n) - 1) << lo
        o.s("s_lshl_b32 s6, s6, 7", f"s_sub_u32 s6, s6, {lo*4}", f"s_mov_b32 exec_lo, {m & 0xffffffff}", f"s_mov_b32 exec_hi, {m >> 32}")
        o.v("v_lshl_add_u32", vA, lane, "2", "s6"); o.s("s_mov_b64 exec, -1"); g.append(list(o))
    part(L().s("s_lshr_b32 s6, s10, 1"), 0, 16)
    for (lo, add) in ((16, 0), (24, 63)):
        part(L().s("s_lshl_b32 s6, s10, 6", f"s_add_u32 s6, s6, {add}", "s_max_u32 s6, s6, 14", "s_sub_u32 s6, s6, 14",
                   "s_mul_i32 s6, s6, 7183", "s_lshr_b32 s6, s6, 20", "s_add_u32 s6, s6, 16"), lo, 8)
    for (i, add) in ((0, 0), (1, 4)):
        part(L().s("s_mul_i32 s6, s11, 5", f"s_add_u32 s6, s6, {add + 128}", "s_lshr_b32 s6, s6, 2"), 32 + 13 * i, 13 if i == 0 else 19)
    g = [[S(x.text.replace("s10", rb).replace("s11", cb)) if x.kind == "salu" else x for x in grp] for grp in g]
    return g

def GEND(j): return 9 if j < 9 else 18 if j < 18 else 27 if j < 27 else 37
def GN(j): return 10 if j >= 27 else 9
def p2_w_item(d, vL16):
    slot = (d % 4) * 40960
    ops = []
    for i in range(5):
        g = [S(f"s_add_u32 s9, {sP2W}, {(d%2 if DBG.get('hot') else d)*8*5120 + i*1024}")]
        if DBG.get("rot2"):
            pre = []
            if i == 0:
                ends = sorted(set(GEND(j) for j in range(4 * d, min(4 * d + 4, 37))))
                pre = [S("s_lshr_b32 s8, s3, 1")]
                if len(ends) == 1:
                    pre += [S(f"s_add_u32 s8, s8, {sRot}"), S(f"s_cmp_ge_u32 s8, {ends[0] - 4*d}"), S(f"s_cselect_b32 {sItem}, {GN(4*d)*10240}, 0")]
                else:
                    pre += [S(f"s_cmp_ge_u32 s8, {ends[0] - 4*d}"), S(f"s_cselect_b32 s7, {ends[1] - 4*d}, {ends[0] - 4*d}"),
                            S(f"s_cselect_b32 {sItem}, {GN(ends[0])}, {GN(4*d)}"), S(f"s_mul_i32 {sItem}, {sItem}, 10240"),
                            S(f"s_add_u32 s8, s8, {sRot}"), S("s_cmp_ge_u32 s8, s7"), S(f"s_cselect_b32 {sItem}, {sItem}, 0")]
                pre.append(S(f"s_sub_u32 {sItem}, {sP2W}, {sItem}"))
            g = pre + [S(f"s_add_u32 s9, {sItem}, {d*8*5120 + i*1024}")]
        if DBG.get("now2"): g = [S(f"s_mov_b32 s9, {HUGE}")]
        g += [S(f"s_add_u32 m0, {sL}, {slot + i*8192}"), DMA(vL16, 20, "s9", tag=("W2", d), mod="" if DBG.get("nosc1") else SC1)]
        ops.append(g)
    if d == 9: ops = [[Cond("s_cmp_lt_u32 s3, 2", sum(ops, []))]]
    return ops
def pf_w2(p, vT, vD, lane):
    return [S("s_bfe_u32 s8, s2, 0x30003"), S("s_lshl_b32 s8, s8, 3"), S("s_add_u32 s8, s8, s3"), S("s_mul_i32 s8, s8, 12"), S(f"s_add_u32 s8, s8, {p*768}"),
            S("s_min_u32 s8, s8, 2948"), S("s_lshl_b32 s8, s8, 7"), S("s_mul_i32 s9, s3, 5120"), S(f"s_sub_u32 s9, {sP2W}, s9"), S("s_add_u32 s9, s9, s8"),
            V("v_lshlrev_b32", vT, "7", lane), S("s_mov_b64 exec, 0xfff"), BLD(vD, 1, vT, 20, "s9", tag="pf", mod=SC1), S("s_mov_b64 exec, -1")]
def pf_act(g, vT, vD, lane):
    j0, n = [(0, 9), (9, 9), (18, 9), (27, 10)][g]
    return [S("s_lshr_b32 s8, s2, 6"), V("v_lshrrev_b32", vT, "3", lane), V("v_lshl_add_u32", vT, vT, "2", "s8"), V("v_min_u32", vT, str(n - 1), vT),
            V("v_lshlrev_b32", vT, "5", vT), V("v_and_or_b32", vT, lane, "7", vT), V("v_lshlrev_b32", vT, "7", vT),
            S(f"s_add_u32 s9, {sP2A}, {j0*4096}"), S("s_mov_b64 exec, 0xffffff"), BLD(vD, 1, vT, 20, "s9", tag="pf", mod=SC1), S("s_mov_b64 exec, -1")]
def p2_act(j, vL16):
    if DBG.get("noact"): return [S(f"s_mov_b32 s9, {HUGE}"), BLD(ACTB + 4 * j, 4, vL16, 20, "s9", mod=SC1)]
    if DBG.get("hot"): return [S(f"s_add_u32 s9, {sP2A}, {(j%4)*4096}"), BLD(ACTB + 4 * j, 4, vL16, 20, "s9", mod=SC1)]
    if DBG.get("rot2"):
        return [S(f"s_cmp_ge_u32 {sRot}, {GEND(j) - j}"), S(f"s_cselect_b32 s9, {GN(j)*4096}, 0"), S(f"s_sub_u32 s9, {sP2A}, s9"), S(f"s_add_u32 s9, s9, {j*4096}"),
                BLD(ACTB + 4 * j, 4, vL16, 20, "s9", mod=SC1)]
    return [S(f"s_add_u32 s9, {sP2A}, {j*4096}"), BLD(ACTB + 4 * j, 4, vL16, 20, "s9", mod="" if DBG.get("nosc1") else SC1)]

def phase2(a, st, cfg, vL16, lane, vPA, vP, pieces_done, act_done, rate, publish, epoch=False, parked=[]):
    E = a.emit
    PF = cfg.get("pf2", False)
    vRd = [68, 69, 70]; vXO = [71, 72]; vRr = [73, 74]; vWrt = 75
    X0 = 244; t0, t1, t2 = 76, 77, 78
    EP = 86
    E(S("s_lshr_b32 s4, s3, 2")); E(S("s_lshl_b32 s5, s4, 10"))
    E(V("v_add_u32", vRd[0], "s5", vL16))
    for b in (1, 2): E(V("v_add_u32", vRd[b], str(b << 16), vRd[0]))
    def reads(j):
        pos = ((j // 4) % 4) * 40960 + (j % 4) * 2048
        f = WF2 + 20 * (j % 2)
        return [DSR(f + 4 * l, 4, vRd[(pos + l * 8192) >> 16], off=(pos + l * 8192) & 0xffff) for l in range(5)]
    misc = []
    for i in range(2):
        misc.append([S("s_lshl_b32 s4, s3, 6"), S(f"s_add_u32 s4, s4, {512*i}"), V("v_add_u32", t0, "s4", lane), V("v_mul_u32_u24", t1, "6554", t0), V("v_lshrrev_b32", t1, "16", t1)])
        misc.append([V("v_mul_u32_u24", t2, "10", t1), V("v_sub_u32", t0, t0, t2), V("v_mul_u32_u24", vRr[i], "336", t1), V("v_lshl_add_u32", vRr[i], t0, "5", vRr[i]), V("v_add_u32", vRr[i], "81920", vRr[i])])
        misc.append([V("v_and_b32", t2, "15", t1), V("v_and_b32", vXO[i], "32", t1), V("v_lshl_add_u32", vXO[i], t2, "1", vXO[i]), V("v_bfe_u32", t2, t1, "4", "1"), V("v_add_u32", vXO[i], vXO[i], t2)])
        ld = BLD(X0 + 4 * i, 4, vXO[i], 24, sP2X)
        misc.append([V("v_mul_u32_u24", vXO[i], "1280", vXO[i]), V("v_lshl_add_u32", vXO[i], t0, "4", vXO[i]), ld if i == 0 else Cond("s_cmp_lt_u32 s3, 2", [ld])])
    misc.append([S("s_lshr_b32 s4, s3, 2"), S("s_mul_i32 s4, s4, 21504"), S("s_and_b32 s5, s3, 3"), S(f"s_mul_i32 s5, s5, {16*336}"), S("s_add_u32 s4, s4, s5"), S("s_add_u32 s4, s4, 81920"),
                 V("v_and_b32", t0, "15", lane), V("v_mul_u32_u24", t0, "336", t0), V("v_and_b32", t1, "48", lane), V("v_add3_u32", vWrt, t0, t1, "s4")])
    epl = [BLD(EP + 4 + i, 1, EP + i, 36, "0", off=4, mod=SC1) for i in range(4)]
    if epoch:
        misc.append([S("s_or_b32 s4, s2, s3"), Cond("s_cmp_eq_u32 s4, 0", [V("v_lshlrev_b32", EP, "3", vL16)] +
                    [V("v_add_u32", EP + i, str(i * 8192), EP) for i in range(1, 4)] + epl)])
    a.wait_tag(("W2", 0), lg=0); a.barrier()
    st("p2s")
    E(reads(0))
    if parked:
        assert pieces_done == parked[0][0], pieces_done
        E(V("v_add_u32", 6, sL, vL16)); E(V("v_add_u32", 7, "0x20000", 6)); E(V("v_add_u32", 6, "0x10000", 6))
        for (k, r) in parked: E(DSW(6 + (k * 8192 >> 16) - 1, r, 4, off=(k * 8192) & 0xffff))
        pieces_done += len(parked)
    q = []
    def push(need, g): q.append((need, len(q), g)); q.sort(key=lambda e: e[:2])
    def push_item(d, frm=0):
        for g in p2_w_item(d, vL16)[frm:]: push(4 * d - 1.5, g)
    for x in range(act_done, 9): push(x, p2_act(x, vL16))
    for d in range(4):
        if pieces_done < 5 * (d + 1): push_item(d, max(0, pieces_done - 5 * d))
    nitem = 4
    PUB, CB, P3, C3 = cfg.get("pub", 6), cfg.get("cb", 1), cfg.get("p3", 13), cfg.get("c3", 16)
    RATE = rate
    LEAD = cfg.get("lead", 5)
    credit = 0.0
    for g in misc: push(cfg.get("misc", 19), g)
    for j in range(37):
        f = WF2 + 20 * (j % 2)
        nxt = []
        while q and q[0][0] <= j: E(q.pop(0)[2])
        if j + 1 < 37:
            if j == PUB:
                a.wait_tag("st"); a.barrier(); E(publish); st("pub")
            if (j + 1) % 4 == 0:
                d = (j + 1) // 4
                a.wait_tag(("W2", d), lg=0); a.barrier()
                if nitem < 10: push_item(nitem); nitem += 1
            nxt = reads(j + 1)
        if j == CB:
            flg_check(a, vP, vPA, LV_B)
            if PF: E(pf_act(1, t0, 6, lane))
            for x in range(9, 18): push(x, p2_act(x, vL16))
        if j == P3: E(flg_poll(vP, vPA, LV_C))
        if j == C3:
            flg_check(a, vP, vPA, LV_C, sleep=1)
            st("c3")
            if PF: E(pf_act(2, t0, 6, lane)); E(pf_act(3, t0, 7, lane))
            for x in range(18, 18 + cfg.get("burst", 6)): E(p2_act(x, vL16))
            for x in range(18 + cfg.get("burst", 6), 37): push(x, p2_act(x, vL16))
            RATE = cfg.get("rate2", 1.4)
        st(f"g{j}")
        credit = min(credit + RATE, 4)
        for l in range(5):
            if cfg.get("nomfma") and l: pass
            else: E(MFMA16(ACC2 + 4 * l, f + 4 * l, ACTB + 4 * j, c="0" if j == 0 else None))
            if nxt:
                x_ = nxt.pop(0)
                if not (cfg.get("nords") and l): E(x_)
            if q and (credit >= 1 or q[0][0] <= j + LEAD):
                g = q.pop(0)[2]; E(g)
                if any(x.kind in ("vld", "dma") for x in g): credit -= 1
    fill = q
    assert not fill
    st("p2e")
    for l in range(5): E(DSW(vWrt, ACC2 + 4 * l, 4, off=l * 64))
    def unpack(i):
        o = []
        for e in range(4): o += [V("v_lshlrev_b32", 8 + 8 * i + 2 * e, "16", X0 + 4 * i + e), V("v_and_b32", 9 + 8 * i + 2 * e, "0xffff0000", X0 + 4 * i + e)]
        return o
    E(unpack(0)); E(unpack(1))
    a.wait(lg=0); a.barrier()
    st("red")
    def finish(i):
        RD = 96 + 16 * i; o = []
        for k in range(4): o.append(DSR(RD + 4 * k, 4, vRr[i], off=(k // 2) * 21504 + (k % 2) * 16))
        c = []
        for e in range(8): c.append(V("v_add_f32", 8 + 8 * i + e, 8 + 8 * i + e, RD + e))
        for e in range(8): c.append(V("v_add_f32", 8 + 8 * i + e, 8 + 8 * i + e, RD + 8 + e))
        for e in range(4): c.append(V("v_cvt_pk_bf16_f32", X0 + 4 * i + e, 8 + 8 * i + 2 * e, 9 + 8 * i + 2 * e))
        c.append(BST(X0 + 4 * i, 4, vXO[i], S_OUT, sP2X, mod=cfg.get("om", " nt")))
        return o, c
    r0, c0 = finish(0); r1, c1 = finish(1)
    uid[0] += 1; L1 = f"L_f{uid[0]}"
    E(r0)
    E(S("s_cmp_lt_u32 s3, 2")); a.raw(f"s_cbranch_scc1 {L1}")
    import copy
    sv = copy.deepcopy((a.pos, a.lg, a.vm, a.lastw, a.lastc, a.lastst, a.slastw))
    E(c0)
    a.raw(f"s_branch {L1}e")
    a.label(L1)
    a.pos, a.lg, a.vm, a.lastw, a.lastc, a.lastst, a.slastw = sv
    E(r1); E(finish(0)[1]); E(c1)
    a.label(f"{L1}e")
    st("out")
    if epoch:
        uid[0] += 1; Lb = f"L_ep{uid[0]}"
        E(S("s_or_b32 s4, s2, s3")); a.raw(f"s_cbranch_scc1 {Lb}")
        check(a, epl, tag_cmp([EP + 4, EP + 5, EP + 6, EP + 7], 24))
        E(V("v_mov_b32", 25, sTag)); E(V("v_lshlrev_b32", 24, "20", vL16)); E(S(f"s_mov_b32 s4, {EPO_OFF}"))
        E(BST(25, 1, 24, 20, "s4", mod=SC1))
        a.label(Lb)

def common_wait(a, stamps):
    E = a.emit
    a.raw("s_waitcnt lgkmcnt(0)")
    if stamps: a.raw("s_mov_b32 s77, s76")
    E(S(f"s_add_u32 s36, s20, {TOK_OFF}")); E(S("s_addc_u32 s37, s21, 0"))

def cost(o):
    if isinstance(o, list): return 1 + len(o) // 5 if o else 4
    return {"trans": 2, "perml": 2, "salu": 0.5}.get(o.kind, 1)

def gen_ffn(a, name, stamps, cfg):
    E = a.emit; st = Stamp(a, stamps, cfg.get("sel"))
    PFX = cfg.get("pf", False)
    sK, sKx = 40, 50
    XF, A0, A1, A2, WB = 96, 48, 64, 80, 28
    vL16, lane = 0, 1
    vWr = [2, 3, 4]; vDW, vSt, vCol = 5, 6, 7
    TOK = 8; AP = [12, 14]; T = 16
    vPA, vP, vF, vTt = 24, 25, 26, 27
    vDX, vDX2, vXr, vTokA = A2, A2 + 1, A2 + 2, A2 + 6
    TB = 208; XO = 9 * 16384 + 8192
    t0, t1, t2, t3 = T, T + 1, T + 2, T + 3
    sSt, sCb, sRb, sTok = "s13", "s14", "s15", "s19"
    RB = cfg.get("rblk", 1)
    o = L()
    o.s("s_mul_i32 s13, s11, 18", "s_add_u32 s13, s13, s12", f"s_lshr_b32 {sCb}, s13, 3", f"s_and_b32 {sRb}, s13, 7",
        f"s_mul_i32 s4, {sCb}, {cfg.get('rmul', 3)}", f"s_add_u32 s4, s4, {sRb}")
    o += mod_ops("s4", "s19", RB)
    o.s("s_lshl_b32 s5, s10, 3", f"s_add_u32 {sRb}, {sRb}, s5")
    o += rot_table("s19", sK, 64 * 3456, sKx, 0, 2, RB)
    o.s("s_and_b32 s4, s3, 3", "s_lshr_b32 s5, s3, 2", "s_lshl_b32 s6, s4, 3")
    o.v("v_lshrrev_b32", t0, "3", lane).v("v_and_b32", t1, "7", lane).v("v_add_u32", t2, "s6", t0)
    o.v("v_bfe_u32", t3, t2, "1", "3").v("v_xor_b32", t3, t1, t3)
    o.v("v_and_b32", vDX, "15", t2).v("v_lshrrev_b32", t2, "4", t2).v("v_lshl_add_u32", vDX, vDX, "1", t2)
    o.s(f"s_lshl_b32 s6, {sRb}, 7", "s_lshl_b32 s9, s5, 5", "s_add_u32 s6, s6, s9")
    o.v("v_add_u32", vDX, "s6", vDX).v("v_mul_u32_u24", vDX, "1280", vDX).v("v_lshl_add_u32", vDX, t3, "4", vDX).v("v_add_u32", vDX2, str(64 * 1280), vDX)
    o.v("v_lshrrev_b32", t2, "2", lane).v("v_and_b32", t2, "4", t2).v("v_xor_b32", t2, t1, t2)
    o.v("v_mul_u32_u24", vDW, "3456", t0).v("v_lshl_add_u32", vDW, t2, "4", vDW)
    o.s(f"s_mul_i32 s6, s3, {8*3456}", f"s_mul_i32 s9, {sCb}, 384", "s_add_u32 s6, s6, s9")
    o.v("v_add_u32", vDW, "s6", vDW)
    E(o); E(st_pre(TB, lane))
    items = {}
    free = list(range(10))
    qX = [("X", s) for s in range(10)]
    qW = [("W", s) for s in range(30)]
    dma_chunk = [0]
    def dma_ops(it, slot):
        kind, s = it
        base = slot * 16384
        m0 = lambda x: S(f"s_add_u32 m0, {sL}, {base+x}")
        if kind == "X":
            return [[m0(0), DMA(vDX, 24, f"s{sKx+s}", tag=it)], [m0(8192), DMA(vDX2, 24, f"s{sKx+s}", tag=it)]]
        if s < 10:
            return [[m0(0), DMA(vDW, 28, f"s{sK+s}", tag=it, mod=DBG.get("wm", ""))], [m0(8192), DMA(vDW, 32, f"s{sK+s}", tag=it, mod=DBG.get("wm", ""))]]
        p = (s - 10) // 5 + 1; j = (s - 10) % 5
        chunk = (p + 1) // 2; srdw = 28 if p % 2 == 1 else 32
        pre = []
        if chunk != dma_chunk[0]:
            dma_chunk[0] = chunk; pre = [V("v_add_u32", vDW, "128", vDW)]
        return [pre + [m0(0), DMA(vDW, srdw, f"s{sK+2*j}", tag=it, mod=DBG.get("wm", ""))], [m0(8192), DMA(vDW, srdw, f"s{sK+2*j+1}", tag=it, mod=DBG.get("wm", ""))]]
    def slot_of(it):
        kind, s = it
        return (s + 2) % 4 if kind == "X" else ([4, 5, 6, 7, 8, 4, 5, 6, 7, 4][s] if s < 10 else s % 10)
    def refill(maxstage=99):
        out = []
        while True:
            cands = []
            for q in (qX, qW):
                if q and q[0][1] <= maxstage and slot_of(q[0]) in free and not (q is qW and q[0][1] >= 10 and slot_of(q[0]) < 4 and any(slot_of(x) == slot_of(q[0]) for x in qX)):
                    cands.append((q[0][1], q is qW, q))
            if not cands: break
            cands.sort(key=lambda c: c[:2]); q = cands[0][2]
            it = q.pop(0); sl = slot_of(it); free.remove(sl); items[it] = sl; out += dma_ops(it, sl)
        if not qW and p2["go"]:
            while p2["pieces"] < 20 and p2["pieces"] // 2 in free:
                k = p2["pieces"]; out.append(p2_w_item(k // 5, vL16)[k % 5]); p2["pieces"] += 1
        return out
    p2 = {"pieces": 0, "act": 0, "go": False}
    o = L()
    o.s("s_bitcmp1_b32 s13, 0", "s_cselect_b32 s8, 57, 30", f"s_mov_b32 s{S_AUX+2}, {640*3456}", f"s_mov_b32 s{S_AUX+3}, 0x20000",
        f"s_mul_i32 s9, {sCb}, 3", "s_bfe_u32 s4, s13, 0x20001", "s_add_u32 s9, s9, s4", "s_add_u32 s8, s8, s9", "s_lshl_b32 s9, s9, 7", "s_cmp_lt_u32 s4, 3")
    o += col_pre(TB, lane, 3456)
    o.s("s_and_b32 s17, s13, 6")
    common_wait(a, stamps)
    E(st_issue(TB))
    o.s("s_bitcmp1_b32 s13, 0", f"s_cselect_b32 s{S_AUX}, s32, s28", f"s_cselect_b32 s{S_AUX+1}, s33, s29")
    ci = [[Cond("s_cmp_lt_u32 s17, 6", g)] for g in col_issue(TB, S_AUX, 3456)]
    if cfg.get("nocol") == 1: ci = []
    if cfg.get("nocol") == 2:
        ci = [[V("v_mul_u32_u24", TB + 16, "3456", lane)], [Cond("s_cmp_lt_u32 s17, 6", [S("s_mul_i32 s9, s3, %d" % (32 * 3456)), S("s_add_u32 s9, s9, s78"), S("s_mov_b32 exec_hi, 0xff"),
              BLD(TB + 17, 1, TB + 16, S_AUX, "s9"), S("s_mov_b64 exec, -1")])]]
    dq = refill(0)
    paced(E, o, dq, cfg.get("pace0", 8))
    st("i0")
    dq += ci + refill(1)
    o0 = L()
    o0.s("s_mul_i32 s12, s10, 72", "s_add_u32 s12, s12, s13", "s_cmp_ge_u32 s12, 90",
        f"s_cselect_b32 s0, s{P_WO}, s{P_W2}", f"s_cselect_b32 s1, s{P_WO+1}, s{P_W2+1}")
    o0 += rot_table("s19", sK, 64 * 3456, sKx, 2, 10, RB)
    rp_pre = L()
    rp_pre.s("s_mul_i32 s10, s12, 57", "s_lshr_b32 s10, s10, 9", "s_mul_i32 s4, s10, 9", "s_sub_u32 s11, s12, s4",
        "s_sub_u32 s4, s12, 90", "s_lshr_b32 s5, s4, 2", "s_and_b32 s4, s4, 3", "s_cmp_ge_u32 s12, 90",
        "s_cselect_b32 s10, s5, s10", "s_cselect_b32 s11, s4, s11", "s_cselect_b32 s4, 5, 6", "s_cselect_b32 s5, 5, 2", "s_cselect_b32 s6, 54, 0",
        "s_cselect_b32 s7, 2, 18", "s_cselect_b32 s8, 9, 0",
        "s_add_u32 s8, s8, s11", "s_lshl_b32 s8, s8, 2",
        "s_mul_i32 s4, s4, s11", "s_lshr_b32 s9, s3, 2", "s_add_u32 s4, s4, s9",
        "s_mul_i32 s5, s5, s11", "s_add_u32 s5, s5, s6", "s_add_u32 s5, s5, s9",
        "s_lshl_b32 s4, s4, 2", "s_and_b32 s6, s3, 3", "s_add_u32 s4, s4, s6", f"s_mul_i32 s4, s4, {8*1280}", "s_lshl_b32 s9, s10, 7", "s_add_u32 s63, s4, s9",
        "s_add_u32 s8, s8, s9",
        "s_lshl_b32 s4, s10, 2", "s_add_u32 s4, s4, s6", "s_mul_i32 s6, s4, 52", "s_lshr_b32 s6, s6, 8", "s_mul_i32 s6, s6, 365", "s_add_u32 s6, s6, s4",
        "s_mul_i32 s5, s5, 5", "s_add_u32 s6, s6, s5", "s_lshl_b32 s6, s6, 10", f"s_add_u32 s76, s6, {W2F_OFF}",
        f"s_add_u32 s10, s8, {FLG_OFF + 32*128}",
        "s_cmp_lt_u32 s12, 130", f"s_cselect_b32 s76, s76, {0x70000000}", f"s_cselect_b32 s63, s63, {0x70000000}", f"s_cselect_b32 s10, s10, {0x30000000}",
        )
    rp_pre.v("v_lshrrev_b32", T + 4, "3", lane).v("v_mul_u32_u24", T + 4, "1280", T + 4).v("v_and_b32", T + 5, "7", lane).v("v_lshl_add_u32", T + 4, T + 5, "4", T + 4)
    rp_pre.v("v_lshrrev_b32", vP, "4", lane).v("v_lshlrev_b32", vP, "10", vP).v("v_bfe_u32", vTt, lane, "2", "2").v("v_lshl_add_u32", vP, vTt, "7", vP)
    rp_pre.v("v_and_b32", vTt, "3", lane).v("v_lshl_add_u32", vP, vTt, "3", vP)
    rp_pre.s("s_lshr_b32 s4, s3, 2", "s_lshl_b32 s4, s4, 12", "s_and_b32 s5, s3, 3", "s_lshl_b32 s5, s5, 5", "s_add_u32 s4, s4, s5", f"s_add_u32 s4, s4, {8*16384}").v("v_add_u32", vP, "s4", vP)
    o = L()
    o.s("s_and_b32 s4, s3, 3", "s_lshr_b32 s5, s3, 2")
    o.v("v_lshrrev_b32", t0, "5", lane).v("v_lshlrev_b32", t0, "10", t0).v("v_bfe_u32", t1, lane, "2", "2").v("v_lshl_add_u32", t0, t1, "7", t0)
    o.v("v_lshrrev_b32", t1, "1", t1).v("v_xor_b32", t1, "s5", t1).v("v_lshl_add_u32", t0, t1, "6", t0)
    o.v("v_bfe_u32", t1, lane, "4", "1").v("v_lshl_add_u32", t0, t1, "5", t0).v("v_and_b32", t1, "1", lane).v("v_lshl_add_u32", t0, t1, "4", t0)
    o.v("v_bfe_u32", t1, lane, "1", "1").v("v_lshl_add_u32", vWr[0], t1, "3", t0)
    o.v("v_add_u32", vWr[1], "0x10000", vWr[0]).v("v_add_u32", vWr[2], "0x20000", vWr[0])
    o.v("v_and_b32", t0, "31", lane).v("v_lshrrev_b32", t1, "5", lane).v("v_bfe_u32", t2, lane, "1", "3").v("v_xor_b32", t2, t1, t2)
    o.s("s_lshl_b32 s6, s4, 12")
    o.v("v_lshlrev_b32", t3, "7", t0).v("v_add_u32", t3, "s6", t3)
    for s4 in range(4): o.v("v_xor_b32", vXr + s4, str(2 * s4), t2).v("v_lshl_add_u32", vXr + s4, vXr + s4, "4", t3)
    o += rp_pre
    o += p2_setup(vPA, lane, "s4", "s11")
    paced(E, o0 + o, dq, cfg.get("pace", 40))
    st("i1")
    while any(x.kind == "vld" for g in dq for x in g): E(dq.pop(0))
    o = L()
    o += stats_ops(TB, XO)
    dq += refill(cfg.get("pre", 1))
    paced(E, o, dq, cfg.get("pace2", 16))
    E(Block("s_cmp_lt_u32 s17, 6", col_acc_ops(TB, lane, XO)))
    E(L().s(*PERMSEL))
    st("i3")
    D = L()
    D.append(list(L().s("s_and_b32 s4, s3, 3", "s_lshr_b32 s5, s3, 2", f"s_lshl_b32 s6, {sRb}, 2", "s_add_u32 s6, s6, s4", f"s_lshl_b32 {sTok}, s6, 9",
        "s_mul_i32 s6, s6, 74", f"s_lshl_b32 s7, {sCb}, 1", "s_add_u32 s6, s6, s7", "s_add_u32 s6, s6, s5", f"s_lshl_b32 {sSt}, s6, 11")))
    D.v("v_lshrrev_b32", t1, "5", lane).v("v_and_b32", t2, "15", lane).v("v_bfe_u32", t3, lane, "4", "1").v("v_lshl_add_u32", vTokA, t2, "1", t3).v("v_lshlrev_b32", vTokA, "4", vTokA)
    D.v("v_lshlrev_b32", vSt, "10", t3).v("v_lshl_add_u32", vSt, t1, "8", vSt).v("v_lshl_add_u32", vSt, t2, "4", vSt)
    D.v("v_and_b32", vCol, "19", lane).v("v_bfe_u32", t2, lane, "2", "1").v("v_lshl_add_u32", vCol, t2, "3", vCol)
    D.v("v_bfe_u32", t2, lane, "3", "1").v("v_lshl_add_u32", vCol, t2, "2", vCol)
    D.append(list(L().s(f"s_mul_i32 s6, {sCb}, 384", "s_lshr_b32 s5, s3, 2", "s_lshl_b32 s7, s5, 5", "s_add_u32 s6, s6, s7").v("v_add_u32", vCol, "s6", vCol)))
    D.v("v_lshlrev_b32", vCol, "3", vCol).v("v_lshl_add_u32", vCol, t1, "9", vCol)
    D.append(list(L().s(f"s_lshl_b32 {sOwn}, {sRb}, 7", f"s_lshl_b32 s6, {sCb}, 2", f"s_add_u32 {sOwn}, {sOwn}, s6", f"s_add_u32 {sOwn}, {sOwn}, {FLG_OFF}")))
    D.s(f"s_mov_b32 s14, {COL_OFF + 30*1024}", f"s_mov_b32 s15, {COL_OFF + 57*1024}")
    D.v("v_lshlrev_b32", vL16, "4", lane).v("v_or_b32", vF, sL, lane).v("v_min_u32", vF, "1", vF).v("v_lshlrev_b32", vF, "30", vF)
    def colload(dst, mat, chunk):
        return BLD(dst, 2, vCol, 20, "s14" if mat == 0 else "s15", off=chunk * 1024, tag="col", mod=SC1)
    def colchk(dst, mat, chunk):
        E(col_fix(dst))
    M = []
    for t in range(40):
        M.append((A0, t, t // 4, 0, t % 4)); M.append((A1, t, t // 4, 1, t % 4))
    for p, acc in ((1, A2), (2, A0), (3, A1), (4, A0)):
        for t in range(40):
            M.append((acc, t, 10 + 5 * (p - 1) + t // 8, (t // 4) % 2, t % 4))
    PF = 4; NB = 5
    def reads(n):
        acc, t, s, half, sub = M[n]
        pos = items[("W", s)] * 16384 + half * 8192 + sub * 2048
        b = WB + 4 * (n % NB)
        return [DSR(b, 2, vWr[pos >> 16], off=pos & 0xffff, tr=True), DSR(b + 2, 2, vWr[pos >> 16], off=(pos & 0xffff) + 512, tr=True)]
    fill = []
    def silu(G):
        ops = []
        if cfg.get("nosilu"): return ops
        for i in range(0, 16, 4):
            ops += [V("v_mul_f32", T + e, G + i + e, TOK + 2) for e in range(4)]
            ops += [V("v_exp_f32", T + e, T + e) for e in range(4)]
            ops += [V("v_fma_f32", T + e, T + e, TOK + 3, TOK + 3) for e in range(4)]
            ops += [V("v_rcp_f32", T + e, T + e) for e in range(4)]
            ops += [V("v_mul_f32", G + i + e, G + i + e, T + e) for e in range(4)]
        return ops
    def fin(G, U, chunk):
        ops = []
        for ip in range(2):
            ops += [V("v_mul_f32", G + 8 * ip + e, G + 8 * ip + e, U + 8 * ip + e) for e in range(8)]
            ops += [V("v_cvt_pk_bf16_f32", T + 4 + e, G + 8 * ip + 2 * e, G + 8 * ip + 2 * e + 1) for e in range(4)]
            mk = lambda: BST(T + 4, 4, vSt, 20, sSt, off=512 * ip, tag="st", mod=SC1)
            if cfg.get("stag") and chunk < 2: ops += [[Cond("s_cmp_lt_u32 s3, 4", [mk()])], [], [Cond("s_cmp_ge_u32 s3, 4", [mk()])]]
            else: ops.append(mk())
        if chunk < 2: ops.append(S(f"s_add_u32 {sSt}, {sSt}, {18*2048}"))
        return ops
    at_sync = {}
    def sync(s):
        its = [("W", s)] + ([("X", s)] if s < 10 else [])
        ex = at_sync.get(s, {})
        tags = its + ex.get("tags", [])
        while any(getattr(x, "tag", None) in tags for g in dq for x in g): E(dq.pop(0))
        for it in its: assert it in items
        for o_ in fill:
            for x_ in (o_ if isinstance(o_, list) else [o_]): assert getattr(x_, "tag", None) not in tags, (s, x_.text)
        tags.sort(key=lambda it: max([i for i, e in enumerate(a.vm) if e[1] == it] + [-1]))
        lg = None
        if 1 <= s <= 10:
            xr = set(rng(XF + 16 * (s - 1), 16))
            idx = [i for i, e in enumerate(a.lg) if e & xr]
            if idx: lg = len(a.lg) - 1 - max(idx)
        if s == 0: lg = 0
        if "lgw" in ex:
            idx = [i for i, e in enumerate(a.lg) if not e]
            if idx: lg = min(99 if lg is None else lg, len(a.lg) - 1 - max(idx))
        a.wait_tag(tags[-1], lg=lg)
        if not (cfg.get("nobar") and s > 11 and s % 2): a.barrier()
        st(f"s{s}")
        if 1 <= s <= 10: free.append(items[("X", s - 1)])
        if s >= 2: free.append(items[("W", s - 2)])
        free.extend(ex.get("free", []))
        if "post" in ex: ex["post"]()
        dq.extend(refill())
        if s < 10:
            for s4 in range(4):
                E(DSR(XF + 4 * (4 * s + s4), 4, vXr + s4, off=items[("X", s)] * 16384))
    def chk_empty(): assert not fill, len(fill)
    fill += tok_fin_ops(TB, XO)
    fill += [[Block(f"s_cmp_lt_u32 {sColSt}, {HUGE}", col_fin_ops(TB + 16, TB + 6, lane, XO))]] + D
    RS = [8, 9]
    def rp_issue():
        for x in RS: free.remove(x)
        dq.append(list(L().s(f"s_mov_b32 s{S_AUX}, s0", f"s_mov_b32 s{S_AUX+1}, s1", f"s_mov_b32 s{S_AUX+2}, {1728*1280}", f"s_mov_b32 s7, {18*5120}", "s_cmp_ge_u32 s12, 90",
              f"s_cselect_b32 s{S_AUX+2}, {640*1280}, s{S_AUX+2}", f"s_cselect_b32 s7, {2*5120}, s7", "s_add_u32 s0, s76, s7", "s_add_u32 s1, s0, s7")))
        dq.append(list(L().s("s_lshr_b32 s4, s3, 2", "s_mul_i32 s4, s4, s12", "s_cmp_ge_u32 s4, 90", f"s_cselect_b32 s1, {0x70000000}, s1")))
        for z in range(3):
            dq.append([S(f"s_add_u32 m0, {sL}, {RS[0]*16384 + z*8192}"), DMA(T + 4, S_AUX, "s63", tag="rp", mod=DBG.get("rm", " nt")), S(f"s_add_u32 s63, s63, {64*1280}")])
    def rp_rd(z): return [DSR(T + 4, 2, vP, off=z * 8192, tr=True), DSR(T + 6, 2, vP, off=z * 8192 + 512, tr=True)]
    def rp_st(z): return BST(T + 4, 4, vL16, 20, ["s76", "s0", "s1"][z], tag="rps", mod=SC1)
    at_sync[8] = dict(post=rp_issue)
    at_sync[11] = dict(tags=["rp"])
    at_sync[13] = dict(free=RS)
    at_sync[cfg.get("fw", 14)] = dict(tags=["rps"], post=lambda: E(flag_st(vTt, vF, LV_W2, "s10")))
    at_sync[17] = dict(tags=["st"], post=lambda: E(flag_st(vTt, vF, LV_A)))
    at_sync[cfg.get("fb", 24)] = dict(tags=["st"], post=lambda: E(flag_st(vTt, vF, LV_B)))
    sync(0)
    for n in range(PF): E(reads(n))
    def w2chk():
        flg_check(a, vP, vPA, LV_W2); p2["go"] = True
    def achk():
        flg_check(a, vP, vPA, LV_A)
    P1 = cfg.get("p1", 46); WC = cfg.get("wc", 168); AC = cfg.get("ac", 198)
    tokld = BLD(TOK, 4, vTokA, 36, sTok, tag="tok", mod=SC1)
    first = [tokld, colload(AP[0], 0, 0), colload(AP[1], 1, 0)] + \
            [BLD(T + i, 1, vCol, 20, "s14" if i % 2 == 0 else "s15", off=(1 + i // 2) * 1024 + 4, mod=SC1) for i in range(4)]
    after = {}
    def at(n, f): after.setdefault(n, []).append(f)
    if cfg.get("tag1", 1):
        import copy
        at(P1, lambda: E([V("v_mov_b32", T + i, sTag) for i in range(4)] + [S("s_and_b32 s4, s3, 3"), Cond("s_cmp_eq_u32 s4, 0", [copy.copy(x) for x in first[3:]])]))
        for i, x in enumerate(first[:3]): at(P1 + 8 + 4 * i, lambda x=x: E(x))
    else:
        for i, x in enumerate(first): at(P1 + 3 * i, lambda x=x: E(x))
    at(79, lambda: (check(a, first, tag_cmp([TOK + 1, AP[0] + 1, AP[1] + 1, T, T + 1, T + 2, T + 3], vTt)), E(col_fix(AP[0])), E(col_fix(AP[1])),
                    E(V("v_mov_b32", TOK + 1, TOK)), E(V("v_mul_f32", TOK + 2, NLOG2E, TOK + 2))))
    at(82, lambda: (E(MFMA32C(A0, AP[0], TOK)), E(MFMA32C(A1, AP[1], TOK)),
                    fill.extend([[], []] + silu(A0) + fin(A0, A1, 0))))
    for z in range(3):
        if cfg.get("stag"):
            at(85 + 5 * z, lambda z=z: E(rp_rd(z))); at(87 + 5 * z, lambda z=z: E(Cond("s_cmp_lt_u32 s3, 4", [rp_st(z)]))); at(89 + 5 * z, lambda z=z: E(Cond("s_cmp_ge_u32 s3, 4", [rp_st(z)])))
        else:
            at(86 + 4 * z, lambda z=z: E(rp_rd(z))); at(89 + 4 * z, lambda z=z: E(rp_st(z)))
    at(101, lambda: E(colload(AP[0], 0, 1))); at(105, lambda: E(colload(AP[1], 1, 1)))
    at(119, lambda: colchk(AP[0], 0, 1))
    at(122, lambda: (E(MFMA32C(A2, AP[0], TOK)), fill.extend([colload(AP[0], 0, 2), [], []] + silu(A2))))
    at(159, lambda: colchk(AP[1], 1, 1))
    at(162, lambda: (E(MFMA32C(A0, AP[1], TOK)), fill.extend([colload(AP[1], 1, 2), [], []] + fin(A2, A0, 1))))
    at(WC - cfg.get("pl", 14), lambda: E(flg_poll(vP, vPA, LV_W2))); at(WC, w2chk)
    if PFX:
        for p in range(1, 4): at(WC + 1 + cfg.get("pfs", 6) * (p - 1), lambda p=p: E(pf_w2(p, vTt, T + p, lane)))
    at(199, lambda: colchk(AP[0], 0, 2))
    at(202, lambda: (E(MFMA32C(A1, AP[0], TOK)), fill.extend([[], []] + silu(A1))))
    at(AC - cfg.get("pl", 14), lambda: E(flg_poll(vP, vPA, LV_A))); at(AC, achk)
    at(220, lambda: colchk(AP[1], 1, 2))
    PARK = cfg.get("park", 177)
    if PARK:
        for i in range(4):
            at(PARK + 6 * i, lambda i=i: (chk_empty(), E([S(f"s_add_u32 s9, {sP2W}, {3*8*5120 + (i+1)*1024}"), BLD(A2 + 4 * i, 4, vL16, 20, "s9", mod=SC1)])))
    at(236, lambda: E(flg_poll(3, vPA, LV_B)))
    for n in range(240):
        acc, t, s, half, sub = M[n]
        if n in (P1, 80, 120, 200): chk_empty()
        E(MFMA32(acc, WB + 4 * (n % NB), XF + 4 * t, c="0" if t == 0 else None))
        m = n + PF
        if m < 240:
            if m % 8 == 0: sync(m // 8)
            E(reads(m))
        for f in after.get(n, []): f()
        b = cfg.get("b1", 4.5) if (80 <= n < 120) else cfg.get("b2", 3.5) if 120 <= n < 200 else cfg.get("b", 3.5)
        ph = m % 8
        okd = ph in cfg.get("ph0", [1, 2, 3, 4, 5, 6]) if n < 80 else ph in ((cfg.get("ph2", [2, 4, 6]) if n >= cfg.get("cu", 80) else cfg.get("ph3", [3, 5])) if len(dq) > 2 else cfg.get("ph1", [3, 5]))
        if dq and (okd or not any(x.kind == "dma" for x in dq[0])):
            g_ = dq.pop(0)
            if cfg.get("nodma") and n >= 80: g_ = [x for x in g_ if x.kind != "dma"]
            E(g_); b -= 1
        elif n >= cfg.get("ago", 202) and ph in (1, 7) and p2["act"] < 9:
            assert p2["act"] <= t
            E(p2_act(p2["act"], vL16)); p2["act"] += 1; b -= 1
        while fill and b > 0:
            o_ = fill.pop(0); E(o_); b -= cost(o_)
    assert not fill and not dq
    st("p1e")
    E(MFMA32C(A0, AP[1], TOK))
    E(V("v_mov_b32", 2, vPA)); E(V("v_mov_b32", 4, vF))
    E(fin(A1, A0, 2))
    phase2(a, st, cfg, vL16, lane, 2, 3, p2["pieces"], p2["act"], cfg.get("rate", 2.1), flag_st(5, 4, LV_C), epoch=True,
           parked=[(16 + i, A2 + 4 * i) for i in range(4)] if PARK else [])
    st.finish(1, name, cfg.get("stw", 0))
    a.raw("s_endpgm")

def gen_qkv(a, name, stamps, cfg):
    E = a.emit; st = Stamp(a, stamps, cfg.get("sel"))
    PFX = cfg.get("pf", False)
    sK, sKx = 40, 50
    vL16, lane = 0, 1
    ACC = 176; FR = [128, 152]; TB = 80
    vPA, vP, vF = 2, 3, 4
    vDW, vDX = 5, 6
    vWr, vXr = 9, 12
    TOK = 24; AP = 44; vQW = 46; T = 50
    vTt, vColA, vTokA = 57, 58, 87
    BC, BP, MC, MP, ONE, MG0 = 60, 64, 68, 70, 72, 76
    vQ, vQ2, vV, vV2, vOW, vOW2, vOR = 77, 78, 79, 80, 81, 82, 83
    n_, g_ = 85, 86
    vOG = 92
    t0, t1, t2, t3, t4 = T, T + 1, T + 2, T + 3, T + 4
    sHg, sB, sT0 = "s13", "s14", "s15"
    SLOT = 53248; WOFF = 20480; DUMMY = 3 * SLOT; XOFF = DUMMY + 1024
    sM3 = ["s68", "s69", "s70"]
    RB = cfg.get("rblkq", 5)
    E(st_pre(TB, lane, TOK))
    o = L()
    o.s("s_sub_u32 s12, s12, 18", f"s_mov_b32 s30, {640*3840}",
        "s_cmp_ge_u32 s12, 7", f"s_cselect_b32 {sHg}, 1, 0", f"s_cselect_b32 {sB}, 7, 0", f"s_sub_u32 {sB}, s12, {sB}",
        f"s_mul_i32 s4, {sHg}, {cfg.get('rmulq', 2)}", f"s_add_u32 s4, s4, {sB}")
    o += mod_ops("s4", "s19", RB)
    o.s("s_lshl_b32 s4, s11, 1", f"s_add_u32 {sHg}, {sHg}, s4", "s_mul_i32 s4, s10, 7", f"s_add_u32 {sB}, {sB}, s4")
    o += rot_table("s19", sK, 64 * 3840, sKx, 0, 1, RB)
    o.s("s_and_b32 s4, s3, 3", "s_lshr_b32 s5, s3, 2", "s_lshl_b32 s6, s4, 3")
    o.v("v_lshrrev_b32", t0, "3", lane).v("v_and_b32", t1, "7", lane).v("v_add_u32", t2, "s6", t0)
    o.v("v_bfe_u32", t3, t2, "1", "3").v("v_xor_b32", t3, t1, t3)
    o.v("v_and_b32", vDX, "15", t2).v("v_lshrrev_b32", t2, "4", t2).v("v_lshl_add_u32", vDX, vDX, "1", t2)
    o.s(f"s_mul_i32 {sT0}, {sB}, 146", "s_lshl_b32 s9, s5, 5", f"s_add_u32 s6, {sT0}, s9")
    o.v("v_add_u32", vDX, "s6", vDX).v("v_mul_u32_u24", vDX, "1280", vDX).v("v_lshl_add_u32", vDX, t3, "4", vDX).v("v_add_u32", vDX + 1, str(64 * 1280), vDX)
    o.v("v_add_u32", vDX + 2, str(128 * 1280), vDX)
    E(o)
    def dma_stage(s):
        z = s % 3; base = z * SLOT
        ops = [[S(f"s_add_u32 m0, {sL}, {base}"), DMA(vDX, 24, f"s{sKx+s}", tag=s)],
               [S(f"s_add_u32 m0, {sL}, {base+8192}"), DMA(vDX + 1, 24, f"s{sKx+s}", tag=s)],
               [Cond("s_cmp_lt_u32 s3, 4", [S(f"s_add_u32 m0, {sL}, {base+16384}"), DMA(vDX + 2, 24, f"s{sKx+s}", tag=s)])]]
        for e in range(4):
            g = [S(f"s_add_u32 m0, {sL}, {base+WOFF+e*8192}")]
            if e == 0: g.append(DMA(vDW, 28, f"s{sK+s}", tag=s, mod=DBG.get("wm", "")))
            else: g += [S(f"s_add_u32 s63, s{sK+s}, {e*16*3840}"), DMA(vDW, 28, "s63", tag=s, mod=DBG.get("wm", ""))]
            ops.append(g)
        return ops
    o = L()
    o.s("s_lshl_b32 s6, s3, 1")
    o.v("v_lshrrev_b32", t0, "5", lane).v("v_add_u32", t0, "s6", t0)
    o.v("v_and_b32", t1, "3", t0).v("v_lshlrev_b32", t1, "2", t1).v("v_and_b32", t2, "31", lane).v("v_xor_b32", t1, t1, t2)
    o.v("v_mul_u32_u24", t2, "26", t1).v("v_lshrrev_b32", t2, "8", t2)
    o.v("v_mul_u32_u24", t3, str(1280 - 160), t2).v("v_lshl_add_u32", t3, t1, "4", t3)
    o.v("v_add_u32", t1, "2", t1).v("v_lshrrev_b32", t1, "5", t1).v("v_lshl_add_u32", t3, t1, "30", t3)
    o.v("v_mul_u32_u24", vDW, "3840", t0).v("v_add_u32", vDW, vDW, t3)
    o.s(f"s_mul_i32 s6, {sHg}, 160").v("v_add_u32", vDW, "s6", vDW)
    E(o)
    common_wait(a, stamps)
    E(S(f"s_mov_b32 s28, s{P_QKV}")); E(S(f"s_mov_b32 s29, s{P_QKV+1}"))
    E(st_issue(TB, TOK))
    dq = dma_stage(0)
    paced(E, rot_table("s19", sK, 64 * 3840, sKx, 1, 10, RB), dq, cfg.get("paceq0", 12))
    st("i0")
    o = L()
    o.v("v_lshrrev_b32", t0, "5", lane).v("v_lshlrev_b32", t0, "12", t0).v("v_bfe_u32", t1, lane, "2", "2").v("v_lshl_add_u32", t0, t1, "9", t0)
    o.v("v_xor_b32", t1, "s3", t1).v("v_lshl_add_u32", t0, t1, "6", t0)
    o.v("v_bfe_u32", t1, lane, "4", "1").v("v_lshl_add_u32", t0, t1, "5", t0).v("v_and_b32", t1, "3", lane).v("v_lshl_add_u32", t0, t1, "3", t0)
    for z in range(3): o.v("v_add_u32", vWr + z, str(z * SLOT + WOFF), t0)
    o.v("v_and_b32", t0, "31", lane).v("v_lshrrev_b32", t1, "5", lane).v("v_bfe_u32", t2, lane, "1", "3").v("v_xor_b32", t2, t1, t2).v("v_lshlrev_b32", t3, "7", t0)
    for s4 in range(4):
        o.v("v_xor_b32", t4, str(2 * s4), t2).v("v_lshl_add_u32", vXr + s4, t4, "4", t3)
        for z in (1, 2): o.v("v_add_u32", vXr + 4 * z + s4, str(z * SLOT), vXr + s4)
    o.s("s_mul_i32 s4, s11, 15", "s_add_u32 s4, s4, 1", "s_lshr_b32 s4, s4, 1", "s_add_u32 s4, s4, s12",
        "s_mul_i32 s6, s4, 86", "s_lshr_b32 s6, s6, 8", "s_mul_i32 s7, s6, 3", "s_sub_u32 s4, s4, s7", "s_mul_i32 s8, s4, 10", "s_add_u32 s8, s8, s6",
        "s_lshl_b32 s9, s8, 7", "s_and_b32 s4, s11, 1", "s_add_u32 s4, s4, s12", "s_cmp_lt_u32 s4, 8")
    o += col_pre(TB, lane, 3840)
    o_pre = o
    QB = 81920
    D = L()
    D += p2_setup(vPA, lane)
    D.s(f"s_lshl_b32 {sOwn}, {sB}, 5", f"s_add_u32 {sOwn}, {sOwn}, {sHg}", f"s_lshl_b32 {sOwn}, {sOwn}, 2", f"s_add_u32 {sOwn}, {sOwn}, {FLG_OFF + 16*128}",
        f"s_mov_b32 s12, {COL_OFF}")
    D.v("v_lshlrev_b32", vL16, "4", lane).v("v_or_b32", vF, sL, lane).v("v_min_u32", vF, "1", vF).v("v_lshlrev_b32", vF, "30", vF)
    D.v("v_and_b32", t0, "31", lane).v("v_lshrrev_b32", t1, "5", lane)
    D.v("v_and_b32", t2, "15", lane).v("v_bfe_u32", t3, lane, "4", "1").v("v_lshl_add_u32", t4, t2, "1", t3).v("v_add_u32", t4, sT0, t4)
    for rg in range(5):
        D.v("v_add_u32", vTokA + rg, str(32 * rg), t4).v("v_min_u32", vTokA + rg, "2047", vTokA + rg).v("v_lshlrev_b32", vTokA + rg, "4", vTokA + rg)
    D.s("s_lshl_b32 s6, s3, 5").v("v_add_u32", t0, "s6", t0).v("v_min_u32", t0, "239", t0)
    D.v("v_mul_u32_u24", t4, "205", t0).v("v_lshrrev_b32", t4, "14", t4).v("v_mul_u32_u24", t4, "560", t4).v("v_add_u32", t4, t4, t0)
    D.s(f"s_mul_i32 s6, {sHg}, 80").v("v_add_u32", t4, "s6", t4)
    D.v("v_lshrrev_b32", vColA, "6", t4).v("v_lshlrev_b32", vColA, "10", vColA).v("v_and_b32", t4, "63", t4)
    D.v("v_lshl_add_u32", vColA, t4, "3", vColA).v("v_lshl_add_u32", vColA, t1, "9", vColA)
    D.v("v_mul_u32_u24", T + 5, "3200", t3).v("v_mul_u32_u24", T + 6, "40", t2).v("v_add_u32", T + 5, T + 5, T + 6).v("v_add_u32", T + 5, str(QB), T + 5)
    D.s("s_lshl_b32 s6, s3, 3")
    for i in range(4):
        D.v("v_add_u32", t0, "s6", t1)
        if i: D.v("v_add_u32", t0, str(2 * i), t0)
        D.v("v_mul_u32_u24", t4, "52", t0).v("v_lshrrev_b32", t4, "8", t4)
        D.v("v_mul_u32_u24", T + 6, str(6400 - 40), t4).v("v_lshl_add_u32", T + 6, t0, "3", T + 6).v("v_add_u32", vQW + i, T + 6, T + 5)
    D.v("v_and_b32", n_, "15", lane).v("v_lshrrev_b32", g_, "4", lane).v("v_lshlrev_b32", t0, "2", g_).v("v_sub_u32", t0, n_, t0)
    D.v("v_mov_b32", t4, "0xf149f2ca").v("v_mov_b32", T + 5, "0xffff").v("v_mov_b32", T + 6, "0xffff0000")
    for r in range(4):
        for (BB, MM, add) in ((BC, MC, 0), (BP, MP, 16)):
            D.v("v_add_u32", t1, str(add - r), t0)
            D.append(VCMP("v_cmp_gt_u32", "s[4:5]", "8", t1))
            D.v("v_cndmask_b32", BB + r, t4, "0", "s[4:5]")
            if r % 2 == 0: D.v("v_cndmask_b32", MM + r // 2, "0", T + 5, "s[4:5]")
            else: D.v("v_cndmask_b32", t3, "0", T + 6, "s[4:5]").v("v_or_b32", MM + r // 2, MM + r // 2, t3)
    for r in range(4): D.v("v_mov_b32", ONE + r, "0x3f803f80")
    D.append(VCMP("v_cmp_eq_u32", "s[4:5]", "0", g_))
    D.v("v_cndmask_b32", MG0, "0", "-1", "s[4:5]")
    D.s("s_mul_i32 s6, s3, 3200", f"s_add_u32 s6, s6, {QB}")
    D.v("v_mul_u32_u24", t0, "40", n_).v("v_add_u32", t0, "s6", t0).v("v_lshl_add_u32", vQ, g_, "3", t0).v("v_add_u32", vQ2, "32", t0)
    D.v("v_lshrrev_b32", t0, "2", lane).v("v_mul_u32_u24", t0, "40", t0).v("v_add_u32", t0, "s6", t0).v("v_add_u32", t0, str(51200), t0)
    D.v("v_and_b32", t1, "3", lane).v("v_lshl_add_u32", vV, t1, "3", t0).v("v_add_u32", vV2, "32", t0)
    OB = QB
    D.s(f"s_mul_i32 s7, {sB}, 73", "s_and_b32 s6, s7, 7", "s_lshl_b32 s6, s6, 4", "s_bitcmp1_b32 s3, 0")
    D[-1:] = [[D[-1], S(f"s_cselect_b32 s8, {OB + 1408}, {0}"), S(f"s_max_u32 s8, s8, {OB}"), S("s_add_u32 s6, s6, s8")]]
    D.v("v_lshl_add_u32", t1, n_, "4", "s6")
    D.s("s_lshr_b32 s6, s3, 1", "s_mul_i32 s6, s6, 5")
    for (dst, second) in ((vOW, False), (vOW2, True)):
        if second: D.s("s_add_u32 s6, s6, 4").v("v_mov_b32", t0, "s6")
        else: D.v("v_add_u32", t0, "s6", g_)
        D.v("v_lshrrev_b32", t2, "1", t0).v("v_mul_u32_u24", t2, "2816", t2).v("v_add_u32", dst, t2, t1)
        D.v("v_and_b32", t2, "1", t0).v("v_lshl_add_u32", dst, t2, "3", dst)
    D.v("v_mov_b32", T + 5, str(DUMMY)).v("v_cndmask_b32", vOW2, T + 5, vOW2, "s[4:5]")
    D.v("v_lshrrev_b32", t0, "4", sL) if False else None
    D.v("v_lshl_add_u32", vOR, lane, "4", sL).v("v_add_u32", vOR, str(OB), vOR)
    D.append([S(f"s_mul_i32 s7, {sB}, 73"), S("s_add_u32 s8, s7, 7"), S(f"s_cmp_eq_u32 {sB}, 0"), S("s_cselect_b32 s8, 0, s8"),
              S("s_add_u32 s35, s7, 80"), S("s_sub_u32 s34, s35, s8"), S("s_mov_b32 s33, s8"), S("s_and_b32 s32, s7, -8"),
              S(f"s_mul_i32 s71, {sHg}, 10")])
    D.v("v_mov_b32", T + 5, HUGE)
    for i in range(4):
        D.append([S("s_lshl_b32 s6, s3, 6"), S(f"s_add_u32 s6, s6, {512*i}"), V("v_add_u32", t0, "s6", lane)])
        D.v("v_mul_u32_u24", t1, "745", t0).v("v_lshrrev_b32", t1, "16", t1)
        D.v("v_mul_u32_u24", t2, "88", t1).v("v_sub_u32", t0, t0, t2).v("v_add_u32", t0, "s32", t0)
        D.v("v_lshrrev_b32", t2, "4", t0).v("v_mul_u32_u24", vOG + i, str(74 * 2048), t2)
        D.v("v_and_b32", t2, "15", t0).v("v_lshl_add_u32", vOG + i, t2, "4", vOG + i)
        D.v("v_and_b32", t2, "1", t1).v("v_lshl_add_u32", vOG + i, t2, "10", vOG + i)
        D.v("v_lshrrev_b32", t2, "1", t1).v("v_add_u32", t2, "s71", t2)
        D.v("v_lshrrev_b32", t3, "2", t2).v("v_lshl_add_u32", vOG + i, t3, "11", vOG + i)
        D.v("v_and_b32", t2, "3", t2).v("v_lshl_add_u32", vOG + i, t2, "8", vOG + i)
        D.v("v_subrev_u32", t0, "s33", t0)
        D.append(VCMP("v_cmp_gt_u32", "s[4:5]", "s34", t0))
        D.v("v_cndmask_b32", vOG + i, T + 5, vOG + i, "s[4:5]")
        if i == 3:
            D.append(VCMP("v_cmp_gt_u32", "s[4:5]", "20", t1))
            D.v("v_cndmask_b32", vOG + i, T + 5, vOG + i, "s[4:5]")
    dq += dma_stage(1)
    paced(E, o_pre + D + [S(x) for x in PERMSEL], dq, cfg.get("paceq", 36))
    st("i1")
    paced(E, stats_ops(TOK, XOFF), dq, 16)
    dq += dma_stage(2)
    st("i3")
    def reads(t):
        s, sub = t // 4, t % 4; z = s % 3; f = FR[t % 2]
        ops = [DSR(f, 2, vWr + z, off=sub * 8192, tr=True), DSR(f + 2, 2, vWr + z, off=sub * 8192 + 2048, tr=True)]
        for rg in range(5): ops.append(DSR(f + 4 + 4 * rg, 4, vXr + 4 * z + sub, off=rg * 4096))
        return ops
    tabld = [BLD(TOK + 4 * rg, 4, vTokA + rg, 36, "0", tag="tok", mod=SC1) for rg in range(5)] + [BLD(AP, 2, vColA, 20, "s12", tag="col", mod=SC1)]
    while any(x.tag == 0 for g in dq for x in g): E(dq.pop(0))
    if cfg.get("prio"): E(Cond("s_cmp_ge_u32 s3, 4", [S("s_setprio 1")]))
    a.wait_tag(0, lg=0); a.barrier()
    st("s0")
    E(reads(0))
    fill = tok_fin_ops(TB, XOFF, TOK)
    for t in range(40):
        f = FR[t % 2]
        nxt = []
        if t + 1 < 40:
            if (t + 1) % 4 == 0:
                s = (t + 1) // 4
                while any(x.tag == s for g in dq for x in g): E(dq.pop(0))
                a.wait_tag(s, lg=0); a.barrier()
                st(f"s{s}")
                if s + 2 < 10: dq += dma_stage(s + 2)
                CQ = cfg.get("cq", 1)
                if s in (CQ, CQ + 1):
                    cl_ = [[Cond(f"s_cmp_lt_u32 s78, {HUGE}", g)] for g in col_issue(TB, 28, 3840)]
                    dq += cl_[:3] if s == CQ else cl_[3:]
                if s == CQ + 2: fill = [[]] * 10 + col_acc_ops(TB, lane, XOFF, dot=False)
                if s == CQ + 5:
                    assert not fill; fill = [[Block(f"s_cmp_lt_u32 {sColSt}, {HUGE}", col_fin_ops(TB + 16, vTt, lane, XOFF))]]
                if s == 9:
                    assert not fill
                    dq += [[x] for x in tabld]
                    if cfg.get("qpark", 10): dq.append(flg_poll(vP, vPA, LV_W2))
            nxt = reads(t + 1)
        if t == 39:
            check(a, tabld, tag_cmp([TOK + 4 * rg + 1 for rg in range(5)] + [AP + 1], vTt))
            fill = col_fix(AP) + [V("v_mov_b32", TOK + 4 * rg + 1, TOK + 4 * rg) for rg in range(5)]
        for rg in range(5):
            E(MFMA32(ACC + 16 * rg, f, f + 4 + 4 * rg, c="0" if t == 0 else None))
            for k in range(2):
                if nxt: E(nxt.pop(0))
            b = 2.5
            if (rg >= 3 or (rg >= 1 and len(dq) > 4)) and dq: E(dq.pop(0)); b -= 1
            while fill and b > 0:
                o_ = fill.pop(0); E(o_); b -= cost(o_)
    assert not fill and not dq
    st("ge")
    for rg in range(5): E(MFMA32C(ACC + 16 * rg, AP, TOK + 4 * rg))
    QP = cfg.get("qpark", 10)
    early = []
    if QP:
        flg_check(a, vP, vPA, LV_W2)
        early = p2_w_item(1, vL16)[2:] + [[S(f"s_add_u32 s9, {sP2W}, {(k//5)*8*5120 + (k%5)*1024}"), BLD(132 + 4 * (k - 10), 4, vL16, 20, "s9", mod=SC1)] for k in range(10, 10 + QP)]
    for rg in range(5):
        A = ACC + 16 * rg
        if rg == 2 and not QP: E(flg_poll(vP, vPA, LV_W2))
        for i in range(4):
            if early and i != 3: E(early.pop(0))
            for e in range(4): E(V("v_mul_f32", A + 4 * i + e, A + 4 * i + e, TOK + 4 * rg + 2))
            E(V("v_cvt_pk_bf16_f32", A + 4 * i, A + 4 * i, A + 4 * i + 1)); E(V("v_cvt_pk_bf16_f32", A + 4 * i + 1, A + 4 * i + 2, A + 4 * i + 3))
            E(DSW(vQW + i, A + 4 * i, 2, off=rg * 640))
    E(flg_poll(vTt, vPA, LV_A))
    a.wait(lg=0); a.barrier()
    st("at")
    Qr = [176 + 4 * j for j in range(5)]; Kr = [196 + 4 * j for j in range(5)]
    V0, V1 = 24, 36
    for j in range(5):
        E(DSR(Qr[j], 2, vQ, off=j * 640)); E(DSR(Qr[j] + 2, 2, vQ2, off=j * 640))
        E(DSR(Kr[j], 2, vQ, off=25600 + j * 640)); E(DSR(Kr[j] + 2, 2, vQ2, off=25600 + j * 640))
    for j in range(5):
        E(DSR(V0 + 2 * (j + 1), 2, vV, off=j * 640, tr=True)); E(DSR(V1 + 2 * (j + 1), 2, vV2, off=j * 640, tr=True))
    for r in (V0, V0 + 1, V1, V1 + 1): E(V("v_mov_b32", r, "0"))
    SC = [216 + 4 * j for j in range(5)]; SP = [236 + 4 * j for j in range(5)]
    for j in range(5):
        E(V("v_and_b32", Qr[j] + 2, Qr[j] + 2, MG0)); E(V("v_and_b32", Qr[j] + 3, Qr[j] + 3, MG0))
    for j in range(5):
        E(MFMA16C(SC[j], Kr[j], Qr[j], BC))
        if j > 0: E(MFMA16C(SP[j], Kr[j - 1], Qr[j], BP))
    MX = [5 + j for j in range(5)]; TT = [10 + j for j in range(5)]
    a.barrier()
    assert not early
    st("a1")
    if not QP: flg_check(a, vP, vPA, LV_W2)
    flg_check(a, vTt, vPA, LV_A)
    if PFX:
        for p in range(1, 4): E(pf_w2(p, vTt, 140 + p, lane))
    pre = merge(p2_w_item(0, vL16) + p2_w_item(1, vL16)[:2 if QP else 5], [p2_act(x, vL16) for x in range(0, 9)])
    st("a2")
    if cfg.get("nopre"): post = pre; pre = []
    def pp(k=1):
        for _ in range(k):
            if pre: E(pre.pop(0))
    for j in range(5):
        if j > 0:
            for r in range(4): E(V("v_max_f32", SC[j] + r, SC[j] + r, SP[j] + r))
        E(V("v_max3_f32", MX[j], SC[j], SC[j] + 1, SC[j] + 2)); E(V("v_max_f32", MX[j], MX[j], SC[j] + 3))
        if j % 2: pp()
    for lvl in (16, 32):
        for j in range(5): E(V("v_mov_b32", TT[j], MX[j]))
        for j in range(5): E(SWAP(lvl, MX[j], TT[j]))
        for j in range(5): E(V("v_max_f32", MX[j], MX[j], TT[j]))
        pp()
    st("a3")
    E(S(f"s_mov_b32 s7, {CSC}"))
    for j in range(5): E(V("v_mul_f32", MX[j], NCSC, MX[j]))
    PB = [236 + 4 * j for j in range(5)]
    for j in range(5):
        for r in range(4): E(V("v_fma_f32", SC[j] + r, SC[j] + r, "s7", MX[j]))
        for r in range(4): E(V("v_exp_f32", SC[j] + r, SC[j] + r))
        pp()
    for j in range(5):
        E(V("v_cvt_pk_bf16_f32", SC[j], SC[j], SC[j] + 1)); E(V("v_cvt_pk_bf16_f32", SC[j] + 1, SC[j] + 2, SC[j] + 3))
        for h in range(2):
            E(V("v_and_b32", PB[j] + h, SC[j] + h, MP + h)); E(V("v_and_b32", PB[j] + 2 + h, SC[j] + h, MC + h))
        if j % 2: pp()
    st("a4")
    O0 = Qr; O1 = Kr; DN = SC
    for j in range(5):
        E(MFMA16(DN[j], ONE, PB[j], c="0")); E(MFMA16(O0[j], V0 + 2 * j, PB[j], c="0")); E(MFMA16(O1[j], V1 + 2 * j, PB[j], c="0"))
    srd(a, 28, "s20", "s21", ACT_SIZE)
    for j in range(5): E(V("v_rcp_f32", DN[j], DN[j]))
    for j in range(5):
        for O in (O0[j], O1[j]):
            for r in range(4): E(V("v_mul_f32", O + r, O + r, DN[j]))
            E(V("v_cvt_pk_bf16_f32", O, O, O + 1)); E(V("v_cvt_pk_bf16_f32", O + 1, O + 2, O + 3))
        E(DSW(vOW, O0[j], 2, off=j * 256)); E(DSW(vOW2, O1[j], 2, off=j * 256))
        pp()
    st("a5")
    a.wait(lg=0); a.barrier()
    st("a6")
    for i in range(4): E(DSR(216 + 4 * i, 4, vOR, off=i * 8192))
    E(S(f"s_mov_b32 s6, {54*2048}"))
    for i in range(4): E(BST(216 + 4 * i, 4, vOG + i, 28, "s6", tag="st", mod=SC1))
    st("p1e")
    if cfg.get("nopre"): pre = post
    pp(20)
    E(flg_poll(vP, vPA, LV_B))
    phase2(a, st, cfg, vL16, lane, vPA, vP, 10, 9, cfg.get("rateq", 2.1), flag_st(5, vF, LV_C), parked=[(10 + i, 132 + 4 * i) for i in range(QP)])
    st.finish(2, name, cfg.get("stw", 0))
    a.raw("s_endpgm")

def gen_fused(name, stamps=False, cfg={}):
    DBG.update(cfg)
    a = Asm(); E = a.emit
    a.out.append(f".globl {name}\n.p2align 8\n.type {name},@function\n{name}:")
    E(S("s_cmp_ge_u32 s2, 256")); a.raw(f"s_cbranch_scc1 L_{name}_end")
    if stamps:
        a.raw("s_memrealtime s[76:77]"); a.raw("s_memtime s[80:81]")
    a.raw("s_load_dwordx2 s[24:25], s[0:1], 0")
    a.raw(f"s_load_dwordx4 s[{P_QKV}:{P_QKV+3}], s[0:1], 8")
    a.raw("s_load_dwordx2 s[28:29], s[0:1], 32"); a.raw("s_load_dwordx2 s[32:33], s[0:1], 40")
    a.raw(f"s_load_dwordx2 s[{P_W2}:{P_W2+1}], s[0:1], 48")
    a.raw(f"s_load_dwordx2 s[{S_OUT}:{S_OUT+1}], s[0:1], 56")
    a.raw("s_load_dwordx2 s[20:21], s[0:1], 72")
    E(V("v_lshrrev_b32", 2, "6", 0)); E(V("v_and_b32", 1, "63", 0))
    E(RFL("s3", 2))
    for (b, size) in ((20, WS_USED), (24, XBYTES), (S_OUT, XBYTES), (36, 2048 * 16), (28, 640 * 3456), (32, 640 * 3456)):
        E(S(f"s_mov_b32 s{b+2}, {size}")); E(S(f"s_mov_b32 s{b+3}, 0x20000"))
    E(S("s_and_b32 s11, s2, 3")); E(S("s_bfe_u32 s10, s2, 0x10002")); E(S("s_lshr_b32 s12, s2, 3"))
    E(S(f"s_lshl_b32 {sL}, s3, 10")); E(S(f"s_mov_b32 {sSpin}, 0"))
    E(S("s_cmp_lt_u32 s12, 18")); a.raw(f"s_cbranch_scc1 L_{name}_ffn")
    gen_qkv(a, name, stamps, cfg)
    a.label(f"L_{name}_ffn"); a.reset()
    gen_ffn(a, name, stamps, cfg)
    a.label(f"L_{name}_end"); a.raw("s_endpgm")
    return a.text(), kdesc(name, 256, 256, 102), 163840
```

```python
from gasm import *
from common import *

NLOG2E = "0xbfb8aa3b"; CSC = "0x3ea52b5c"; NCSC = "0xbea52b5c"
HUGE = "0x7ff00000"
SC1 = " sc1"
S_OUT, S_AUX = 64, 68
sTag = "s60"
sP2A, sP2W, sP2X, sSpin, sFlg = "s72", "s73", "s74", "s75", "s76"
sColSt, sOwn, sL = "s18", "s17", "s16"
sRot, sItem = "s79", "s78"
P_QKV, P_WO, P_W2 = 52, 54, 56
NST = 18
DBG = {}
uid = [0]
STW = 0

class Stamp:
    def __init__(self, a, on, sel=None): self.a, self.on, self.n, self.sel, self.names = a, on, 0, sel, []
    def __call__(self, name="x", force=False):
        if not self.on: return
        if self.sel is not None and not force and name not in self.sel: return
        assert self.n < NST, name
        if self.n: self.a.raw(f"s_mov_b32 s{82+self.n-1}, s100")
        self.a.raw("s_memtime s[100:101]"); self.n += 1; self.names.append(name)
    def finish(self, role, name, wave=0):
        a = self.a
        if not self.on: return
        a.raw("s_waitcnt vmcnt(0)")
        self("end", True)
        a.raw("s_memrealtime s[4:5]"); a.raw("s_waitcnt lgkmcnt(0)")
        a.raw(f"s_mov_b32 s{82+self.n-1}, s100")
        a.raw(f"s_cmp_lg_u32 s3, {wave}"); a.raw(f"s_cbranch_scc1 L_{name}_end")
        for i in range(20):
            if i < self.n: a.raw(f"s_sub_u32 s6, s{82+i}, s80"); a.raw(f"v_mov_b32 v{i}, s6")
            else: a.raw(f"v_mov_b32 v{i}, 0")
        a.raw(f"v_mov_b32 v20, {sSpin}")
        a.raw(f"v_mov_b32 v21, {role}"); a.raw("v_mov_b32 v22, s77"); a.raw("v_mov_b32 v23, s4")
        a.raw("s_lshl_b32 s40, s2, 7"); a.raw(f"s_add_u32 s40, s40, {STAMP1}"); a.raw("v_mov_b32 v24, s40")
        a.raw("s_mov_b32 s22, 0x2000000"); a.raw("s_mov_b64 exec, 1")
        for i in range(6): a.raw(f"buffer_store_dwordx4 v[{4*i}:{4*i+3}], v24, s[20:23], 0 offen offset:{16*i}")
        a.comment(f"STAMPS role {role}: " + " ".join(self.names))

class L(list):
    def s(self, *ts):
        for t in ts: self.append(S(t))
        return self
    def v(self, *x, **k): self.append(V(*x, **k)); return self

def scc_live(ops):
    for o in ops:
        if isinstance(o, list): return False
        if o.kind != "salu": continue
        n = o.text.split()[0]
        if n.startswith(("s_cselect", "s_addc", "s_subb", "s_cbranch_scc")): return True
        if n.startswith(("s_mov", "s_mul_i32", "s_movk")): continue
        return False
    return False
def exec_dirty(ops):
    return False

def paced(E, ops, groups, every):
    k = 0
    for i, o in enumerate(ops):
        E(o); k += len(o) if isinstance(o, list) else 1
        if groups and k >= every and not scc_live(ops[i + 1:]):
            E(groups.pop(0)); k = 0

def rot_table(srot, sK, mulK, sKx, lo, hi, blk=10):
    o = L()
    for s in range(lo, hi):
        base = s // blk * blk
        if base: o.s(f"s_add_u32 s4, {srot}, {base}", f"s_mul_i32 s{sK+s}, s4, {mulK}", f"s_lshl_b32 s{sKx+s}, s4, 7")
        else: o.s(f"s_mul_i32 s{sK+s}, {srot}, {mulK}", f"s_lshl_b32 s{sKx+s}, {srot}, 7")
        if s < 9: o.s(f"s_add_u32 {srot}, {srot}, 1", f"s_cmp_eq_u32 {srot}, {blk}", f"s_cselect_b32 {srot}, 0, {srot}")
    return o
def mod_ops(src, dst, m):
    if m == 1: return [S(f"s_mov_b32 {dst}, 0")]
    if m == 2: return [S(f"s_and_b32 {dst}, {src}, 1")]
    k = {5: 52, 10: 26}[m]
    return [S(f"s_mul_i32 s5, {src}, {k}"), S("s_lshr_b32 s5, s5, 8"), S(f"s_mul_i32 s5, s5, {m}"), S(f"s_sub_u32 {dst}, {src}, s5")]

def check(a, load, cmp_ops, sleep=2):
    uid[0] += 1; Lb = f"L_ck{uid[0]}"
    a.emit(cmp_ops)
    a.raw(f"s_cbranch_scc0 {Lb}_ok")
    a.label(f"{Lb}_sp")
    a.raw(f"s_sleep {sleep}")
    for l in (load if isinstance(load, list) else [load]): a.raw(l.text)
    a.raw("s_waitcnt vmcnt(0)")
    a.raw(f"s_add_u32 {sSpin}, {sSpin}, 1"); a.raw(f"s_cmp_gt_u32 {sSpin}, 30000"); a.raw(f"s_cbranch_scc1 {Lb}_ok")
    for o in cmp_ops:
        a.raw(o.text); a.raw("s_nop 3")
    a.raw(f"s_cbranch_scc1 {Lb}_sp")
    a.label(f"{Lb}_ok")

M_FFN, M_Q, M_W2 = 0x1ff, 0xffff0000, 0x3ffffff << 32
LV_W2, LV_A, LV_B, LV_C = "W2", "A", "B", "C"
LV = {"W2": (0, M_W2), "A": (48 * 128, M_FFN), "B": (64 * 128, M_FFN), "C": (0, M_FFN), "Q": (0, M_Q)}
def flg_poll(vP, vA, lv):
    off, m = LV[lv]
    return [S(f"s_mov_b32 s9, {FLG_OFF + off}"), S(f"s_mov_b32 exec_lo, {m & 0xffffffff}"), S(f"s_mov_b32 exec_hi, {m >> 32}"),
            BLD(vP, 1, vA, 20, "s9", tag="poll", mod=SC1), S("s_mov_b64 exec, -1")]
def flg_cmp(vP, lv):
    off, mask = LV[lv]
    o = [VCMP("v_cmp_ne_u32", "vcc", sTag, vP)]
    if mask >> 32 == 0: o.append(S(f"s_and_b32 vcc_lo, vcc_lo, {mask}", sr=["vcc"]))
    else: o.append(S(f"s_and_b32 vcc_hi, vcc_hi, {mask >> 32}", sr=["vcc"]))
    return o
def flg_check(a, vP, vA, lv, sleep=2): check(a, flg_poll(vP, vA, lv), flg_cmp(vP, lv), sleep)
def tag_cmp(regs, t):
    o = [V("v_xor_b32", t, sTag, regs[0])]
    for r in regs[1:]: o.append(Op(f"v_bitop3_b32 {R(t)}, {R(t)}, {R(r)}, {sTag} bitop3:0xf6", "valu", r=[t, r], w=[t], sr=[sTag]))
    return o + [VCMP("v_cmp_ne_u32", "vcc", "0", t), S("s_cmp_lg_u64 vcc, 0")]
def flag_st(vT, vF, lv, base=None):
    return [Cond("s_cmp_eq_u32 s3, 0", [S(f"s_add_u32 s9, {base or sOwn}, {LV[lv][0]}"), V("v_mov_b32", vT, sTag), BST(vT, 1, vF, 20, "s9", tag="flag", mod=SC1)])]
def col_fix(AP): return [V("v_perm_b32", AP + 1, AP, AP, "s62"), V("v_perm_b32", AP, AP, AP, "s61")]

def wsum(s, t):
    return [DPP("v_add_f32", s, s, s, "quad_perm:[1,0,3,2]"), DPP("v_add_f32", s, s, s, "quad_perm:[2,3,0,1]"), DPP("v_add_f32", s, s, s, "row_half_mirror"),
            DPP("v_add_f32", s, s, s, "row_ror:8"), V("v_mov_b32", t, s), SWAP(16, s, t), V("v_add_f32", s, s, t),
            V("v_mov_b32", t, s), SWAP(32, s, t), V("v_add_f32", s, s, t)]
def merge(a, b):
    o = []
    a, b = list(a), list(b)
    na, nb = len(a), len(b)
    while a or b:
        if a and (not b or len(a) * nb >= len(b) * na): o.append(a.pop(0))
        else: o.append(b.pop(0))
    return o

def st_pre(B, lane, Bs=None):
    Bs = B if Bs is None else Bs
    o = L()
    o.s("s_and_b32 s4, s2, 7", "s_lshl_b32 s4, s4, 5", "s_lshr_b32 s5, s2, 3", "s_add_u32 s4, s4, s5", "s_lshl_b32 s4, s4, 3", "s_add_u32 s4, s4, s3",
        "s_mul_i32 s63, s4, 1280", "s_lshl_b32 s61, s4, 4", f"s_mov_b32 s62, {EPO_OFF}")
    o.v("v_lshlrev_b32", B + 36, "4", lane).v("v_lshlrev_b32", B + 37, "2", lane).v("v_lshlrev_b32", Bs + 5, "24", lane)
    return o
def st_issue(B, Bs=None):
    Bs = B if Bs is None else Bs
    return [BLD(Bs + 5, 1, Bs + 5, 20, "s62", mod=SC1), BLD(Bs, 4, B + 36, 24, "s63"), BLD(Bs + 4, 1, B + 37, 24, "s63", off=1024), S("s_mov_b32 s81, s61")]
def col_pre(B, lane, pitch):
    o = L()
    o.s(f"s_cselect_b32 s9, s9, {HUGE}", "s_cselect_b32 s7, s3, 1",
        "s_lshl_b32 s5, s8, 10", "s_lshl_b32 s8, s10, 9", "s_add_u32 s5, s5, s8", f"s_add_u32 s5, s5, {COL_OFF}",
        "s_mul_i32 s8, s10, 40", "s_add_u32 s8, s8, s3", f"s_mul_i32 s8, s8, {8*pitch}", "s_add_u32 s78, s8, s9",
        "s_cmp_eq_u32 s7, 0", f"s_cselect_b32 {sColSt}, s5, {HUGE}")
    o.v("v_lshrrev_b32", B + 38, "3", lane).v("v_and_b32", B + 39, "7", lane)
    o.v("v_mul_u32_u24", B + 38, str(pitch), B + 38).v("v_lshl_add_u32", B + 38, B + 39, "4", B + 38)
    return o
def col_issue(B, srdn, pitch):
    return [[BLD(B + 16 + 4 * it, 4, B + 38, srdn, "s78", mod=DBG.get("cm", ""))] + ([S(f"s_add_u32 s78, s78, {64*pitch}")] if it < 4 else []) for it in range(5)]
def stats_ops(B, xoff):
    U = B + 6; s, t = B + 5, B + 4
    o = L()
    o.append(RFL(sTag, B + 5))
    for i in (4, 0, 1, 2, 3): o.v("v_lshlrev_b32", U + 2 * i, "16", B + i).v("v_and_b32", U + 2 * i + 1, "0xffff0000", B + i)
    o.s(f"s_mul_i32 {sTag}, {sTag}, 0x9e3779b1", f"s_add_u32 {sTag}, {sTag}, 0x7f4a7c15")
    o.v("v_add_f32", s, U, U + 1).v("v_add_f32", t, U + 2, U + 3)
    for i in range(4, 10, 2): o.v("v_add_f32", s, s, U + i).v("v_add_f32", t, t, U + i + 1)
    o.v("v_add_f32", s, s, t)
    o += wsum(s, t)
    o.v("v_mul_f32", s, "0xbacccccd", s)
    q = B + 1
    for i in range(10): o.v("v_add_f32", U + i, U + i, s)
    o.v("v_mul_f32", q, U, U).v("v_mul_f32", t, U + 1, U + 1)
    for i in range(2, 10, 2): o.v("v_fmac_f32", q, U + i, U + i).v("v_fmac_f32", t, U + i + 1, U + i + 1)
    o.v("v_add_f32", q, q, t)
    o += wsum(q, t)
    o.v("v_mov_b32", B + 3, "0x3727c5ac").v("v_fmac_f32", B + 3, "0x3acccccd", q).v("v_rsq_f32", B + 2, B + 3)
    o.v("v_cvt_pk_bf16_f32", t, s, s).v("v_lshlrev_b32", t, "16", t).v("v_sub_f32", t, s, t)
    o.v("v_cvt_pk_bf16_f32", B, s, t).v("v_mov_b32", B + 1, sTag)
    o.v("v_mov_b32", t, sL).v("v_lshrrev_b32", t, "6", t).v("v_add_u32", t, str(xoff + 2048), t)
    o.append(DSW(t, B, 4))
    return o
def tok_fin_ops(B, xoff, Bs=None):
    Bs = B if Bs is None else Bs
    o = L()
    o.v("v_and_b32", Bs + 4, "0x70", B + 36).v("v_add_u32", Bs + 4, str(xoff + 2048), Bs + 4)
    o.append(DSR(Bs, 4, Bs + 4))
    o.v("v_lshrrev_b32", Bs + 5, "7", B + 36).v("v_lshl_add_u32", Bs + 5, Bs + 5, "24", B + 36)
    o.s("s_sub_u32 s81, s81, 16")
    o.append(BST(Bs, 4, Bs + 5, 36, "s81", tag="tab", mod=SC1))
    return [[Block("s_cmp_eq_u32 s3, 1", o)]]
def col_add(A, r, first, t, dot):
    o = L()
    for j in range(4):
        if first: o.v("v_lshlrev_b32", A + 2 * j, "16", r + j).v("v_and_b32", A + 2 * j + 1, "0xffff0000", r + j)
        elif dot: o.v("v_dot2c_f32_bf16", A + 2 * j, "s61", r + j).v("v_dot2c_f32_bf16", A + 2 * j + 1, "s62", r + j)
        else: o.v("v_lshlrev_b32", t, "16", r + j).v("v_and_b32", r + j, "0xffff0000", r + j).v("v_add_f32", A + 2 * j, A + 2 * j, t).v("v_add_f32", A + 2 * j + 1, A + 2 * j + 1, r + j)
    return o
def col_red(A, t0, piece, lane, xoff):
    o = L()
    o.v("v_lshrrev_b32", t0, "4", lane).v("v_lshlrev_b32", t0, "3", t0).v("v_lshl_add_u32", t0, piece, "5", t0)
    for j in range(4): o.append(SWAP(32, A + j, A + j + 4))
    for j in range(4): o.v("v_add_f32", A + j, A + j, A + j + 4)
    o.v("v_mov_b32", t0 + 1, sL).v("v_lshrrev_b32", t0 + 1, "2", t0 + 1)
    for j in range(2): o.append(SWAP(16, A + j, A + j + 2))
    for j in range(2): o.v("v_add_f32", A + j, A + j, A + j + 2)
    o.v("v_add_u32", t0, t0, t0 + 1).v("v_add_u32", t0, str(xoff), t0)
    for j in range(2): o.append(DPP("v_add_f32", A + j, A + j, A + j, "row_ror:8"))
    o.append(DSW(t0, A, 2))
    return o
def col_acc_ops(B, lane, xoff, dot=True):
    A = B + 40
    o = L()
    if dot: o.s("s_mov_b32 s61, 0x3f80", "s_mov_b32 s62, 0x3f800000")
    for it in range(5): o += col_add(A, B + 16 + 4 * it, it == 0, B + 16, dot)
    o += col_red(A, B + 16, B + 39, lane, xoff)
    return o
PERMSEL = ["s_mov_b32 s61, 0x01000100", "s_mov_b32 s62, 0x03020302"]
def col_fin_ops(Rd, t, lane, xoff):
    o = L()
    o.v("v_lshlrev_b32", t, "2", lane).v("v_add_u32", t, str(xoff), t)
    for w in range(8): o.append(DSR(Rd + w, 1, t, off=w * 256))
    for w in range(4): o.v("v_add_f32", Rd + w, Rd + w, Rd + 4 + w)
    o.v("v_add_f32", Rd, Rd, Rd + 1).v("v_add_f32", Rd + 2, Rd + 2, Rd + 3).v("v_add_f32", Rd, Rd, Rd + 2)
    o.v("v_cvt_pk_bf16_f32", Rd + 4, Rd, Rd).v("v_lshlrev_b32", Rd + 6, "16", Rd + 4).v("v_sub_f32", Rd + 6, Rd, Rd + 6)
    o.v("v_cvt_pk_bf16_f32", Rd + 4, Rd, Rd + 6).v("v_mov_b32", Rd + 5, sTag).v("v_lshlrev_b32", t, "3", lane)
    o.append(BST(Rd + 4, 2, t, 20, sColSt, tag="tab", mod=SC1))
    return o

ACTB, ACC2, WF2 = 96, 48, 8
def p2_setup(vA, lane, rb="s10", cb="s11"):
    g = []
    o = L()
    o.s("s_bfe_u32 s10, s2, 0x20001", "s_lshl_b32 s10, s10, 3", "s_bfe_u32 s5, s2, 0x30003", "s_add_u32 s10, s10, s5",
        "s_and_b32 s11, s2, 1", "s_lshl_b32 s11, s11, 2", "s_lshr_b32 s6, s2, 6", "s_add_u32 s11, s11, s6"); g.append(list(o))
    o = L()
    o.s("s_bfe_u32 s6, s3, 0x10001", "s_lshl_b32 s9, s10, 1", "s_add_u32 s6, s6, s9",
        f"s_mul_i32 {sP2A}, s6, 74", "s_lshr_b32 s9, s3, 2", f"s_add_u32 {sP2A}, {sP2A}, s9", f"s_lshl_b32 {sP2A}, {sP2A}, 1",
        "s_and_b32 s9, s3, 1", f"s_add_u32 {sP2A}, {sP2A}, s9", f"s_lshl_b32 {sP2A}, {sP2A}, 10",
        f"s_mul_i32 {sP2X}, s10, {64*1280}"); g.append(list(o))
    o = L()
    o.s(f"s_mul_i32 {sP2W}, s11, 74", f"s_add_u32 {sP2W}, {sP2W}, s3", f"s_mul_i32 {sP2W}, {sP2W}, 5120", f"s_add_u32 {sP2W}, {sP2W}, {W2F_OFF}",
        "s_mul_i32 s6, s11, 160", f"s_add_u32 {sP2X}, {sP2X}, s6",
        ); g.append(list(o))
    if DBG.get("rot2"):
        o = L()
        o.s("s_bfe_u32 s6, s2, 0x30003", "s_lshr_b32 s9, s2, 6", "s_lshl_b32 s9, s9, 1", "s_add_u32 s6, s6, s9", "s_cmp_ge_u32 s6, 9", "s_cselect_b32 s9, 9, 0", f"s_sub_u32 {sRot}, s6, s9",
            f"s_lshl_b32 s6, {sRot}, 12", f"s_add_u32 {sP2A}, {sP2A}, s6", f"s_mul_i32 s6, {sRot}, 10240", f"s_add_u32 {sP2W}, {sP2W}, s6"); g.append(list(o))
    def part(o, lo, n):
        m = ((1 << n) - 1) << lo
        o.s("s_lshl_b32 s6, s6, 7", f"s_sub_u32 s6, s6, {lo*4}", f"s_mov_b32 exec_lo, {m & 0xffffffff}", f"s_mov_b32 exec_hi, {m >> 32}")
        o.v("v_lshl_add_u32", vA, lane, "2", "s6"); o.s("s_mov_b64 exec, -1"); g.append(list(o))
    part(L().s("s_lshr_b32 s6, s10, 1"), 0, 16)
    for (lo, add) in ((16, 0), (24, 63)):
        part(L().s("s_lshl_b32 s6, s10, 6", f"s_add_u32 s6, s6, {add}", "s_max_u32 s6, s6, 14", "s_sub_u32 s6, s6, 14",
                   "s_mul_i32 s6, s6, 7183", "s_lshr_b32 s6, s6, 20", "s_add_u32 s6, s6, 16"), lo, 8)
    for (i, add) in ((0, 0), (1, 4)):
        part(L().s("s_mul_i32 s6, s11, 5", f"s_add_u32 s6, s6, {add + 128}", "s_lshr_b32 s6, s6, 2"), 32 + 13 * i, 13 if i == 0 else 19)
    g = [[S(x.text.replace("s10", rb).replace("s11", cb)) if x.kind == "salu" else x for x in grp] for grp in g]
    return g

def GEND(j): return 9 if j < 9 else 18 if j < 18 else 27 if j < 27 else 37
def GN(j): return 10 if j >= 27 else 9
def p2_w_item(d, vL16):
    slot = (d % 4) * 40960
    ops = []
    for i in range(5):
        g = [S(f"s_add_u32 s9, {sP2W}, {(d%2 if DBG.get('hot') else d)*8*5120 + i*1024}")]
        if DBG.get("rot2"):
            pre = []
            if i == 0:
                ends = sorted(set(GEND(j) for j in range(4 * d, min(4 * d + 4, 37))))
                pre = [S("s_lshr_b32 s8, s3, 1")]
                if len(ends) == 1:
                    pre += [S(f"s_add_u32 s8, s8, {sRot}"), S(f"s_cmp_ge_u32 s8, {ends[0] - 4*d}"), S(f"s_cselect_b32 {sItem}, {GN(4*d)*10240}, 0")]
                else:
                    pre += [S(f"s_cmp_ge_u32 s8, {ends[0] - 4*d}"), S(f"s_cselect_b32 s7, {ends[1] - 4*d}, {ends[0] - 4*d}"),
                            S(f"s_cselect_b32 {sItem}, {GN(ends[0])}, {GN(4*d)}"), S(f"s_mul_i32 {sItem}, {sItem}, 10240"),
                            S(f"s_add_u32 s8, s8, {sRot}"), S("s_cmp_ge_u32 s8, s7"), S(f"s_cselect_b32 {sItem}, {sItem}, 0")]
                pre.append(S(f"s_sub_u32 {sItem}, {sP2W}, {sItem}"))
            g = pre + [S(f"s_add_u32 s9, {sItem}, {d*8*5120 + i*1024}")]
        if DBG.get("now2"): g = [S(f"s_mov_b32 s9, {HUGE}")]
        g += [S(f"s_add_u32 m0, {sL}, {slot + i*8192}"), DMA(vL16, 20, "s9", tag=("W2", d), mod="" if DBG.get("nosc1") else SC1)]
        ops.append(g)
    if d == 9: ops = [[Cond("s_cmp_lt_u32 s3, 2", sum(ops, []))]]
    return ops
def pf_w2(p, vT, vD, lane):
    return [S("s_bfe_u32 s8, s2, 0x30003"), S("s_lshl_b32 s8, s8, 3"), S("s_add_u32 s8, s8, s3"), S("s_mul_i32 s8, s8, 12"), S(f"s_add_u32 s8, s8, {p*768}"),
            S("s_min_u32 s8, s8, 2948"), S("s_lshl_b32 s8, s8, 7"), S("s_mul_i32 s9, s3, 5120"), S(f"s_sub_u32 s9, {sP2W}, s9"), S("s_add_u32 s9, s9, s8"),
            V("v_lshlrev_b32", vT, "7", lane), S("s_mov_b64 exec, 0xfff"), BLD(vD, 1, vT, 20, "s9", tag="pf", mod=SC1), S("s_mov_b64 exec, -1")]
def pf_act(g, vT, vD, lane):
    j0, n = [(0, 9), (9, 9), (18, 9), (27, 10)][g]
    return [S("s_lshr_b32 s8, s2, 6"), V("v_lshrrev_b32", vT, "3", lane), V("v_lshl_add_u32", vT, vT, "2", "s8"), V("v_min_u32", vT, str(n - 1), vT),
            V("v_lshlrev_b32", vT, "5", vT), V("v_and_or_b32", vT, lane, "7", vT), V("v_lshlrev_b32", vT, "7", vT),
            S(f"s_add_u32 s9, {sP2A}, {j0*4096}"), S("s_mov_b64 exec, 0xffffff"), BLD(vD, 1, vT, 20, "s9", tag="pf", mod=SC1), S("s_mov_b64 exec, -1")]
def p2_act(j, vL16):
    if DBG.get("noact"): return [S(f"s_mov_b32 s9, {HUGE}"), BLD(ACTB + 4 * j, 4, vL16, 20, "s9", mod=SC1)]
    if DBG.get("hot"): return [S(f"s_add_u32 s9, {sP2A}, {(j%4)*4096}"), BLD(ACTB + 4 * j, 4, vL16, 20, "s9", mod=SC1)]
    if DBG.get("rot2"):
        return [S(f"s_cmp_ge_u32 {sRot}, {GEND(j) - j}"), S(f"s_cselect_b32 s9, {GN(j)*4096}, 0"), S(f"s_sub_u32 s9, {sP2A}, s9"), S(f"s_add_u32 s9, s9, {j*4096}"),
                BLD(ACTB + 4 * j, 4, vL16, 20, "s9", mod=SC1)]
    return [S(f"s_add_u32 s9, {sP2A}, {j*4096}"), BLD(ACTB + 4 * j, 4, vL16, 20, "s9", mod="" if DBG.get("nosc1") else SC1)]

def phase2(a, st, cfg, vL16, lane, vPA, vP, pieces_done, act_done, rate, publish, epoch=False, parked=[]):
    E = a.emit
    PF = cfg.get("pf2", False)
    vRd = [68, 69, 70]; vXO = [71, 72]; vRr = [73, 74]; vWrt = 75
    X0 = 244; t0, t1, t2 = 76, 77, 78
    EP = 86
    E(S("s_lshr_b32 s4, s3, 2")); E(S("s_lshl_b32 s5, s4, 10"))
    E(V("v_add_u32", vRd[0], "s5", vL16))
    for b in (1, 2): E(V("v_add_u32", vRd[b], str(b << 16), vRd[0]))
    def reads(j):
        pos = ((j // 4) % 4) * 40960 + (j % 4) * 2048
        f = WF2 + 20 * (j % 2)
        return [DSR(f + 4 * l, 4, vRd[(pos + l * 8192) >> 16], off=(pos + l * 8192) & 0xffff) for l in range(5)]
    misc = []
    for i in range(2):
        misc.append([S("s_lshl_b32 s4, s3, 6"), S(f"s_add_u32 s4, s4, {512*i}"), V("v_add_u32", t0, "s4", lane), V("v_mul_u32_u24", t1, "6554", t0), V("v_lshrrev_b32", t1, "16", t1)])
        misc.append([V("v_mul_u32_u24", t2, "10", t1), V("v_sub_u32", t0, t0, t2), V("v_mul_u32_u24", vRr[i], "336", t1), V("v_lshl_add_u32", vRr[i], t0, "5", vRr[i]), V("v_add_u32", vRr[i], "81920", vRr[i])])
        misc.append([V("v_and_b32", t2, "15", t1), V("v_and_b32", vXO[i], "32", t1), V("v_lshl_add_u32", vXO[i], t2, "1", vXO[i]), V("v_bfe_u32", t2, t1, "4", "1"), V("v_add_u32", vXO[i], vXO[i], t2)])
        ld = BLD(X0 + 4 * i, 4, vXO[i], 24, sP2X)
        misc.append([V("v_mul_u32_u24", vXO[i], "1280", vXO[i]), V("v_lshl_add_u32", vXO[i], t0, "4", vXO[i]), ld if i == 0 else Cond("s_cmp_lt_u32 s3, 2", [ld])])
    misc.append([S("s_lshr_b32 s4, s3, 2"), S("s_mul_i32 s4, s4, 21504"), S("s_and_b32 s5, s3, 3"), S(f"s_mul_i32 s5, s5, {16*336}"), S("s_add_u32 s4, s4, s5"), S("s_add_u32 s4, s4, 81920"),
                 V("v_and_b32", t0, "15", lane), V("v_mul_u32_u24", t0, "336", t0), V("v_and_b32", t1, "48", lane), V("v_add3_u32", vWrt, t0, t1, "s4")])
    epl = [BLD(EP + 4 + i, 1, EP + i, 36, "0", off=4, mod=SC1) for i in range(4)]
    if epoch:
        misc.append([S("s_or_b32 s4, s2, s3"), Cond("s_cmp_eq_u32 s4, 0", [V("v_lshlrev_b32", EP, "3", vL16)] +
                    [V("v_add_u32", EP + i, str(i * 8192), EP) for i in range(1, 4)] + epl)])
    a.wait_tag(("W2", 0), lg=0); a.barrier()
    st("p2s")
    E(reads(0))
    if parked:
        assert pieces_done == parked[0][0], pieces_done
        E(V("v_add_u32", 6, sL, vL16)); E(V("v_add_u32", 7, "0x20000", 6)); E(V("v_add_u32", 6, "0x10000", 6))
        for (k, r) in parked: E(DSW(6 + (k * 8192 >> 16) - 1, r, 4, off=(k * 8192) & 0xffff))
        pieces_done += len(parked)
    q = []
    def push(need, g): q.append((need, len(q), g)); q.sort(key=lambda e: e[:2])
    def push_item(d, frm=0):
        for g in p2_w_item(d, vL16)[frm:]: push(4 * d - 1.5, g)
    for x in range(act_done, 9): push(x, p2_act(x, vL16))
    for d in range(4):
        if pieces_done < 5 * (d + 1): push_item(d, max(0, pieces_done - 5 * d))
    nitem = 4
    PUB, CB, P3, C3 = cfg.get("pub", 4), cfg.get("cb", 1), cfg.get("p3", 12), cfg.get("c3", 15)
    RATE = rate
    LEAD = cfg.get("lead", 5)
    credit = 0.0
    for g in misc: push(cfg.get("misc", 19), g)
    for j in range(37):
        f = WF2 + 20 * (j % 2)
        nxt = []
        while q and q[0][0] <= j: E(q.pop(0)[2])
        if j + 1 < 37:
            if j == PUB:
                a.wait_tag("st"); a.barrier(); E(publish); st("pub")
            if (j + 1) % 4 == 0:
                d = (j + 1) // 4
                a.wait_tag(("W2", d), lg=0); a.barrier()
                if nitem < 10: push_item(nitem); nitem += 1
            nxt = reads(j + 1)
        if j == CB:
            flg_check(a, vP, vPA, LV_B)
            if PF: E(pf_act(1, t0, 6, lane))
            for x in range(9, 18): push(x, p2_act(x, vL16))
        if j == P3: E(flg_poll(vP, vPA, LV_C))
        if j == C3:
            flg_check(a, vP, vPA, LV_C, sleep=1)
            st("c3")
            if PF: E(pf_act(2, t0, 6, lane)); E(pf_act(3, t0, 7, lane))
            for x in range(18, 18 + cfg.get("burst", 4)): E(p2_act(x, vL16))
            for x in range(18 + cfg.get("burst", 4), 27): push(x, p2_act(x, vL16))
            RATE = cfg.get("rate2", 1.3)
        if j == cfg.get("p4", 17): E(flg_poll(vP, vPA, "Q"))
        if j == cfg.get("c4", 20):
            flg_check(a, vP, vPA, "Q", sleep=1)
            st("c4")
            for x in range(27, 37): push(x, p2_act(x, vL16))
        st(f"g{j}")
        credit = min(credit + RATE, 4)
        for l in range(5):
            if cfg.get("nomfma") and l: pass
            else: E(MFMA16(ACC2 + 4 * l, f + 4 * l, ACTB + 4 * j, c="0" if j == 0 else None))
            if nxt:
                x_ = nxt.pop(0)
                if not (cfg.get("nords") and l): E(x_)
            if q and (credit >= 1 or q[0][0] <= j + LEAD):
                g = q.pop(0)[2]; E(g)
                if any(x.kind in ("vld", "dma") for x in g): credit -= 1
    fill = q
    assert not fill
    st("p2e")
    for l in range(5): E(DSW(vWrt, ACC2 + 4 * l, 4, off=l * 64))
    def unpack(i):
        o = []
        for e in range(4): o += [V("v_lshlrev_b32", 8 + 8 * i + 2 * e, "16", X0 + 4 * i + e), V("v_and_b32", 9 + 8 * i + 2 * e, "0xffff0000", X0 + 4 * i + e)]
        return o
    E(unpack(0)); E(unpack(1))
    a.wait(lg=0); a.barrier()
    st("red")
    def finish(i):
        RD = 96 + 16 * i; o = []
        for k in range(4): o.append(DSR(RD + 4 * k, 4, vRr[i], off=(k // 2) * 21504 + (k % 2) * 16))
        c = []
        for e in range(8): c.append(V("v_add_f32", 8 + 8 * i + e, 8 + 8 * i + e, RD + e))
        for e in range(8): c.append(V("v_add_f32", 8 + 8 * i + e, 8 + 8 * i + e, RD + 8 + e))
        for e in range(4): c.append(V("v_cvt_pk_bf16_f32", X0 + 4 * i + e, 8 + 8 * i + 2 * e, 9 + 8 * i + 2 * e))
        c.append(BST(X0 + 4 * i, 4, vXO[i], S_OUT, sP2X, mod=cfg.get("om", " nt")))
        return o, c
    r0, c0 = finish(0); r1, c1 = finish(1)
    uid[0] += 1; L1 = f"L_f{uid[0]}"
    E(r0)
    E(S("s_cmp_lt_u32 s3, 2")); a.raw(f"s_cbranch_scc1 {L1}")
    import copy
    sv = copy.deepcopy((a.pos, a.lg, a.vm, a.lastw, a.lastc, a.lastst, a.slastw))
    E(c0)
    a.raw(f"s_branch {L1}e")
    a.label(L1)
    a.pos, a.lg, a.vm, a.lastw, a.lastc, a.lastst, a.slastw = sv
    E(r1); E(finish(0)[1]); E(c1)
    a.label(f"{L1}e")
    st("out")
    if epoch:
        uid[0] += 1; Lb = f"L_ep{uid[0]}"
        E(S("s_or_b32 s4, s2, s3")); a.raw(f"s_cbranch_scc1 {Lb}")
        check(a, epl, tag_cmp([EP + 4, EP + 5, EP + 6, EP + 7], 24))
        E(V("v_mov_b32", 25, sTag)); E(V("v_lshlrev_b32", 24, "20", vL16)); E(S(f"s_mov_b32 s4, {EPO_OFF}"))
        E(BST(25, 1, 24, 20, "s4", mod=SC1))
        a.label(Lb)

def common_wait(a, stamps):
    E = a.emit
    a.raw("s_waitcnt lgkmcnt(0)")
    if stamps: a.raw("s_mov_b32 s77, s76")
    E(S(f"s_add_u32 s36, s20, {TOK_OFF}")); E(S("s_addc_u32 s37, s21, 0"))

def cost(o):
    if isinstance(o, list): return 1 + len(o) // 5 if o else 4
    return {"trans": 2, "perml": 2, "salu": 0.5}.get(o.kind, 1)

def gen_ffn(a, name, stamps, cfg):
    E = a.emit; st = Stamp(a, stamps, cfg.get("sel"))
    PFX = cfg.get("pf", False)
    sK, sKx = 40, 50
    XF, A0, A1, A2, WB = 96, 48, 64, 80, 28
    vL16, lane = 0, 1
    vWr = [2, 3, 4]; vDW, vSt, vCol = 5, 6, 7
    TOK = 8; AP = [12, 14]; T = 16
    vPA, vP, vF, vTt = 24, 25, 26, 27
    vDX, vDX2, vXr, vTokA = A2, A2 + 1, A2 + 2, A2 + 6
    TB = 208; XO = 9 * 16384 + 8192
    t0, t1, t2, t3 = T, T + 1, T + 2, T + 3
    sSt, sCb, sRb, sTok = "s13", "s14", "s15", "s19"
    RB = cfg.get("rblk", 1)
    o = L()
    o.s("s_mul_i32 s13, s11, 18", "s_add_u32 s13, s13, s12", f"s_lshr_b32 {sCb}, s13, 3", f"s_and_b32 {sRb}, s13, 7",
        f"s_mul_i32 s4, {sCb}, {cfg.get('rmul', 3)}", f"s_add_u32 s4, s4, {sRb}")
    o += mod_ops("s4", "s19", RB)
    o.s("s_lshl_b32 s5, s10, 3", f"s_add_u32 {sRb}, {sRb}, s5")
    o += rot_table("s19", sK, 64 * 3456, sKx, 0, 2, RB)
    o.s("s_and_b32 s4, s3, 3", "s_lshr_b32 s5, s3, 2", "s_lshl_b32 s6, s4, 3")
    o.v("v_lshrrev_b32", t0, "3", lane).v("v_and_b32", t1, "7", lane).v("v_add_u32", t2, "s6", t0)
    o.v("v_bfe_u32", t3, t2, "1", "3").v("v_xor_b32", t3, t1, t3)
    o.v("v_and_b32", vDX, "15", t2).v("v_lshrrev_b32", t2, "4", t2).v("v_lshl_add_u32", vDX, vDX, "1", t2)
    o.s(f"s_lshl_b32 s6, {sRb}, 7", "s_lshl_b32 s9, s5, 5", "s_add_u32 s6, s6, s9")
    o.v("v_add_u32", vDX, "s6", vDX).v("v_mul_u32_u24", vDX, "1280", vDX).v("v_lshl_add_u32", vDX, t3, "4", vDX).v("v_add_u32", vDX2, str(64 * 1280), vDX)
    o.v("v_lshrrev_b32", t2, "2", lane).v("v_and_b32", t2, "4", t2).v("v_xor_b32", t2, t1, t2)
    o.v("v_mul_u32_u24", vDW, "3456", t0).v("v_lshl_add_u32", vDW, t2, "4", vDW)
    o.s(f"s_mul_i32 s6, s3, {8*3456}", f"s_mul_i32 s9, {sCb}, 384", "s_add_u32 s6, s6, s9")
    o.v("v_add_u32", vDW, "s6", vDW)
    E(o); E(st_pre(TB, lane))
    items = {}
    free = list(range(10))
    qX = [("X", s) for s in range(10)]
    qW = [("W", s) for s in range(30)]
    dma_chunk = [0]
    def dma_ops(it, slot):
        kind, s = it
        base = slot * 16384
        m0 = lambda x: S(f"s_add_u32 m0, {sL}, {base+x}")
        if kind == "X":
            return [[m0(0), DMA(vDX, 24, f"s{sKx+s}", tag=it)], [m0(8192), DMA(vDX2, 24, f"s{sKx+s}", tag=it)]]
        if s < 10:
            return [[m0(0), DMA(vDW, 28, f"s{sK+s}", tag=it, mod=DBG.get("wm", ""))], [m0(8192), DMA(vDW, 32, f"s{sK+s}", tag=it, mod=DBG.get("wm", ""))]]
        p = (s - 10) // 5 + 1; j = (s - 10) % 5
        chunk = (p + 1) // 2; srdw = 28 if p % 2 == 1 else 32
        pre = []
        if chunk != dma_chunk[0]:
            dma_chunk[0] = chunk; pre = [V("v_add_u32", vDW, "128", vDW)]
        return [pre + [m0(0), DMA(vDW, srdw, f"s{sK+2*j}", tag=it, mod=DBG.get("wm", ""))], [m0(8192), DMA(vDW, srdw, f"s{sK+2*j+1}", tag=it, mod=DBG.get("wm", ""))]]
    def slot_of(it):
        kind, s = it
        return (s + 2) % 4 if kind == "X" else ([4, 5, 6, 7, 8, 4, 5, 6, 7, 4][s] if s < 10 else s % 10)
    def refill(maxstage=99):
        out = []
        while True:
            cands = []
            for q in (qX, qW):
                if q and q[0][1] <= maxstage and slot_of(q[0]) in free and not (q is qW and q[0][1] >= 10 and slot_of(q[0]) < 4 and any(slot_of(x) == slot_of(q[0]) for x in qX)):
                    cands.append((q[0][1], q is qW, q))
            if not cands: break
            cands.sort(key=lambda c: c[:2]); q = cands[0][2]
            it = q.pop(0); sl = slot_of(it); free.remove(sl); items[it] = sl; out += dma_ops(it, sl)
        if not qW and p2["go"]:
            while p2["pieces"] < 20 and p2["pieces"] // 2 in free:
                k = p2["pieces"]; out.append(p2_w_item(k // 5, vL16)[k % 5]); p2["pieces"] += 1
        return out
    p2 = {"pieces": 0, "act": 0, "go": False}
    o = L()
    o.s("s_bitcmp1_b32 s13, 0", "s_cselect_b32 s8, 57, 30", f"s_mov_b32 s{S_AUX+2}, {640*3456}", f"s_mov_b32 s{S_AUX+3}, 0x20000",
        f"s_mul_i32 s9, {sCb}, 3", "s_bfe_u32 s4, s13, 0x20001", "s_add_u32 s9, s9, s4", "s_add_u32 s8, s8, s9", "s_lshl_b32 s9, s9, 7", "s_cmp_lt_u32 s4, 3")
    o += col_pre(TB, lane, 3456)
    o.s("s_and_b32 s17, s13, 6")
    common_wait(a, stamps)
    E(st_issue(TB))
    o.s("s_bitcmp1_b32 s13, 0", f"s_cselect_b32 s{S_AUX}, s32, s28", f"s_cselect_b32 s{S_AUX+1}, s33, s29")
    ci = [[Cond("s_cmp_lt_u32 s17, 6", g)] for g in col_issue(TB, S_AUX, 3456)]
    if cfg.get("nocol") == 1: ci = []
    if cfg.get("nocol") == 2:
        ci = [[V("v_mul_u32_u24", TB + 16, "3456", lane)], [Cond("s_cmp_lt_u32 s17, 6", [S("s_mul_i32 s9, s3, %d" % (32 * 3456)), S("s_add_u32 s9, s9, s78"), S("s_mov_b32 exec_hi, 0xff"),
              BLD(TB + 17, 1, TB + 16, S_AUX, "s9"), S("s_mov_b64 exec, -1")])]]
    dq = refill(0)
    paced(E, o, dq, cfg.get("pace0", 8))
    st("i0")
    dq += ci + refill(1)
    o0 = L()
    o0.s("s_mul_i32 s12, s10, 72", "s_add_u32 s12, s12, s13", "s_cmp_ge_u32 s12, 90",
        f"s_cselect_b32 s0, s{P_WO}, s{P_W2}", f"s_cselect_b32 s1, s{P_WO+1}, s{P_W2+1}")
    o0 += rot_table("s19", sK, 64 * 3456, sKx, 2, 10, RB)
    rp_pre = L()
    rp_pre.s("s_mul_i32 s10, s12, 57", "s_lshr_b32 s10, s10, 9", "s_mul_i32 s4, s10, 9", "s_sub_u32 s11, s12, s4",
        "s_sub_u32 s4, s12, 90", "s_lshr_b32 s5, s4, 2", "s_and_b32 s4, s4, 3", "s_cmp_ge_u32 s12, 90",
        "s_cselect_b32 s10, s5, s10", "s_cselect_b32 s11, s4, s11", "s_cselect_b32 s4, 5, 6", "s_cselect_b32 s5, 5, 2", "s_cselect_b32 s6, 54, 0",
        "s_cselect_b32 s7, 2, 18", "s_cselect_b32 s8, 9, 0",
        "s_add_u32 s8, s8, s11", "s_lshl_b32 s8, s8, 2",
        "s_mul_i32 s4, s4, s11", "s_lshr_b32 s9, s3, 2", "s_add_u32 s4, s4, s9",
        "s_mul_i32 s5, s5, s11", "s_add_u32 s5, s5, s6", "s_add_u32 s5, s5, s9",
        "s_lshl_b32 s4, s4, 2", "s_and_b32 s6, s3, 3", "s_add_u32 s4, s4, s6", f"s_mul_i32 s4, s4, {8*1280}", "s_lshl_b32 s9, s10, 7", "s_add_u32 s63, s4, s9",
        "s_add_u32 s8, s8, s9",
        "s_lshl_b32 s4, s10, 2", "s_add_u32 s4, s4, s6", "s_mul_i32 s6, s4, 52", "s_lshr_b32 s6, s6, 8", "s_mul_i32 s6, s6, 365", "s_add_u32 s6, s6, s4",
        "s_mul_i32 s5, s5, 5", "s_add_u32 s6, s6, s5", "s_lshl_b32 s6, s6, 10", f"s_add_u32 s76, s6, {W2F_OFF}",
        f"s_add_u32 s10, s8, {FLG_OFF + 32*128}",
        "s_cmp_lt_u32 s12, 130", f"s_cselect_b32 s76, s76, {0x70000000}", f"s_cselect_b32 s63, s63, {0x70000000}", f"s_cselect_b32 s10, s10, {0x30000000}",
        )
    rp_pre.v("v_lshrrev_b32", T + 4, "3", lane).v("v_mul_u32_u24", T + 4, "1280", T + 4).v("v_and_b32", T + 5, "7", lane).v("v_lshl_add_u32", T + 4, T + 5, "4", T + 4)
    rp_pre.v("v_lshrrev_b32", vP, "4", lane).v("v_lshlrev_b32", vP, "10", vP).v("v_bfe_u32", vTt, lane, "2", "2").v("v_lshl_add_u32", vP, vTt, "7", vP)
    rp_pre.v("v_and_b32", vTt, "3", lane).v("v_lshl_add_u32", vP, vTt, "3", vP)
    rp_pre.s("s_lshr_b32 s4, s3, 2", "s_lshl_b32 s4, s4, 12", "s_and_b32 s5, s3, 3", "s_lshl_b32 s5, s5, 5", "s_add_u32 s4, s4, s5", f"s_add_u32 s4, s4, {8*16384}").v("v_add_u32", vP, "s4", vP)
    o = L()
    o.s("s_and_b32 s4, s3, 3", "s_lshr_b32 s5, s3, 2")
    o.v("v_lshrrev_b32", t0, "5", lane).v("v_lshlrev_b32", t0, "10", t0).v("v_bfe_u32", t1, lane, "2", "2").v("v_lshl_add_u32", t0, t1, "7", t0)
    o.v("v_lshrrev_b32", t1, "1", t1).v("v_xor_b32", t1, "s5", t1).v("v_lshl_add_u32", t0, t1, "6", t0)
    o.v("v_bfe_u32", t1, lane, "4", "1").v("v_lshl_add_u32", t0, t1, "5", t0).v("v_and_b32", t1, "1", lane).v("v_lshl_add_u32", t0, t1, "4", t0)
    o.v("v_bfe_u32", t1, lane, "1", "1").v("v_lshl_add_u32", vWr[0], t1, "3", t0)
    o.v("v_add_u32", vWr[1], "0x10000", vWr[0]).v("v_add_u32", vWr[2], "0x20000", vWr[0])
    o.v("v_and_b32", t0, "31", lane).v("v_lshrrev_b32", t1, "5", lane).v("v_bfe_u32", t2, lane, "1", "3").v("v_xor_b32", t2, t1, t2)
    o.s("s_lshl_b32 s6, s4, 12")
    o.v("v_lshlrev_b32", t3, "7", t0).v("v_add_u32", t3, "s6", t3)
    for s4 in range(4): o.v("v_xor_b32", vXr + s4, str(2 * s4), t2).v("v_lshl_add_u32", vXr + s4, vXr + s4, "4", t3)
    o += rp_pre
    o += p2_setup(vPA, lane, "s4", "s11")
    paced(E, o0 + o, dq, cfg.get("pace", 40))
    st("i1")
    while any(x.kind == "vld" for g in dq for x in g): E(dq.pop(0))
    o = L()
    o += stats_ops(TB, XO)
    dq += refill(cfg.get("pre", 1))
    paced(E, o, dq, cfg.get("pace2", 16))
    E(Block("s_cmp_lt_u32 s17, 6", col_acc_ops(TB, lane, XO)))
    E(L().s(*PERMSEL))
    st("i3")
    D = L()
    D.append(list(L().s("s_and_b32 s4, s3, 3", "s_lshr_b32 s5, s3, 2", f"s_lshl_b32 s6, {sRb}, 2", "s_add_u32 s6, s6, s4", f"s_lshl_b32 {sTok}, s6, 9",
        "s_mul_i32 s6, s6, 74", f"s_lshl_b32 s7, {sCb}, 1", "s_add_u32 s6, s6, s7", "s_add_u32 s6, s6, s5", f"s_lshl_b32 {sSt}, s6, 11")))
    D.v("v_lshrrev_b32", t1, "5", lane).v("v_and_b32", t2, "15", lane).v("v_bfe_u32", t3, lane, "4", "1").v("v_lshl_add_u32", vTokA, t2, "1", t3).v("v_lshlrev_b32", vTokA, "4", vTokA)
    D.v("v_lshlrev_b32", vSt, "10", t3).v("v_lshl_add_u32", vSt, t1, "8", vSt).v("v_lshl_add_u32", vSt, t2, "4", vSt)
    D.v("v_and_b32", vCol, "19", lane).v("v_bfe_u32", t2, lane, "2", "1").v("v_lshl_add_u32", vCol, t2, "3", vCol)
    D.v("v_bfe_u32", t2, lane, "3", "1").v("v_lshl_add_u32", vCol, t2, "2", vCol)
    D.append(list(L().s(f"s_mul_i32 s6, {sCb}, 384", "s_lshr_b32 s5, s3, 2", "s_lshl_b32 s7, s5, 5", "s_add_u32 s6, s6, s7").v("v_add_u32", vCol, "s6", vCol)))
    D.v("v_lshlrev_b32", vCol, "3", vCol).v("v_lshl_add_u32", vCol, t1, "9", vCol)
    D.append(list(L().s(f"s_lshl_b32 {sOwn}, {sRb}, 7", f"s_lshl_b32 s6, {sCb}, 2", f"s_add_u32 {sOwn}, {sOwn}, s6", f"s_add_u32 {sOwn}, {sOwn}, {FLG_OFF}")))
    D.s(f"s_mov_b32 s14, {COL_OFF + 30*1024}", f"s_mov_b32 s15, {COL_OFF + 57*1024}")
    D.v("v_lshlrev_b32", vL16, "4", lane).v("v_or_b32", vF, sL, lane).v("v_min_u32", vF, "1", vF).v("v_lshlrev_b32", vF, "30", vF)
    def colload(dst, mat, chunk):
        return BLD(dst, 2, vCol, 20, "s14" if mat == 0 else "s15", off=chunk * 1024, tag="col", mod=SC1)
    def colchk(dst, mat, chunk):
        E(col_fix(dst))
    M = []
    for t in range(40):
        M.append((A0, t, t // 4, 0, t % 4)); M.append((A1, t, t // 4, 1, t % 4))
    for p, acc in ((1, A2), (2, A0), (3, A1), (4, A0)):
        for t in range(40):
            M.append((acc, t, 10 + 5 * (p - 1) + t // 8, (t // 4) % 2, t % 4))
    PF = 4; NB = 5
    def reads(n):
        acc, t, s, half, sub = M[n]
        pos = items[("W", s)] * 16384 + half * 8192 + sub * 2048
        b = WB + 4 * (n % NB)
        return [DSR(b, 2, vWr[pos >> 16], off=pos & 0xffff, tr=True), DSR(b + 2, 2, vWr[pos >> 16], off=(pos & 0xffff) + 512, tr=True)]
    fill = []
    def silu(G):
        ops = []
        if cfg.get("nosilu"): return ops
        for i in range(0, 16, 4):
            ops += [V("v_mul_f32", T + e, G + i + e, TOK + 2) for e in range(4)]
            ops += [V("v_exp_f32", T + e, T + e) for e in range(4)]
            ops += [V("v_fma_f32", T + e, T + e, TOK + 3, TOK + 3) for e in range(4)]
            ops += [V("v_rcp_f32", T + e, T + e) for e in range(4)]
            ops += [V("v_mul_f32", G + i + e, G + i + e, T + e) for e in range(4)]
        return ops
    def fin(G, U, chunk):
        ops = []
        for ip in range(2):
            ops += [V("v_mul_f32", G + 8 * ip + e, G + 8 * ip + e, U + 8 * ip + e) for e in range(8)]
            ops += [V("v_cvt_pk_bf16_f32", T + 4 + e, G + 8 * ip + 2 * e, G + 8 * ip + 2 * e + 1) for e in range(4)]
            mk = lambda: BST(T + 4, 4, vSt, 20, sSt, off=512 * ip, tag="st", mod=SC1)
            if cfg.get("stag") and chunk < 2: ops += [[Cond("s_cmp_lt_u32 s3, 4", [mk()])], [], [Cond("s_cmp_ge_u32 s3, 4", [mk()])]]
            else: ops.append(mk())
        if chunk < 2: ops.append(S(f"s_add_u32 {sSt}, {sSt}, {18*2048}"))
        return ops
    at_sync = {}
    def sync(s):
        its = [("W", s)] + ([("X", s)] if s < 10 else [])
        ex = at_sync.get(s, {})
        tags = its + ex.get("tags", [])
        while any(getattr(x, "tag", None) in tags for g in dq for x in g): E(dq.pop(0))
        for it in its: assert it in items
        for o_ in fill:
            for x_ in (o_ if isinstance(o_, list) else [o_]): assert getattr(x_, "tag", None) not in tags, (s, x_.text)
        tags.sort(key=lambda it: max([i for i, e in enumerate(a.vm) if e[1] == it] + [-1]))
        lg = None
        if 1 <= s <= 10:
            xr = set(rng(XF + 16 * (s - 1), 16))
            idx = [i for i, e in enumerate(a.lg) if e & xr]
            if idx: lg = len(a.lg) - 1 - max(idx)
        if s == 0: lg = 0
        if "lgw" in ex:
            idx = [i for i, e in enumerate(a.lg) if not e]
            if idx: lg = min(99 if lg is None else lg, len(a.lg) - 1 - max(idx))
        a.wait_tag(tags[-1], lg=lg)
        if not (cfg.get("nobar") and s > 11 and s % 2): a.barrier()
        st(f"s{s}")
        if 1 <= s <= 10: free.append(items[("X", s - 1)])
        if s >= 2: free.append(items[("W", s - 2)])
        free.extend(ex.get("free", []))
        if "post" in ex: ex["post"]()
        dq.extend(refill())
        if s < 10:
            for s4 in range(4):
                E(DSR(XF + 4 * (4 * s + s4), 4, vXr + s4, off=items[("X", s)] * 16384))
    def chk_empty(): assert not fill, len(fill)
    fill += tok_fin_ops(TB, XO)
    fill += [[Block(f"s_cmp_lt_u32 {sColSt}, {HUGE}", col_fin_ops(TB + 16, TB + 6, lane, XO))]] + D
    RS = [8, 9]
    def rp_issue():
        for x in RS: free.remove(x)
        dq.append(list(L().s(f"s_mov_b32 s{S_AUX}, s0", f"s_mov_b32 s{S_AUX+1}, s1", f"s_mov_b32 s{S_AUX+2}, {1728*1280}", f"s_mov_b32 s7, {18*5120}", "s_cmp_ge_u32 s12, 90",
              f"s_cselect_b32 s{S_AUX+2}, {640*1280}, s{S_AUX+2}", f"s_cselect_b32 s7, {2*5120}, s7", "s_add_u32 s0, s76, s7", "s_add_u32 s1, s0, s7")))
        dq.append(list(L().s("s_lshr_b32 s4, s3, 2", "s_mul_i32 s4, s4, s12", "s_cmp_ge_u32 s4, 90", f"s_cselect_b32 s1, {0x70000000}, s1")))
        for z in range(3):
            dq.append([S(f"s_add_u32 m0, {sL}, {RS[0]*16384 + z*8192}"), DMA(T + 4, S_AUX, "s63", tag="rp", mod=DBG.get("rm", " nt")), S(f"s_add_u32 s63, s63, {64*1280}")])
    def rp_rd(z): return [DSR(T + 4, 2, vP, off=z * 8192, tr=True), DSR(T + 6, 2, vP, off=z * 8192 + 512, tr=True)]
    def rp_st(z): return BST(T + 4, 4, vL16, 20, ["s76", "s0", "s1"][z], tag="rps", mod=SC1)
    at_sync[8] = dict(post=rp_issue)
    at_sync[11] = dict(tags=["rp"])
    at_sync[13] = dict(free=RS)
    at_sync[cfg.get("fw", 14)] = dict(tags=["rps"], post=lambda: E(flag_st(vTt, vF, LV_W2, "s10")))
    at_sync[17] = dict(tags=["st"], post=lambda: E(flag_st(vTt, vF, LV_A)))
    at_sync[cfg.get("fb", 24)] = dict(tags=["st"], post=lambda: E(flag_st(vTt, vF, LV_B)))
    sync(0)
    for n in range(PF): E(reads(n))
    def w2chk():
        flg_check(a, vP, vPA, LV_W2); p2["go"] = True
    def achk():
        flg_check(a, vP, vPA, LV_A)
    P1 = cfg.get("p1", 46); WC = cfg.get("wc", 168); AC = cfg.get("ac", 198)
    tokld = BLD(TOK, 4, vTokA, 36, sTok, tag="tok", mod=SC1)
    first = [tokld, colload(AP[0], 0, 0), colload(AP[1], 1, 0)] + \
            [BLD(T + i, 1, vCol, 20, "s14" if i % 2 == 0 else "s15", off=(1 + i // 2) * 1024 + 4, mod=SC1) for i in range(4)]
    after = {}
    def at(n, f): after.setdefault(n, []).append(f)
    if cfg.get("tag1", 1):
        import copy
        at(P1, lambda: E([V("v_mov_b32", T + i, sTag) for i in range(4)] + [S("s_and_b32 s4, s3, 3"), Cond("s_cmp_eq_u32 s4, 0", [copy.copy(x) for x in first[3:]])]))
        for i, x in enumerate(first[:3]): at(P1 + 8 + 4 * i, lambda x=x: E(x))
    else:
        for i, x in enumerate(first): at(P1 + 3 * i, lambda x=x: E(x))
    at(79, lambda: (check(a, first, tag_cmp([TOK + 1, AP[0] + 1, AP[1] + 1, T, T + 1, T + 2, T + 3], vTt)), E(col_fix(AP[0])), E(col_fix(AP[1])),
                    E(V("v_mov_b32", TOK + 1, TOK)), E(V("v_mul_f32", TOK + 2, NLOG2E, TOK + 2))))
    at(82, lambda: (E(MFMA32C(A0, AP[0], TOK)), E(MFMA32C(A1, AP[1], TOK)),
                    fill.extend([[], []] + silu(A0) + fin(A0, A1, 0))))
    for z in range(3):
        if cfg.get("stag"):
            at(85 + 5 * z, lambda z=z: E(rp_rd(z))); at(87 + 5 * z, lambda z=z: E(Cond("s_cmp_lt_u32 s3, 4", [rp_st(z)]))); at(89 + 5 * z, lambda z=z: E(Cond("s_cmp_ge_u32 s3, 4", [rp_st(z)])))
        else:
            at(86 + 4 * z, lambda z=z: E(rp_rd(z))); at(89 + 4 * z, lambda z=z: E(rp_st(z)))
    at(101, lambda: E(colload(AP[0], 0, 1))); at(105, lambda: E(colload(AP[1], 1, 1)))
    at(119, lambda: colchk(AP[0], 0, 1))
    at(122, lambda: (E(MFMA32C(A2, AP[0], TOK)), fill.extend([colload(AP[0], 0, 2), [], []] + silu(A2))))
    at(159, lambda: colchk(AP[1], 1, 1))
    at(162, lambda: (E(MFMA32C(A0, AP[1], TOK)), fill.extend([colload(AP[1], 1, 2), [], []] + fin(A2, A0, 1))))
    at(WC - cfg.get("pl", 14), lambda: E(flg_poll(vP, vPA, LV_W2))); at(WC, w2chk)
    if PFX:
        for p in range(1, 4): at(WC + 1 + cfg.get("pfs", 6) * (p - 1), lambda p=p: E(pf_w2(p, vTt, T + p, lane)))
    at(199, lambda: colchk(AP[0], 0, 2))
    at(202, lambda: (E(MFMA32C(A1, AP[0], TOK)), fill.extend([[], []] + silu(A1))))
    at(AC - cfg.get("pl", 14), lambda: E(flg_poll(vP, vPA, LV_A))); at(AC, achk)
    at(220, lambda: colchk(AP[1], 1, 2))
    PARK = cfg.get("park", 177)
    if PARK:
        for i in range(4):
            at(PARK + 6 * i, lambda i=i: (chk_empty(), E([S(f"s_add_u32 s9, {sP2W}, {3*8*5120 + (i+1)*1024}"), BLD(A2 + 4 * i, 4, vL16, 20, "s9", mod=SC1)])))
    at(236, lambda: E(flg_poll(3, vPA, LV_B)))
    for n in range(240):
        acc, t, s, half, sub = M[n]
        if n in (P1, 80, 120, 200): chk_empty()
        E(MFMA32(acc, WB + 4 * (n % NB), XF + 4 * t, c="0" if t == 0 else None))
        m = n + PF
        if m < 240:
            if m % 8 == 0: sync(m // 8)
            E(reads(m))
        for f in after.get(n, []): f()
        b = cfg.get("b1", 4.5) if (80 <= n < 120) else cfg.get("b2", 3.5) if 120 <= n < 200 else cfg.get("b", 3.5)
        ph = m % 8
        okd = ph in cfg.get("ph0", [1, 2, 3, 4, 5, 6]) if n < 80 else ph in ((cfg.get("ph2", [2, 4, 6]) if n >= cfg.get("cu", 80) else cfg.get("ph3", [3, 5])) if len(dq) > 2 else cfg.get("ph1", [3, 5]))
        if dq and (okd or not any(x.kind == "dma" for x in dq[0])):
            g_ = dq.pop(0)
            if cfg.get("nodma") and n >= 80: g_ = [x for x in g_ if x.kind != "dma"]
            E(g_); b -= 1
        elif n >= cfg.get("ago", 202) and ph in (1, 7) and p2["act"] < 9:
            assert p2["act"] <= t
            E(p2_act(p2["act"], vL16)); p2["act"] += 1; b -= 1
        while fill and b > 0:
            o_ = fill.pop(0); E(o_); b -= cost(o_)
    assert not fill and not dq
    st("p1e")
    E(MFMA32C(A0, AP[1], TOK))
    E(V("v_mov_b32", 2, vPA)); E(V("v_mov_b32", 4, vF))
    E(fin(A1, A0, 2))
    phase2(a, st, cfg, vL16, lane, 2, 3, p2["pieces"], p2["act"], cfg.get("rate", 2.1), flag_st(5, 4, LV_C), epoch=True,
           parked=[(16 + i, A2 + 4 * i) for i in range(4)] if PARK else [])
    st.finish(1, name, cfg.get("stw", 0))
    a.raw("s_endpgm")

def gen_qkv(a, name, stamps, cfg):
    E = a.emit; st = Stamp(a, stamps, cfg.get("sel"))
    PFX = cfg.get("pf", False)
    sK, sKx = 40, 50
    vL16, lane = 0, 1
    ACC = 176; FR = [128, 152]; TB = 80
    vPA, vP, vF = 2, 3, 4
    vDW, vDX = 5, 6
    vWr, vXr = 9, 12
    TOK = 24; AP = 44; vQW = 46; T = 50
    vTt, vColA, vTokA = 57, 58, 87
    BC, BP, MC, MP, ONE, MG0 = 60, 64, 68, 70, 72, 76
    vQ, vQ2, vV, vV2, vOW, vOW2, vOR = 77, 78, 79, 80, 81, 82, 83
    n_, g_ = 85, 86
    vOG = 92
    t0, t1, t2, t3, t4 = T, T + 1, T + 2, T + 3, T + 4
    sHg, sB, sT0 = "s13", "s14", "s15"
    SLOT = 53248; WOFF = 20480; DUMMY = 3 * SLOT; XOFF = DUMMY + 1024
    sM3 = ["s68", "s69", "s70"]
    RB = cfg.get("rblkq", 5)
    E(st_pre(TB, lane, TOK))
    o = L()
    o.s("s_sub_u32 s12, s12, 18", f"s_mov_b32 s30, {640*3840}",
        "s_cmp_ge_u32 s12, 7", f"s_cselect_b32 {sHg}, 1, 0", f"s_cselect_b32 {sB}, 7, 0", f"s_sub_u32 {sB}, s12, {sB}",
        f"s_mul_i32 s4, {sHg}, {cfg.get('rmulq', 2)}", f"s_add_u32 s4, s4, {sB}")
    o += mod_ops("s4", "s19", RB)
    o.s("s_lshl_b32 s4, s11, 1", f"s_add_u32 {sHg}, {sHg}, s4", "s_mul_i32 s4, s10, 7", f"s_add_u32 {sB}, {sB}, s4")
    o += rot_table("s19", sK, 64 * 3840, sKx, 0, 1, RB)
    o.s("s_and_b32 s4, s3, 3", "s_lshr_b32 s5, s3, 2", "s_lshl_b32 s6, s4, 3")
    o.v("v_lshrrev_b32", t0, "3", lane).v("v_and_b32", t1, "7", lane).v("v_add_u32", t2, "s6", t0)
    o.v("v_bfe_u32", t3, t2, "1", "3").v("v_xor_b32", t3, t1, t3)
    o.v("v_and_b32", vDX, "15", t2).v("v_lshrrev_b32", t2, "4", t2).v("v_lshl_add_u32", vDX, vDX, "1", t2)
    o.s(f"s_mul_i32 {sT0}, {sB}, 146", "s_lshl_b32 s9, s5, 5", f"s_add_u32 s6, {sT0}, s9")
    o.v("v_add_u32", vDX, "s6", vDX).v("v_mul_u32_u24", vDX, "1280", vDX).v("v_lshl_add_u32", vDX, t3, "4", vDX).v("v_add_u32", vDX + 1, str(64 * 1280), vDX)
    o.v("v_add_u32", vDX + 2, str(128 * 1280), vDX)
    E(o)
    def dma_stage(s):
        z = s % 3; base = z * SLOT
        ops = [[S(f"s_add_u32 m0, {sL}, {base}"), DMA(vDX, 24, f"s{sKx+s}", tag=s)],
               [S(f"s_add_u32 m0, {sL}, {base+8192}"), DMA(vDX + 1, 24, f"s{sKx+s}", tag=s)],
               [Cond("s_cmp_lt_u32 s3, 4", [S(f"s_add_u32 m0, {sL}, {base+16384}"), DMA(vDX + 2, 24, f"s{sKx+s}", tag=s)])]]
        for e in range(4):
            g = [S(f"s_add_u32 m0, {sL}, {base+WOFF+e*8192}")]
            if e == 0: g.append(DMA(vDW, 28, f"s{sK+s}", tag=s, mod=DBG.get("wm", "")))
            else: g += [S(f"s_add_u32 s63, s{sK+s}, {e*16*3840}"), DMA(vDW, 28, "s63", tag=s, mod=DBG.get("wm", ""))]
            ops.append(g)
        return ops
    o = L()
    o.s("s_lshl_b32 s6, s3, 1")
    o.v("v_lshrrev_b32", t0, "5", lane).v("v_add_u32", t0, "s6", t0)
    o.v("v_and_b32", t1, "3", t0).v("v_lshlrev_b32", t1, "2", t1).v("v_and_b32", t2, "31", lane).v("v_xor_b32", t1, t1, t2)
    o.v("v_mul_u32_u24", t2, "26", t1).v("v_lshrrev_b32", t2, "8", t2)
    o.v("v_mul_u32_u24", t3, str(1280 - 160), t2).v("v_lshl_add_u32", t3, t1, "4", t3)
    o.v("v_add_u32", t1, "2", t1).v("v_lshrrev_b32", t1, "5", t1).v("v_lshl_add_u32", t3, t1, "30", t3)
    o.v("v_mul_u32_u24", vDW, "3840", t0).v("v_add_u32", vDW, vDW, t3)
    o.s(f"s_mul_i32 s6, {sHg}, 160").v("v_add_u32", vDW, "s6", vDW)
    E(o)
    common_wait(a, stamps)
    E(S(f"s_mov_b32 s28, s{P_QKV}")); E(S(f"s_mov_b32 s29, s{P_QKV+1}"))
    E(st_issue(TB, TOK))
    dq = dma_stage(0)
    paced(E, rot_table("s19", sK, 64 * 3840, sKx, 1, 10, RB), dq, cfg.get("paceq0", 12))
    st("i0")
    o = L()
    o.v("v_lshrrev_b32", t0, "5", lane).v("v_lshlrev_b32", t0, "12", t0).v("v_bfe_u32", t1, lane, "2", "2").v("v_lshl_add_u32", t0, t1, "9", t0)
    o.v("v_xor_b32", t1, "s3", t1).v("v_lshl_add_u32", t0, t1, "6", t0)
    o.v("v_bfe_u32", t1, lane, "4", "1").v("v_lshl_add_u32", t0, t1, "5", t0).v("v_and_b32", t1, "3", lane).v("v_lshl_add_u32", t0, t1, "3", t0)
    for z in range(3): o.v("v_add_u32", vWr + z, str(z * SLOT + WOFF), t0)
    o.v("v_and_b32", t0, "31", lane).v("v_lshrrev_b32", t1, "5", lane).v("v_bfe_u32", t2, lane, "1", "3").v("v_xor_b32", t2, t1, t2).v("v_lshlrev_b32", t3, "7", t0)
    for s4 in range(4):
        o.v("v_xor_b32", t4, str(2 * s4), t2).v("v_lshl_add_u32", vXr + s4, t4, "4", t3)
        for z in (1, 2): o.v("v_add_u32", vXr + 4 * z + s4, str(z * SLOT), vXr + s4)
    o.s("s_mul_i32 s4, s11, 15", "s_add_u32 s4, s4, 1", "s_lshr_b32 s4, s4, 1", "s_add_u32 s4, s4, s12",
        "s_mul_i32 s6, s4, 86", "s_lshr_b32 s6, s6, 8", "s_mul_i32 s7, s6, 3", "s_sub_u32 s4, s4, s7", "s_mul_i32 s8, s4, 10", "s_add_u32 s8, s8, s6",
        "s_lshl_b32 s9, s8, 7", "s_and_b32 s4, s11, 1", "s_add_u32 s4, s4, s12", "s_cmp_lt_u32 s4, 8")
    o += col_pre(TB, lane, 3840)
    o_pre = o
    QB = 81920
    D = L()
    D += p2_setup(vPA, lane)
    D.s(f"s_lshl_b32 {sOwn}, {sB}, 5", f"s_add_u32 {sOwn}, {sOwn}, {sHg}", f"s_lshl_b32 {sOwn}, {sOwn}, 2", f"s_add_u32 {sOwn}, {sOwn}, {FLG_OFF + 16*128}",
        f"s_mov_b32 s12, {COL_OFF}")
    D.v("v_lshlrev_b32", vL16, "4", lane).v("v_or_b32", vF, sL, lane).v("v_min_u32", vF, "1", vF).v("v_lshlrev_b32", vF, "30", vF)
    D.v("v_and_b32", t0, "31", lane).v("v_lshrrev_b32", t1, "5", lane)
    D.v("v_and_b32", t2, "15", lane).v("v_bfe_u32", t3, lane, "4", "1").v("v_lshl_add_u32", t4, t2, "1", t3).v("v_add_u32", t4, sT0, t4)
    for rg in range(5):
        D.v("v_add_u32", vTokA + rg, str(32 * rg), t4).v("v_min_u32", vTokA + rg, "2047", vTokA + rg).v("v_lshlrev_b32", vTokA + rg, "4", vTokA + rg)
    D.s("s_lshl_b32 s6, s3, 5").v("v_add_u32", t0, "s6", t0).v("v_min_u32", t0, "239", t0)
    D.v("v_mul_u32_u24", t4, "205", t0).v("v_lshrrev_b32", t4, "14", t4).v("v_mul_u32_u24", t4, "560", t4).v("v_add_u32", t4, t4, t0)
    D.s(f"s_mul_i32 s6, {sHg}, 80").v("v_add_u32", t4, "s6", t4)
    D.v("v_lshrrev_b32", vColA, "6", t4).v("v_lshlrev_b32", vColA, "10", vColA).v("v_and_b32", t4, "63", t4)
    D.v("v_lshl_add_u32", vColA, t4, "3", vColA).v("v_lshl_add_u32", vColA, t1, "9", vColA)
    D.v("v_mul_u32_u24", T + 5, "3200", t3).v("v_mul_u32_u24", T + 6, "40", t2).v("v_add_u32", T + 5, T + 5, T + 6).v("v_add_u32", T + 5, str(QB), T + 5)
    D.s("s_lshl_b32 s6, s3, 3")
    for i in range(4):
        D.v("v_add_u32", t0, "s6", t1)
        if i: D.v("v_add_u32", t0, str(2 * i), t0)
        D.v("v_mul_u32_u24", t4, "52", t0).v("v_lshrrev_b32", t4, "8", t4)
        D.v("v_mul_u32_u24", T + 6, str(6400 - 40), t4).v("v_lshl_add_u32", T + 6, t0, "3", T + 6).v("v_add_u32", vQW + i, T + 6, T + 5)
    D.v("v_and_b32", n_, "15", lane).v("v_lshrrev_b32", g_, "4", lane).v("v_lshlrev_b32", t0, "2", g_).v("v_sub_u32", t0, n_, t0)
    D.v("v_mov_b32", t4, "0xf149f2ca").v("v_mov_b32", T + 5, "0xffff").v("v_mov_b32", T + 6, "0xffff0000")
    for r in range(4):
        for (BB, MM, add) in ((BC, MC, 0), (BP, MP, 16)):
            D.v("v_add_u32", t1, str(add - r), t0)
            D.append(VCMP("v_cmp_gt_u32", "s[4:5]", "8", t1))
            D.v("v_cndmask_b32", BB + r, t4, "0", "s[4:5]")
            if r % 2 == 0: D.v("v_cndmask_b32", MM + r // 2, "0", T + 5, "s[4:5]")
            else: D.v("v_cndmask_b32", t3, "0", T + 6, "s[4:5]").v("v_or_b32", MM + r // 2, MM + r // 2, t3)
    for r in range(4): D.v("v_mov_b32", ONE + r, "0x3f803f80")
    D.append(VCMP("v_cmp_eq_u32", "s[4:5]", "0", g_))
    D.v("v_cndmask_b32", MG0, "0", "-1", "s[4:5]")
    D.s("s_mul_i32 s6, s3, 3200", f"s_add_u32 s6, s6, {QB}")
    D.v("v_mul_u32_u24", t0, "40", n_).v("v_add_u32", t0, "s6", t0).v("v_lshl_add_u32", vQ, g_, "3", t0).v("v_add_u32", vQ2, "32", t0)
    D.v("v_lshrrev_b32", t0, "2", lane).v("v_mul_u32_u24", t0, "40", t0).v("v_add_u32", t0, "s6", t0).v("v_add_u32", t0, str(51200), t0)
    D.v("v_and_b32", t1, "3", lane).v("v_lshl_add_u32", vV, t1, "3", t0).v("v_add_u32", vV2, "32", t0)
    OB = QB
    D.s(f"s_mul_i32 s7, {sB}, 73", "s_and_b32 s6, s7, 7", "s_lshl_b32 s6, s6, 4", "s_bitcmp1_b32 s3, 0")
    D[-1:] = [[D[-1], S(f"s_cselect_b32 s8, {OB + 1408}, {0}"), S(f"s_max_u32 s8, s8, {OB}"), S("s_add_u32 s6, s6, s8")]]
    D.v("v_lshl_add_u32", t1, n_, "4", "s6")
    D.s("s_lshr_b32 s6, s3, 1", "s_mul_i32 s6, s6, 5")
    for (dst, second) in ((vOW, False), (vOW2, True)):
        if second: D.s("s_add_u32 s6, s6, 4").v("v_mov_b32", t0, "s6")
        else: D.v("v_add_u32", t0, "s6", g_)
        D.v("v_lshrrev_b32", t2, "1", t0).v("v_mul_u32_u24", t2, "2816", t2).v("v_add_u32", dst, t2, t1)
        D.v("v_and_b32", t2, "1", t0).v("v_lshl_add_u32", dst, t2, "3", dst)
    D.v("v_mov_b32", T + 5, str(DUMMY)).v("v_cndmask_b32", vOW2, T + 5, vOW2, "s[4:5]")
    D.v("v_lshrrev_b32", t0, "4", sL) if False else None
    D.v("v_lshl_add_u32", vOR, lane, "4", sL).v("v_add_u32", vOR, str(OB), vOR)
    D.append([S(f"s_mul_i32 s7, {sB}, 73"), S("s_add_u32 s8, s7, 7"), S(f"s_cmp_eq_u32 {sB}, 0"), S("s_cselect_b32 s8, 0, s8"),
              S("s_add_u32 s35, s7, 80"), S("s_sub_u32 s34, s35, s8"), S("s_mov_b32 s33, s8"), S("s_and_b32 s32, s7, -8"),
              S(f"s_mul_i32 s71, {sHg}, 10")])
    D.v("v_mov_b32", T + 5, HUGE)
    for i in range(4):
        D.append([S("s_lshl_b32 s6, s3, 6"), S(f"s_add_u32 s6, s6, {512*i}"), V("v_add_u32", t0, "s6", lane)])
        D.v("v_mul_u32_u24", t1, "745", t0).v("v_lshrrev_b32", t1, "16", t1)
        D.v("v_mul_u32_u24", t2, "88", t1).v("v_sub_u32", t0, t0, t2).v("v_add_u32", t0, "s32", t0)
        D.v("v_lshrrev_b32", t2, "4", t0).v("v_mul_u32_u24", vOG + i, str(74 * 2048), t2)
        D.v("v_and_b32", t2, "15", t0).v("v_lshl_add_u32", vOG + i, t2, "4", vOG + i)
        D.v("v_and_b32", t2, "1", t1).v("v_lshl_add_u32", vOG + i, t2, "10", vOG + i)
        D.v("v_lshrrev_b32", t2, "1", t1).v("v_add_u32", t2, "s71", t2)
        D.v("v_lshrrev_b32", t3, "2", t2).v("v_lshl_add_u32", vOG + i, t3, "11", vOG + i)
        D.v("v_and_b32", t2, "3", t2).v("v_lshl_add_u32", vOG + i, t2, "8", vOG + i)
        D.v("v_subrev_u32", t0, "s33", t0)
        D.append(VCMP("v_cmp_gt_u32", "s[4:5]", "s34", t0))
        D.v("v_cndmask_b32", vOG + i, T + 5, vOG + i, "s[4:5]")
        if i == 3:
            D.append(VCMP("v_cmp_gt_u32", "s[4:5]", "20", t1))
            D.v("v_cndmask_b32", vOG + i, T + 5, vOG + i, "s[4:5]")
    dq += dma_stage(1)
    paced(E, o_pre + D + [S(x) for x in PERMSEL], dq, cfg.get("paceq", 36))
    st("i1")
    paced(E, stats_ops(TOK, XOFF), dq, 16)
    dq += dma_stage(2)
    st("i3")
    def reads(t):
        s, sub = t // 4, t % 4; z = s % 3; f = FR[t % 2]
        ops = [DSR(f, 2, vWr + z, off=sub * 8192, tr=True), DSR(f + 2, 2, vWr + z, off=sub * 8192 + 2048, tr=True)]
        for rg in range(5): ops.append(DSR(f + 4 + 4 * rg, 4, vXr + 4 * z + sub, off=rg * 4096))
        return ops
    tabld = [BLD(TOK + 4 * rg, 4, vTokA + rg, 36, "0", tag="tok", mod=SC1) for rg in range(5)] + [BLD(AP, 2, vColA, 20, "s12", tag="col", mod=SC1)]
    while any(x.tag == 0 for g in dq for x in g): E(dq.pop(0))
    if cfg.get("prio"): E(Cond("s_cmp_ge_u32 s3, 4", [S("s_setprio 1")]))
    a.wait_tag(0, lg=0); a.barrier()
    st("s0")
    E(reads(0))
    fill = tok_fin_ops(TB, XOFF, TOK)
    for t in range(40):
        f = FR[t % 2]
        nxt = []
        if t + 1 < 40:
            if (t + 1) % 4 == 0:
                s = (t + 1) // 4
                while any(x.tag == s for g in dq for x in g): E(dq.pop(0))
                a.wait_tag(s, lg=0); a.barrier()
                st(f"s{s}")
                if s + 2 < 10: dq += dma_stage(s + 2)
                CQ = cfg.get("cq", 1)
                if s in (CQ, CQ + 1):
                    cl_ = [[Cond(f"s_cmp_lt_u32 s78, {HUGE}", g)] for g in col_issue(TB, 28, 3840)]
                    dq += cl_[:3] if s == CQ else cl_[3:]
                if s == CQ + 2: fill = [[]] * 10 + col_acc_ops(TB, lane, XOFF, dot=False)
                if s == CQ + 5:
                    assert not fill; fill = [[Block(f"s_cmp_lt_u32 {sColSt}, {HUGE}", col_fin_ops(TB + 16, vTt, lane, XOFF))]]
                if s == 9:
                    assert not fill
                    dq += [[x] for x in tabld]
                    if cfg.get("qpark", 10): dq.append(flg_poll(vP, vPA, LV_W2))
            nxt = reads(t + 1)
        if t == 39:
            check(a, tabld, tag_cmp([TOK + 4 * rg + 1 for rg in range(5)] + [AP + 1], vTt))
            fill = col_fix(AP) + [V("v_mov_b32", TOK + 4 * rg + 1, TOK + 4 * rg) for rg in range(5)]
        for rg in range(5):
            E(MFMA32(ACC + 16 * rg, f, f + 4 + 4 * rg, c="0" if t == 0 else None))
            for k in range(2):
                if nxt: E(nxt.pop(0))
            b = 2.5
            if (rg >= 3 or (rg >= 1 and len(dq) > 4)) and dq: E(dq.pop(0)); b -= 1
            while fill and b > 0:
                o_ = fill.pop(0); E(o_); b -= cost(o_)
    assert not fill and not dq
    st("ge")
    for rg in range(5): E(MFMA32C(ACC + 16 * rg, AP, TOK + 4 * rg))
    QP = cfg.get("qpark", 10)
    early = []
    if QP:
        flg_check(a, vP, vPA, LV_W2)
        early = p2_w_item(1, vL16)[2:] + [[S(f"s_add_u32 s9, {sP2W}, {(k//5)*8*5120 + (k%5)*1024}"), BLD(132 + 4 * (k - 10), 4, vL16, 20, "s9", mod=SC1)] for k in range(10, 10 + QP)]
    for rg in range(5):
        A = ACC + 16 * rg
        if rg == 2 and not QP: E(flg_poll(vP, vPA, LV_W2))
        for i in range(4):
            if early and i != 3: E(early.pop(0))
            for e in range(4): E(V("v_mul_f32", A + 4 * i + e, A + 4 * i + e, TOK + 4 * rg + 2))
            E(V("v_cvt_pk_bf16_f32", A + 4 * i, A + 4 * i, A + 4 * i + 1)); E(V("v_cvt_pk_bf16_f32", A + 4 * i + 1, A + 4 * i + 2, A + 4 * i + 3))
            E(DSW(vQW + i, A + 4 * i, 2, off=rg * 640))
    E(flg_poll(vTt, vPA, LV_A))
    a.wait(lg=0); a.barrier()
    st("at")
    Qr = [176 + 4 * j for j in range(5)]; Kr = [196 + 4 * j for j in range(5)]
    V0, V1 = 24, 36
    for j in range(5):
        E(DSR(Qr[j], 2, vQ, off=j * 640)); E(DSR(Qr[j] + 2, 2, vQ2, off=j * 640))
        E(DSR(Kr[j], 2, vQ, off=25600 + j * 640)); E(DSR(Kr[j] + 2, 2, vQ2, off=25600 + j * 640))
    for j in range(5):
        E(DSR(V0 + 2 * (j + 1), 2, vV, off=j * 640, tr=True)); E(DSR(V1 + 2 * (j + 1), 2, vV2, off=j * 640, tr=True))
    for r in (V0, V0 + 1, V1, V1 + 1): E(V("v_mov_b32", r, "0"))
    SC = [216 + 4 * j for j in range(5)]; SP = [236 + 4 * j for j in range(5)]
    for j in range(5):
        E(V("v_and_b32", Qr[j] + 2, Qr[j] + 2, MG0)); E(V("v_and_b32", Qr[j] + 3, Qr[j] + 3, MG0))
    for j in range(5):
        E(MFMA16C(SC[j], Kr[j], Qr[j], BC))
        if j > 0: E(MFMA16C(SP[j], Kr[j - 1], Qr[j], BP))
    MX = [5 + j for j in range(5)]; TT = [10 + j for j in range(5)]
    a.barrier()
    assert not early
    st("a1")
    if not QP: flg_check(a, vP, vPA, LV_W2)
    flg_check(a, vTt, vPA, LV_A)
    if PFX:
        for p in range(1, 4): E(pf_w2(p, vTt, 140 + p, lane))
    pre = merge(p2_w_item(0, vL16) + p2_w_item(1, vL16)[:2 if QP else 5], [p2_act(x, vL16) for x in range(0, 9)])
    st("a2")
    if cfg.get("nopre"): post = pre; pre = []
    def pp(k=1):
        for _ in range(k):
            if pre: E(pre.pop(0))
    for j in range(5):
        if j > 0:
            for r in range(4): E(V("v_max_f32", SC[j] + r, SC[j] + r, SP[j] + r))
        E(V("v_max3_f32", MX[j], SC[j], SC[j] + 1, SC[j] + 2)); E(V("v_max_f32", MX[j], MX[j], SC[j] + 3))
        if j % 2: pp()
    for lvl in (16, 32):
        for j in range(5): E(V("v_mov_b32", TT[j], MX[j]))
        for j in range(5): E(SWAP(lvl, MX[j], TT[j]))
        for j in range(5): E(V("v_max_f32", MX[j], MX[j], TT[j]))
        pp()
    st("a3")
    E(S(f"s_mov_b32 s7, {CSC}"))
    for j in range(5): E(V("v_mul_f32", MX[j], NCSC, MX[j]))
    PB = [236 + 4 * j for j in range(5)]
    for j in range(5):
        for r in range(4): E(V("v_fma_f32", SC[j] + r, SC[j] + r, "s7", MX[j]))
        for r in range(4): E(V("v_exp_f32", SC[j] + r, SC[j] + r))
        pp()
    for j in range(5):
        E(V("v_cvt_pk_bf16_f32", SC[j], SC[j], SC[j] + 1)); E(V("v_cvt_pk_bf16_f32", SC[j] + 1, SC[j] + 2, SC[j] + 3))
        for h in range(2):
            E(V("v_and_b32", PB[j] + h, SC[j] + h, MP + h)); E(V("v_and_b32", PB[j] + 2 + h, SC[j] + h, MC + h))
        if j % 2: pp()
    st("a4")
    O0 = Qr; O1 = Kr; DN = SC
    for j in range(5):
        E(MFMA16(DN[j], ONE, PB[j], c="0")); E(MFMA16(O0[j], V0 + 2 * j, PB[j], c="0")); E(MFMA16(O1[j], V1 + 2 * j, PB[j], c="0"))
    srd(a, 28, "s20", "s21", ACT_SIZE)
    for j in range(5): E(V("v_rcp_f32", DN[j], DN[j]))
    for j in range(5):
        for O in (O0[j], O1[j]):
            for r in range(4): E(V("v_mul_f32", O + r, O + r, DN[j]))
            E(V("v_cvt_pk_bf16_f32", O, O, O + 1)); E(V("v_cvt_pk_bf16_f32", O + 1, O + 2, O + 3))
        E(DSW(vOW, O0[j], 2, off=j * 256)); E(DSW(vOW2, O1[j], 2, off=j * 256))
        pp()
    st("a5")
    a.wait(lg=0); a.barrier()
    st("a6")
    for i in range(4): E(DSR(216 + 4 * i, 4, vOR, off=i * 8192))
    E(S(f"s_mov_b32 s6, {54*2048}"))
    for i in range(4): E(BST(216 + 4 * i, 4, vOG + i, 28, "s6", tag="st", mod=SC1))
    st("p1e")
    if cfg.get("nopre"): pre = post
    pp(20)
    E(flg_poll(vP, vPA, LV_B))
    phase2(a, st, cfg, vL16, lane, vPA, vP, 10, 9, cfg.get("rateq", 2.1), flag_st(5, vF, LV_C), parked=[(10 + i, 132 + 4 * i) for i in range(QP)])
    st.finish(2, name, cfg.get("stw", 0))
    a.raw("s_endpgm")

def gen_fused(name, stamps=False, cfg={}):
    DBG.update(cfg)
    a = Asm(); E = a.emit
    a.out.append(f".globl {name}\n.p2align 8\n.type {name},@function\n{name}:")
    E(S("s_cmp_ge_u32 s2, 256")); a.raw(f"s_cbranch_scc1 L_{name}_end")
    if stamps:
        a.raw("s_memrealtime s[76:77]"); a.raw("s_memtime s[80:81]")
    a.raw("s_load_dwordx2 s[24:25], s[0:1], 0")
    a.raw(f"s_load_dwordx4 s[{P_QKV}:{P_QKV+3}], s[0:1], 8")
    a.raw("s_load_dwordx2 s[28:29], s[0:1], 32"); a.raw("s_load_dwordx2 s[32:33], s[0:1], 40")
    a.raw(f"s_load_dwordx2 s[{P_W2}:{P_W2+1}], s[0:1], 48")
    a.raw(f"s_load_dwordx2 s[{S_OUT}:{S_OUT+1}], s[0:1], 56")
    a.raw("s_load_dwordx2 s[20:21], s[0:1], 72")
    E(V("v_lshrrev_b32", 2, "6", 0)); E(V("v_and_b32", 1, "63", 0))
    E(RFL("s3", 2))
    for (b, size) in ((20, WS_USED), (24, XBYTES), (S_OUT, XBYTES), (36, 2048 * 16), (28, 640 * 3456), (32, 640 * 3456)):
        E(S(f"s_mov_b32 s{b+2}, {size}")); E(S(f"s_mov_b32 s{b+3}, 0x20000"))
    E(S("s_and_b32 s11, s2, 3")); E(S("s_bfe_u32 s10, s2, 0x10002")); E(S("s_lshr_b32 s12, s2, 3"))
    E(S(f"s_lshl_b32 {sL}, s3, 10")); E(S(f"s_mov_b32 {sSpin}, 0"))
    E(S("s_cmp_lt_u32 s12, 18")); a.raw(f"s_cbranch_scc1 L_{name}_ffn")
    gen_qkv(a, name, stamps, cfg)
    a.label(f"L_{name}_ffn"); a.reset()
    gen_ffn(a, name, stamps, cfg)
    a.label(f"L_{name}_end"); a.raw("s_endpgm")
    return a.text(), kdesc(name, 256, 256, 102), 163840
```

```python
from gasm import *
from common import *

NLOG2E = "0xbfb8aa3b"; CSC = "0x3ea52b5c"; NCSC = "0xbea52b5c"
HUGE = "0x7ff00000"
SC1 = " sc1"
S_OUT, S_AUX = 64, 68
sTag = "s60"
sP2A, sP2W, sP2X, sSpin, sFlg = "s72", "s73", "s74", "s75", "s76"
sColSt, sOwn, sL = "s18", "s17", "s16"
sRot, sItem = "s79", "s78"
P_QKV, P_WO, P_W2 = 52, 54, 56
NST = 18
DBG = {}
uid = [0]
STW = 0

class Stamp:
    def __init__(self, a, on, sel=None): self.a, self.on, self.n, self.sel, self.names = a, on, 0, sel, []
    def __call__(self, name="x", force=False):
        if not self.on: return
        if self.sel is not None and not force and name not in self.sel: return
        assert self.n < NST, name
        if self.n: self.a.raw(f"s_mov_b32 s{82+self.n-1}, s100")
        self.a.raw("s_memtime s[100:101]"); self.n += 1; self.names.append(name)
    def finish(self, role, name, wave=0):
        a = self.a
        if not self.on: return
        a.raw("s_waitcnt vmcnt(0)")
        self("end", True)
        a.raw("s_memrealtime s[4:5]"); a.raw("s_waitcnt lgkmcnt(0)")
        a.raw(f"s_mov_b32 s{82+self.n-1}, s100")
        a.raw(f"s_cmp_lg_u32 s3, {wave}"); a.raw(f"s_cbranch_scc1 L_{name}_end")
        for i in range(20):
            if i < self.n: a.raw(f"s_sub_u32 s6, s{82+i}, s80"); a.raw(f"v_mov_b32 v{i}, s6")
            else: a.raw(f"v_mov_b32 v{i}, 0")
        a.raw(f"v_mov_b32 v20, {sSpin}")
        a.raw(f"v_mov_b32 v21, {role}"); a.raw("v_mov_b32 v22, s77"); a.raw("v_mov_b32 v23, s4")
        a.raw("s_lshl_b32 s40, s2, 7"); a.raw(f"s_add_u32 s40, s40, {STAMP1}"); a.raw("v_mov_b32 v24, s40")
        a.raw("s_mov_b32 s22, 0x2000000"); a.raw("s_mov_b64 exec, 1")
        for i in range(6): a.raw(f"buffer_store_dwordx4 v[{4*i}:{4*i+3}], v24, s[20:23], 0 offen offset:{16*i}")
        a.comment(f"STAMPS role {role}: " + " ".join(self.names))

class L(list):
    def s(self, *ts):
        for t in ts: self.append(S(t))
        return self
    def v(self, *x, **k): self.append(V(*x, **k)); return self

def scc_live(ops):
    for o in ops:
        if isinstance(o, list): return False
        if o.kind != "salu": continue
        n = o.text.split()[0]
        if n.startswith(("s_cselect", "s_addc", "s_subb", "s_cbranch_scc")): return True
        if n.startswith(("s_mov", "s_mul_i32", "s_movk")): continue
        return False
    return False
def exec_dirty(ops):
    return False

def paced(E, ops, groups, every):
    k = 0
    for i, o in enumerate(ops):
        E(o); k += len(o) if isinstance(o, list) else 1
        if groups and k >= every and not scc_live(ops[i + 1:]):
            E(groups.pop(0)); k = 0

def rot_table(srot, sK, mulK, sKx, lo, hi, blk=10):
    o = L()
    for s in range(lo, hi):
        base = s // blk * blk
        if base: o.s(f"s_add_u32 s4, {srot}, {base}", f"s_mul_i32 s{sK+s}, s4, {mulK}", f"s_lshl_b32 s{sKx+s}, s4, 7")
        else: o.s(f"s_mul_i32 s{sK+s}, {srot}, {mulK}", f"s_lshl_b32 s{sKx+s}, {srot}, 7")
        if s < 9: o.s(f"s_add_u32 {srot}, {srot}, 1", f"s_cmp_eq_u32 {srot}, {blk}", f"s_cselect_b32 {srot}, 0, {srot}")
    return o
def mod_ops(src, dst, m):
    if m == 1: return [S(f"s_mov_b32 {dst}, 0")]
    if m == 2: return [S(f"s_and_b32 {dst}, {src}, 1")]
    k = {5: 52, 10: 26}[m]
    return [S(f"s_mul_i32 s5, {src}, {k}"), S("s_lshr_b32 s5, s5, 8"), S(f"s_mul_i32 s5, s5, {m}"), S(f"s_sub_u32 {dst}, {src}, s5")]

def check(a, load, cmp_ops, sleep=2):
    uid[0] += 1; Lb = f"L_ck{uid[0]}"
    a.emit(cmp_ops)
    a.raw(f"s_cbranch_scc0 {Lb}_ok")
    a.label(f"{Lb}_sp")
    a.raw(f"s_sleep {sleep}")
    for l in (load if isinstance(load, list) else [load]): a.raw(l.text)
    a.raw("s_waitcnt vmcnt(0)")
    a.raw(f"s_add_u32 {sSpin}, {sSpin}, 1"); a.raw(f"s_cmp_gt_u32 {sSpin}, 30000"); a.raw(f"s_cbranch_scc1 {Lb}_ok")
    for o in cmp_ops:
        a.raw(o.text); a.raw("s_nop 3")
    a.raw(f"s_cbranch_scc1 {Lb}_sp")
    a.label(f"{Lb}_ok")

M_FFN, M_Q, M_W2 = 0x1ff, 0xffff0000, 0x3ffffff << 32
LV_W2, LV_A, LV_B, LV_C = "W2", "A", "B", "C"
LV = {"W2": (0, M_W2), "A": (48 * 128, M_FFN), "B": (64 * 128, M_FFN), "C": (0, M_FFN), "Q": (0, M_Q)}
def flg_poll(vP, vA, lv):
    off, m = LV[lv]
    return [S(f"s_mov_b32 s9, {FLG_OFF + off}"), S(f"s_mov_b32 exec_lo, {m & 0xffffffff}"), S(f"s_mov_b32 exec_hi, {m >> 32}"),
            BLD(vP, 1, vA, 20, "s9", tag="poll", mod=SC1), S("s_mov_b64 exec, -1")]
def flg_cmp(vP, lv):
    off, mask = LV[lv]
    o = [VCMP("v_cmp_ne_u32", "vcc", sTag, vP)]
    if mask >> 32 == 0: o.append(S(f"s_and_b32 vcc_lo, vcc_lo, {mask}", sr=["vcc"]))
    else: o.append(S(f"s_and_b32 vcc_hi, vcc_hi, {mask >> 32}", sr=["vcc"]))
    return o
def flg_check(a, vP, vA, lv, sleep=2): check(a, flg_poll(vP, vA, lv), flg_cmp(vP, lv), sleep)
def tag_cmp(regs, t):
    o = [V("v_xor_b32", t, sTag, regs[0])]
    for r in regs[1:]: o.append(Op(f"v_bitop3_b32 {R(t)}, {R(t)}, {R(r)}, {sTag} bitop3:0xf6", "valu", r=[t, r], w=[t], sr=[sTag]))
    return o + [VCMP("v_cmp_ne_u32", "vcc", "0", t), S("s_cmp_lg_u64 vcc, 0")]
def flag_st(vT, vF, lv, base=None):
    return [Cond("s_cmp_eq_u32 s3, 0", [S(f"s_add_u32 s9, {base or sOwn}, {LV[lv][0]}"), V("v_mov_b32", vT, sTag), BST(vT, 1, vF, 20, "s9", tag="flag", mod=SC1)])]
def col_fix(AP): return [V("v_perm_b32", AP + 1, AP, AP, "s62"), V("v_perm_b32", AP, AP, AP, "s61")]

def wsum(s, t):
    return [DPP("v_add_f32", s, s, s, "quad_perm:[1,0,3,2]"), DPP("v_add_f32", s, s, s, "quad_perm:[2,3,0,1]"), DPP("v_add_f32", s, s, s, "row_half_mirror"),
            DPP("v_add_f32", s, s, s, "row_ror:8"), V("v_mov_b32", t, s), SWAP(16, s, t), V("v_add_f32", s, s, t),
            V("v_mov_b32", t, s), SWAP(32, s, t), V("v_add_f32", s, s, t)]
def merge(a, b):
    o = []
    a, b = list(a), list(b)
    na, nb = len(a), len(b)
    while a or b:
        if a and (not b or len(a) * nb >= len(b) * na): o.append(a.pop(0))
        else: o.append(b.pop(0))
    return o

def st_pre(B, lane, Bs=None):
    Bs = B if Bs is None else Bs
    o = L()
    o.s("s_and_b32 s4, s2, 7", "s_lshl_b32 s4, s4, 5", "s_lshr_b32 s5, s2, 3", "s_add_u32 s4, s4, s5", "s_lshl_b32 s4, s4, 3", "s_add_u32 s4, s4, s3",
        "s_mul_i32 s63, s4, 1280", "s_lshl_b32 s61, s4, 4", f"s_mov_b32 s62, {EPO_OFF}")
    o.v("v_lshlrev_b32", B + 36, "4", lane).v("v_lshlrev_b32", B + 37, "2", lane).v("v_lshlrev_b32", Bs + 5, "24", lane)
    return o
def st_issue(B, Bs=None):
    Bs = B if Bs is None else Bs
    return [BLD(Bs + 5, 1, Bs + 5, 20, "s62", mod=SC1), BLD(Bs, 4, B + 36, 24, "s63"), BLD(Bs + 4, 1, B + 37, 24, "s63", off=1024), S("s_mov_b32 s81, s61")]
def col_pre(B, lane, pitch):
    o = L()
    o.s(f"s_cselect_b32 s9, s9, {HUGE}", "s_cselect_b32 s7, s3, 1",
        "s_lshl_b32 s5, s8, 10", "s_lshl_b32 s8, s10, 9", "s_add_u32 s5, s5, s8", f"s_add_u32 s5, s5, {COL_OFF}",
        "s_mul_i32 s8, s10, 40", "s_add_u32 s8, s8, s3", *([f"s_mul_i32 s8, s8, {8*pitch}"] if isinstance(pitch, int) else ["s_lshl_b32 s8, s8, 3", f"s_mul_i32 s8, s8, {pitch}"]), "s_add_u32 s78, s8, s9",
        "s_cmp_eq_u32 s7, 0", f"s_cselect_b32 {sColSt}, s5, {HUGE}")
    o.v("v_lshrrev_b32", B + 38, "3", lane).v("v_and_b32", B + 39, "7", lane)
    o.v("v_mul_u32_u24", B + 38, str(pitch), B + 38).v("v_lshl_add_u32", B + 38, B + 39, "4", B + 38)
    return o
def col_issue(B, srdn, pitch):
    return [[BLD(B + 16 + 4 * it, 4, B + 38, srdn, "s78", mod=DBG.get("cm", ""))] + ([S(f"s_add_u32 s78, s78, {64*pitch if isinstance(pitch, int) else pitch}")] if it < 4 else []) for it in range(5)]
def stats_ops(B, xoff):
    U = B + 6; s, t = B + 5, B + 4
    o = L()
    o.append(RFL(sTag, B + 5))
    for i in (4, 0, 1, 2, 3): o.v("v_lshlrev_b32", U + 2 * i, "16", B + i).v("v_and_b32", U + 2 * i + 1, "0xffff0000", B + i)
    o.s(f"s_mul_i32 {sTag}, {sTag}, 0x9e3779b1", f"s_add_u32 {sTag}, {sTag}, 0x7f4a7c15")
    o.v("v_add_f32", s, U, U + 1).v("v_add_f32", t, U + 2, U + 3)
    for i in range(4, 10, 2): o.v("v_add_f32", s, s, U + i).v("v_add_f32", t, t, U + i + 1)
    o.v("v_add_f32", s, s, t)
    o += wsum(s, t)
    o.v("v_mul_f32", s, "0xbacccccd", s)
    q = B + 1
    for i in range(10): o.v("v_add_f32", U + i, U + i, s)
    o.v("v_mul_f32", q, U, U).v("v_mul_f32", t, U + 1, U + 1)
    for i in range(2, 10, 2): o.v("v_fmac_f32", q, U + i, U + i).v("v_fmac_f32", t, U + i + 1, U + i + 1)
    o.v("v_add_f32", q, q, t)
    o += wsum(q, t)
    o.v("v_mov_b32", B + 3, "0x3727c5ac").v("v_fmac_f32", B + 3, "0x3acccccd", q).v("v_rsq_f32", B + 2, B + 3)
    o.v("v_cvt_pk_bf16_f32", t, s, s).v("v_lshlrev_b32", t, "16", t).v("v_sub_f32", t, s, t)
    o.v("v_cvt_pk_bf16_f32", B, s, t).v("v_mov_b32", B + 1, sTag)
    o.v("v_mov_b32", t, sL).v("v_lshrrev_b32", t, "6", t).v("v_add_u32", t, str(xoff + 2048), t)
    o.append(DSW(t, B, 4))
    return o
def tok_fin_ops(B, xoff, Bs=None):
    Bs = B if Bs is None else Bs
    o = L()
    o.v("v_and_b32", Bs + 4, "0x70", B + 36).v("v_add_u32", Bs + 4, str(xoff + 2048), Bs + 4)
    o.append(DSR(Bs, 4, Bs + 4))
    o.v("v_lshrrev_b32", Bs + 5, "7", B + 36).v("v_lshl_add_u32", Bs + 5, Bs + 5, "24", B + 36)
    o.s("s_sub_u32 s81, s81, 16")
    o.append(BST(Bs, 4, Bs + 5, 36, "s81", tag="tab", mod=SC1))
    return [[Block("s_cmp_eq_u32 s3, 1", o)]]
def col_add(A, r, first, t, dot):
    o = L()
    for j in range(4):
        if first: o.v("v_lshlrev_b32", A + 2 * j, "16", r + j).v("v_and_b32", A + 2 * j + 1, "0xffff0000", r + j)
        elif dot: o.v("v_dot2c_f32_bf16", A + 2 * j, "s61", r + j).v("v_dot2c_f32_bf16", A + 2 * j + 1, "s62", r + j)
        else: o.v("v_lshlrev_b32", t, "16", r + j).v("v_and_b32", r + j, "0xffff0000", r + j).v("v_add_f32", A + 2 * j, A + 2 * j, t).v("v_add_f32", A + 2 * j + 1, A + 2 * j + 1, r + j)
    return o
def col_red(A, t0, piece, lane, xoff):
    o = L()
    o.v("v_lshrrev_b32", t0, "4", lane).v("v_lshlrev_b32", t0, "3", t0).v("v_lshl_add_u32", t0, piece, "5", t0)
    for j in range(4): o.append(SWAP(32, A + j, A + j + 4))
    for j in range(4): o.v("v_add_f32", A + j, A + j, A + j + 4)
    o.v("v_mov_b32", t0 + 1, sL).v("v_lshrrev_b32", t0 + 1, "2", t0 + 1)
    for j in range(2): o.append(SWAP(16, A + j, A + j + 2))
    for j in range(2): o.v("v_add_f32", A + j, A + j, A + j + 2)
    o.v("v_add_u32", t0, t0, t0 + 1).v("v_add_u32", t0, str(xoff), t0)
    for j in range(2): o.append(DPP("v_add_f32", A + j, A + j, A + j, "row_ror:8"))
    o.append(DSW(t0, A, 2))
    return o
def col_acc_ops(B, lane, xoff, dot=True):
    A = B + 40
    o = L()
    if dot: o.s("s_mov_b32 s61, 0x3f80", "s_mov_b32 s62, 0x3f800000")
    for it in range(5): o += col_add(A, B + 16 + 4 * it, it == 0, B + 16, dot)
    o += col_red(A, B + 16, B + 39, lane, xoff)
    return o
PERMSEL = ["s_mov_b32 s61, 0x01000100", "s_mov_b32 s62, 0x03020302"]
def col_fin_ops(Rd, t, lane, xoff):
    o = L()
    o.v("v_lshlrev_b32", t, "2", lane).v("v_add_u32", t, str(xoff), t)
    for w in range(8): o.append(DSR(Rd + w, 1, t, off=w * 256))
    for w in range(4): o.v("v_add_f32", Rd + w, Rd + w, Rd + 4 + w)
    o.v("v_add_f32", Rd, Rd, Rd + 1).v("v_add_f32", Rd + 2, Rd + 2, Rd + 3).v("v_add_f32", Rd, Rd, Rd + 2)
    o.v("v_cvt_pk_bf16_f32", Rd + 4, Rd, Rd).v("v_lshlrev_b32", Rd + 6, "16", Rd + 4).v("v_sub_f32", Rd + 6, Rd, Rd + 6)
    o.v("v_cvt_pk_bf16_f32", Rd + 4, Rd, Rd + 6).v("v_mov_b32", Rd + 5, sTag).v("v_lshlrev_b32", t, "3", lane)
    o.append(BST(Rd + 4, 2, t, 20, sColSt, tag="tab", mod=SC1))
    return o

ACTB, ACC2, WF2 = 96, 48, 8
def p2_setup(vA, lane, rb="s10", cb="s11"):
    g = []
    o = L()
    o.s("s_bfe_u32 s10, s2, 0x20001", "s_lshl_b32 s10, s10, 3", "s_bfe_u32 s5, s2, 0x30003", "s_add_u32 s10, s10, s5",
        "s_and_b32 s11, s2, 1", "s_lshl_b32 s11, s11, 2", "s_lshr_b32 s6, s2, 6", "s_add_u32 s11, s11, s6"); g.append(list(o))
    o = L()
    o.s("s_bfe_u32 s6, s3, 0x10001", "s_lshl_b32 s9, s10, 1", "s_add_u32 s6, s6, s9",
        f"s_mul_i32 {sP2A}, s6, 74", "s_lshr_b32 s9, s3, 2", f"s_add_u32 {sP2A}, {sP2A}, s9", f"s_lshl_b32 {sP2A}, {sP2A}, 1",
        "s_and_b32 s9, s3, 1", f"s_add_u32 {sP2A}, {sP2A}, s9", f"s_lshl_b32 {sP2A}, {sP2A}, 10",
        f"s_mul_i32 {sP2X}, s10, {64*1280}"); g.append(list(o))
    o = L()
    o.s(f"s_mul_i32 {sP2W}, s11, 74", f"s_add_u32 {sP2W}, {sP2W}, s3", f"s_mul_i32 {sP2W}, {sP2W}, 5120", f"s_add_u32 {sP2W}, {sP2W}, {W2F_OFF}",
        "s_mul_i32 s6, s11, 160", f"s_add_u32 {sP2X}, {sP2X}, s6",
        ); g.append(list(o))
    if DBG.get("rot2"):
        o = L()
        o.s("s_bfe_u32 s6, s2, 0x30003", "s_lshr_b32 s9, s2, 6", "s_lshl_b32 s9, s9, 1", "s_add_u32 s6, s6, s9", "s_cmp_ge_u32 s6, 9", "s_cselect_b32 s9, 9, 0", f"s_sub_u32 {sRot}, s6, s9",
            f"s_lshl_b32 s6, {sRot}, 12", f"s_add_u32 {sP2A}, {sP2A}, s6", f"s_mul_i32 s6, {sRot}, 10240", f"s_add_u32 {sP2W}, {sP2W}, s6"); g.append(list(o))
    def part(o, lo, n):
        m = ((1 << n) - 1) << lo
        o.s("s_lshl_b32 s6, s6, 7", f"s_sub_u32 s6, s6, {lo*4}", f"s_mov_b32 exec_lo, {m & 0xffffffff}", f"s_mov_b32 exec_hi, {m >> 32}")
        o.v("v_lshl_add_u32", vA, lane, "2", "s6"); o.s("s_mov_b64 exec, -1"); g.append(list(o))
    part(L().s("s_lshr_b32 s6, s10, 1"), 0, 16)
    for (lo, add) in ((16, 0), (24, 63)):
        part(L().s("s_lshl_b32 s6, s10, 6", f"s_add_u32 s6, s6, {add}", "s_max_u32 s6, s6, 14", "s_sub_u32 s6, s6, 14",
                   "s_mul_i32 s6, s6, 7183", "s_lshr_b32 s6, s6, 20", "s_add_u32 s6, s6, 16"), lo, 8)
    for (i, add) in ((0, 0), (1, 4)):
        part(L().s("s_mul_i32 s6, s11, 5", f"s_add_u32 s6, s6, {add + 128}", "s_lshr_b32 s6, s6, 2"), 32 + 13 * i, 13 if i == 0 else 19)
    g = [[S(x.text.replace("s10", rb).replace("s11", cb)) if x.kind == "salu" else x for x in grp] for grp in g]
    return g

def GEND(j): return 9 if j < 9 else 18 if j < 18 else 27 if j < 27 else 37
def GN(j): return 10 if j >= 27 else 9
def p2_w_item(d, vL16):
    slot = (d % 4) * 40960
    ops = []
    for i in range(5):
        g = [S(f"s_add_u32 s9, {sP2W}, {(d%2 if DBG.get('hot') else d)*8*5120 + i*1024}")]
        if DBG.get("rot2"):
            pre = []
            if i == 0:
                ends = sorted(set(GEND(j) for j in range(4 * d, min(4 * d + 4, 37))))
                pre = [S("s_lshr_b32 s8, s3, 1")]
                if len(ends) == 1:
                    pre += [S(f"s_add_u32 s8, s8, {sRot}"), S(f"s_cmp_ge_u32 s8, {ends[0] - 4*d}"), S(f"s_cselect_b32 {sItem}, {GN(4*d)*10240}, 0")]
                else:
                    pre += [S(f"s_cmp_ge_u32 s8, {ends[0] - 4*d}"), S(f"s_cselect_b32 s7, {ends[1] - 4*d}, {ends[0] - 4*d}"),
                            S(f"s_cselect_b32 {sItem}, {GN(ends[0])}, {GN(4*d)}"), S(f"s_mul_i32 {sItem}, {sItem}, 10240"),
                            S(f"s_add_u32 s8, s8, {sRot}"), S("s_cmp_ge_u32 s8, s7"), S(f"s_cselect_b32 {sItem}, {sItem}, 0")]
                pre.append(S(f"s_sub_u32 {sItem}, {sP2W}, {sItem}"))
            g = pre + [S(f"s_add_u32 s9, {sItem}, {d*8*5120 + i*1024}")]
        if DBG.get("now2"): g = [S(f"s_mov_b32 s9, {HUGE}")]
        g += [S(f"s_add_u32 m0, {sL}, {slot + i*8192}"), DMA(vL16, 20, "s9", tag=("W2", d), mod="" if DBG.get("nosc1") else SC1)]
        ops.append(g)
    if d == 9: ops = [[Cond("s_cmp_lt_u32 s3, 2", sum(ops, []))]]
    return ops
def pf_w2(p, vT, vD, lane):
    return [S("s_bfe_u32 s8, s2, 0x30003"), S("s_lshl_b32 s8, s8, 3"), S("s_add_u32 s8, s8, s3"), S("s_mul_i32 s8, s8, 12"), S(f"s_add_u32 s8, s8, {p*768}"),
            S("s_min_u32 s8, s8, 2948"), S("s_lshl_b32 s8, s8, 7"), S("s_mul_i32 s9, s3, 5120"), S(f"s_sub_u32 s9, {sP2W}, s9"), S("s_add_u32 s9, s9, s8"),
            V("v_lshlrev_b32", vT, "7", lane), S("s_mov_b64 exec, 0xfff"), BLD(vD, 1, vT, 20, "s9", tag="pf", mod=SC1), S("s_mov_b64 exec, -1")]
def pf_act(g, vT, vD, lane):
    j0, n = [(0, 9), (9, 9), (18, 9), (27, 10)][g]
    return [S("s_lshr_b32 s8, s2, 6"), V("v_lshrrev_b32", vT, "3", lane), V("v_lshl_add_u32", vT, vT, "2", "s8"), V("v_min_u32", vT, str(n - 1), vT),
            V("v_lshlrev_b32", vT, "5", vT), V("v_and_or_b32", vT, lane, "7", vT), V("v_lshlrev_b32", vT, "7", vT),
            S(f"s_add_u32 s9, {sP2A}, {j0*4096}"), S("s_mov_b64 exec, 0xffffff"), BLD(vD, 1, vT, 20, "s9", tag="pf", mod=SC1), S("s_mov_b64 exec, -1")]
def p2_act(j, vL16):
    if DBG.get("noact"): return [S(f"s_mov_b32 s9, {HUGE}"), BLD(ACTB + 4 * j, 4, vL16, 20, "s9", mod=SC1)]
    if DBG.get("hot"): return [S(f"s_add_u32 s9, {sP2A}, {(j%4)*4096}"), BLD(ACTB + 4 * j, 4, vL16, 20, "s9", mod=SC1)]
    if DBG.get("rot2"):
        return [S(f"s_cmp_ge_u32 {sRot}, {GEND(j) - j}"), S(f"s_cselect_b32 s9, {GN(j)*4096}, 0"), S(f"s_sub_u32 s9, {sP2A}, s9"), S(f"s_add_u32 s9, s9, {j*4096}"),
                BLD(ACTB + 4 * j, 4, vL16, 20, "s9", mod=SC1)]
    return [S(f"s_add_u32 s9, {sP2A}, {j*4096}"), BLD(ACTB + 4 * j, 4, vL16, 20, "s9", mod="" if DBG.get("nosc1") else SC1)]

def phase2(a, st, cfg, vL16, lane, vPA, vP, pieces_done, act_done, rate, publish, epoch=False, parked=[]):
    E = a.emit
    PF = cfg.get("pf2", False)
    vRd = [68, 69, 70]; vXO = [71, 72]; vRr = [73, 74]; vWrt = 75
    X0 = 244; t0, t1, t2 = 76, 77, 78
    EP = 86
    E(S("s_lshr_b32 s4, s3, 2")); E(S("s_lshl_b32 s5, s4, 10"))
    E(V("v_add_u32", vRd[0], "s5", vL16))
    for b in (1, 2): E(V("v_add_u32", vRd[b], str(b << 16), vRd[0]))
    def reads(j):
        pos = ((j // 4) % 4) * 40960 + (j % 4) * 2048
        f = WF2 + 20 * (j % 2)
        return [DSR(f + 4 * l, 4, vRd[(pos + l * 8192) >> 16], off=(pos + l * 8192) & 0xffff) for l in range(5)]
    misc = []
    for i in range(2):
        misc.append([S("s_lshl_b32 s4, s3, 6"), S(f"s_add_u32 s4, s4, {512*i}"), V("v_add_u32", t0, "s4", lane), V("v_mul_u32_u24", t1, "6554", t0), V("v_lshrrev_b32", t1, "16", t1)])
        misc.append([V("v_mul_u32_u24", t2, "10", t1), V("v_sub_u32", t0, t0, t2), V("v_mul_u32_u24", vRr[i], "336", t1), V("v_lshl_add_u32", vRr[i], t0, "5", vRr[i]), V("v_add_u32", vRr[i], "81920", vRr[i])])
        misc.append([V("v_and_b32", t2, "15", t1), V("v_and_b32", vXO[i], "32", t1), V("v_lshl_add_u32", vXO[i], t2, "1", vXO[i]), V("v_bfe_u32", t2, t1, "4", "1"), V("v_add_u32", vXO[i], vXO[i], t2)])
        ld = BLD(X0 + 4 * i, 4, vXO[i], 24, sP2X)
        misc.append([V("v_mul_u32_u24", vXO[i], "1280", vXO[i]), V("v_lshl_add_u32", vXO[i], t0, "4", vXO[i]), ld if i == 0 else Cond("s_cmp_lt_u32 s3, 2", [ld])])
    misc.append([S("s_lshr_b32 s4, s3, 2"), S("s_mul_i32 s4, s4, 21504"), S("s_and_b32 s5, s3, 3"), S(f"s_mul_i32 s5, s5, {16*336}"), S("s_add_u32 s4, s4, s5"), S("s_add_u32 s4, s4, 81920"),
                 V("v_and_b32", t0, "15", lane), V("v_mul_u32_u24", t0, "336", t0), V("v_and_b32", t1, "48", lane), V("v_add3_u32", vWrt, t0, t1, "s4")])
    epl = [BLD(EP + 4 + i, 1, EP + i, 36, "0", off=4, mod=SC1) for i in range(4)]
    if epoch:
        misc.append([S("s_or_b32 s4, s2, s3"), Cond("s_cmp_eq_u32 s4, 0", [V("v_lshlrev_b32", EP, "3", vL16)] +
                    [V("v_add_u32", EP + i, str(i * 8192), EP) for i in range(1, 4)] + epl)])
    a.wait_tag(("W2", 0), lg=0); a.barrier()
    st("p2s")
    E(reads(0))
    if parked:
        assert pieces_done == parked[0][0], pieces_done
        E(V("v_add_u32", 6, sL, vL16)); E(V("v_add_u32", 7, "0x20000", 6)); E(V("v_add_u32", 6, "0x10000", 6))
        for (k, r) in parked: E(DSW(6 + (k * 8192 >> 16) - 1, r, 4, off=(k * 8192) & 0xffff))
        pieces_done += len(parked)
    q = []
    def push(need, g): q.append((need, len(q), g)); q.sort(key=lambda e: e[:2])
    def push_item(d, frm=0):
        for g in p2_w_item(d, vL16)[frm:]: push(4 * d - 1.5, g)
    for x in range(act_done, 9): push(x, p2_act(x, vL16))
    for d in range(4):
        if pieces_done < 5 * (d + 1): push_item(d, max(0, pieces_done - 5 * d))
    nitem = 4
    PUB, CB, P3, C3 = cfg.get("pub", 4), cfg.get("cb", 1), cfg.get("p3", 11), cfg.get("c3", 14)
    RATE = rate
    LEAD = cfg.get("lead", 5)
    credit = 0.0
    for g in misc: push(cfg.get("misc", 19), g)
    for j in range(37):
        f = WF2 + 20 * (j % 2)
        nxt = []
        while q and q[0][0] <= j: E(q.pop(0)[2])
        if j + 1 < 37:
            if j == PUB:
                a.wait_tag("st"); a.barrier(); E(publish); st("pub")
            if (j + 1) % 4 == 0:
                d = (j + 1) // 4
                a.wait_tag(("W2", d), lg=0); a.barrier()
                if nitem < 10: push_item(nitem); nitem += 1
            nxt = reads(j + 1)
        if j == CB:
            flg_check(a, vP, vPA, LV_B)
            if PF: E(pf_act(1, t0, 6, lane))
            for x in range(9, 18): push(x, p2_act(x, vL16))
        if j == P3: E(flg_poll(vP, vPA, LV_C))
        if j == C3:
            flg_check(a, vP, vPA, LV_C, sleep=1)
            st("c3")
            if PF: E(pf_act(2, t0, 6, lane)); E(pf_act(3, t0, 7, lane))
            for x in range(18, 18 + cfg.get("burst", 3)): E(p2_act(x, vL16))
            for x in range(18 + cfg.get("burst", 3), 27): push(x, p2_act(x, vL16))
            RATE = cfg.get("rate2", 1.4)
        if j == cfg.get("p4", 17): E(flg_poll(vP, vPA, "Q"))
        if j == cfg.get("c4", 20):
            flg_check(a, vP, vPA, "Q", sleep=1)
            st("c4")
            for x in range(27, 37): push(x, p2_act(x, vL16))
        st(f"g{j}")
        credit = min(credit + RATE, 4)
        for l in range(5):
            if cfg.get("nomfma") and l: pass
            else: E(MFMA16(ACC2 + 4 * l, f + 4 * l, ACTB + 4 * j, c="0" if j == 0 else None))
            if nxt:
                x_ = nxt.pop(0)
                if not (cfg.get("nords") and l): E(x_)
            if q and (credit >= 1 or q[0][0] <= j + LEAD):
                g = q.pop(0)[2]; E(g)
                if any(x.kind in ("vld", "dma") for x in g): credit -= 1
    fill = q
    assert not fill
    st("p2e")
    for l in range(5): E(DSW(vWrt, ACC2 + 4 * l, 4, off=l * 64))
    def unpack(i):
        o = []
        for e in range(4): o += [V("v_lshlrev_b32", 8 + 8 * i + 2 * e, "16", X0 + 4 * i + e), V("v_and_b32", 9 + 8 * i + 2 * e, "0xffff0000", X0 + 4 * i + e)]
        return o
    E(unpack(0)); E(unpack(1))
    a.wait(lg=0); a.barrier()
    st("red")
    def finish(i):
        RD = 96 + 16 * i; o = []
        for k in range(4): o.append(DSR(RD + 4 * k, 4, vRr[i], off=(k // 2) * 21504 + (k % 2) * 16))
        c = []
        for e in range(8): c.append(V("v_add_f32", 8 + 8 * i + e, 8 + 8 * i + e, RD + e))
        for e in range(8): c.append(V("v_add_f32", 8 + 8 * i + e, 8 + 8 * i + e, RD + 8 + e))
        for e in range(4): c.append(V("v_cvt_pk_bf16_f32", X0 + 4 * i + e, 8 + 8 * i + 2 * e, 9 + 8 * i + 2 * e))
        c.append(BST(X0 + 4 * i, 4, vXO[i], S_OUT, sP2X, mod=cfg.get("om", " nt")))
        return o, c
    r0, c0 = finish(0); r1, c1 = finish(1)
    uid[0] += 1; L1 = f"L_f{uid[0]}"
    E(r0)
    E(S("s_cmp_lt_u32 s3, 2")); a.raw(f"s_cbranch_scc1 {L1}")
    import copy
    sv = copy.deepcopy((a.pos, a.lg, a.vm, a.lastw, a.lastc, a.lastst, a.slastw))
    E(c0)
    a.raw(f"s_branch {L1}e")
    a.label(L1)
    a.pos, a.lg, a.vm, a.lastw, a.lastc, a.lastst, a.slastw = sv
    E(r1); E(finish(0)[1]); E(c1)
    a.label(f"{L1}e")
    st("out")
    if epoch:
        uid[0] += 1; Lb = f"L_ep{uid[0]}"
        E(S("s_or_b32 s4, s2, s3")); a.raw(f"s_cbranch_scc1 {Lb}")
        check(a, epl, tag_cmp([EP + 4, EP + 5, EP + 6, EP + 7], 24))
        E(V("v_mov_b32", 25, sTag)); E(V("v_lshlrev_b32", 24, "20", vL16)); E(S(f"s_mov_b32 s4, {EPO_OFF}"))
        E(BST(25, 1, 24, 20, "s4", mod=SC1))
        a.label(Lb)

def common_wait(a, stamps):
    E = a.emit
    a.raw("s_waitcnt lgkmcnt(0)")
    if stamps: a.raw("s_mov_b32 s77, s76")
    E(S(f"s_add_u32 s36, s20, {TOK_OFF}")); E(S("s_addc_u32 s37, s21, 0"))

def cost(o):
    if isinstance(o, list): return 1 + len(o) // 5 if o else 4
    return {"trans": 2, "perml": 2, "salu": 0.5}.get(o.kind, 1)

def gen_ffn(a, name, stamps, cfg):
    E = a.emit; st = Stamp(a, stamps, cfg.get("sel"))
    PFX = cfg.get("pf", False)
    sK, sKx = 40, 50
    XF, A0, A1, A2, WB = 96, 48, 64, 80, 28
    vL16, lane = 0, 1
    vWr = [2, 3, 4]; vDW, vSt, vCol = 5, 6, 7
    TOK = 8; AP = [12, 14]; T = 16
    vPA, vP, vF, vTt = 24, 25, 26, 27
    vDX, vDX2, vXr, vTokA = A2, A2 + 1, A2 + 2, A2 + 6
    TB = 208; XO = 9 * 16384 + 8192
    t0, t1, t2, t3 = T, T + 1, T + 2, T + 3
    sSt, sCb, sRb, sTok = "s13", "s14", "s15", "s19"
    RB = cfg.get("rblk", 1)
    o = L()
    o.s("s_mul_i32 s13, s11, 18", "s_add_u32 s13, s13, s12", f"s_lshr_b32 {sCb}, s13, 3", f"s_and_b32 {sRb}, s13, 7",
        f"s_mul_i32 s4, {sCb}, {cfg.get('rmul', 3)}", f"s_add_u32 s4, s4, {sRb}")
    o += mod_ops("s4", "s19", RB)
    o.s("s_lshl_b32 s5, s10, 3", f"s_add_u32 {sRb}, {sRb}, s5")
    o += rot_table("s19", sK, 64 * 3456, sKx, 0, 2, RB)
    o.s("s_and_b32 s4, s3, 3", "s_lshr_b32 s5, s3, 2", "s_lshl_b32 s6, s4, 3")
    o.v("v_lshrrev_b32", t0, "3", lane).v("v_and_b32", t1, "7", lane).v("v_add_u32", t2, "s6", t0)
    o.v("v_bfe_u32", t3, t2, "1", "3").v("v_xor_b32", t3, t1, t3)
    o.v("v_and_b32", vDX, "15", t2).v("v_lshrrev_b32", t2, "4", t2).v("v_lshl_add_u32", vDX, vDX, "1", t2)
    o.s(f"s_lshl_b32 s6, {sRb}, 7", "s_lshl_b32 s9, s5, 5", "s_add_u32 s6, s6, s9")
    o.v("v_add_u32", vDX, "s6", vDX).v("v_mul_u32_u24", vDX, "1280", vDX).v("v_lshl_add_u32", vDX, t3, "4", vDX).v("v_add_u32", vDX2, str(64 * 1280), vDX)
    o.v("v_lshrrev_b32", t2, "2", lane).v("v_and_b32", t2, "4", t2).v("v_xor_b32", t2, t1, t2)
    o.v("v_mul_u32_u24", vDW, "3456", t0).v("v_lshl_add_u32", vDW, t2, "4", vDW)
    o.s(f"s_mul_i32 s6, s3, {8*3456}", f"s_mul_i32 s9, {sCb}, 384", "s_add_u32 s6, s6, s9")
    o.v("v_add_u32", vDW, "s6", vDW)
    E(o); E(st_pre(TB, lane))
    items = {}
    free = list(range(10))
    qX = [("X", s) for s in range(10)]
    qW = [("W", s) for s in range(30)]
    dma_chunk = [0]
    def dma_ops(it, slot):
        kind, s = it
        base = slot * 16384
        m0 = lambda x: S(f"s_add_u32 m0, {sL}, {base+x}")
        if kind == "X":
            return [[m0(0), DMA(vDX, 24, f"s{sKx+s}", tag=it)], [m0(8192), DMA(vDX2, 24, f"s{sKx+s}", tag=it)]]
        if s < 10:
            return [[m0(0), DMA(vDW, 28, f"s{sK+s}", tag=it, mod=DBG.get("wm", ""))], [m0(8192), DMA(vDW, 32, f"s{sK+s}", tag=it, mod=DBG.get("wm", ""))]]
        p = (s - 10) // 5 + 1; j = (s - 10) % 5
        chunk = (p + 1) // 2; srdw = 28 if p % 2 == 1 else 32
        pre = []
        if chunk != dma_chunk[0]:
            dma_chunk[0] = chunk; pre = [V("v_add_u32", vDW, "128", vDW)]
        return [pre + [m0(0), DMA(vDW, srdw, f"s{sK+2*j}", tag=it, mod=DBG.get("wm", ""))], [m0(8192), DMA(vDW, srdw, f"s{sK+2*j+1}", tag=it, mod=DBG.get("wm", ""))]]
    def slot_of(it):
        kind, s = it
        return (s + 2) % 4 if kind == "X" else ([4, 5, 6, 7, 8, 4, 5, 6, 7, 4][s] if s < 10 else s % 10)
    def refill(maxstage=99):
        out = []
        while True:
            cands = []
            for q in (qX, qW):
                if q and q[0][1] <= maxstage and slot_of(q[0]) in free and not (q is qW and q[0][1] >= 10 and slot_of(q[0]) < 4 and any(slot_of(x) == slot_of(q[0]) for x in qX)):
                    cands.append((q[0][1], q is qW, q))
            if not cands: break
            cands.sort(key=lambda c: c[:2]); q = cands[0][2]
            it = q.pop(0); sl = slot_of(it); free.remove(sl); items[it] = sl; out += dma_ops(it, sl)
        if not qW and p2["go"]:
            while p2["pieces"] < 20 and p2["pieces"] // 2 in free:
                k = p2["pieces"]; out.append(p2_w_item(k // 5, vL16)[k % 5]); p2["pieces"] += 1
        return out
    p2 = {"pieces": 0, "act": 0, "go": False}
    o = L()
    o.s("s_bitcmp1_b32 s13, 0", "s_cselect_b32 s8, 57, 30", f"s_mov_b32 s{S_AUX+2}, {640*3456}", f"s_mov_b32 s{S_AUX+3}, 0x20000",
        f"s_mul_i32 s9, {sCb}, 3", "s_bfe_u32 s4, s13, 0x20001", "s_add_u32 s9, s9, s4", "s_add_u32 s8, s8, s9", "s_lshl_b32 s9, s9, 7", f"s_cmp_lt_u32 s4, {2 if cfg.get('c2q', 1) else 3}")
    o += col_pre(TB, lane, 3456)
    o.s("s_and_b32 s17, s13, 6")
    common_wait(a, stamps)
    E(st_issue(TB))
    o.s("s_bitcmp1_b32 s13, 0", f"s_cselect_b32 s{S_AUX}, s32, s28", f"s_cselect_b32 s{S_AUX+1}, s33, s29")
    ci = [[Cond(f"s_cmp_lt_u32 s17, {4 if cfg.get('c2q', 1) else 6}", g)] for g in col_issue(TB, S_AUX, 3456)]
    if cfg.get("nocol") == 1: ci = []
    if cfg.get("nocol") == 2:
        ci = [[V("v_mul_u32_u24", TB + 16, "3456", lane)], [Cond(f"s_cmp_lt_u32 s17, {4 if cfg.get('c2q', 1) else 6}", [S("s_mul_i32 s9, s3, %d" % (32 * 3456)), S("s_add_u32 s9, s9, s78"), S("s_mov_b32 exec_hi, 0xff"),
              BLD(TB + 17, 1, TB + 16, S_AUX, "s9"), S("s_mov_b64 exec, -1")])]]
    dq = refill(0)
    paced(E, o, dq, cfg.get("pace0", 8))
    st("i0")
    dq += ci + refill(1)
    o0 = L()
    o0.s("s_mul_i32 s12, s10, 72", "s_add_u32 s12, s12, s13", "s_cmp_ge_u32 s12, 90",
        f"s_cselect_b32 s0, s{P_WO}, s{P_W2}", f"s_cselect_b32 s1, s{P_WO+1}, s{P_W2+1}")
    o0 += rot_table("s19", sK, 64 * 3456, sKx, 2, 10, RB)
    rp_pre = L()
    rp_pre.s("s_mul_i32 s10, s12, 57", "s_lshr_b32 s10, s10, 9", "s_mul_i32 s4, s10, 9", "s_sub_u32 s11, s12, s4",
        "s_sub_u32 s4, s12, 90", "s_lshr_b32 s5, s4, 2", "s_and_b32 s4, s4, 3", "s_cmp_ge_u32 s12, 90",
        "s_cselect_b32 s10, s5, s10", "s_cselect_b32 s11, s4, s11", "s_cselect_b32 s4, 5, 6", "s_cselect_b32 s5, 5, 2", "s_cselect_b32 s6, 54, 0",
        "s_cselect_b32 s7, 2, 18", "s_cselect_b32 s8, 9, 0",
        "s_add_u32 s8, s8, s11", "s_lshl_b32 s8, s8, 2",
        "s_mul_i32 s4, s4, s11", "s_lshr_b32 s9, s3, 2", "s_add_u32 s4, s4, s9",
        "s_mul_i32 s5, s5, s11", "s_add_u32 s5, s5, s6", "s_add_u32 s5, s5, s9",
        "s_lshl_b32 s4, s4, 2", "s_and_b32 s6, s3, 3", "s_add_u32 s4, s4, s6", f"s_mul_i32 s4, s4, {8*1280}", "s_lshl_b32 s9, s10, 7", "s_add_u32 s63, s4, s9",
        "s_add_u32 s8, s8, s9",
        "s_lshl_b32 s4, s10, 2", "s_add_u32 s4, s4, s6", "s_mul_i32 s6, s4, 52", "s_lshr_b32 s6, s6, 8", "s_mul_i32 s6, s6, 365", "s_add_u32 s6, s6, s4",
        "s_mul_i32 s5, s5, 5", "s_add_u32 s6, s6, s5", "s_lshl_b32 s6, s6, 10", f"s_add_u32 s76, s6, {W2F_OFF}",
        f"s_add_u32 s10, s8, {FLG_OFF + 32*128}",
        "s_cmp_lt_u32 s12, 130", f"s_cselect_b32 s76, s76, {0x70000000}", f"s_cselect_b32 s63, s63, {0x70000000}", f"s_cselect_b32 s10, s10, {0x30000000}",
        )
    rp_pre.v("v_lshrrev_b32", T + 4, "3", lane).v("v_mul_u32_u24", T + 4, "1280", T + 4).v("v_and_b32", T + 5, "7", lane).v("v_lshl_add_u32", T + 4, T + 5, "4", T + 4)
    rp_pre.v("v_lshrrev_b32", vP, "4", lane).v("v_lshlrev_b32", vP, "10", vP).v("v_bfe_u32", vTt, lane, "2", "2").v("v_lshl_add_u32", vP, vTt, "7", vP)
    rp_pre.v("v_and_b32", vTt, "3", lane).v("v_lshl_add_u32", vP, vTt, "3", vP)
    rp_pre.s("s_lshr_b32 s4, s3, 2", "s_lshl_b32 s4, s4, 12", "s_and_b32 s5, s3, 3", "s_lshl_b32 s5, s5, 5", "s_add_u32 s4, s4, s5", f"s_add_u32 s4, s4, {8*16384}").v("v_add_u32", vP, "s4", vP)
    o = L()
    o.s("s_and_b32 s4, s3, 3", "s_lshr_b32 s5, s3, 2")
    o.v("v_lshrrev_b32", t0, "5", lane).v("v_lshlrev_b32", t0, "10", t0).v("v_bfe_u32", t1, lane, "2", "2").v("v_lshl_add_u32", t0, t1, "7", t0)
    o.v("v_lshrrev_b32", t1, "1", t1).v("v_xor_b32", t1, "s5", t1).v("v_lshl_add_u32", t0, t1, "6", t0)
    o.v("v_bfe_u32", t1, lane, "4", "1").v("v_lshl_add_u32", t0, t1, "5", t0).v("v_and_b32", t1, "1", lane).v("v_lshl_add_u32", t0, t1, "4", t0)
    o.v("v_bfe_u32", t1, lane, "1", "1").v("v_lshl_add_u32", vWr[0], t1, "3", t0)
    o.v("v_add_u32", vWr[1], "0x10000", vWr[0]).v("v_add_u32", vWr[2], "0x20000", vWr[0])
    o.v("v_and_b32", t0, "31", lane).v("v_lshrrev_b32", t1, "5", lane).v("v_bfe_u32", t2, lane, "1", "3").v("v_xor_b32", t2, t1, t2)
    o.s("s_lshl_b32 s6, s4, 12")
    o.v("v_lshlrev_b32", t3, "7", t0).v("v_add_u32", t3, "s6", t3)
    for s4 in range(4): o.v("v_xor_b32", vXr + s4, str(2 * s4), t2).v("v_lshl_add_u32", vXr + s4, vXr + s4, "4", t3)
    o += rp_pre
    o += p2_setup(vPA, lane, "s4", "s11")
    paced(E, o0 + o, dq, cfg.get("pace", 40))
    st("i1")
    while any(x.kind == "vld" for g in dq for x in g): E(dq.pop(0))
    o = L()
    o += stats_ops(TB, XO)
    dq += refill(cfg.get("pre", 1))
    paced(E, o, dq, cfg.get("pace2", 16))
    E(Block(f"s_cmp_lt_u32 s17, {4 if cfg.get('c2q', 1) else 6}", col_acc_ops(TB, lane, XO)))
    E(L().s(*PERMSEL))
    st("i3")
    D = L()
    D.append(list(L().s("s_and_b32 s4, s3, 3", "s_lshr_b32 s5, s3, 2", f"s_lshl_b32 s6, {sRb}, 2", "s_add_u32 s6, s6, s4", f"s_lshl_b32 {sTok}, s6, 9",
        "s_mul_i32 s6, s6, 74", f"s_lshl_b32 s7, {sCb}, 1", "s_add_u32 s6, s6, s7", "s_add_u32 s6, s6, s5", f"s_lshl_b32 {sSt}, s6, 11")))
    D.v("v_lshrrev_b32", t1, "5", lane).v("v_and_b32", t2, "15", lane).v("v_bfe_u32", t3, lane, "4", "1").v("v_lshl_add_u32", vTokA, t2, "1", t3).v("v_lshlrev_b32", vTokA, "4", vTokA)
    D.v("v_lshlrev_b32", vSt, "10", t3).v("v_lshl_add_u32", vSt, t1, "8", vSt).v("v_lshl_add_u32", vSt, t2, "4", vSt)
    D.v("v_and_b32", vCol, "19", lane).v("v_bfe_u32", t2, lane, "2", "1").v("v_lshl_add_u32", vCol, t2, "3", vCol)
    D.v("v_bfe_u32", t2, lane, "3", "1").v("v_lshl_add_u32", vCol, t2, "2", vCol)
    D.append(list(L().s(f"s_mul_i32 s6, {sCb}, 384", "s_lshr_b32 s5, s3, 2", "s_lshl_b32 s7, s5, 5", "s_add_u32 s6, s6, s7").v("v_add_u32", vCol, "s6", vCol)))
    D.v("v_lshlrev_b32", vCol, "3", vCol).v("v_lshl_add_u32", vCol, t1, "9", vCol)
    D.append(list(L().s(f"s_lshl_b32 {sOwn}, {sRb}, 7", f"s_lshl_b32 s6, {sCb}, 2", f"s_add_u32 {sOwn}, {sOwn}, s6", f"s_add_u32 {sOwn}, {sOwn}, {FLG_OFF}")))
    D.s(f"s_mov_b32 s14, {COL_OFF + 30*1024}", f"s_mov_b32 s15, {COL_OFF + 57*1024}")
    D.v("v_lshlrev_b32", vL16, "4", lane).v("v_or_b32", vF, sL, lane).v("v_min_u32", vF, "1", vF).v("v_lshlrev_b32", vF, "30", vF)
    def colload(dst, mat, chunk):
        return BLD(dst, 2, vCol, 20, "s14" if mat == 0 else "s15", off=chunk * 1024, tag="col", mod=SC1)
    def colchk(dst, mat, chunk):
        if chunk == 2 and cfg.get("c2q", 1): check(a, colload(dst, mat, chunk), tag_cmp([dst + 1], vTt))
        E(col_fix(dst))
    M = []
    for t in range(40):
        M.append((A0, t, t // 4, 0, t % 4)); M.append((A1, t, t // 4, 1, t % 4))
    for p, acc in ((1, A2), (2, A0), (3, A1), (4, A0)):
        for t in range(40):
            M.append((acc, t, 10 + 5 * (p - 1) + t // 8, (t // 4) % 2, t % 4))
    PF = 4; NB = 5
    def reads(n):
        acc, t, s, half, sub = M[n]
        pos = items[("W", s)] * 16384 + half * 8192 + sub * 2048
        b = WB + 4 * (n % NB)
        return [DSR(b, 2, vWr[pos >> 16], off=pos & 0xffff, tr=True), DSR(b + 2, 2, vWr[pos >> 16], off=(pos & 0xffff) + 512, tr=True)]
    fill = []
    def silu(G):
        ops = []
        if cfg.get("nosilu"): return ops
        for i in range(0, 16, 4):
            ops += [V("v_mul_f32", T + e, G + i + e, TOK + 2) for e in range(4)]
            ops += [V("v_exp_f32", T + e, T + e) for e in range(4)]
            ops += [V("v_fma_f32", T + e, T + e, TOK + 3, TOK + 3) for e in range(4)]
            ops += [V("v_rcp_f32", T + e, T + e) for e in range(4)]
            ops += [V("v_mul_f32", G + i + e, G + i + e, T + e) for e in range(4)]
        return ops
    def fin(G, U, chunk):
        ops = []
        for ip in range(2):
            ops += [V("v_mul_f32", G + 8 * ip + e, G + 8 * ip + e, U + 8 * ip + e) for e in range(8)]
            ops += [V("v_cvt_pk_bf16_f32", T + 4 + e, G + 8 * ip + 2 * e, G + 8 * ip + 2 * e + 1) for e in range(4)]
            mk = lambda: BST(T + 4, 4, vSt, 20, sSt, off=512 * ip, tag="st", mod=SC1)
            if cfg.get("stag") and chunk < 2: ops += [[Cond("s_cmp_lt_u32 s3, 4", [mk()])], [], [Cond("s_cmp_ge_u32 s3, 4", [mk()])]]
            else: ops.append(mk())
        if chunk < 2: ops.append(S(f"s_add_u32 {sSt}, {sSt}, {18*2048}"))
        return ops
    at_sync = {}
    def sync(s):
        its = [("W", s)] + ([("X", s)] if s < 10 else [])
        ex = at_sync.get(s, {})
        tags = its + ex.get("tags", [])
        while any(getattr(x, "tag", None) in tags for g in dq for x in g): E(dq.pop(0))
        for it in its: assert it in items
        for o_ in fill:
            for x_ in (o_ if isinstance(o_, list) else [o_]): assert getattr(x_, "tag", None) not in tags, (s, x_.text)
        tags.sort(key=lambda it: max([i for i, e in enumerate(a.vm) if e[1] == it] + [-1]))
        lg = None
        if 1 <= s <= 10:
            xr = set(rng(XF + 16 * (s - 1), 16))
            idx = [i for i, e in enumerate(a.lg) if e & xr]
            if idx: lg = len(a.lg) - 1 - max(idx)
        if s == 0: lg = 0
        if "lgw" in ex:
            idx = [i for i, e in enumerate(a.lg) if not e]
            if idx: lg = min(99 if lg is None else lg, len(a.lg) - 1 - max(idx))
        a.wait_tag(tags[-1], lg=lg)
        if not (cfg.get("nobar") and s > 11 and s % 2): a.barrier()
        st(f"s{s}")
        if 1 <= s <= 10: free.append(items[("X", s - 1)])
        if s >= 2: free.append(items[("W", s - 2)])
        free.extend(ex.get("free", []))
        if "post" in ex: ex["post"]()
        dq.extend(refill())
        if s < 10:
            for s4 in range(4):
                E(DSR(XF + 4 * (4 * s + s4), 4, vXr + s4, off=items[("X", s)] * 16384))
    def chk_empty(): assert not fill, len(fill)
    fill += tok_fin_ops(TB, XO)
    fill += [[Block(f"s_cmp_lt_u32 {sColSt}, {HUGE}", col_fin_ops(TB + 16, TB + 6, lane, XO))]] + D
    RS = [8, 9]
    def rp_issue():
        for x in RS: free.remove(x)
        dq.append(list(L().s(f"s_mov_b32 s{S_AUX}, s0", f"s_mov_b32 s{S_AUX+1}, s1", f"s_mov_b32 s{S_AUX+2}, {1728*1280}", f"s_mov_b32 s7, {18*5120}", "s_cmp_ge_u32 s12, 90",
              f"s_cselect_b32 s{S_AUX+2}, {640*1280}, s{S_AUX+2}", f"s_cselect_b32 s7, {2*5120}, s7", "s_add_u32 s0, s76, s7", "s_add_u32 s1, s0, s7")))
        dq.append(list(L().s("s_lshr_b32 s4, s3, 2", "s_mul_i32 s4, s4, s12", "s_cmp_ge_u32 s4, 90", f"s_cselect_b32 s1, {0x70000000}, s1")))
        for z in range(3):
            dq.append([S(f"s_add_u32 m0, {sL}, {RS[0]*16384 + z*8192}"), DMA(T + 4, S_AUX, "s63", tag="rp", mod=DBG.get("rm", " nt")), S(f"s_add_u32 s63, s63, {64*1280}")])
    def rp_rd(z): return [DSR(T + 4, 2, vP, off=z * 8192, tr=True), DSR(T + 6, 2, vP, off=z * 8192 + 512, tr=True)]
    def rp_st(z): return BST(T + 4, 4, vL16, 20, ["s76", "s0", "s1"][z], tag="rps", mod=SC1)
    at_sync[8] = dict(post=rp_issue)
    at_sync[11] = dict(tags=["rp"])
    at_sync[13] = dict(free=RS)
    at_sync[cfg.get("fw", 14)] = dict(tags=["rps"], post=lambda: E(flag_st(vTt, vF, LV_W2, "s10")))
    at_sync[17] = dict(tags=["st"], post=lambda: E(flag_st(vTt, vF, LV_A)))
    at_sync[cfg.get("fb", 24)] = dict(tags=["st"], post=lambda: E(flag_st(vTt, vF, LV_B)))
    sync(0)
    for n in range(PF): E(reads(n))
    def w2chk():
        flg_check(a, vP, vPA, LV_W2); p2["go"] = True
    def achk():
        flg_check(a, vP, vPA, LV_A)
    P1 = cfg.get("p1", 46); WC = cfg.get("wc", 168); AC = cfg.get("ac", 198)
    tokld = BLD(TOK, 4, vTokA, 36, sTok, tag="tok", mod=SC1)
    first = [tokld, colload(AP[0], 0, 0), colload(AP[1], 1, 0)] + \
            [BLD(T + i, 1, vCol, 20, "s14" if i % 2 == 0 else "s15", off=(1 + i // 2) * 1024 + 4, mod=SC1) for i in range(2 if cfg.get("c2q", 1) else 4)]
    after = {}
    def at(n, f): after.setdefault(n, []).append(f)
    if cfg.get("tag1", 1):
        import copy
        at(P1, lambda: E([V("v_mov_b32", T + i, sTag) for i in range(4)] + [S("s_and_b32 s4, s3, 3"), Cond("s_cmp_eq_u32 s4, 0", [copy.copy(x) for x in first[3:]])]))
        for i, x in enumerate(first[:3]): at(P1 + 8 + 4 * i, lambda x=x: E(x))
    else:
        for i, x in enumerate(first): at(P1 + 3 * i, lambda x=x: E(x))
    at(79, lambda: (check(a, first, tag_cmp([TOK + 1, AP[0] + 1, AP[1] + 1, T, T + 1, T + 2, T + 3], vTt)), E(col_fix(AP[0])), E(col_fix(AP[1])),
                    E(V("v_mov_b32", TOK + 1, TOK)), E(V("v_mul_f32", TOK + 2, NLOG2E, TOK + 2))))
    at(82, lambda: (E(MFMA32C(A0, AP[0], TOK)), E(MFMA32C(A1, AP[1], TOK)),
                    fill.extend([[], []] + silu(A0) + fin(A0, A1, 0))))
    for z in range(3):
        if cfg.get("stag"):
            at(85 + 5 * z, lambda z=z: E(rp_rd(z))); at(87 + 5 * z, lambda z=z: E(Cond("s_cmp_lt_u32 s3, 4", [rp_st(z)]))); at(89 + 5 * z, lambda z=z: E(Cond("s_cmp_ge_u32 s3, 4", [rp_st(z)])))
        else:
            at(86 + 4 * z, lambda z=z: E(rp_rd(z))); at(89 + 4 * z, lambda z=z: E(rp_st(z)))
    at(101, lambda: E(colload(AP[0], 0, 1))); at(105, lambda: E(colload(AP[1], 1, 1)))
    at(119, lambda: colchk(AP[0], 0, 1))
    at(122, lambda: (E(MFMA32C(A2, AP[0], TOK)), fill.extend([[], []] + silu(A2))))
    at(159, lambda: colchk(AP[1], 1, 1))
    at(173, lambda: E(colload(AP[0], 0, 2)))
    at(162, lambda: (E(MFMA32C(A0, AP[1], TOK)), fill.extend([colload(AP[1], 1, 2), [], []] + fin(A2, A0, 1))))
    at(WC - cfg.get("pl", 14), lambda: E(flg_poll(vP, vPA, LV_W2))); at(WC, w2chk)
    if PFX:
        for p in range(1, 4): at(WC + 1 + cfg.get("pfs", 6) * (p - 1), lambda p=p: E(pf_w2(p, vTt, T + p, lane)))
    at(199, lambda: colchk(AP[0], 0, 2))
    at(202, lambda: (E(MFMA32C(A1, AP[0], TOK)), fill.extend([[], []] + silu(A1))))
    at(AC - cfg.get("pl", 14), lambda: E(flg_poll(vP, vPA, LV_A))); at(AC, achk)
    at(220, lambda: colchk(AP[1], 1, 2))
    PARK = cfg.get("park", 177)
    if PARK:
        for i in range(4):
            at(PARK + 6 * i, lambda i=i: (chk_empty(), E([S(f"s_add_u32 s9, {sP2W}, {3*8*5120 + (i+1)*1024}"), BLD(A2 + 4 * i, 4, vL16, 20, "s9", mod=SC1)])))
    at(236, lambda: E(flg_poll(3, vPA, LV_B)))
    for n in range(240):
        acc, t, s, half, sub = M[n]
        if n in (P1, 80, 120, 200): chk_empty()
        E(MFMA32(acc, WB + 4 * (n % NB), XF + 4 * t, c="0" if t == 0 else None))
        m = n + PF
        if m < 240:
            if m % 8 == 0: sync(m // 8)
            E(reads(m))
        for f in after.get(n, []): f()
        b = cfg.get("b1", 4.5) if (80 <= n < 120) else cfg.get("b2", 3.5) if 120 <= n < 200 else cfg.get("b", 3.5)
        ph = m % 8
        okd = ph in cfg.get("ph0", [1, 2, 3, 4, 5, 6]) if n < 80 else ph in ((cfg.get("ph2", [2, 4, 6]) if n >= cfg.get("cu", 80) else cfg.get("ph3", [3, 5])) if len(dq) > 2 else cfg.get("ph1", [3, 5]))
        if dq and (okd or not any(x.kind == "dma" for x in dq[0])):
            g_ = dq.pop(0)
            if cfg.get("nodma") and n >= 80: g_ = [x for x in g_ if x.kind != "dma"]
            E(g_); b -= 1
        elif n >= cfg.get("ago", 202) and ph in (1, 7) and p2["act"] < 9:
            assert p2["act"] <= t
            E(p2_act(p2["act"], vL16)); p2["act"] += 1; b -= 1
        while fill and b > 0:
            o_ = fill.pop(0); E(o_); b -= cost(o_)
    assert not fill and not dq
    st("p1e")
    E(MFMA32C(A0, AP[1], TOK))
    E(V("v_mov_b32", 2, vPA)); E(V("v_mov_b32", 4, vF))
    E(fin(A1, A0, 2))
    phase2(a, st, cfg, vL16, lane, 2, 3, p2["pieces"], p2["act"], cfg.get("rate", 2.1), flag_st(5, 4, LV_C), epoch=True,
           parked=[(16 + i, A2 + 4 * i) for i in range(4)] if PARK else [])
    st.finish(1, name, cfg.get("stw", 0))
    a.raw("s_endpgm")

def gen_qkv(a, name, stamps, cfg):
    E = a.emit; st = Stamp(a, stamps, cfg.get("sel"))
    PFX = cfg.get("pf", False)
    sK, sKx = 40, 50
    vL16, lane = 0, 1
    ACC = 176; FR = [128, 152]; TB = 80
    vPA, vP, vF = 2, 3, 4
    vDW, vDX = 5, 6
    vWr, vXr = 9, 12
    TOK = 24; AP = 44; vQW = 46; T = 50
    vTt, vColA, vTokA = 57, 58, 87
    BC, BP, MC, MP, ONE, MG0 = 60, 64, 68, 70, 72, 76
    vQ, vQ2, vV, vV2, vOW, vOW2, vOR = 77, 78, 79, 80, 81, 82, 83
    n_, g_ = 85, 86
    vOG = 92
    t0, t1, t2, t3, t4 = T, T + 1, T + 2, T + 3, T + 4
    sHg, sB, sT0 = "s13", "s14", "s15"
    SLOT = 53248; WOFF = 20480; DUMMY = 3 * SLOT; XOFF = DUMMY + 1024
    sM3 = ["s68", "s69", "s70"]
    RB = cfg.get("rblkq", 5)
    E(st_pre(TB, lane, TOK))
    o = L()
    o.s("s_sub_u32 s12, s12, 18", f"s_mov_b32 s30, {640*3840}",
        "s_cmp_ge_u32 s12, 7", f"s_cselect_b32 {sHg}, 1, 0", f"s_cselect_b32 {sB}, 7, 0", f"s_sub_u32 {sB}, s12, {sB}",
        f"s_mul_i32 s4, {sHg}, {cfg.get('rmulq', 2)}", f"s_add_u32 s4, s4, {sB}")
    o += mod_ops("s4", "s19", RB)
    o.s("s_lshl_b32 s4, s11, 1", f"s_add_u32 {sHg}, {sHg}, s4", "s_mul_i32 s4, s10, 7", f"s_add_u32 {sB}, {sB}, s4")
    o += rot_table("s19", sK, 64 * 3840, sKx, 0, 1, RB)
    o.s("s_and_b32 s4, s3, 3", "s_lshr_b32 s5, s3, 2", "s_lshl_b32 s6, s4, 3")
    o.v("v_lshrrev_b32", t0, "3", lane).v("v_and_b32", t1, "7", lane).v("v_add_u32", t2, "s6", t0)
    o.v("v_bfe_u32", t3, t2, "1", "3").v("v_xor_b32", t3, t1, t3)
    o.v("v_and_b32", vDX, "15", t2).v("v_lshrrev_b32", t2, "4", t2).v("v_lshl_add_u32", vDX, vDX, "1", t2)
    o.s(f"s_mul_i32 {sT0}, {sB}, 146", "s_lshl_b32 s9, s5, 5", f"s_add_u32 s6, {sT0}, s9")
    o.v("v_add_u32", vDX, "s6", vDX).v("v_mul_u32_u24", vDX, "1280", vDX).v("v_lshl_add_u32", vDX, t3, "4", vDX).v("v_add_u32", vDX + 1, str(64 * 1280), vDX)
    o.v("v_add_u32", vDX + 2, str(128 * 1280), vDX)
    E(o)
    def dma_stage(s):
        z = s % 3; base = z * SLOT
        ops = [[S(f"s_add_u32 m0, {sL}, {base}"), DMA(vDX, 24, f"s{sKx+s}", tag=s)],
               [S(f"s_add_u32 m0, {sL}, {base+8192}"), DMA(vDX + 1, 24, f"s{sKx+s}", tag=s)],
               [Cond("s_cmp_lt_u32 s3, 4", [S(f"s_add_u32 m0, {sL}, {base+16384}"), DMA(vDX + 2, 24, f"s{sKx+s}", tag=s)])]]
        for e in range(4):
            g = [S(f"s_add_u32 m0, {sL}, {base+WOFF+e*8192}")]
            if e == 0: g.append(DMA(vDW, 28, f"s{sK+s}", tag=s, mod=DBG.get("wm", "")))
            else: g += [S(f"s_add_u32 s63, s{sK+s}, {e*16*3840}"), DMA(vDW, 28, "s63", tag=s, mod=DBG.get("wm", ""))]
            ops.append(g)
        return ops
    o = L()
    o.s("s_lshl_b32 s6, s3, 1")
    o.v("v_lshrrev_b32", t0, "5", lane).v("v_add_u32", t0, "s6", t0)
    o.v("v_and_b32", t1, "3", t0).v("v_lshlrev_b32", t1, "2", t1).v("v_and_b32", t2, "31", lane).v("v_xor_b32", t1, t1, t2)
    o.v("v_mul_u32_u24", t2, "26", t1).v("v_lshrrev_b32", t2, "8", t2)
    o.v("v_mul_u32_u24", t3, str(1280 - 160), t2).v("v_lshl_add_u32", t3, t1, "4", t3)
    o.v("v_add_u32", t1, "2", t1).v("v_lshrrev_b32", t1, "5", t1).v("v_lshl_add_u32", t3, t1, "30", t3)
    o.v("v_mul_u32_u24", vDW, "3840", t0).v("v_add_u32", vDW, vDW, t3)
    o.s(f"s_mul_i32 s6, {sHg}, 160").v("v_add_u32", vDW, "s6", vDW)
    E(o)
    common_wait(a, stamps)
    E(S(f"s_mov_b32 s{S_AUX}, s28")); E(S(f"s_mov_b32 s{S_AUX+1}, s29"))
    E(S(f"s_mov_b32 s28, s{P_QKV}")); E(S(f"s_mov_b32 s29, s{P_QKV+1}"))
    E(st_issue(TB, TOK))
    dq = dma_stage(0)
    paced(E, rot_table("s19", sK, 64 * 3840, sKx, 1, 10, RB), dq, cfg.get("paceq0", 12))
    st("i0")
    o = L()
    o.v("v_lshrrev_b32", t0, "5", lane).v("v_lshlrev_b32", t0, "12", t0).v("v_bfe_u32", t1, lane, "2", "2").v("v_lshl_add_u32", t0, t1, "9", t0)
    o.v("v_xor_b32", t1, "s3", t1).v("v_lshl_add_u32", t0, t1, "6", t0)
    o.v("v_bfe_u32", t1, lane, "4", "1").v("v_lshl_add_u32", t0, t1, "5", t0).v("v_and_b32", t1, "3", lane).v("v_lshl_add_u32", t0, t1, "3", t0)
    for z in range(3): o.v("v_add_u32", vWr + z, str(z * SLOT + WOFF), t0)
    o.v("v_and_b32", t0, "31", lane).v("v_lshrrev_b32", t1, "5", lane).v("v_bfe_u32", t2, lane, "1", "3").v("v_xor_b32", t2, t1, t2).v("v_lshlrev_b32", t3, "7", t0)
    for s4 in range(4):
        o.v("v_xor_b32", t4, str(2 * s4), t2).v("v_lshl_add_u32", vXr + s4, t4, "4", t3)
        for z in (1, 2): o.v("v_add_u32", vXr + 4 * z + s4, str(z * SLOT), vXr + s4)
    o.s("s_mul_i32 s4, s11, 15", "s_add_u32 s4, s4, 1", "s_lshr_b32 s4, s4, 1", "s_add_u32 s4, s4, s12",
        "s_mul_i32 s6, s4, 86", "s_lshr_b32 s6, s6, 8", "s_mul_i32 s7, s6, 3", "s_sub_u32 s4, s4, s7", "s_mul_i32 s8, s4, 10", "s_add_u32 s8, s8, s6",
        "s_lshl_b32 s9, s8, 7")
    if cfg.get("c2q", 1):
        o.s("s_mul_i32 s4, s11, 9", "s_add_u32 s4, s4, 1", "s_lshr_b32 s4, s4, 1", "s_add_u32 s4, s4, s12", "s_sub_u32 s4, s4, 9",
            "s_lshr_b32 s5, s4, 1", "s_mul_i32 s5, s5, 3", "s_add_u32 s5, s5, 2",
            "s_bitcmp1_b32 s4, 0", "s_cselect_b32 s6, 57, 30", f"s_cselect_b32 s{S_AUX}, s32, s{S_AUX}", f"s_cselect_b32 s{S_AUX+1}, s33, s{S_AUX+1}",
            "s_add_u32 s6, s6, s5", "s_lshl_b32 s5, s5, 7", "s_movk_i32 s76, 3456",
            "s_cmp_lt_u32 s12, 9", "s_cselect_b32 s8, s8, s6", "s_cselect_b32 s9, s9, s5", "s_cselect_b32 s76, 3840, s76", "s_cselect_b32 s7, 8, 14",
            f"s_cselect_b32 s{S_AUX}, s28, s{S_AUX}", f"s_cselect_b32 s{S_AUX+1}, s29, s{S_AUX+1}",
            f"s_mul_i32 s{S_AUX+2}, s76, 640", f"s_mov_b32 s{S_AUX+3}, 0x20000", "s_lshl_b32 s0, s76, 6",
            "s_and_b32 s4, s11, 1", "s_add_u32 s4, s4, s12", "s_cmp_lt_u32 s4, s7")
        o += col_pre(TB, lane, "s76")
    else:
        o.s("s_and_b32 s4, s11, 1", "s_add_u32 s4, s4, s12", "s_cmp_lt_u32 s4, 8")
        o += col_pre(TB, lane, 3840)
    o_pre = o
    QB = 81920
    D = L()
    D += p2_setup(vPA, lane)
    D.s(f"s_lshl_b32 {sOwn}, {sB}, 5", f"s_add_u32 {sOwn}, {sOwn}, {sHg}", f"s_lshl_b32 {sOwn}, {sOwn}, 2", f"s_add_u32 {sOwn}, {sOwn}, {FLG_OFF + 16*128}",
        f"s_mov_b32 s12, {COL_OFF}")
    D.v("v_lshlrev_b32", vL16, "4", lane).v("v_or_b32", vF, sL, lane).v("v_min_u32", vF, "1", vF).v("v_lshlrev_b32", vF, "30", vF)
    D.v("v_and_b32", t0, "31", lane).v("v_lshrrev_b32", t1, "5", lane)
    D.v("v_and_b32", t2, "15", lane).v("v_bfe_u32", t3, lane, "4", "1").v("v_lshl_add_u32", t4, t2, "1", t3).v("v_add_u32", t4, sT0, t4)
    for rg in range(5):
        D.v("v_add_u32", vTokA + rg, str(32 * rg), t4).v("v_min_u32", vTokA + rg, "2047", vTokA + rg).v("v_lshlrev_b32", vTokA + rg, "4", vTokA + rg)
    D.s("s_lshl_b32 s6, s3, 5").v("v_add_u32", t0, "s6", t0).v("v_min_u32", t0, "239", t0)
    D.v("v_mul_u32_u24", t4, "205", t0).v("v_lshrrev_b32", t4, "14", t4).v("v_mul_u32_u24", t4, "560", t4).v("v_add_u32", t4, t4, t0)
    D.s(f"s_mul_i32 s6, {sHg}, 80").v("v_add_u32", t4, "s6", t4)
    D.v("v_lshrrev_b32", vColA, "6", t4).v("v_lshlrev_b32", vColA, "10", vColA).v("v_and_b32", t4, "63", t4)
    D.v("v_lshl_add_u32", vColA, t4, "3", vColA).v("v_lshl_add_u32", vColA, t1, "9", vColA)
    D.v("v_mul_u32_u24", T + 5, "3200", t3).v("v_mul_u32_u24", T + 6, "40", t2).v("v_add_u32", T + 5, T + 5, T + 6).v("v_add_u32", T + 5, str(QB), T + 5)
    D.s("s_lshl_b32 s6, s3, 3")
    for i in range(4):
        D.v("v_add_u32", t0, "s6", t1)
        if i: D.v("v_add_u32", t0, str(2 * i), t0)
        D.v("v_mul_u32_u24", t4, "52", t0).v("v_lshrrev_b32", t4, "8", t4)
        D.v("v_mul_u32_u24", T + 6, str(6400 - 40), t4).v("v_lshl_add_u32", T + 6, t0, "3", T + 6).v("v_add_u32", vQW + i, T + 6, T + 5)
    D.v("v_and_b32", n_, "15", lane).v("v_lshrrev_b32", g_, "4", lane).v("v_lshlrev_b32", t0, "2", g_).v("v_sub_u32", t0, n_, t0)
    D.v("v_mov_b32", t4, "0xf149f2ca").v("v_mov_b32", T + 5, "0xffff").v("v_mov_b32", T + 6, "0xffff0000")
    for r in range(4):
        for (BB, MM, add) in ((BC, MC, 0), (BP, MP, 16)):
            D.v("v_add_u32", t1, str(add - r), t0)
            D.append(VCMP("v_cmp_gt_u32", "s[4:5]", "8", t1))
            D.v("v_cndmask_b32", BB + r, t4, "0", "s[4:5]")
            if r % 2 == 0: D.v("v_cndmask_b32", MM + r // 2, "0", T + 5, "s[4:5]")
            else: D.v("v_cndmask_b32", t3, "0", T + 6, "s[4:5]").v("v_or_b32", MM + r // 2, MM + r // 2, t3)
    for r in range(4): D.v("v_mov_b32", ONE + r, "0x3f803f80")
    D.append(VCMP("v_cmp_eq_u32", "s[4:5]", "0", g_))
    D.v("v_cndmask_b32", MG0, "0", "-1", "s[4:5]")
    D.s("s_mul_i32 s6, s3, 3200", f"s_add_u32 s6, s6, {QB}")
    D.v("v_mul_u32_u24", t0, "40", n_).v("v_add_u32", t0, "s6", t0).v("v_lshl_add_u32", vQ, g_, "3", t0).v("v_add_u32", vQ2, "32", t0)
    D.v("v_lshrrev_b32", t0, "2", lane).v("v_mul_u32_u24", t0, "40", t0).v("v_add_u32", t0, "s6", t0).v("v_add_u32", t0, str(51200), t0)
    D.v("v_and_b32", t1, "3", lane).v("v_lshl_add_u32", vV, t1, "3", t0).v("v_add_u32", vV2, "32", t0)
    OB = QB
    D.s(f"s_mul_i32 s7, {sB}, 73", "s_and_b32 s6, s7, 7", "s_lshl_b32 s6, s6, 4", "s_bitcmp1_b32 s3, 0")
    D[-1:] = [[D[-1], S(f"s_cselect_b32 s8, {OB + 1408}, {0}"), S(f"s_max_u32 s8, s8, {OB}"), S("s_add_u32 s6, s6, s8")]]
    D.v("v_lshl_add_u32", t1, n_, "4", "s6")
    D.s("s_lshr_b32 s6, s3, 1", "s_mul_i32 s6, s6, 5")
    for (dst, second) in ((vOW, False), (vOW2, True)):
        if second: D.s("s_add_u32 s6, s6, 4").v("v_mov_b32", t0, "s6")
        else: D.v("v_add_u32", t0, "s6", g_)
        D.v("v_lshrrev_b32", t2, "1", t0).v("v_mul_u32_u24", t2, "2816", t2).v("v_add_u32", dst, t2, t1)
        D.v("v_and_b32", t2, "1", t0).v("v_lshl_add_u32", dst, t2, "3", dst)
    D.v("v_mov_b32", T + 5, str(DUMMY)).v("v_cndmask_b32", vOW2, T + 5, vOW2, "s[4:5]")
    D.v("v_lshrrev_b32", t0, "4", sL) if False else None
    D.v("v_lshl_add_u32", vOR, lane, "4", sL).v("v_add_u32", vOR, str(OB), vOR)
    D.append([S(f"s_mul_i32 s7, {sB}, 73"), S("s_add_u32 s8, s7, 7"), S(f"s_cmp_eq_u32 {sB}, 0"), S("s_cselect_b32 s8, 0, s8"),
              S("s_add_u32 s35, s7, 80"), S("s_sub_u32 s34, s35, s8"), S("s_mov_b32 s33, s8"), S("s_and_b32 s32, s7, -8"),
              S(f"s_mul_i32 s1, {sHg}, 10")])
    D.v("v_mov_b32", T + 5, HUGE)
    for i in range(4):
        D.append([S("s_lshl_b32 s6, s3, 6"), S(f"s_add_u32 s6, s6, {512*i}"), V("v_add_u32", t0, "s6", lane)])
        D.v("v_mul_u32_u24", t1, "745", t0).v("v_lshrrev_b32", t1, "16", t1)
        D.v("v_mul_u32_u24", t2, "88", t1).v("v_sub_u32", t0, t0, t2).v("v_add_u32", t0, "s32", t0)
        D.v("v_lshrrev_b32", t2, "4", t0).v("v_mul_u32_u24", vOG + i, str(74 * 2048), t2)
        D.v("v_and_b32", t2, "15", t0).v("v_lshl_add_u32", vOG + i, t2, "4", vOG + i)
        D.v("v_and_b32", t2, "1", t1).v("v_lshl_add_u32", vOG + i, t2, "10", vOG + i)
        D.v("v_lshrrev_b32", t2, "1", t1).v("v_add_u32", t2, "s1", t2)
        D.v("v_lshrrev_b32", t3, "2", t2).v("v_lshl_add_u32", vOG + i, t3, "11", vOG + i)
        D.v("v_and_b32", t2, "3", t2).v("v_lshl_add_u32", vOG + i, t2, "8", vOG + i)
        D.v("v_subrev_u32", t0, "s33", t0)
        D.append(VCMP("v_cmp_gt_u32", "s[4:5]", "s34", t0))
        D.v("v_cndmask_b32", vOG + i, T + 5, vOG + i, "s[4:5]")
        if i == 3:
            D.append(VCMP("v_cmp_gt_u32", "s[4:5]", "20", t1))
            D.v("v_cndmask_b32", vOG + i, T + 5, vOG + i, "s[4:5]")
    dq += dma_stage(1)
    paced(E, o_pre + D + [S(x) for x in PERMSEL], dq, cfg.get("paceq", 36))
    st("i1")
    paced(E, stats_ops(TOK, XOFF), dq, 16)
    dq += dma_stage(2)
    st("i3")
    def reads(t):
        s, sub = t // 4, t % 4; z = s % 3; f = FR[t % 2]
        ops = [DSR(f, 2, vWr + z, off=sub * 8192, tr=True), DSR(f + 2, 2, vWr + z, off=sub * 8192 + 2048, tr=True)]
        for rg in range(5): ops.append(DSR(f + 4 + 4 * rg, 4, vXr + 4 * z + sub, off=rg * 4096))
        return ops
    tabld = [BLD(TOK + 4 * rg, 4, vTokA + rg, 36, "0", tag="tok", mod=SC1) for rg in range(5)] + [BLD(AP, 2, vColA, 20, "s12", tag="col", mod=SC1)]
    while any(x.tag == 0 for g in dq for x in g): E(dq.pop(0))
    if cfg.get("prio"): E(Cond("s_cmp_ge_u32 s3, 4", [S("s_setprio 1")]))
    a.wait_tag(0, lg=0); a.barrier()
    st("s0")
    E(reads(0))
    fill = tok_fin_ops(TB, XOFF, TOK)
    for t in range(40):
        f = FR[t % 2]
        nxt = []
        if t + 1 < 40:
            if (t + 1) % 4 == 0:
                s = (t + 1) // 4
                while any(x.tag == s for g in dq for x in g): E(dq.pop(0))
                a.wait_tag(s, lg=0); a.barrier()
                st(f"s{s}")
                if s + 2 < 10: dq += dma_stage(s + 2)
                CQ = cfg.get("cq", 1)
                if s in (CQ, CQ + 1):
                    cl_ = [[Cond(f"s_cmp_lt_u32 s78, {HUGE}", g)] for g in (col_issue(TB, S_AUX, "s0") if cfg.get("c2q", 1) else col_issue(TB, 28, 3840))]
                    dq += cl_[:3] if s == CQ else cl_[3:]
                if s == CQ + 2: fill = [[]] * cfg.get("cqd", 6) + col_acc_ops(TB, lane, XOFF, dot=False)
                if s == CQ + cfg.get("cqf", 4):
                    assert not fill; fill = [[Block(f"s_cmp_lt_u32 {sColSt}, {HUGE}", col_fin_ops(TB + 16, vTt, lane, XOFF))]]
                if s == 9:
                    assert not fill
                    dq += [[x] for x in tabld]
                    if cfg.get("qpark", 10): dq.append(flg_poll(vP, vPA, LV_W2))
            nxt = reads(t + 1)
        if t == 39:
            check(a, tabld, tag_cmp([TOK + 4 * rg + 1 for rg in range(5)] + [AP + 1], vTt))
            fill = col_fix(AP) + [V("v_mov_b32", TOK + 4 * rg + 1, TOK + 4 * rg) for rg in range(5)]
        for rg in range(5):
            E(MFMA32(ACC + 16 * rg, f, f + 4 + 4 * rg, c="0" if t == 0 else None))
            for k in range(2):
                if nxt: E(nxt.pop(0))
            b = cfg.get("bq", 3.5)
            if (rg >= 3 or (rg >= 1 and len(dq) > 4)) and dq: E(dq.pop(0)); b -= 1
            while fill and b > 0:
                o_ = fill.pop(0); E(o_); b -= cost(o_)
    assert not fill and not dq
    st("ge")
    for rg in range(5): E(MFMA32C(ACC + 16 * rg, AP, TOK + 4 * rg))
    QP = cfg.get("qpark", 10)
    early = []
    if QP:
        flg_check(a, vP, vPA, LV_W2)
        early = p2_w_item(1, vL16)[2:] + [[S(f"s_add_u32 s9, {sP2W}, {(k//5)*8*5120 + (k%5)*1024}"), BLD(132 + 4 * (k - 10), 4, vL16, 20, "s9", mod=SC1)] for k in range(10, 10 + QP)]
    for rg in range(5):
        A = ACC + 16 * rg
        if rg == 2 and not QP: E(flg_poll(vP, vPA, LV_W2))
        for i in range(4):
            if early and i != 3: E(early.pop(0))
            for e in range(4): E(V("v_mul_f32", A + 4 * i + e, A + 4 * i + e, TOK + 4 * rg + 2))
            E(V("v_cvt_pk_bf16_f32", A + 4 * i, A + 4 * i, A + 4 * i + 1)); E(V("v_cvt_pk_bf16_f32", A + 4 * i + 1, A + 4 * i + 2, A + 4 * i + 3))
            E(DSW(vQW + i, A + 4 * i, 2, off=rg * 640))
    E(flg_poll(vTt, vPA, LV_A))
    a.wait(lg=0); a.barrier()
    st("at")
    Qr = [176 + 4 * j for j in range(5)]; Kr = [196 + 4 * j for j in range(5)]
    V0, V1 = 24, 36
    for j in range(5):
        E(DSR(Qr[j], 2, vQ, off=j * 640)); E(DSR(Qr[j] + 2, 2, vQ2, off=j * 640))
        E(DSR(Kr[j], 2, vQ, off=25600 + j * 640)); E(DSR(Kr[j] + 2, 2, vQ2, off=25600 + j * 640))
    for j in range(5):
        E(DSR(V0 + 2 * (j + 1), 2, vV, off=j * 640, tr=True)); E(DSR(V1 + 2 * (j + 1), 2, vV2, off=j * 640, tr=True))
    for r in (V0, V0 + 1, V1, V1 + 1): E(V("v_mov_b32", r, "0"))
    SC = [216 + 4 * j for j in range(5)]; SP = [236 + 4 * j for j in range(5)]
    for j in range(5):
        E(V("v_and_b32", Qr[j] + 2, Qr[j] + 2, MG0)); E(V("v_and_b32", Qr[j] + 3, Qr[j] + 3, MG0))
    for j in range(5):
        E(MFMA16C(SC[j], Kr[j], Qr[j], BC))
        if j > 0: E(MFMA16C(SP[j], Kr[j - 1], Qr[j], BP))
    MX = [5 + j for j in range(5)]; TT = [10 + j for j in range(5)]
    a.barrier()
    assert not early
    st("a1")
    if not QP: flg_check(a, vP, vPA, LV_W2)
    flg_check(a, vTt, vPA, LV_A)
    if PFX:
        for p in range(1, 4): E(pf_w2(p, vTt, 140 + p, lane))
    pre = merge(p2_w_item(0, vL16) + p2_w_item(1, vL16)[:2 if QP else 5], [p2_act(x, vL16) for x in range(0, 9)])
    st("a2")
    if cfg.get("nopre"): post = pre; pre = []
    def pp(k=1):
        for _ in range(k):
            if pre: E(pre.pop(0))
    for j in range(5):
        if j > 0:
            for r in range(4): E(V("v_max_f32", SC[j] + r, SC[j] + r, SP[j] + r))
        E(V("v_max3_f32", MX[j], SC[j], SC[j] + 1, SC[j] + 2)); E(V("v_max_f32", MX[j], MX[j], SC[j] + 3))
        if j % 2: pp()
    for lvl in (16, 32):
        for j in range(5): E(V("v_mov_b32", TT[j], MX[j]))
        for j in range(5): E(SWAP(lvl, MX[j], TT[j]))
        for j in range(5): E(V("v_max_f32", MX[j], MX[j], TT[j]))
        pp()
    st("a3")
    E(S(f"s_mov_b32 s7, {CSC}"))
    for j in range(5): E(V("v_mul_f32", MX[j], NCSC, MX[j]))
    PB = [236 + 4 * j for j in range(5)]
    for j in range(5):
        for r in range(4): E(V("v_fma_f32", SC[j] + r, SC[j] + r, "s7", MX[j]))
        for r in range(4): E(V("v_exp_f32", SC[j] + r, SC[j] + r))
        pp()
    for j in range(5):
        E(V("v_cvt_pk_bf16_f32", SC[j], SC[j], SC[j] + 1)); E(V("v_cvt_pk_bf16_f32", SC[j] + 1, SC[j] + 2, SC[j] + 3))
        for h in range(2):
            E(V("v_and_b32", PB[j] + h, SC[j] + h, MP + h)); E(V("v_and_b32", PB[j] + 2 + h, SC[j] + h, MC + h))
        if j % 2: pp()
    st("a4")
    O0 = Qr; O1 = Kr; DN = SC
    for j in range(5):
        E(MFMA16(DN[j], ONE, PB[j], c="0")); E(MFMA16(O0[j], V0 + 2 * j, PB[j], c="0")); E(MFMA16(O1[j], V1 + 2 * j, PB[j], c="0"))
    srd(a, 28, "s20", "s21", ACT_SIZE)
    for j in range(5): E(V("v_rcp_f32", DN[j], DN[j]))
    for j in range(5):
        for O in (O0[j], O1[j]):
            for r in range(4): E(V("v_mul_f32", O + r, O + r, DN[j]))
            E(V("v_cvt_pk_bf16_f32", O, O, O + 1)); E(V("v_cvt_pk_bf16_f32", O + 1, O + 2, O + 3))
        E(DSW(vOW, O0[j], 2, off=j * 256)); E(DSW(vOW2, O1[j], 2, off=j * 256))
        pp()
    st("a5")
    a.wait(lg=0); a.barrier()
    st("a6")
    for i in range(4): E(DSR(216 + 4 * i, 4, vOR, off=i * 8192))
    E(S(f"s_mov_b32 s6, {54*2048}"))
    for i in range(4): E(BST(216 + 4 * i, 4, vOG + i, 28, "s6", tag="st", mod=SC1))
    st("p1e")
    if cfg.get("nopre"): pre = post
    pp(20)
    E(flg_poll(vP, vPA, LV_B))
    phase2(a, st, cfg, vL16, lane, vPA, vP, 10, 9, cfg.get("rateq", 2.1), flag_st(5, vF, LV_C), parked=[(10 + i, 132 + 4 * i) for i in range(QP)])
    st.finish(2, name, cfg.get("stw", 0))
    a.raw("s_endpgm")

def gen_fused(name, stamps=False, cfg={}):
    DBG.update(cfg)
    a = Asm(); E = a.emit
    a.out.append(f".globl {name}\n.p2align 8\n.type {name},@function\n{name}:")
    E(S("s_cmp_ge_u32 s2, 256")); a.raw(f"s_cbranch_scc1 L_{name}_end")
    if stamps:
        a.raw("s_memrealtime s[76:77]"); a.raw("s_memtime s[80:81]")
    a.raw("s_load_dwordx2 s[24:25], s[0:1], 0")
    a.raw(f"s_load_dwordx4 s[{P_QKV}:{P_QKV+3}], s[0:1], 8")
    a.raw("s_load_dwordx2 s[28:29], s[0:1], 32"); a.raw("s_load_dwordx2 s[32:33], s[0:1], 40")
    a.raw(f"s_load_dwordx2 s[{P_W2}:{P_W2+1}], s[0:1], 48")
    a.raw(f"s_load_dwordx2 s[{S_OUT}:{S_OUT+1}], s[0:1], 56")
    a.raw("s_load_dwordx2 s[20:21], s[0:1], 72")
    E(V("v_lshrrev_b32", 2, "6", 0)); E(V("v_and_b32", 1, "63", 0))
    E(RFL("s3", 2))
    for (b, size) in ((20, WS_USED), (24, XBYTES), (S_OUT, XBYTES), (36, 2048 * 16), (28, 640 * 3456), (32, 640 * 3456)):
        E(S(f"s_mov_b32 s{b+2}, {size}")); E(S(f"s_mov_b32 s{b+3}, 0x20000"))
    E(S("s_and_b32 s11, s2, 3")); E(S("s_bfe_u32 s10, s2, 0x10002")); E(S("s_lshr_b32 s12, s2, 3"))
    E(S(f"s_lshl_b32 {sL}, s3, 10")); E(S(f"s_mov_b32 {sSpin}, 0"))
    E(S("s_cmp_lt_u32 s12, 18")); a.raw(f"s_cbranch_scc1 L_{name}_ffn")
    gen_qkv(a, name, stamps, cfg)
    a.label(f"L_{name}_ffn"); a.reset()
    gen_ffn(a, name, stamps, cfg)
    a.label(f"L_{name}_end"); a.raw("s_endpgm")
    return a.text(), kdesc(name, 256, 256, 102), 163840
```

```python
import sys, json
from f2 import gen_fused
NAME = "parallel_sum__sliding_local_dilated__glu_gated_swiglu__prompt"
HDR = open("cdna_kernels/" + NAME + ".s.ref").read().split("; Override launch")[0]
out = sys.argv[1]; stamps = len(sys.argv) > 2 and sys.argv[2] == "st"
cfg = json.loads(sys.argv[3]) if len(sys.argv) > 3 else {}
t, d, l = gen_fused(NAME + "_kernel", stamps, cfg)
DESC = """; Generated by dev/genf.py + dev/f2.py (own generator). One persistent launch, 256 workgroups (1 per CU), 8 waves each.
;   column sums x row means) plus per-row rstd in the epilogue. 144 WGs: SwiGLU tiles; 112 WGs: QKV tiles + banded attention.
; Phase 2: [h | o] @ [W2 ; Wo] + x. Hand-offs between workgroups go through d_ws with write-through stores and
"""
s = HDR + DESC + f"; @launch grid=(256,1,1) block=(512,1,1) lds={l}\n" + '.amdgcn_target "amdgcn-amd-amdhsa--gfx950"\n.text\n' + t + d
open(out, "w").write(s)
```

```python
from gasm import *
from common import *

NLOG2E = "0xbfb8aa3b"; CSC = "0x3ea52b5c"; NCSC = "0xbea52b5c"
HUGE = "0x7ff00000"
SC1 = " sc1"
S_OUT, S_AUX = 64, 68
sTag = "s60"
sP2A, sP2W, sP2X, sSpin, sFlg = "s72", "s73", "s74", "s75", "s76"
sColSt, sOwn, sL = "s18", "s17", "s16"
sRot, sItem = "s79", "s78"
P_QKV, P_WO, P_W2 = 52, 54, 56
NST = 18
DBG = {}
uid = [0]
STW = 0

class Stamp:
    def __init__(self, a, on, sel=None): self.a, self.on, self.n, self.sel, self.names = a, on, 0, sel, []
    def __call__(self, name="x", force=False):
        if not self.on: return
        if self.sel is not None and not force and name not in self.sel: return
        assert self.n < NST, name
        if self.n: self.a.raw(f"s_mov_b32 s{82+self.n-1}, s100")
        self.a.raw("s_memtime s[100:101]"); self.n += 1; self.names.append(name)
    def finish(self, role, name, wave=0):
        a = self.a
        if not self.on: return
        a.raw("s_waitcnt vmcnt(0)")
        self("end", True)
        a.raw("s_memrealtime s[4:5]"); a.raw("s_waitcnt lgkmcnt(0)")
        a.raw(f"s_mov_b32 s{82+self.n-1}, s100")
        a.raw(f"s_cmp_lg_u32 s3, {wave}"); a.raw(f"s_cbranch_scc1 L_{name}_end")
        for i in range(20):
            if i < self.n: a.raw(f"s_sub_u32 s6, s{82+i}, s80"); a.raw(f"v_mov_b32 v{i}, s6")
            else: a.raw(f"v_mov_b32 v{i}, 0")
        a.raw(f"v_mov_b32 v20, {sSpin}")
        a.raw(f"v_mov_b32 v21, {role}"); a.raw("v_mov_b32 v22, s77"); a.raw("v_mov_b32 v23, s4")
        a.raw("s_lshl_b32 s40, s2, 7"); a.raw(f"s_add_u32 s40, s40, {STAMP1}"); a.raw("v_mov_b32 v24, s40")
        a.raw("s_mov_b32 s22, 0x2000000"); a.raw("s_mov_b64 exec, 1")
        for i in range(6): a.raw(f"buffer_store_dwordx4 v[{4*i}:{4*i+3}], v24, s[20:23], 0 offen offset:{16*i}")
        a.comment(f"STAMPS role {role}: " + " ".join(self.names))

class L(list):
    def s(self, *ts):
        for t in ts: self.append(S(t))
        return self
    def v(self, *x, **k): self.append(V(*x, **k)); return self

def scc_live(ops):
    for o in ops:
        if isinstance(o, list): return False
        if o.kind != "salu": continue
        n = o.text.split()[0]
        if n.startswith(("s_cselect", "s_addc", "s_subb", "s_cbranch_scc")): return True
        if n.startswith(("s_mov", "s_mul_i32", "s_movk")): continue
        return False
    return False
def exec_dirty(ops):
    return False

def paced(E, ops, groups, every):
    k = 0
    for i, o in enumerate(ops):
        E(o); k += len(o) if isinstance(o, list) else 1
        if groups and k >= every and not scc_live(ops[i + 1:]):
            E(groups.pop(0)); k = 0

def rot_table(srot, sK, mulK, sKx, lo, hi, blk=10):
    o = L()
    for s in range(lo, hi):
        base = s // blk * blk
        if base: o.s(f"s_add_u32 s4, {srot}, {base}", f"s_mul_i32 s{sK+s}, s4, {mulK}", f"s_lshl_b32 s{sKx+s}, s4, 7")
        else: o.s(f"s_mul_i32 s{sK+s}, {srot}, {mulK}", f"s_lshl_b32 s{sKx+s}, {srot}, 7")
        if s < 9: o.s(f"s_add_u32 {srot}, {srot}, 1", f"s_cmp_eq_u32 {srot}, {blk}", f"s_cselect_b32 {srot}, 0, {srot}")
    return o
def mod_ops(src, dst, m):
    if m == 1: return [S(f"s_mov_b32 {dst}, 0")]
    if m == 2: return [S(f"s_and_b32 {dst}, {src}, 1")]
    k = {5: 52, 10: 26}[m]
    return [S(f"s_mul_i32 s5, {src}, {k}"), S("s_lshr_b32 s5, s5, 8"), S(f"s_mul_i32 s5, s5, {m}"), S(f"s_sub_u32 {dst}, {src}, s5")]

def check(a, load, cmp_ops, sleep=2):
    uid[0] += 1; Lb = f"L_ck{uid[0]}"
    a.emit(cmp_ops)
    a.raw(f"s_cbranch_scc0 {Lb}_ok")
    p0 = a.pos
    a.label(f"{Lb}_sp")
    a.raw(f"s_sleep {sleep}")
    for l in (load if isinstance(load, list) else [load]): a.raw(l.text)
    a.raw("s_waitcnt vmcnt(0)")
    a.raw(f"s_add_u32 {sSpin}, {sSpin}, 1"); a.raw(f"s_cmp_gt_u32 {sSpin}, 30000"); a.raw(f"s_cbranch_scc1 {Lb}_ok")
    for o in cmp_ops:
        a.raw(o.text); a.raw("s_nop 3")
    a.raw(f"s_cbranch_scc1 {Lb}_sp")
    a.label(f"{Lb}_ok")
    a.pos = p0

M_FFN, M_Q, M_W2 = 0x1ff, 0xffff0000, 0x3ffffff << 32
LV_W2, LV_A, LV_B, LV_C = "W2", "A", "B", "C"
LV = {"W2": (0, M_W2), "A": (48 * 128, M_FFN), "B": (64 * 128, M_FFN), "C": (0, M_FFN), "Q": (0, M_Q)}
def flg_poll(vP, vA, lv):
    off, m = LV[lv]
    return [S(f"s_mov_b32 s9, {FLG_OFF + off}"), S(f"s_mov_b32 exec_lo, {m & 0xffffffff}"), S(f"s_mov_b32 exec_hi, {m >> 32}"),
            BLD(vP, 1, vA, 20, "s9", tag="poll", mod=SC1), S("s_mov_b64 exec, -1")]
def flg_cmp(vP, lv):
    off, mask = LV[lv]
    o = [VCMP("v_cmp_ne_u32", "vcc", sTag, vP)]
    if mask >> 32 == 0: o.append(S(f"s_and_b32 vcc_lo, vcc_lo, {mask}", sr=["vcc"]))
    else: o.append(S(f"s_and_b32 vcc_hi, vcc_hi, {mask >> 32}", sr=["vcc"]))
    return o
def flg_check(a, vP, vA, lv, sleep=2): check(a, flg_poll(vP, vA, lv), flg_cmp(vP, lv), sleep)
def tag_cmp(regs, t):
    o = [V("v_xor_b32", t, sTag, regs[0])]
    for r in regs[1:]: o.append(Op(f"v_bitop3_b32 {R(t)}, {R(t)}, {R(r)}, {sTag} bitop3:0xf6", "valu", r=[t, r], w=[t], sr=[sTag]))
    return o + [VCMP("v_cmp_ne_u32", "vcc", "0", t), S("s_cmp_lg_u64 vcc, 0")]
def flag_st(vT, vF, lv, base=None):
    return [Cond("s_cmp_eq_u32 s3, 0", [S(f"s_add_u32 s9, {base or sOwn}, {LV[lv][0]}"), V("v_mov_b32", vT, sTag), BST(vT, 1, vF, 20, "s9", tag="flag", mod=SC1)])]
def col_fix(AP): return [V("v_perm_b32", AP + 1, AP, AP, "s62"), V("v_perm_b32", AP, AP, AP, "s61")]

def wsum(s, t):
    return [DPP("v_add_f32", s, s, s, "quad_perm:[1,0,3,2]"), DPP("v_add_f32", s, s, s, "quad_perm:[2,3,0,1]"), DPP("v_add_f32", s, s, s, "row_half_mirror"),
            DPP("v_add_f32", s, s, s, "row_ror:8"), V("v_mov_b32", t, s), SWAP(16, s, t), V("v_add_f32", s, s, t),
            V("v_mov_b32", t, s), SWAP(32, s, t), V("v_add_f32", s, s, t)]
def merge(a, b):
    o = []
    a, b = list(a), list(b)
    na, nb = len(a), len(b)
    while a or b:
        if a and (not b or len(a) * nb >= len(b) * na): o.append(a.pop(0))
        else: o.append(b.pop(0))
    return o

def st_pre(B, lane, Bs=None):
    Bs = B if Bs is None else Bs
    o = L()
    o.s("s_and_b32 s4, s2, 7", "s_lshl_b32 s4, s4, 5", "s_lshr_b32 s5, s2, 3", "s_add_u32 s4, s4, s5", "s_lshl_b32 s4, s4, 3", "s_add_u32 s4, s4, s3",
        "s_mul_i32 s63, s4, 1280", "s_lshl_b32 s61, s4, 4", f"s_mov_b32 s62, {EPO_OFF}")
    o.v("v_lshlrev_b32", B + 36, "4", lane).v("v_lshlrev_b32", B + 37, "2", lane).v("v_lshlrev_b32", Bs + 5, "24", lane)
    return o
def st_issue(B, Bs=None):
    Bs = B if Bs is None else Bs
    return [BLD(Bs + 5, 1, Bs + 5, 20, "s62", mod=SC1), BLD(Bs, 4, B + 36, 24, "s63"), BLD(Bs + 4, 1, B + 37, 24, "s63", off=1024), S("s_mov_b32 s81, s61")]
def col_pre(B, lane, pitch):
    o = L()
    o.s(f"s_cselect_b32 s9, s9, {HUGE}", "s_cselect_b32 s7, s3, 1",
        "s_lshl_b32 s5, s8, 10", "s_lshl_b32 s8, s10, 9", "s_add_u32 s5, s5, s8", f"s_add_u32 s5, s5, {COL_OFF}",
        "s_mul_i32 s8, s10, 40", "s_add_u32 s8, s8, s3", *([f"s_mul_i32 s8, s8, {8*pitch}"] if isinstance(pitch, int) else ["s_lshl_b32 s8, s8, 3", f"s_mul_i32 s8, s8, {pitch}"]), "s_add_u32 s78, s8, s9",
        "s_cmp_eq_u32 s7, 0", f"s_cselect_b32 {sColSt}, s5, {HUGE}")
    o.v("v_lshrrev_b32", B + 38, "3", lane).v("v_and_b32", B + 39, "7", lane)
    o.v("v_mul_u32_u24", B + 38, str(pitch), B + 38).v("v_lshl_add_u32", B + 38, B + 39, "4", B + 38)
    return o
def col_issue(B, srdn, pitch):
    return [[BLD(B + 16 + 4 * it, 4, B + 38, srdn, "s78", mod=DBG.get("cm", ""))] + ([S(f"s_add_u32 s78, s78, {64*pitch if isinstance(pitch, int) else pitch}")] if it < 4 else []) for it in range(5)]
def stats_ops(B, xoff):
    U = B + 6; s, t = B + 5, B + 4
    o = L()
    o.append(RFL(sTag, B + 5))
    for i in (4, 0, 1, 2, 3): o.v("v_lshlrev_b32", U + 2 * i, "16", B + i).v("v_and_b32", U + 2 * i + 1, "0xffff0000", B + i)
    o.s(f"s_mul_i32 {sTag}, {sTag}, 0x9e3779b1", f"s_add_u32 {sTag}, {sTag}, 0x7f4a7c15")
    o.v("v_add_f32", s, U, U + 1).v("v_add_f32", t, U + 2, U + 3)
    for i in range(4, 10, 2): o.v("v_add_f32", s, s, U + i).v("v_add_f32", t, t, U + i + 1)
    o.v("v_add_f32", s, s, t)
    o += wsum(s, t)
    o.v("v_mul_f32", s, "0xbacccccd", s)
    q = B + 1
    for i in range(10): o.v("v_add_f32", U + i, U + i, s)
    o.v("v_mul_f32", q, U, U).v("v_mul_f32", t, U + 1, U + 1)
    for i in range(2, 10, 2): o.v("v_fmac_f32", q, U + i, U + i).v("v_fmac_f32", t, U + i + 1, U + i + 1)
    o.v("v_add_f32", q, q, t)
    o += wsum(q, t)
    o.v("v_mov_b32", B + 3, "0x3727c5ac").v("v_fmac_f32", B + 3, "0x3acccccd", q).v("v_rsq_f32", B + 2, B + 3)
    o.v("v_cvt_pk_bf16_f32", t, s, s).v("v_lshlrev_b32", t, "16", t).v("v_sub_f32", t, s, t)
    o.v("v_cvt_pk_bf16_f32", B, s, t).v("v_mov_b32", B + 1, sTag)
    o.v("v_mov_b32", t, sL).v("v_lshrrev_b32", t, "6", t).v("v_add_u32", t, str(xoff + 2048), t)
    o.append(DSW(t, B, 4))
    return o
def tok_fin_ops(B, xoff, Bs=None):
    Bs = B if Bs is None else Bs
    o = L()
    o.v("v_and_b32", Bs + 4, "0x70", B + 36).v("v_add_u32", Bs + 4, str(xoff + 2048), Bs + 4)
    o.append(DSR(Bs, 4, Bs + 4))
    o.v("v_lshrrev_b32", Bs + 5, "7", B + 36).v("v_lshl_add_u32", Bs + 5, Bs + 5, "24", B + 36)
    o.s("s_sub_u32 s81, s81, 16")
    o.append(BST(Bs, 4, Bs + 5, 36, "s81", tag="tab", mod=SC1))
    return [[Block("s_cmp_eq_u32 s3, 1", o)]]
def col_add(A, r, first, t, dot):
    o = L()
    for j in range(4):
        if first: o.v("v_lshlrev_b32", A + 2 * j, "16", r + j).v("v_and_b32", A + 2 * j + 1, "0xffff0000", r + j)
        elif dot: o.v("v_dot2c_f32_bf16", A + 2 * j, "s61", r + j).v("v_dot2c_f32_bf16", A + 2 * j + 1, "s62", r + j)
        else: o.v("v_lshlrev_b32", t, "16", r + j).v("v_and_b32", r + j, "0xffff0000", r + j).v("v_add_f32", A + 2 * j, A + 2 * j, t).v("v_add_f32", A + 2 * j + 1, A + 2 * j + 1, r + j)
    return o
def col_red(A, t0, piece, lane, xoff):
    o = L()
    o.v("v_lshrrev_b32", t0, "4", lane).v("v_lshlrev_b32", t0, "3", t0).v("v_lshl_add_u32", t0, piece, "5", t0)
    for j in range(4): o.append(SWAP(32, A + j, A + j + 4))
    for j in range(4): o.v("v_add_f32", A + j, A + j, A + j + 4)
    o.v("v_mov_b32", t0 + 1, sL).v("v_lshrrev_b32", t0 + 1, "2", t0 + 1)
    for j in range(2): o.append(SWAP(16, A + j, A + j + 2))
    for j in range(2): o.v("v_add_f32", A + j, A + j, A + j + 2)
    o.v("v_add_u32", t0, t0, t0 + 1).v("v_add_u32", t0, str(xoff), t0)
    for j in range(2): o.append(DPP("v_add_f32", A + j, A + j, A + j, "row_ror:8"))
    o.append(DSW(t0, A, 2))
    return o
def col_acc_ops(B, lane, xoff, dot=True):
    A = B + 40
    o = L()
    if dot: o.s("s_mov_b32 s61, 0x3f80", "s_mov_b32 s62, 0x3f800000")
    for it in range(5): o += col_add(A, B + 16 + 4 * it, it == 0, B + 16, dot)
    o += col_red(A, B + 16, B + 39, lane, xoff)
    return o
PERMSEL = ["s_mov_b32 s61, 0x01000100", "s_mov_b32 s62, 0x03020302"]
def col_fin_ops(Rd, t, lane, xoff):
    o = L()
    o.v("v_lshlrev_b32", t, "2", lane).v("v_add_u32", t, str(xoff), t)
    for w in range(8): o.append(DSR(Rd + w, 1, t, off=w * 256))
    for w in range(4): o.v("v_add_f32", Rd + w, Rd + w, Rd + 4 + w)
    o.v("v_add_f32", Rd, Rd, Rd + 1).v("v_add_f32", Rd + 2, Rd + 2, Rd + 3).v("v_add_f32", Rd, Rd, Rd + 2)
    o.v("v_cvt_pk_bf16_f32", Rd + 4, Rd, Rd).v("v_lshlrev_b32", Rd + 6, "16", Rd + 4).v("v_sub_f32", Rd + 6, Rd, Rd + 6)
    o.v("v_cvt_pk_bf16_f32", Rd + 4, Rd, Rd + 6).v("v_mov_b32", Rd + 5, sTag).v("v_lshlrev_b32", t, "3", lane)
    o.append(BST(Rd + 4, 2, t, 20, sColSt, tag="tab", mod=SC1))
    return o

ACTB, ACC2, WF2 = 96, 48, 8
def p2_setup(vA, lane, rb="s10", cb="s11"):
    g = []
    o = L()
    o.s("s_bfe_u32 s10, s2, 0x20001", "s_lshl_b32 s10, s10, 3", "s_bfe_u32 s5, s2, 0x30003", "s_add_u32 s10, s10, s5",
        "s_and_b32 s11, s2, 1", "s_lshl_b32 s11, s11, 2", "s_lshr_b32 s6, s2, 6", "s_add_u32 s11, s11, s6"); g.append(list(o))
    o = L()
    o.s("s_bfe_u32 s6, s3, 0x10001", "s_lshl_b32 s9, s10, 1", "s_add_u32 s6, s6, s9",
        f"s_mul_i32 {sP2A}, s6, 74", "s_lshr_b32 s9, s3, 2", f"s_add_u32 {sP2A}, {sP2A}, s9", f"s_lshl_b32 {sP2A}, {sP2A}, 1",
        "s_and_b32 s9, s3, 1", f"s_add_u32 {sP2A}, {sP2A}, s9", f"s_lshl_b32 {sP2A}, {sP2A}, 10",
        f"s_mul_i32 {sP2X}, s10, {64*1280}"); g.append(list(o))
    o = L()
    o.s(f"s_mul_i32 {sP2W}, s11, 74", f"s_add_u32 {sP2W}, {sP2W}, s3", f"s_mul_i32 {sP2W}, {sP2W}, 5120", f"s_add_u32 {sP2W}, {sP2W}, {W2F_OFF}",
        "s_mul_i32 s6, s11, 160", f"s_add_u32 {sP2X}, {sP2X}, s6",
        ); g.append(list(o))
    if DBG.get("rot2"):
        o = L()
        o.s("s_bfe_u32 s6, s2, 0x30003", "s_lshr_b32 s9, s2, 6", "s_lshl_b32 s9, s9, 1", "s_add_u32 s6, s6, s9", "s_cmp_ge_u32 s6, 9", "s_cselect_b32 s9, 9, 0", f"s_sub_u32 {sRot}, s6, s9",
            f"s_lshl_b32 s6, {sRot}, 12", f"s_add_u32 {sP2A}, {sP2A}, s6", f"s_mul_i32 s6, {sRot}, 10240", f"s_add_u32 {sP2W}, {sP2W}, s6"); g.append(list(o))
    def part(o, lo, n):
        m = ((1 << n) - 1) << lo
        o.s("s_lshl_b32 s6, s6, 7", f"s_sub_u32 s6, s6, {lo*4}", f"s_mov_b32 exec_lo, {m & 0xffffffff}", f"s_mov_b32 exec_hi, {m >> 32}")
        o.v("v_lshl_add_u32", vA, lane, "2", "s6"); o.s("s_mov_b64 exec, -1"); g.append(list(o))
    part(L().s("s_lshr_b32 s6, s10, 1"), 0, 16)
    for (lo, add) in ((16, 0), (24, 63)):
        part(L().s("s_lshl_b32 s6, s10, 6", f"s_add_u32 s6, s6, {add}", "s_max_u32 s6, s6, 14", "s_sub_u32 s6, s6, 14",
                   "s_mul_i32 s6, s6, 7183", "s_lshr_b32 s6, s6, 20", "s_add_u32 s6, s6, 16"), lo, 8)
    for (i, add) in ((0, 0), (1, 4)):
        part(L().s("s_mul_i32 s6, s11, 5", f"s_add_u32 s6, s6, {add + 128}", "s_lshr_b32 s6, s6, 2"), 32 + 13 * i, 13 if i == 0 else 19)
    g = [[S(x.text.replace("s10", rb).replace("s11", cb)) if x.kind == "salu" else x for x in grp] for grp in g]
    return g

def GEND(j): return 9 if j < 9 else 18 if j < 18 else 27 if j < 27 else 37
def GN(j): return 10 if j >= 27 else 9
def p2_w_item(d, vL16):
    slot = (d % 4) * 40960
    ops = []
    for i in range(5):
        g = [S(f"s_add_u32 s9, {sP2W}, {(d%2 if DBG.get('hot') else d)*8*5120 + i*1024}")]
        if DBG.get("rot2"):
            pre = []
            if i == 0:
                ends = sorted(set(GEND(j) for j in range(4 * d, min(4 * d + 4, 37))))
                pre = [S("s_lshr_b32 s8, s3, 1")]
                if len(ends) == 1:
                    pre += [S(f"s_add_u32 s8, s8, {sRot}"), S(f"s_cmp_ge_u32 s8, {ends[0] - 4*d}"), S(f"s_cselect_b32 {sItem}, {GN(4*d)*10240}, 0")]
                else:
                    pre += [S(f"s_cmp_ge_u32 s8, {ends[0] - 4*d}"), S(f"s_cselect_b32 s7, {ends[1] - 4*d}, {ends[0] - 4*d}"),
                            S(f"s_cselect_b32 {sItem}, {GN(ends[0])}, {GN(4*d)}"), S(f"s_mul_i32 {sItem}, {sItem}, 10240"),
                            S(f"s_add_u32 s8, s8, {sRot}"), S("s_cmp_ge_u32 s8, s7"), S(f"s_cselect_b32 {sItem}, {sItem}, 0")]
                pre.append(S(f"s_sub_u32 {sItem}, {sP2W}, {sItem}"))
            g = pre + [S(f"s_add_u32 s9, {sItem}, {d*8*5120 + i*1024}")]
        if DBG.get("now2"): g = [S(f"s_mov_b32 s9, {HUGE}")]
        g += [S(f"s_add_u32 m0, {sL}, {slot + i*8192}"), DMA(vL16, 20, "s9", tag=("W2", d), mod="" if DBG.get("nosc1") else SC1)]
        ops.append(g)
    if d == 9: ops = [[Cond("s_cmp_lt_u32 s3, 2", sum(ops, []))]]
    return ops
def pf_w2(p, vT, vD, lane):
    return [S("s_bfe_u32 s8, s2, 0x30003"), S("s_lshl_b32 s8, s8, 3"), S("s_add_u32 s8, s8, s3"), S("s_mul_i32 s8, s8, 12"), S(f"s_add_u32 s8, s8, {p*768}"),
            S("s_min_u32 s8, s8, 2948"), S("s_lshl_b32 s8, s8, 7"), S("s_mul_i32 s9, s3, 5120"), S(f"s_sub_u32 s9, {sP2W}, s9"), S("s_add_u32 s9, s9, s8"),
            V("v_lshlrev_b32", vT, "7", lane), S("s_mov_b64 exec, 0xfff"), BLD(vD, 1, vT, 20, "s9", tag="pf", mod=SC1), S("s_mov_b64 exec, -1")]
def pf_act(g, vT, vD, lane):
    j0, n = [(0, 9), (9, 9), (18, 9), (27, 10)][g]
    return [S("s_lshr_b32 s8, s2, 6"), V("v_lshrrev_b32", vT, "3", lane), V("v_lshl_add_u32", vT, vT, "2", "s8"), V("v_min_u32", vT, str(n - 1), vT),
            V("v_lshlrev_b32", vT, "5", vT), V("v_and_or_b32", vT, lane, "7", vT), V("v_lshlrev_b32", vT, "7", vT),
            S(f"s_add_u32 s9, {sP2A}, {j0*4096}"), S("s_mov_b64 exec, 0xffffff"), BLD(vD, 1, vT, 20, "s9", tag="pf", mod=SC1), S("s_mov_b64 exec, -1")]
def p2_act(j, vL16):
    if DBG.get("noact"): return [S(f"s_mov_b32 s9, {HUGE}"), BLD(ACTB + 4 * j, 4, vL16, 20, "s9", mod=SC1)]
    if DBG.get("hot"): return [S(f"s_add_u32 s9, {sP2A}, {(j%4)*4096}"), BLD(ACTB + 4 * j, 4, vL16, 20, "s9", mod=SC1)]
    if DBG.get("rot2"):
        return [S(f"s_cmp_ge_u32 {sRot}, {GEND(j) - j}"), S(f"s_cselect_b32 s9, {GN(j)*4096}, 0"), S(f"s_sub_u32 s9, {sP2A}, s9"), S(f"s_add_u32 s9, s9, {j*4096}"),
                BLD(ACTB + 4 * j, 4, vL16, 20, "s9", mod=SC1)]
    return [S(f"s_add_u32 s9, {sP2A}, {j*4096}"), BLD(ACTB + 4 * j, 4, vL16, 20, "s9", mod="" if DBG.get("nosc1") else SC1)]

def phase2(a, st, cfg, vL16, lane, vPA, vP, pieces_done, act_done, rate, publish, epoch=False, parked=[]):
    E = a.emit
    PF = cfg.get("pf2", False)
    vRd = [68, 69, 70]; vXO = [71, 72]; vRr = [73, 74]; vWrt = 75
    X0 = 244; t0, t1, t2 = 76, 77, 78
    EP = 86
    E(S("s_lshr_b32 s4, s3, 2")); E(S("s_lshl_b32 s5, s4, 10"))
    E(V("v_add_u32", vRd[0], "s5", vL16))
    for b in (1, 2): E(V("v_add_u32", vRd[b], str(b << 16), vRd[0]))
    def reads(j):
        pos = ((j // 4) % 4) * 40960 + (j % 4) * 2048
        f = WF2 + 20 * (j % 2)
        return [DSR(f + 4 * l, 4, vRd[(pos + l * 8192) >> 16], off=(pos + l * 8192) & 0xffff) for l in range(5)]
    misc = []
    for i in range(2):
        misc.append([S("s_lshl_b32 s4, s3, 6"), S(f"s_add_u32 s4, s4, {512*i}"), V("v_add_u32", t0, "s4", lane), V("v_mul_u32_u24", t1, "6554", t0), V("v_lshrrev_b32", t1, "16", t1)])
        misc.append([V("v_mul_u32_u24", t2, "10", t1), V("v_sub_u32", t0, t0, t2), V("v_mul_u32_u24", vRr[i], "336", t1), V("v_lshl_add_u32", vRr[i], t0, "5", vRr[i]), V("v_add_u32", vRr[i], "81920", vRr[i])])
        misc.append([V("v_and_b32", t2, "15", t1), V("v_and_b32", vXO[i], "32", t1), V("v_lshl_add_u32", vXO[i], t2, "1", vXO[i]), V("v_bfe_u32", t2, t1, "4", "1"), V("v_add_u32", vXO[i], vXO[i], t2)])
        ld = BLD(X0 + 4 * i, 4, vXO[i], 24, sP2X)
        misc.append([V("v_mul_u32_u24", vXO[i], "1280", vXO[i]), V("v_lshl_add_u32", vXO[i], t0, "4", vXO[i]), ld if i == 0 else Cond("s_cmp_lt_u32 s3, 2", [ld])])
    if cfg.get("touch") == 1: misc.append([S("s_mov_b64 exec, 1"), BLD(79, 1, vXO[0], S_OUT, sP2X), S("s_mov_b64 exec, -1")])
    if cfg.get("touch") == 2: misc.append([BLD(79, 1, vXO[0], S_OUT, sP2X)])
    misc.append([S("s_lshr_b32 s4, s3, 2"), S("s_mul_i32 s4, s4, 21504"), S("s_and_b32 s5, s3, 3"), S(f"s_mul_i32 s5, s5, {16*336}"), S("s_add_u32 s4, s4, s5"), S("s_add_u32 s4, s4, 81920"),
                 V("v_and_b32", t0, "15", lane), V("v_mul_u32_u24", t0, "336", t0), V("v_and_b32", t1, "48", lane), V("v_add3_u32", vWrt, t0, t1, "s4")])
    epl = [BLD(EP + 4 + i, 1, EP + i, 36, "0", off=4, mod=SC1) for i in range(4)]
    if epoch:
        misc.append([S("s_or_b32 s4, s2, s3"), Cond("s_cmp_eq_u32 s4, 0", [V("v_lshlrev_b32", EP, "3", vL16)] +
                    [V("v_add_u32", EP + i, str(i * 8192), EP) for i in range(1, 4)] + epl)])
    a.wait_tag(("W2", 0), lg=0); a.barrier()
    st("p2s")
    E(reads(0))
    if parked:
        assert pieces_done == parked[0][0], pieces_done
        E(V("v_add_u32", 6, sL, vL16)); E(V("v_add_u32", 7, "0x20000", 6)); E(V("v_add_u32", 6, "0x10000", 6))
        for (k, r) in parked: E(DSW(6 + (k * 8192 >> 16) - 1, r, 4, off=(k * 8192) & 0xffff))
        pieces_done += len(parked)
    q = []
    def push(need, g): q.append((need, len(q), g)); q.sort(key=lambda e: e[:2])
    def push_item(d, frm=0):
        for g in p2_w_item(d, vL16)[frm:]: push(4 * d - 1.5, g)
    for x in range(act_done, 9): push(x, p2_act(x, vL16))
    for d in range(4):
        if pieces_done < 5 * (d + 1): push_item(d, max(0, pieces_done - 5 * d))
    nitem = 4
    PUB, CB, P3, C3 = cfg.get("pub", 4), cfg.get("cb", 1), cfg.get("p3", 11), cfg.get("c3", 14)
    RATE = rate
    LEAD = cfg.get("lead", 5)
    credit = 0.0
    for g in misc: push(cfg.get("misc", 19), g)
    for j in range(37):
        f = WF2 + 20 * (j % 2)
        nxt = []
        while q and q[0][0] <= j: E(q.pop(0)[2])
        if j + 1 < 37:
            if j == PUB:
                a.wait_tag("st"); a.barrier(); E(publish); st("pub")
            if (j + 1) % 4 == 0:
                d = (j + 1) // 4
                a.wait_tag(("W2", d), lg=0); a.barrier()
                if nitem < 10: push_item(nitem); nitem += 1
            nxt = reads(j + 1)
        if j == CB:
            flg_check(a, vP, vPA, LV_B)
            if PF: E(pf_act(1, t0, 6, lane))
            for x in range(9, 18): push(x, p2_act(x, vL16))
        if j == P3: E(flg_poll(vP, vPA, LV_C))
        if j == C3:
            flg_check(a, vP, vPA, LV_C, sleep=1)
            st("c3")
            if PF: E(pf_act(2, t0, 6, lane)); E(pf_act(3, t0, 7, lane))
            for x in range(18, 18 + cfg.get("burst", 3)): E(p2_act(x, vL16))
            for x in range(18 + cfg.get("burst", 3), 27): push(x, p2_act(x, vL16))
            RATE = cfg.get("rate2", 1.4)
        if j == cfg.get("p4", 17): E(flg_poll(vP, vPA, "Q"))
        if j == cfg.get("c4", 20):
            flg_check(a, vP, vPA, "Q", sleep=1)
            st("c4")
            for x in range(27, 37): push(x, p2_act(x, vL16))
        st(f"g{j}")
        credit = min(credit + RATE, 4)
        for l in range(5):
            if cfg.get("nomfma") and l: pass
            else: E(MFMA16(ACC2 + 4 * l, f + 4 * l, ACTB + 4 * j, c="0" if j == 0 else None))
            if nxt:
                x_ = nxt.pop(0)
                if not (cfg.get("nords") and l): E(x_)
            if q and (credit >= 1 or q[0][0] <= j + LEAD):
                g = q.pop(0)[2]; E(g)
                if any(x.kind in ("vld", "dma") for x in g): credit -= 1
    fill = q
    assert not fill
    st("p2e")
    for l in range(5): E(DSW(vWrt, ACC2 + 4 * l, 4, off=l * 64))
    def unpack(i):
        o = []
        for e in range(4): o += [V("v_lshlrev_b32", 8 + 8 * i + 2 * e, "16", X0 + 4 * i + e), V("v_and_b32", 9 + 8 * i + 2 * e, "0xffff0000", X0 + 4 * i + e)]
        return o
    E(unpack(0)); E(unpack(1))
    a.wait(lg=0); a.barrier()
    st("red")
    def finish(i):
        RD = 96 + 16 * i; o = []
        for k in range(4): o.append(DSR(RD + 4 * k, 4, vRr[i], off=(k // 2) * 21504 + (k % 2) * 16))
        c = []
        for e in range(8): c.append(V("v_add_f32", 8 + 8 * i + e, 8 + 8 * i + e, RD + e))
        for e in range(8): c.append(V("v_add_f32", 8 + 8 * i + e, 8 + 8 * i + e, RD + 8 + e))
        for e in range(4): c.append(V("v_cvt_pk_bf16_f32", X0 + 4 * i + e, 8 + 8 * i + 2 * e, 9 + 8 * i + 2 * e))
        c.append(BST(X0 + 4 * i, 4, vXO[i], S_OUT, sP2X, mod=cfg.get("om", " nt")))
        return o, c
    r0, c0 = finish(0); r1, c1 = finish(1)
    uid[0] += 1; L1 = f"L_f{uid[0]}"
    E(r0)
    E(S("s_cmp_lt_u32 s3, 2")); a.raw(f"s_cbranch_scc1 {L1}")
    import copy
    sv = copy.deepcopy((a.pos, a.lg, a.vm, a.lastw, a.lastc, a.lastst, a.slastw))
    E(c0)
    a.raw(f"s_branch {L1}e")
    a.label(L1)
    a.pos, a.lg, a.vm, a.lastw, a.lastc, a.lastst, a.slastw = sv
    E(r1); E(finish(0)[1]); E(c1)
    a.label(f"{L1}e")
    st("out")
    if epoch:
        uid[0] += 1; Lb = f"L_ep{uid[0]}"
        E(S("s_or_b32 s4, s2, s3")); a.raw(f"s_cbranch_scc1 {Lb}")
        check(a, epl, tag_cmp([EP + 4, EP + 5, EP + 6, EP + 7], 24))
        E(V("v_mov_b32", 25, sTag)); E(V("v_lshlrev_b32", 24, "20", vL16)); E(S(f"s_mov_b32 s4, {EPO_OFF}"))
        E(BST(25, 1, 24, 20, "s4", mod=SC1))
        a.label(Lb)

def common_wait(a, stamps):
    E = a.emit
    a.raw("s_waitcnt lgkmcnt(0)")
    if stamps: a.raw("s_mov_b32 s77, s76")
    E(S(f"s_add_u32 s36, s20, {TOK_OFF}")); E(S("s_addc_u32 s37, s21, 0"))

def cost(o):
    if isinstance(o, list): return 1 + len(o) // 5 if o else 4
    return {"trans": 2, "perml": 2, "salu": 0.5}.get(o.kind, 1)

def gen_ffn(a, name, stamps, cfg):
    E = a.emit; st = Stamp(a, stamps, cfg.get("sel"))
    PFX = cfg.get("pf", False)
    sK, sKx = 40, 50
    XF, A0, A1, A2, WB = 96, 48, 64, 80, 28
    vL16, lane = 0, 1
    vWr = [2, 3, 4]; vDW, vSt, vCol = 5, 6, 7
    TOK = 8; AP = [12, 14]; T = 16
    vPA, vP, vF, vTt = 24, 25, 26, 27
    vDX, vDX2, vXr, vTokA = A2, A2 + 1, A2 + 2, A2 + 6
    TB = 208; XO = 9 * 16384 + 8192
    t0, t1, t2, t3 = T, T + 1, T + 2, T + 3
    sSt, sCb, sRb, sTok = "s13", "s14", "s15", "s19"
    RB = cfg.get("rblk", 1)
    o = L()
    o.s("s_mul_i32 s13, s11, 18", "s_add_u32 s13, s13, s12", f"s_lshr_b32 {sCb}, s13, 3", f"s_and_b32 {sRb}, s13, 7",
        f"s_mul_i32 s4, {sCb}, {cfg.get('rmul', 3)}", f"s_add_u32 s4, s4, {sRb}")
    o += mod_ops("s4", "s19", RB)
    o.s("s_lshl_b32 s5, s10, 3", f"s_add_u32 {sRb}, {sRb}, s5")
    o += rot_table("s19", sK, 64 * 3456, sKx, 0, 2, RB)
    o.s("s_and_b32 s4, s3, 3", "s_lshr_b32 s5, s3, 2", "s_lshl_b32 s6, s4, 3")
    o.v("v_lshrrev_b32", t0, "3", lane).v("v_and_b32", t1, "7", lane).v("v_add_u32", t2, "s6", t0)
    o.v("v_bfe_u32", t3, t2, "1", "3").v("v_xor_b32", t3, t1, t3)
    o.v("v_and_b32", vDX, "15", t2).v("v_lshrrev_b32", t2, "4", t2).v("v_lshl_add_u32", vDX, vDX, "1", t2)
    o.s(f"s_lshl_b32 s6, {sRb}, 7", "s_lshl_b32 s9, s5, 5", "s_add_u32 s6, s6, s9")
    o.v("v_add_u32", vDX, "s6", vDX).v("v_mul_u32_u24", vDX, "1280", vDX).v("v_lshl_add_u32", vDX, t3, "4", vDX).v("v_add_u32", vDX2, str(64 * 1280), vDX)
    o.v("v_lshrrev_b32", t2, "2", lane).v("v_and_b32", t2, "4", t2).v("v_xor_b32", t2, t1, t2)
    o.v("v_mul_u32_u24", vDW, "3456", t0).v("v_lshl_add_u32", vDW, t2, "4", vDW)
    o.s(f"s_mul_i32 s6, s3, {8*3456}", f"s_mul_i32 s9, {sCb}, 384", "s_add_u32 s6, s6, s9")
    o.v("v_add_u32", vDW, "s6", vDW)
    E(o); E(st_pre(TB, lane))
    items = {}
    free = list(range(10))
    qX = [("X", s) for s in range(10)]
    qW = [("W", s) for s in range(30)]
    dma_chunk = [0]
    def dma_ops(it, slot):
        kind, s = it
        base = slot * 16384
        m0 = lambda x: S(f"s_add_u32 m0, {sL}, {base+x}")
        if kind == "X":
            return [[m0(0), DMA(vDX, 24, f"s{sKx+s}", tag=it)], [m0(8192), DMA(vDX2, 24, f"s{sKx+s}", tag=it)]]
        if s < 10:
            return [[m0(0), DMA(vDW, 28, f"s{sK+s}", tag=it, mod=DBG.get("wm", ""))], [m0(8192), DMA(vDW, 32, f"s{sK+s}", tag=it, mod=DBG.get("wm", ""))]]
        p = (s - 10) // 5 + 1; j = (s - 10) % 5
        chunk = (p + 1) // 2; srdw = 28 if p % 2 == 1 else 32
        pre = []
        if chunk != dma_chunk[0]:
            dma_chunk[0] = chunk; pre = [V("v_add_u32", vDW, "128", vDW)]
        return [pre + [m0(0), DMA(vDW, srdw, f"s{sK+2*j}", tag=it, mod=DBG.get("wm", ""))], [m0(8192), DMA(vDW, srdw, f"s{sK+2*j+1}", tag=it, mod=DBG.get("wm", ""))]]
    def slot_of(it):
        kind, s = it
        return (s + 2) % 4 if kind == "X" else ([4, 5, 6, 7, 8, 4, 5, 6, 7, 4][s] if s < 10 else s % 10)
    def refill(maxstage=99):
        out = []
        while True:
            cands = []
            for q in (qX, qW):
                if q and q[0][1] <= maxstage and slot_of(q[0]) in free and not (q is qW and q[0][1] >= 10 and slot_of(q[0]) < 4 and any(slot_of(x) == slot_of(q[0]) for x in qX)):
                    cands.append((q[0][1], q is qW, q))
            if not cands: break
            cands.sort(key=lambda c: c[:2]); q = cands[0][2]
            it = q.pop(0); sl = slot_of(it); free.remove(sl); items[it] = sl; out += dma_ops(it, sl)
        if not qW and p2["go"]:
            while p2["pieces"] < 20 and p2["pieces"] // 2 in free:
                k = p2["pieces"]; out.append(p2_w_item(k // 5, vL16)[k % 5]); p2["pieces"] += 1
        return out
    p2 = {"pieces": 0, "act": 0, "go": False}
    o = L()
    o.s("s_bitcmp1_b32 s13, 0", "s_cselect_b32 s8, 57, 30", f"s_mov_b32 s{S_AUX+2}, {640*3456}", f"s_mov_b32 s{S_AUX+3}, 0x20000",
        f"s_mul_i32 s9, {sCb}, 3", "s_bfe_u32 s4, s13, 0x20001", "s_add_u32 s9, s9, s4", "s_add_u32 s8, s8, s9", "s_lshl_b32 s9, s9, 7", f"s_cmp_lt_u32 s4, {2 if cfg.get('c2q', 1) else 3}")
    o += col_pre(TB, lane, 3456)
    o.s("s_and_b32 s17, s13, 6")
    common_wait(a, stamps)
    E(st_issue(TB))
    o.s("s_bitcmp1_b32 s13, 0", f"s_cselect_b32 s{S_AUX}, s32, s28", f"s_cselect_b32 s{S_AUX+1}, s33, s29")
    ci = [[Cond(f"s_cmp_lt_u32 s17, {4 if cfg.get('c2q', 1) else 6}", g)] for g in col_issue(TB, S_AUX, 3456)]
    if cfg.get("nocol") == 1: ci = []
    if cfg.get("nocol") == 2:
        ci = [[V("v_mul_u32_u24", TB + 16, "3456", lane)], [Cond(f"s_cmp_lt_u32 s17, {4 if cfg.get('c2q', 1) else 6}", [S("s_mul_i32 s9, s3, %d" % (32 * 3456)), S("s_add_u32 s9, s9, s78"), S("s_mov_b32 exec_hi, 0xff"),
              BLD(TB + 17, 1, TB + 16, S_AUX, "s9"), S("s_mov_b64 exec, -1")])]]
    dq = refill(0)
    paced(E, o, dq, cfg.get("pace0", 8))
    st("i0")
    dq += ci + refill(1)
    o0 = L()
    o0.s("s_mul_i32 s12, s10, 72", "s_add_u32 s12, s12, s13", "s_cmp_ge_u32 s12, 90",
        f"s_cselect_b32 s0, s{P_WO}, s{P_W2}", f"s_cselect_b32 s1, s{P_WO+1}, s{P_W2+1}")
    o0 += rot_table("s19", sK, 64 * 3456, sKx, 2, 10, RB)
    rp_pre = L()
    rp_pre.s("s_mul_i32 s10, s12, 57", "s_lshr_b32 s10, s10, 9", "s_mul_i32 s4, s10, 9", "s_sub_u32 s11, s12, s4",
        "s_sub_u32 s4, s12, 90", "s_lshr_b32 s5, s4, 2", "s_and_b32 s4, s4, 3", "s_cmp_ge_u32 s12, 90",
        "s_cselect_b32 s10, s5, s10", "s_cselect_b32 s11, s4, s11", "s_cselect_b32 s4, 5, 6", "s_cselect_b32 s5, 5, 2", "s_cselect_b32 s6, 54, 0",
        "s_cselect_b32 s7, 2, 18", "s_cselect_b32 s8, 9, 0",
        "s_add_u32 s8, s8, s11", "s_lshl_b32 s8, s8, 2",
        "s_mul_i32 s4, s4, s11", "s_lshr_b32 s9, s3, 2", "s_add_u32 s4, s4, s9",
        "s_mul_i32 s5, s5, s11", "s_add_u32 s5, s5, s6", "s_add_u32 s5, s5, s9",
        "s_lshl_b32 s4, s4, 2", "s_and_b32 s6, s3, 3", "s_add_u32 s4, s4, s6", f"s_mul_i32 s4, s4, {8*1280}", "s_lshl_b32 s9, s10, 7", "s_add_u32 s63, s4, s9",
        "s_add_u32 s8, s8, s9",
        "s_lshl_b32 s4, s10, 2", "s_add_u32 s4, s4, s6", "s_mul_i32 s6, s4, 52", "s_lshr_b32 s6, s6, 8", "s_mul_i32 s6, s6, 365", "s_add_u32 s6, s6, s4",
        "s_mul_i32 s5, s5, 5", "s_add_u32 s6, s6, s5", "s_lshl_b32 s6, s6, 10", f"s_add_u32 s76, s6, {W2F_OFF}",
        f"s_add_u32 s10, s8, {FLG_OFF + 32*128}",
        "s_cmp_lt_u32 s12, 130", f"s_cselect_b32 s76, s76, {0x70000000}", f"s_cselect_b32 s63, s63, {0x70000000}", f"s_cselect_b32 s10, s10, {0x30000000}",
        )
    rp_pre.v("v_lshrrev_b32", T + 4, "3", lane).v("v_mul_u32_u24", T + 4, "1280", T + 4).v("v_and_b32", T + 5, "7", lane).v("v_lshl_add_u32", T + 4, T + 5, "4", T + 4)
    rp_pre.v("v_lshrrev_b32", vP, "4", lane).v("v_lshlrev_b32", vP, "10", vP).v("v_bfe_u32", vTt, lane, "2", "2").v("v_lshl_add_u32", vP, vTt, "7", vP)
    rp_pre.v("v_and_b32", vTt, "3", lane).v("v_lshl_add_u32", vP, vTt, "3", vP)
    rp_pre.s("s_lshr_b32 s4, s3, 2", "s_lshl_b32 s4, s4, 12", "s_and_b32 s5, s3, 3", "s_lshl_b32 s5, s5, 5", "s_add_u32 s4, s4, s5", f"s_add_u32 s4, s4, {8*16384}").v("v_add_u32", vP, "s4", vP)
    o = L()
    o.s("s_and_b32 s4, s3, 3", "s_lshr_b32 s5, s3, 2")
    o.v("v_lshrrev_b32", t0, "5", lane).v("v_lshlrev_b32", t0, "10", t0).v("v_bfe_u32", t1, lane, "2", "2").v("v_lshl_add_u32", t0, t1, "7", t0)
    o.v("v_lshrrev_b32", t1, "1", t1).v("v_xor_b32", t1, "s5", t1).v("v_lshl_add_u32", t0, t1, "6", t0)
    o.v("v_bfe_u32", t1, lane, "4", "1").v("v_lshl_add_u32", t0, t1, "5", t0).v("v_and_b32", t1, "1", lane).v("v_lshl_add_u32", t0, t1, "4", t0)
    o.v("v_bfe_u32", t1, lane, "1", "1").v("v_lshl_add_u32", vWr[0], t1, "3", t0)
    o.v("v_add_u32", vWr[1], "0x10000", vWr[0]).v("v_add_u32", vWr[2], "0x20000", vWr[0])
    o.v("v_and_b32", t0, "31", lane).v("v_lshrrev_b32", t1, "5", lane).v("v_bfe_u32", t2, lane, "1", "3").v("v_xor_b32", t2, t1, t2)
    o.s("s_lshl_b32 s6, s4, 12")
    o.v("v_lshlrev_b32", t3, "7", t0).v("v_add_u32", t3, "s6", t3)
    for s4 in range(4): o.v("v_xor_b32", vXr + s4, str(2 * s4), t2).v("v_lshl_add_u32", vXr + s4, vXr + s4, "4", t3)
    o += rp_pre
    o += p2_setup(vPA, lane, "s4", "s11")
    paced(E, o0 + o, dq, cfg.get("pace", 40))
    st("i1")
    while any(x.kind == "vld" for g in dq for x in g): E(dq.pop(0))
    o = L()
    o += stats_ops(TB, XO)
    dq += refill(cfg.get("pre", 1))
    paced(E, o, dq, cfg.get("pace2", 16))
    E(Block(f"s_cmp_lt_u32 s17, {4 if cfg.get('c2q', 1) else 6}", col_acc_ops(TB, lane, XO)))
    E(L().s(*PERMSEL))
    st("i3")
    D = L()
    D.append(list(L().s("s_and_b32 s4, s3, 3", "s_lshr_b32 s5, s3, 2", f"s_lshl_b32 s6, {sRb}, 2", "s_add_u32 s6, s6, s4", f"s_lshl_b32 {sTok}, s6, 9",
        "s_mul_i32 s6, s6, 74", f"s_lshl_b32 s7, {sCb}, 1", "s_add_u32 s6, s6, s7", "s_add_u32 s6, s6, s5", f"s_lshl_b32 {sSt}, s6, 11")))
    D.v("v_lshrrev_b32", t1, "5", lane).v("v_and_b32", t2, "15", lane).v("v_bfe_u32", t3, lane, "4", "1").v("v_lshl_add_u32", vTokA, t2, "1", t3).v("v_lshlrev_b32", vTokA, "4", vTokA)
    D.v("v_lshlrev_b32", vSt, "10", t3).v("v_lshl_add_u32", vSt, t1, "8", vSt).v("v_lshl_add_u32", vSt, t2, "4", vSt)
    D.v("v_and_b32", vCol, "19", lane).v("v_bfe_u32", t2, lane, "2", "1").v("v_lshl_add_u32", vCol, t2, "3", vCol)
    D.v("v_bfe_u32", t2, lane, "3", "1").v("v_lshl_add_u32", vCol, t2, "2", vCol)
    D.append(list(L().s(f"s_mul_i32 s6, {sCb}, 384", "s_lshr_b32 s5, s3, 2", "s_lshl_b32 s7, s5, 5", "s_add_u32 s6, s6, s7").v("v_add_u32", vCol, "s6", vCol)))
    D.v("v_lshlrev_b32", vCol, "3", vCol).v("v_lshl_add_u32", vCol, t1, "9", vCol)
    D.append(list(L().s(f"s_lshl_b32 {sOwn}, {sRb}, 7", f"s_lshl_b32 s6, {sCb}, 2", f"s_add_u32 {sOwn}, {sOwn}, s6", f"s_add_u32 {sOwn}, {sOwn}, {FLG_OFF}")))
    D.s(f"s_mov_b32 s14, {COL_OFF + 30*1024}", f"s_mov_b32 s15, {COL_OFF + 57*1024}")
    D.v("v_lshlrev_b32", vL16, "4", lane).v("v_or_b32", vF, sL, lane).v("v_min_u32", vF, "1", vF).v("v_lshlrev_b32", vF, "30", vF)
    def colload(dst, mat, chunk):
        return BLD(dst, 1, vCol, 20, "s14" if mat == 0 else "s15", off=chunk * 1024, tag="col", mod=SC1)
    def colchk(dst, mat, chunk):
        E(col_fix(dst))
    M = []
    for t in range(40):
        M.append((A0, t, t // 4, 0, t % 4)); M.append((A1, t, t // 4, 1, t % 4))
    for p, acc in ((1, A2), (2, A0), (3, A1), (4, A0)):
        for t in range(40):
            M.append((acc, t, 10 + 5 * (p - 1) + t // 8, (t // 4) % 2, t % 4))
    PF = 4; NB = 5
    def reads(n):
        acc, t, s, half, sub = M[n]
        pos = items[("W", s)] * 16384 + half * 8192 + sub * 2048
        b = WB + 4 * (n % NB)
        return [DSR(b, 2, vWr[pos >> 16], off=pos & 0xffff, tr=True), DSR(b + 2, 2, vWr[pos >> 16], off=(pos & 0xffff) + 512, tr=True)]
    fill = []
    def silu(G):
        ops = []
        if cfg.get("nosilu"): return ops
        for i in range(0, 16, 4):
            ops += [V("v_mul_f32", T + e, G + i + e, TOK + 2) for e in range(4)]
            ops += [V("v_exp_f32", T + e, T + e) for e in range(4)]
            ops += [V("v_fma_f32", T + e, T + e, TOK + 3, TOK + 3) for e in range(4)]
            ops += [V("v_rcp_f32", T + e, T + e) for e in range(4)]
            ops += [V("v_mul_f32", G + i + e, G + i + e, T + e) for e in range(4)]
        return ops
    def fin(G, U, chunk):
        ops = []
        for ip in range(2):
            ops += [V("v_mul_f32", G + 8 * ip + e, G + 8 * ip + e, U + 8 * ip + e) for e in range(8)]
            ops += [V("v_cvt_pk_bf16_f32", T + 4 + e, G + 8 * ip + 2 * e, G + 8 * ip + 2 * e + 1) for e in range(4)]
            mk = lambda: BST(T + 4, 4, vSt, 20, sSt, off=512 * ip, tag="st", mod=SC1)
            if cfg.get("stag") and chunk < 2: ops += [[Cond("s_cmp_lt_u32 s3, 4", [mk()])], [], [Cond("s_cmp_ge_u32 s3, 4", [mk()])]]
            else: ops.append(mk())
        if chunk < 2: ops.append(S(f"s_add_u32 {sSt}, {sSt}, {18*2048}"))
        return ops
    at_sync = {}
    def sync(s):
        its = [("W", s)] + ([("X", s)] if s < 10 else [])
        ex = at_sync.get(s, {})
        tags = its + ex.get("tags", [])
        while any(getattr(x, "tag", None) in tags for g in dq for x in g): E(dq.pop(0))
        for it in its: assert it in items
        for o_ in fill:
            for x_ in (o_ if isinstance(o_, list) else [o_]): assert getattr(x_, "tag", None) not in tags, (s, x_.text)
        tags.sort(key=lambda it: max([i for i, e in enumerate(a.vm) if e[1] == it] + [-1]))
        lg = None
        if 1 <= s <= 10:
            xr = set(rng(XF + 16 * (s - 1), 16))
            idx = [i for i, e in enumerate(a.lg) if e & xr]
            if idx: lg = len(a.lg) - 1 - max(idx)
        if s == 0: lg = 0
        if "lgw" in ex:
            idx = [i for i, e in enumerate(a.lg) if not e]
            if idx: lg = min(99 if lg is None else lg, len(a.lg) - 1 - max(idx))
        a.wait_tag(tags[-1], lg=lg)
        if not (cfg.get("nobar") and s > 11 and s % 2): a.barrier()
        st(f"s{s}")
        if 1 <= s <= 10: free.append(items[("X", s - 1)])
        if s >= 2: free.append(items[("W", s - 2)])
        free.extend(ex.get("free", []))
        if "post" in ex: ex["post"]()
        dq.extend(refill())
        if s < 10:
            for s4 in range(4):
                E(DSR(XF + 4 * (4 * s + s4), 4, vXr + s4, off=items[("X", s)] * 16384))
    def chk_empty(): assert not fill, len(fill)
    fill += tok_fin_ops(TB, XO)
    fill += [[Block(f"s_cmp_lt_u32 {sColSt}, {HUGE}", col_fin_ops(TB + 16, TB + 6, lane, XO))]] + D
    RS = [8, 9]
    def rp_issue():
        for x in RS: free.remove(x)
        dq.append(list(L().s(f"s_mov_b32 s{S_AUX}, s0", f"s_mov_b32 s{S_AUX+1}, s1", f"s_mov_b32 s{S_AUX+2}, {1728*1280}", f"s_mov_b32 s7, {18*5120}", "s_cmp_ge_u32 s12, 90",
              f"s_cselect_b32 s{S_AUX+2}, {640*1280}, s{S_AUX+2}", f"s_cselect_b32 s7, {2*5120}, s7", "s_add_u32 s0, s76, s7", "s_add_u32 s1, s0, s7")))
        dq.append(list(L().s("s_lshr_b32 s4, s3, 2", "s_mul_i32 s4, s4, s12", "s_cmp_ge_u32 s4, 90", f"s_cselect_b32 s1, {0x70000000}, s1")))
        for z in range(3):
            dq.append([S(f"s_add_u32 m0, {sL}, {RS[0]*16384 + z*8192}"), DMA(T + 4, S_AUX, "s63", tag="rp", mod=DBG.get("rm", " nt")), S(f"s_add_u32 s63, s63, {64*1280}")])
    def rp_rd(z): return [DSR(T + 4, 2, vP, off=z * 8192, tr=True), DSR(T + 6, 2, vP, off=z * 8192 + 512, tr=True)]
    def rp_st(z): return BST(T + 4, 4, vL16, 20, ["s76", "s0", "s1"][z], tag="rps", mod=SC1)
    at_sync[8] = dict(post=rp_issue)
    at_sync[11] = dict(tags=["rp"])
    at_sync[13] = dict(free=RS)
    at_sync[cfg.get("fw", 14)] = dict(tags=["rps"], post=lambda: E(flag_st(vTt, vF, LV_W2, "s10")))
    at_sync[17] = dict(tags=["st"], post=lambda: E(flag_st(vTt, vF, LV_A)))
    at_sync[cfg.get("fb", 24)] = dict(tags=["st"], post=lambda: E(flag_st(vTt, vF, LV_B)))
    sync(0)
    for n in range(PF): E(reads(n))
    def w2chk():
        flg_check(a, vP, vPA, LV_W2); p2["go"] = True
    def achk():
        flg_check(a, vP, vPA, LV_A)
    P1 = cfg.get("p1", 44); WC = cfg.get("wc", 168); AC = cfg.get("ac", 198)
    tokld = BLD(TOK, 4, vTokA, 36, sTok, tag="tok", mod=SC1)
    after = {}
    def at(n, f): after.setdefault(n, []).append(f)
    import copy
    def tagsite(tiles, nl, nc):
        lds_ = [BLD(T + i, 1, vCol, 20, "s14" if m_ == 0 else "s15", off=c_ * 1024 + 4, mod=SC1) for i, (m_, c_) in enumerate(tiles)]
        at(nl, lambda: E([V("v_mov_b32", T + i, sTag) for i in range(len(tiles))] + [S("s_and_b32 s4, s3, 3"), Cond("s_cmp_eq_u32 s4, 0", [copy.copy(x) for x in lds_])]))
        at(nc, lambda: check(a, lds_, tag_cmp([T + i for i in range(len(tiles))], vTt)))
    tagsite([(0, 0), (1, 0), (0, 1), (1, 1)], P1, 59)
    tagsite([(0, 2), (1, 2)], 164, 179)
    at(57, lambda: E(tokld)); at(62, lambda: E(colload(AP[0], 0, 0))); at(65, lambda: E(colload(AP[1], 1, 0)))
    at(79, lambda: (check(a, tokld, tag_cmp([TOK + 1], vTt)), E(col_fix(AP[0])), E(col_fix(AP[1])),
                    E(V("v_mov_b32", TOK + 1, TOK)), E(V("v_mul_f32", TOK + 2, NLOG2E, TOK + 2))))
    at(82, lambda: (E(MFMA32C(A0, AP[0], TOK)), E(MFMA32C(A1, AP[1], TOK)),
                    fill.extend([[], []] + silu(A0) + fin(A0, A1, 0))))
    for z in range(3):
        if cfg.get("stag"):
            at(85 + 5 * z, lambda z=z: E(rp_rd(z))); at(87 + 5 * z, lambda z=z: E(Cond("s_cmp_lt_u32 s3, 4", [rp_st(z)]))); at(89 + 5 * z, lambda z=z: E(Cond("s_cmp_ge_u32 s3, 4", [rp_st(z)])))
        else:
            at(86 + 4 * z, lambda z=z: E(rp_rd(z))); at(89 + 4 * z, lambda z=z: E(rp_st(z)))
    at(101, lambda: E(colload(AP[0], 0, 1))); at(105, lambda: E(colload(AP[1], 1, 1)))
    at(119, lambda: colchk(AP[0], 0, 1))
    at(122, lambda: (E(MFMA32C(A2, AP[0], TOK)), fill.extend([[], []] + silu(A2))))
    at(159, lambda: colchk(AP[1], 1, 1))
    at(182, lambda: E(colload(AP[0], 0, 2))); at(186, lambda: E(colload(AP[1], 1, 2)))
    at(162, lambda: (E(MFMA32C(A0, AP[1], TOK)), fill.extend([[], []] + fin(A2, A0, 1))))
    at(WC - cfg.get("pl", 14), lambda: E(flg_poll(vP, vPA, LV_W2))); at(WC, w2chk)
    if PFX:
        for p in range(1, 4): at(WC + 1 + cfg.get("pfs", 6) * (p - 1), lambda p=p: E(pf_w2(p, vTt, T + p, lane)))
    at(199, lambda: colchk(AP[0], 0, 2))
    at(202, lambda: (E(MFMA32C(A1, AP[0], TOK)), fill.extend([[], []] + silu(A1))))
    at(AC - cfg.get("pl", 14), lambda: E(flg_poll(vP, vPA, LV_A))); at(AC, achk)
    at(220, lambda: colchk(AP[1], 1, 2))
    PARK = cfg.get("park", 177)
    if PARK:
        for i in range(4):
            at(PARK + 6 * i, lambda i=i: (chk_empty(), E([S(f"s_add_u32 s9, {sP2W}, {3*8*5120 + (i+1)*1024}"), BLD(A2 + 4 * i, 4, vL16, 20, "s9", mod=SC1)])))
    at(236, lambda: E(flg_poll(3, vPA, LV_B)))
    for n in range(240):
        acc, t, s, half, sub = M[n]
        if n in (P1, 80, 120, 160, 200): chk_empty()
        E(MFMA32(acc, WB + 4 * (n % NB), XF + 4 * t, c="0" if t == 0 else None))
        m = n + PF
        if m < 240:
            if m % 8 == 0: sync(m // 8)
            E(reads(m))
        for f in after.get(n, []): f()
        b = cfg.get("b1", 4.5) if (80 <= n < 120) else cfg.get("b2", 3.5) if 120 <= n < 200 else cfg.get("b", 3.5)
        ph = m % 8
        okd = ph in cfg.get("ph0", [1, 2, 3, 4, 5, 6]) if n < 80 else ph in ((cfg.get("ph2", [2, 4, 6]) if n >= cfg.get("cu", 80) else cfg.get("ph3", [3, 5])) if len(dq) > 2 else cfg.get("ph1", [3, 5]))
        if dq and (okd or not any(x.kind == "dma" for x in dq[0])):
            g_ = dq.pop(0)
            if cfg.get("nodma") and n >= 80: g_ = [x for x in g_ if x.kind != "dma"]
            E(g_); b -= 1
        elif n >= cfg.get("ago", 202) and ph in (1, 7) and p2["act"] < 9:
            assert p2["act"] <= t
            E(p2_act(p2["act"], vL16)); p2["act"] += 1; b -= 1
        while fill and b > 0:
            o_ = fill.pop(0); E(o_); b -= cost(o_)
    assert not fill and not dq
    st("p1e")
    E(MFMA32C(A0, AP[1], TOK))
    E(V("v_mov_b32", 2, vPA)); E(V("v_mov_b32", 4, vF))
    E(fin(A1, A0, 2))
    phase2(a, st, cfg, vL16, lane, 2, 3, p2["pieces"], p2["act"], cfg.get("rate", 2.1), flag_st(5, 4, LV_C), epoch=True,
           parked=[(16 + i, A2 + 4 * i) for i in range(4)] if PARK else [])
    st.finish(1, name, cfg.get("stw", 0))
    a.raw("s_endpgm")

def gen_qkv(a, name, stamps, cfg):
    E = a.emit; st = Stamp(a, stamps, cfg.get("sel"))
    PFX = cfg.get("pf", False)
    sK, sKx = 40, 50
    vL16, lane = 0, 1
    ACC = 176; FR = [128, 152]; TB = 80
    vPA, vP, vF = 2, 3, 4
    vDW, vDX = 5, 6
    vWr, vXr = 9, 12
    TOK = 24; AP = 44; vQW = 46; T = 50
    vTt, vColA, vTokA = 57, 58, 87
    BC, BP, MC, MP, ONE, MG0 = 60, 64, 68, 70, 72, 76
    vQ, vQ2, vV, vV2, vOW, vOW2, vOR = 77, 78, 79, 80, 81, 82, 83
    n_, g_ = 85, 86
    vOG = 92
    t0, t1, t2, t3, t4 = T, T + 1, T + 2, T + 3, T + 4
    sHg, sB, sT0 = "s13", "s14", "s15"
    SLOT = 53248; WOFF = 20480; DUMMY = 3 * SLOT; XOFF = DUMMY + 1024
    sM3 = ["s68", "s69", "s70"]
    RB = cfg.get("rblkq", 5)
    E(st_pre(TB, lane, TOK))
    o = L()
    o.s("s_sub_u32 s12, s12, 18", f"s_mov_b32 s30, {640*3840}",
        "s_cmp_ge_u32 s12, 7", f"s_cselect_b32 {sHg}, 1, 0", f"s_cselect_b32 {sB}, 7, 0", f"s_sub_u32 {sB}, s12, {sB}",
        f"s_mul_i32 s4, {sHg}, {cfg.get('rmulq', 2)}", f"s_add_u32 s4, s4, {sB}")
    o += mod_ops("s4", "s19", RB)
    o.s("s_lshl_b32 s4, s11, 1", f"s_add_u32 {sHg}, {sHg}, s4", "s_mul_i32 s4, s10, 7", f"s_add_u32 {sB}, {sB}, s4")
    o += rot_table("s19", sK, 64 * 3840, sKx, 0, 1, RB)
    o.s("s_and_b32 s4, s3, 3", "s_lshr_b32 s5, s3, 2", "s_lshl_b32 s6, s4, 3")
    o.v("v_lshrrev_b32", t0, "3", lane).v("v_and_b32", t1, "7", lane).v("v_add_u32", t2, "s6", t0)
    o.v("v_bfe_u32", t3, t2, "1", "3").v("v_xor_b32", t3, t1, t3)
    o.v("v_and_b32", vDX, "15", t2).v("v_lshrrev_b32", t2, "4", t2).v("v_lshl_add_u32", vDX, vDX, "1", t2)
    o.s(f"s_mul_i32 {sT0}, {sB}, 146", "s_lshl_b32 s9, s5, 5", f"s_add_u32 s6, {sT0}, s9")
    o.v("v_add_u32", vDX, "s6", vDX).v("v_mul_u32_u24", vDX, "1280", vDX).v("v_lshl_add_u32", vDX, t3, "4", vDX).v("v_add_u32", vDX + 1, str(64 * 1280), vDX)
    o.v("v_add_u32", vDX + 2, str(128 * 1280), vDX)
    E(o)
    def dma_stage(s):
        z = s % 3; base = z * SLOT
        ops = [[S(f"s_add_u32 m0, {sL}, {base}"), DMA(vDX, 24, f"s{sKx+s}", tag=s)],
               [S(f"s_add_u32 m0, {sL}, {base+8192}"), DMA(vDX + 1, 24, f"s{sKx+s}", tag=s)],
               [Cond("s_cmp_lt_u32 s3, 4", [S(f"s_add_u32 m0, {sL}, {base+16384}"), DMA(vDX + 2, 24, f"s{sKx+s}", tag=s)])]]
        for e in range(4):
            g = [S(f"s_add_u32 m0, {sL}, {base+WOFF+e*8192}")]
            if e == 0: g.append(DMA(vDW, 28, f"s{sK+s}", tag=s, mod=DBG.get("wm", "")))
            else: g += [S(f"s_add_u32 s63, s{sK+s}, {e*16*3840}"), DMA(vDW, 28, "s63", tag=s, mod=DBG.get("wm", ""))]
            ops.append(g)
        return ops
    o = L()
    o.s("s_lshl_b32 s6, s3, 1")
    o.v("v_lshrrev_b32", t0, "5", lane).v("v_add_u32", t0, "s6", t0)
    o.v("v_and_b32", t1, "3", t0).v("v_lshlrev_b32", t1, "2", t1).v("v_and_b32", t2, "31", lane).v("v_xor_b32", t1, t1, t2)
    o.v("v_mul_u32_u24", t2, "26", t1).v("v_lshrrev_b32", t2, "8", t2)
    o.v("v_mul_u32_u24", t3, str(1280 - 160), t2).v("v_lshl_add_u32", t3, t1, "4", t3)
    o.v("v_add_u32", t1, "2", t1).v("v_lshrrev_b32", t1, "5", t1).v("v_lshl_add_u32", t3, t1, "30", t3)
    o.v("v_mul_u32_u24", vDW, "3840", t0).v("v_add_u32", vDW, vDW, t3)
    o.s(f"s_mul_i32 s6, {sHg}, 160").v("v_add_u32", vDW, "s6", vDW)
    E(o)
    common_wait(a, stamps)
    E(S(f"s_mov_b32 s{S_AUX}, s28")); E(S(f"s_mov_b32 s{S_AUX+1}, s29"))
    E(S(f"s_mov_b32 s28, s{P_QKV}")); E(S(f"s_mov_b32 s29, s{P_QKV+1}"))
    E(st_issue(TB, TOK))
    dq = dma_stage(0)
    paced(E, rot_table("s19", sK, 64 * 3840, sKx, 1, 10, RB), dq, cfg.get("paceq0", 12))
    st("i0")
    o = L()
    o.v("v_lshrrev_b32", t0, "5", lane).v("v_lshlrev_b32", t0, "12", t0).v("v_bfe_u32", t1, lane, "2", "2").v("v_lshl_add_u32", t0, t1, "9", t0)
    o.v("v_xor_b32", t1, "s3", t1).v("v_lshl_add_u32", t0, t1, "6", t0)
    o.v("v_bfe_u32", t1, lane, "4", "1").v("v_lshl_add_u32", t0, t1, "5", t0).v("v_and_b32", t1, "3", lane).v("v_lshl_add_u32", t0, t1, "3", t0)
    for z in range(3): o.v("v_add_u32", vWr + z, str(z * SLOT + WOFF), t0)
    o.v("v_and_b32", t0, "31", lane).v("v_lshrrev_b32", t1, "5", lane).v("v_bfe_u32", t2, lane, "1", "3").v("v_xor_b32", t2, t1, t2).v("v_lshlrev_b32", t3, "7", t0)
    for s4 in range(4):
        o.v("v_xor_b32", t4, str(2 * s4), t2).v("v_lshl_add_u32", vXr + s4, t4, "4", t3)
        for z in (1, 2): o.v("v_add_u32", vXr + 4 * z + s4, str(z * SLOT), vXr + s4)
    o.s("s_mul_i32 s4, s11, 15", "s_add_u32 s4, s4, 1", "s_lshr_b32 s4, s4, 1", "s_add_u32 s4, s4, s12",
        "s_mul_i32 s6, s4, 86", "s_lshr_b32 s6, s6, 8", "s_mul_i32 s7, s6, 3", "s_sub_u32 s4, s4, s7", "s_mul_i32 s8, s4, 10", "s_add_u32 s8, s8, s6",
        "s_lshl_b32 s9, s8, 7")
    if cfg.get("c2q", 1):
        o.s("s_mul_i32 s4, s11, 9", "s_add_u32 s4, s4, 1", "s_lshr_b32 s4, s4, 1", "s_add_u32 s4, s4, s12", "s_sub_u32 s4, s4, 9",
            "s_lshr_b32 s5, s4, 1", "s_mul_i32 s5, s5, 3", "s_add_u32 s5, s5, 2",
            "s_bitcmp1_b32 s4, 0", "s_cselect_b32 s6, 57, 30", f"s_cselect_b32 s{S_AUX}, s32, s{S_AUX}", f"s_cselect_b32 s{S_AUX+1}, s33, s{S_AUX+1}",
            "s_add_u32 s6, s6, s5", "s_lshl_b32 s5, s5, 7", "s_movk_i32 s76, 3456",
            "s_cmp_lt_u32 s12, 9", "s_cselect_b32 s8, s8, s6", "s_cselect_b32 s9, s9, s5", "s_cselect_b32 s76, 3840, s76", "s_cselect_b32 s7, 8, 14",
            f"s_cselect_b32 s{S_AUX}, s28, s{S_AUX}", f"s_cselect_b32 s{S_AUX+1}, s29, s{S_AUX+1}",
            f"s_mul_i32 s{S_AUX+2}, s76, 640", f"s_mov_b32 s{S_AUX+3}, 0x20000", "s_lshl_b32 s0, s76, 6",
            "s_and_b32 s4, s11, 1", "s_add_u32 s4, s4, s12", "s_cmp_lt_u32 s4, s7")
        o += col_pre(TB, lane, "s76")
    else:
        o.s("s_and_b32 s4, s11, 1", "s_add_u32 s4, s4, s12", "s_cmp_lt_u32 s4, 8")
        o += col_pre(TB, lane, 3840)
    o_pre = o
    QB = 81920
    D = L()
    D += p2_setup(vPA, lane)
    D.s(f"s_lshl_b32 {sOwn}, {sB}, 5", f"s_add_u32 {sOwn}, {sOwn}, {sHg}", f"s_lshl_b32 {sOwn}, {sOwn}, 2", f"s_add_u32 {sOwn}, {sOwn}, {FLG_OFF + 16*128}",
        f"s_mov_b32 s12, {COL_OFF}")
    D.v("v_lshlrev_b32", vL16, "4", lane).v("v_or_b32", vF, sL, lane).v("v_min_u32", vF, "1", vF).v("v_lshlrev_b32", vF, "30", vF)
    D.v("v_and_b32", t0, "31", lane).v("v_lshrrev_b32", t1, "5", lane)
    D.v("v_and_b32", t2, "15", lane).v("v_bfe_u32", t3, lane, "4", "1").v("v_lshl_add_u32", t4, t2, "1", t3).v("v_add_u32", t4, sT0, t4)
    for rg in range(5):
        D.v("v_add_u32", vTokA + rg, str(32 * rg), t4).v("v_min_u32", vTokA + rg, "2047", vTokA + rg).v("v_lshlrev_b32", vTokA + rg, "4", vTokA + rg)
    D.s("s_lshl_b32 s6, s3, 5").v("v_add_u32", t0, "s6", t0).v("v_min_u32", t0, "239", t0)
    D.v("v_mul_u32_u24", t4, "205", t0).v("v_lshrrev_b32", t4, "14", t4).v("v_mul_u32_u24", t4, "560", t4).v("v_add_u32", t4, t4, t0)
    D.s(f"s_mul_i32 s6, {sHg}, 80").v("v_add_u32", t4, "s6", t4)
    D.v("v_lshrrev_b32", vColA, "6", t4).v("v_lshlrev_b32", vColA, "10", vColA).v("v_and_b32", t4, "63", t4)
    D.v("v_lshl_add_u32", vColA, t4, "3", vColA).v("v_lshl_add_u32", vColA, t1, "9", vColA)
    D.v("v_mul_u32_u24", T + 5, "3200", t3).v("v_mul_u32_u24", T + 6, "40", t2).v("v_add_u32", T + 5, T + 5, T + 6).v("v_add_u32", T + 5, str(QB), T + 5)
    D.s("s_lshl_b32 s6, s3, 3")
    for i in range(4):
        D.v("v_add_u32", t0, "s6", t1)
        if i: D.v("v_add_u32", t0, str(2 * i), t0)
        D.v("v_mul_u32_u24", t4, "52", t0).v("v_lshrrev_b32", t4, "8", t4)
        D.v("v_mul_u32_u24", T + 6, str(6400 - 40), t4).v("v_lshl_add_u32", T + 6, t0, "3", T + 6).v("v_add_u32", vQW + i, T + 6, T + 5)
    D.v("v_and_b32", n_, "15", lane).v("v_lshrrev_b32", g_, "4", lane).v("v_lshlrev_b32", t0, "2", g_).v("v_sub_u32", t0, n_, t0)
    D.v("v_mov_b32", t4, "0xf149f2ca").v("v_mov_b32", T + 5, "0xffff").v("v_mov_b32", T + 6, "0xffff0000")
    for r in range(4):
        for (BB, MM, add) in ((BC, MC, 0), (BP, MP, 16)):
            D.v("v_add_u32", t1, str(add - r), t0)
            D.append(VCMP("v_cmp_gt_u32", "s[4:5]", "8", t1))
            D.v("v_cndmask_b32", BB + r, t4, "0", "s[4:5]")
            if r % 2 == 0: D.v("v_cndmask_b32", MM + r // 2, "0", T + 5, "s[4:5]")
            else: D.v("v_cndmask_b32", t3, "0", T + 6, "s[4:5]").v("v_or_b32", MM + r // 2, MM + r // 2, t3)
    for r in range(4): D.v("v_mov_b32", ONE + r, "0x3f803f80")
    D.append(VCMP("v_cmp_eq_u32", "s[4:5]", "0", g_))
    D.v("v_cndmask_b32", MG0, "0", "-1", "s[4:5]")
    D.s("s_mul_i32 s6, s3, 3200", f"s_add_u32 s6, s6, {QB}")
    D.v("v_mul_u32_u24", t0, "40", n_).v("v_add_u32", t0, "s6", t0).v("v_lshl_add_u32", vQ, g_, "3", t0).v("v_add_u32", vQ2, "32", t0)
    D.v("v_lshrrev_b32", t0, "2", lane).v("v_mul_u32_u24", t0, "40", t0).v("v_add_u32", t0, "s6", t0).v("v_add_u32", t0, str(51200), t0)
    D.v("v_and_b32", t1, "3", lane).v("v_lshl_add_u32", vV, t1, "3", t0).v("v_add_u32", vV2, "32", t0)
    OB = QB
    D.s(f"s_mul_i32 s7, {sB}, 73", "s_and_b32 s6, s7, 7", "s_lshl_b32 s6, s6, 4", "s_bitcmp1_b32 s3, 0")
    D[-1:] = [[D[-1], S(f"s_cselect_b32 s8, {OB + 1408}, {0}"), S(f"s_max_u32 s8, s8, {OB}"), S("s_add_u32 s6, s6, s8")]]
    D.v("v_lshl_add_u32", t1, n_, "4", "s6")
    D.s("s_lshr_b32 s6, s3, 1", "s_mul_i32 s6, s6, 5")
    for (dst, second) in ((vOW, False), (vOW2, True)):
        if second: D.s("s_add_u32 s6, s6, 4").v("v_mov_b32", t0, "s6")
        else: D.v("v_add_u32", t0, "s6", g_)
        D.v("v_lshrrev_b32", t2, "1", t0).v("v_mul_u32_u24", t2, "2816", t2).v("v_add_u32", dst, t2, t1)
        D.v("v_and_b32", t2, "1", t0).v("v_lshl_add_u32", dst, t2, "3", dst)
    D.v("v_mov_b32", T + 5, str(DUMMY)).v("v_cndmask_b32", vOW2, T + 5, vOW2, "s[4:5]")
    D.v("v_lshrrev_b32", t0, "4", sL) if False else None
    D.v("v_lshl_add_u32", vOR, lane, "4", sL).v("v_add_u32", vOR, str(OB), vOR)
    D.append([S(f"s_mul_i32 s7, {sB}, 73"), S("s_add_u32 s8, s7, 7"), S(f"s_cmp_eq_u32 {sB}, 0"), S("s_cselect_b32 s8, 0, s8"),
              S("s_add_u32 s35, s7, 80"), S("s_sub_u32 s34, s35, s8"), S("s_mov_b32 s33, s8"), S("s_and_b32 s32, s7, -8"),
              S(f"s_mul_i32 s1, {sHg}, 10")])
    D.v("v_mov_b32", T + 5, HUGE)
    for i in range(4):
        D.append([S("s_lshl_b32 s6, s3, 6"), S(f"s_add_u32 s6, s6, {512*i}"), V("v_add_u32", t0, "s6", lane)])
        D.v("v_mul_u32_u24", t1, "745", t0).v("v_lshrrev_b32", t1, "16", t1)
        D.v("v_mul_u32_u24", t2, "88", t1).v("v_sub_u32", t0, t0, t2).v("v_add_u32", t0, "s32", t0)
        D.v("v_lshrrev_b32", t2, "4", t0).v("v_mul_u32_u24", vOG + i, str(74 * 2048), t2)
        D.v("v_and_b32", t2, "15", t0).v("v_lshl_add_u32", vOG + i, t2, "4", vOG + i)
        D.v("v_and_b32", t2, "1", t1).v("v_lshl_add_u32", vOG + i, t2, "10", vOG + i)
        D.v("v_lshrrev_b32", t2, "1", t1).v("v_add_u32", t2, "s1", t2)
        D.v("v_lshrrev_b32", t3, "2", t2).v("v_lshl_add_u32", vOG + i, t3, "11", vOG + i)
        D.v("v_and_b32", t2, "3", t2).v("v_lshl_add_u32", vOG + i, t2, "8", vOG + i)
        D.v("v_subrev_u32", t0, "s33", t0)
        D.append(VCMP("v_cmp_gt_u32", "s[4:5]", "s34", t0))
        D.v("v_cndmask_b32", vOG + i, T + 5, vOG + i, "s[4:5]")
        if i == 3:
            D.append(VCMP("v_cmp_gt_u32", "s[4:5]", "20", t1))
            D.v("v_cndmask_b32", vOG + i, T + 5, vOG + i, "s[4:5]")
    dq += dma_stage(1)
    paced(E, o_pre + D + [S(x) for x in PERMSEL], dq, cfg.get("paceq", 36))
    st("i1")
    paced(E, stats_ops(TOK, XOFF), dq, 16)
    dq += dma_stage(2)
    st("i3")
    def reads(t):
        s, sub = t // 4, t % 4; z = s % 3; f = FR[t % 2]
        ops = [DSR(f, 2, vWr + z, off=sub * 8192, tr=True), DSR(f + 2, 2, vWr + z, off=sub * 8192 + 2048, tr=True)]
        for rg in range(5): ops.append(DSR(f + 4 + 4 * rg, 4, vXr + 4 * z + sub, off=rg * 4096))
        return ops
    tabld = [BLD(TOK + 4 * rg, 4, vTokA + rg, 36, "0", tag="tok", mod=SC1) for rg in range(5)] + [BLD(AP, 2, vColA, 20, "s12", tag="col", mod=SC1)]
    while any(x.tag == 0 for g in dq for x in g): E(dq.pop(0))
    if cfg.get("prio"): E(Cond("s_cmp_ge_u32 s3, 4", [S("s_setprio 1")]))
    a.wait_tag(0, lg=0); a.barrier()
    st("s0")
    E(reads(0))
    fill = tok_fin_ops(TB, XOFF, TOK)
    for t in range(40):
        f = FR[t % 2]
        nxt = []
        if t + 1 < 40:
            if (t + 1) % 4 == 0:
                s = (t + 1) // 4
                while any(x.tag == s for g in dq for x in g): E(dq.pop(0))
                a.wait_tag(s, lg=0); a.barrier()
                st(f"s{s}")
                if s + 2 < 10: dq += dma_stage(s + 2)
                CQ = cfg.get("cq", 1)
                if s in (CQ, CQ + 1):
                    cl_ = [[Cond(f"s_cmp_lt_u32 s78, {HUGE}", g)] for g in (col_issue(TB, S_AUX, "s0") if cfg.get("c2q", 1) else col_issue(TB, 28, 3840))]
                    dq += cl_[:3] if s == CQ else cl_[3:]
                if s == CQ + 2: fill = [[]] * cfg.get("cqd", 6) + col_acc_ops(TB, lane, XOFF, dot=False)
                if s == CQ + cfg.get("cqf", 4):
                    assert not fill; fill = [[Block(f"s_cmp_lt_u32 {sColSt}, {HUGE}", col_fin_ops(TB + 16, vTt, lane, XOFF))]]
                if s == 9:
                    assert not fill
                    dq += [[x] for x in tabld]
                    if cfg.get("qpark", 10): dq.append(flg_poll(vP, vPA, LV_W2))
            nxt = reads(t + 1)
        if t == 39:
            check(a, tabld, tag_cmp([TOK + 4 * rg + 1 for rg in range(5)] + [AP + 1], vTt))
            fill = col_fix(AP) + [V("v_mov_b32", TOK + 4 * rg + 1, TOK + 4 * rg) for rg in range(5)]
        for rg in range(5):
            E(MFMA32(ACC + 16 * rg, f, f + 4 + 4 * rg, c="0" if t == 0 else None))
            for k in range(2):
                if nxt: E(nxt.pop(0))
            b = cfg.get("bq", 3.5)
            if (rg >= 3 or (rg >= 1 and len(dq) > 4)) and dq: E(dq.pop(0)); b -= 1
            while fill and b > 0:
                o_ = fill.pop(0); E(o_); b -= cost(o_)
    assert not fill and not dq
    st("ge")
    for rg in range(5): E(MFMA32C(ACC + 16 * rg, AP, TOK + 4 * rg))
    QP = cfg.get("qpark", 10)
    early = []
    if QP:
        flg_check(a, vP, vPA, LV_W2)
        early = p2_w_item(1, vL16)[2:] + [[S(f"s_add_u32 s9, {sP2W}, {(k//5)*8*5120 + (k%5)*1024}"), BLD(132 + 4 * (k - 10), 4, vL16, 20, "s9", mod=SC1)] for k in range(10, 10 + QP)]
    for rg in range(5):
        A = ACC + 16 * rg
        if rg == 2 and not QP: E(flg_poll(vP, vPA, LV_W2))
        for i in range(4):
            if early and i != 3: E(early.pop(0))
            for e in range(4): E(V("v_mul_f32", A + 4 * i + e, A + 4 * i + e, TOK + 4 * rg + 2))
            E(V("v_cvt_pk_bf16_f32", A + 4 * i, A + 4 * i, A + 4 * i + 1)); E(V("v_cvt_pk_bf16_f32", A + 4 * i + 1, A + 4 * i + 2, A + 4 * i + 3))
            E(DSW(vQW + i, A + 4 * i, 2, off=rg * 640))
    E(flg_poll(vTt, vPA, LV_A))
    a.wait(lg=0); a.barrier()
    st("at")
    Qr = [176 + 4 * j for j in range(5)]; Kr = [196 + 4 * j for j in range(5)]
    V0, V1 = 24, 36
    for j in range(5):
        E(DSR(Qr[j], 2, vQ, off=j * 640)); E(DSR(Qr[j] + 2, 2, vQ2, off=j * 640))
        E(DSR(Kr[j], 2, vQ, off=25600 + j * 640)); E(DSR(Kr[j] + 2, 2, vQ2, off=25600 + j * 640))
    for j in range(5):
        E(DSR(V0 + 2 * (j + 1), 2, vV, off=j * 640, tr=True)); E(DSR(V1 + 2 * (j + 1), 2, vV2, off=j * 640, tr=True))
    for r in (V0, V0 + 1, V1, V1 + 1): E(V("v_mov_b32", r, "0"))
    SC = [216 + 4 * j for j in range(5)]; SP = [236 + 4 * j for j in range(5)]
    for j in range(5):
        E(V("v_and_b32", Qr[j] + 2, Qr[j] + 2, MG0)); E(V("v_and_b32", Qr[j] + 3, Qr[j] + 3, MG0))
    for j in range(5):
        E(MFMA16C(SC[j], Kr[j], Qr[j], BC))
        if j > 0: E(MFMA16C(SP[j], Kr[j - 1], Qr[j], BP))
    MX = [5 + j for j in range(5)]; TT = [10 + j for j in range(5)]
    a.barrier()
    assert not early
    st("a1")
    if not QP: flg_check(a, vP, vPA, LV_W2)
    flg_check(a, vTt, vPA, LV_A)
    if PFX:
        for p in range(1, 4): E(pf_w2(p, vTt, 140 + p, lane))
    pre = merge(p2_w_item(0, vL16) + p2_w_item(1, vL16)[:2 if QP else 5], [p2_act(x, vL16) for x in range(0, 9)])
    st("a2")
    if cfg.get("nopre"): post = pre; pre = []
    def pp(k=1):
        for _ in range(k):
            if pre: E(pre.pop(0))
    for j in range(5):
        if j > 0:
            for r in range(4): E(V("v_max_f32", SC[j] + r, SC[j] + r, SP[j] + r))
        E(V("v_max3_f32", MX[j], SC[j], SC[j] + 1, SC[j] + 2)); E(V("v_max_f32", MX[j], MX[j], SC[j] + 3))
        if j % 2: pp()
    for lvl in (16, 32):
        for j in range(5): E(V("v_mov_b32", TT[j], MX[j]))
        for j in range(5): E(SWAP(lvl, MX[j], TT[j]))
        for j in range(5): E(V("v_max_f32", MX[j], MX[j], TT[j]))
        pp()
    st("a3")
    E(S(f"s_mov_b32 s7, {CSC}"))
    for j in range(5): E(V("v_mul_f32", MX[j], NCSC, MX[j]))
    PB = [236 + 4 * j for j in range(5)]
    for j in range(5):
        for r in range(4): E(V("v_fma_f32", SC[j] + r, SC[j] + r, "s7", MX[j]))
        for r in range(4): E(V("v_exp_f32", SC[j] + r, SC[j] + r))
        pp()
    for j in range(5):
        E(V("v_cvt_pk_bf16_f32", SC[j], SC[j], SC[j] + 1)); E(V("v_cvt_pk_bf16_f32", SC[j] + 1, SC[j] + 2, SC[j] + 3))
        for h in range(2):
            E(V("v_and_b32", PB[j] + h, SC[j] + h, MP + h)); E(V("v_and_b32", PB[j] + 2 + h, SC[j] + h, MC + h))
        if j % 2: pp()
    st("a4")
    O0 = Qr; O1 = Kr; DN = SC
    for j in range(5):
        E(MFMA16(DN[j], ONE, PB[j], c="0")); E(MFMA16(O0[j], V0 + 2 * j, PB[j], c="0")); E(MFMA16(O1[j], V1 + 2 * j, PB[j], c="0"))
    srd(a, 28, "s20", "s21", ACT_SIZE)
    for j in range(5): E(V("v_rcp_f32", DN[j], DN[j]))
    for j in range(5):
        for O in (O0[j], O1[j]):
            for r in range(4): E(V("v_mul_f32", O + r, O + r, DN[j]))
            E(V("v_cvt_pk_bf16_f32", O, O, O + 1)); E(V("v_cvt_pk_bf16_f32", O + 1, O + 2, O + 3))
        E(DSW(vOW, O0[j], 2, off=j * 256)); E(DSW(vOW2, O1[j], 2, off=j * 256))
        pp()
    st("a5")
    a.wait(lg=0); a.barrier()
    st("a6")
    for i in range(4): E(DSR(216 + 4 * i, 4, vOR, off=i * 8192))
    E(S(f"s_mov_b32 s6, {54*2048}"))
    for i in range(4): E(BST(216 + 4 * i, 4, vOG + i, 28, "s6", tag="st", mod=SC1))
    st("p1e")
    if cfg.get("nopre"): pre = post
    pp(20)
    E(flg_poll(vP, vPA, LV_B))
    phase2(a, st, cfg, vL16, lane, vPA, vP, 10, 9, cfg.get("rateq", 2.1), flag_st(5, vF, LV_C), parked=[(10 + i, 132 + 4 * i) for i in range(QP)])
    st.finish(2, name, cfg.get("stw", 0))
    a.raw("s_endpgm")

def gen_fused(name, stamps=False, cfg={}):
    DBG.update(cfg)
    a = Asm(); E = a.emit
    a.out.append(f".globl {name}\n.p2align 8\n.type {name},@function\n{name}:")
    E(S("s_cmp_ge_u32 s2, 256")); a.raw(f"s_cbranch_scc1 L_{name}_end")
    if stamps:
        a.raw("s_memrealtime s[76:77]"); a.raw("s_memtime s[80:81]")
    a.raw("s_load_dwordx2 s[24:25], s[0:1], 0")
    a.raw(f"s_load_dwordx4 s[{P_QKV}:{P_QKV+3}], s[0:1], 8")
    a.raw("s_load_dwordx2 s[28:29], s[0:1], 32"); a.raw("s_load_dwordx2 s[32:33], s[0:1], 40")
    a.raw(f"s_load_dwordx2 s[{P_W2}:{P_W2+1}], s[0:1], 48")
    a.raw(f"s_load_dwordx2 s[{S_OUT}:{S_OUT+1}], s[0:1], 56")
    a.raw("s_load_dwordx2 s[20:21], s[0:1], 72")
    E(V("v_lshrrev_b32", 2, "6", 0)); E(V("v_and_b32", 1, "63", 0))
    E(RFL("s3", 2))
    for (b, size) in ((20, WS_USED), (24, XBYTES), (S_OUT, XBYTES), (36, 2048 * 16), (28, 640 * 3456), (32, 640 * 3456)):
        E(S(f"s_mov_b32 s{b+2}, {size}")); E(S(f"s_mov_b32 s{b+3}, 0x20000"))
    E(S("s_and_b32 s11, s2, 3")); E(S("s_bfe_u32 s10, s2, 0x10002")); E(S("s_lshr_b32 s12, s2, 3"))
    E(S(f"s_lshl_b32 {sL}, s3, 10")); E(S(f"s_mov_b32 {sSpin}, 0"))
    E(S("s_cmp_lt_u32 s12, 18")); a.raw(f"s_cbranch_scc1 L_{name}_ffn")
    gen_qkv(a, name, stamps, cfg)
    a.label(f"L_{name}_ffn"); a.reset()
    gen_ffn(a, name, stamps, cfg)
    a.label(f"L_{name}_end"); a.raw("s_endpgm")
    return a.text(), kdesc(name, 256, 256, 102), 163840
```
